```python
import torch

def _softmax(x, axis=-1):
    return torch.softmax(x, dim=axis)
def _gelu(x):
    return torch.nn.functional.gelu(x, approximate="tanh")
def _silu(x):
    return torch.nn.functional.silu(x)
def _sigmoid(x):
    return torch.sigmoid(x)
def _layernorm(x, axis=-1, eps=1e-5):
    m = x.mean(dim=axis, keepdim=True)
    v = x.var(dim=axis, keepdim=True, unbiased=False)
    return (x - m) / torch.sqrt(v + eps)
def _scatter_add(tgt, idx, src, axis=0):
    return tgt.clone().index_add_(axis, idx, src)
def _segment_sum(src, seg, n):
    out = torch.zeros((n,) + src.shape[1:], dtype=src.dtype)
    return out.index_add_(0, seg, src)
def _pad(x, pw):
    flat = tuple(v for pair in reversed(pw) for v in pair)
    return torch.nn.functional.pad(x, flat)

kernel_name = 'sequential_preLN__ssm_conv_s4d__moe_arch_mod__prompt'

def setup_inputs():

    _w = (lambda a: (lambda t: t.to(torch.bfloat16) if t.is_floating_point() else t)(torch.as_tensor(a)))
    def _A_setup():
        Bsz, L, D, N = 1, 2048, 512, 128
        return {
            "u": _w((lambda *s: torch.randn(*s, dtype=torch.bfloat16) * 0.1)(Bsz, L, D)),
            "log_A_real": _w((lambda *s: torch.randn(*s, dtype=torch.bfloat16) * 6.4)(D, N) * 0.5),
            "A_imag": _w((lambda *s: torch.randn(*s, dtype=torch.bfloat16) * 0.1)(D, N) * 3.14),
            "C_real": _w((lambda *s: torch.randn(*s, dtype=torch.bfloat16) * 0.1)(D, N) / N ** 0.5),
            "C_imag": _w((lambda *s: torch.randn(*s, dtype=torch.bfloat16) * 0.1)(D, N) / N ** 0.5),
            "log_dt": _w((lambda *s: torch.randn(*s, dtype=torch.bfloat16) * 0.1)(D) * 0.5 - 4.0),
            "D_skip": _w((lambda *s: torch.randn(*s, dtype=torch.bfloat16) * 0.1)(D)),
        }
    _A_in = _A_setup()

    def _B_setup():
        B, S, D, F, C = 1, 2048, 512, 1792, 8
        return {
            "x": _w((lambda *s: torch.randn(*s, dtype=torch.bfloat16) * 0.1)(B, S, D)),
            "w_r": _w((lambda *s: torch.randn(*s, dtype=torch.bfloat16) * 0.1)(D)),
            "w_gate": _w((lambda *s: torch.randn(*s, dtype=torch.bfloat16) * 0.1)(D, F)),
            "w_up": _w((lambda *s: torch.randn(*s, dtype=torch.bfloat16) * 0.1)(D, F)),
            "w_down": _w((lambda *s: torch.randn(*s, dtype=torch.bfloat16) * 0.1)(F, D)),
        }
    _B_in = _B_setup()

    return {
        "A_u": _A_in["u"],
        "A_log_A_real": _A_in["log_A_real"],
        "A_A_imag": _A_in["A_imag"],
        "A_C_real": _A_in["C_real"],
        "A_C_imag": _A_in["C_imag"],
        "A_log_dt": _A_in["log_dt"],
        "A_D_skip": _A_in["D_skip"],
        "B_x": _B_in["x"],
        "B_w_r": _B_in["w_r"],
        "B_w_gate": _B_in["w_gate"],
        "B_w_up": _B_in["w_up"],
        "B_w_down": _B_in["w_down"],
    }

def reference(A_u, A_log_A_real, A_A_imag, A_C_real, A_C_imag, A_log_dt, A_D_skip, B_x, B_w_r, B_w_gate, B_w_up, B_w_down):
    def _A_ref(u, log_A_real, A_imag, C_real, C_imag, log_dt, D_skip):
        L = u.shape[1]
        dt = torch.exp(log_dt)
        A = -torch.exp(log_A_real) + 1j * A_imag
        C = (C_real + 1j * C_imag) * dt[:, None]
        pos = (lambda x, dt: x.to(dt))(torch.arange(L), log_dt.dtype)
        P = torch.exp((A * dt[:, None])[:, :, None] * pos[None, None, :])
        K = 2.0 * torch.einsum("dn,dnl->dl", C, P).real
        L2 = 2 * L
        u_t = (lambda x, *d: x.permute(*d))(u, 0, 2, 1)
        Kf = (lambda x, *a, **k: torch.fft.rfft(x.float(), *a, **k))(K, L2)
        Uf = (lambda x, *a, **k: torch.fft.rfft(x.float(), *a, **k))(u_t, L2)
        y = (lambda x, *a, **k: torch.fft.irfft(x, *a, **k).to(torch.bfloat16))(Uf * Kf[None, :, :], L2)[:, :, :L]
        y = (lambda x, *d: x.permute(*d))(y, 0, 2, 1)
        return y + u * D_skip[None, None, :]

    def _B_ref(x, w_r, w_gate, w_up, w_down):
        B, S, D = x.shape
        C = 8
        r = x @ w_r
        idx = torch.argsort(-r, axis=-1)[:, :C]
        idx_e = (lambda x, n, axis: torch.repeat_interleave(x, n, dim=axis))(idx.reshape(B, C, 1), D, axis=2)
        x_sel = (lambda x, i, axis: torch.take_along_dim(x, i, dim=axis))(x, idx_e, axis=1)
        g = _silu(x_sel @ w_gate)
        u = x_sel @ w_up
        y = (g * u) @ w_down
        r_sel = _sigmoid((lambda x, i, axis: torch.take_along_dim(x, i, dim=axis))(r, idx, axis=1))
        y = y * r_sel.reshape(B, C, 1)
        b_off = (torch.arange(B) * S).reshape(B, 1)
        flat_idx = (idx + b_off).reshape(B * C)
        zero = (x * 0.0).reshape(B * S, D)
        upd = _scatter_add(zero, flat_idx, y.reshape(B * C, D), axis=0)
        return x + upd.reshape(B, S, D)

    x = A_u
    h = x + _A_ref(_layernorm(x, axis=-1), A_log_A_real, A_A_imag, A_C_real, A_C_imag, A_log_dt, A_D_skip)
    h2 = h + _B_ref(_layernorm(h, axis=-1), B_w_r, B_w_gate, B_w_up, B_w_down)
    return h2
```

```python
import re

TRANS = ('v_exp_f32','v_log_f32','v_rcp_f32','v_rsq_f32','v_sqrt_f32','v_sin_f32','v_cos_f32','v_rcp_iflag_f32',
         'v_exp_f16','v_log_f16','v_rcp_f16','v_rsq_f16','v_sqrt_f16','v_sin_f16','v_cos_f16')

def expand(tok):
    tok = tok.strip()
    neg = tok.lstrip('-')
    m = re.fullmatch(r'(?:abs\()?\|?([vsa])(\d+)\|?\)?', neg)
    if m: return {m.group(1) + m.group(2)}
    m = re.fullmatch(r'([vsa])\[(\d+):(\d+)\]', neg)
    if m: return {m.group(1) + str(i) for i in range(int(m.group(2)), int(m.group(3)) + 1)}
    if neg in ('vcc',): return {'vcc'}
    if neg in ('vcc_lo', 'vcc_hi'): return {'vcc'}
    if neg in ('exec', 'exec_lo', 'exec_hi'): return {'exec'}
    if neg == 'm0': return {'m0'}
    return set()

class Ins:
    def __init__(self, text):
        self.text = text
        t = text.split(';')[0].strip()
        self.is_label = t.endswith(':')
        self.is_dir = t.startswith('.') and not self.is_label
        self.op = ''
        self.wr = set(); self.rd = set()
        self.kind = 'other'
        if not t or self.is_label or self.is_dir:
            self.kind = 'none'; return
        parts = t.split(None, 1)
        self.op = parts[0]
        rest = parts[1] if len(parts) > 1 else ''
        ops = [o.strip() for o in re.split(r',(?![^\[]*\])', rest)] if rest else []
        mods = ''
        if ops:
            last = ops[-1].split(None, 1)
            if len(last) > 1:
                ops[-1] = last[0]; mods = last[1]
        self.ops = ops; self.mods = mods
        op = self.op
        base = re.sub(r'_(e32|e64|dpp|sdwa)$', '', op)
        self.base = base
        self.dpp = op.endswith('_dpp') or any(k in mods for k in ('row_', 'quad_perm', 'wave_', 'row_bcast'))
        R = [expand(o) for o in ops]
        if op.startswith('v_mfma') or op.startswith('v_smfmac'):
            self.kind = 'mfma'
            self.wr = R[0]; self.A = R[1]; self.B = R[2]; self.C = R[3]
            self.rd = R[1] | R[2] | R[3]
            self.passes = 8 if '32x32' in op else 4
        elif op.startswith('v_'):
            self.kind = 'valu'
            self.trans = base in TRANS
            if base.startswith('v_cmp'):
                self.wr = R[0]
                for r in R[1:]: self.rd |= r
                if base.startswith('v_cmpx'): self.wr |= {'exec'}
            elif base in ('v_readlane_b32', 'v_readfirstlane_b32'):
                self.wr = R[0]
                for r in R[1:]: self.rd |= r
            elif base.startswith('v_permlane') and 'swap' in base:
                self.wr = R[0] | R[1]; self.rd = R[0] | R[1]
            elif base in ('v_add_co_u32', 'v_sub_co_u32', 'v_subrev_co_u32'):
                self.wr = R[0] | R[1]
                for r in R[2:]: self.rd |= r
            elif base in ('v_addc_co_u32', 'v_subb_co_u32', 'v_subbrev_co_u32'):
                self.wr = R[0] | R[1]
                for r in R[2:]: self.rd |= r
            else:
                self.wr = R[0]
                for r in R[1:]: self.rd |= r
                if base in ('v_fmac_f32', 'v_fmac_f16', 'v_pk_fmac_f16', 'v_dot2c_f32_bf16', 'v_writelane_b32', 'v_mac_f32') or self.dpp or 'sdwa' in op:
                    self.rd |= R[0]
                if base == 'v_cndmask_b32' and len(ops) == 3:
                    self.rd |= {'vcc'}
            if base == 'v_cndmask_b32' and len(ops) == 4: pass
            self.rd |= {'exec'}
            self.opsel_dst = ('op_sel' in mods and not base.startswith('v_pk') and not base.startswith('v_fma_mix_f32')) or ('dst_sel:WORD' in mods) or ('dst_sel:BYTE' in mods)
        elif op.startswith('ds_'):
            self.kind = 'ds'
            if op.startswith('ds_read') or op.startswith('ds_bpermute') or op.startswith('ds_permute') or op.startswith('ds_swizzle') or '_rtn' in op:
                self.wr = R[0]
                for r in R[1:]: self.rd |= r
                if 'd16' in op: self.rd |= R[0]
            else:
                for r in R: self.rd |= r
            if 'addtid' in op: self.rd |= {'m0'}
        elif op.startswith('global_') or op.startswith('buffer_') or op.startswith('flat_'):
            self.kind = 'vmem'
            islds = ('_lds_' in op) or (' lds' in (' ' + mods))
            if 'store' in op or ('atomic' in op and 'sc0' not in mods) or islds or op.startswith('buffer_inv') or op.startswith('buffer_wbl2'):
                for r in R: self.rd |= r
                self.store_wide = 'store' in op and ('x4' in op or 'x3' in op)
                if self.store_wide:
                    self.sdata = R[1] if op.startswith('global_') else R[0]
                if islds: self.rd |= {'m0'}
            else:
                self.wr = R[0]
                for r in R[1:]: self.rd |= r
                if 'd16' in op: self.rd |= R[0]
        elif op.startswith('s_'):
            if op in ('s_nop',):
                self.kind = 'nop'; self.n = int(ops[0], 0) + 1
            elif op in ('s_waitcnt', 's_barrier', 's_sleep', 's_setprio', 's_endpgm', 's_branch') or op.startswith('s_cbranch'):
                self.kind = 'ctl'
                if 'vcc' in op: self.rd = {'vcc'}
                if 'exec' in op: self.rd = {'exec'}
            elif op.startswith('s_load') or op.startswith('s_memtime') or op.startswith('s_memrealtime'):
                self.kind = 'smem'; self.wr = R[0]
                for r in R[1:]: self.rd |= r
            elif op.startswith('s_cmp') or op.startswith('s_bitcmp'):
                self.kind = 'salu'
                for r in R: self.rd |= r
            else:
                self.kind = 'salu'; self.wr = R[0]
                for r in R[1:]: self.rd |= r
                if 'saveexec' in op: self.wr |= {'exec'}; self.rd |= {'exec'}
        else:
            raise ValueError('unknown op ' + text)

def is_sgpr(r): return r.startswith('s') or r in ('vcc',)
def is_vgpr(r): return r.startswith('v') and r != 'vcc' or r.startswith('a')

def required_wait(prod, cons):
    need = 0
    pk, ck = prod.kind, cons.kind
    if pk == 'valu':
        wv = {r for r in prod.wr if is_vgpr(r)}
        ws = {r for r in prod.wr if is_sgpr(r)}
        if ck == 'valu':
            if cons.dpp and (wv & cons.rd): need = max(need, 2)
            if ws & cons.rd:
                if cons.base in ('v_readlane_b32', 'v_writelane_b32') and (ws & expand(cons.ops[2])): need = max(need, 4)
                need = max(need, 2)
            if cons.base in ('v_readlane_b32', 'v_readfirstlane_b32') and (wv & cons.rd): need = max(need, 1)
            if prod.trans and (wv & cons.rd): need = max(need, 1)
            if cons.base.startswith('v_permlane') and (wv & cons.rd): need = max(need, 2)
            if getattr(prod, 'opsel_dst', False) and (wv & (cons.rd | cons.wr)): need = max(need, 1)
            if 'exec' in prod.wr:
                if cons.dpp: need = max(need, 5)
                if cons.base in ('v_readlane_b32','v_readfirstlane_b32','v_writelane_b32') or cons.base.startswith('v_permlane'): need = max(need, 4)
        if prod.base.startswith('v_dot'):
            if ck == 'valu' and cons.base == prod.base:
                srcs = [expand(o) for o in cons.ops[1:3]]
                if any(wv & x for x in srcs): need = max(need, 3)
            elif ck in ('valu', 'vmem', 'ds', 'mfma') and (wv & (cons.rd | cons.wr)): need = max(need, 3)
        if ck == 'mfma':
            if wv & cons.rd: need = max(need, 2)
            if 'exec' in prod.wr: need = max(need, 4)
        if ck == 'vmem' or ck == 'ds':
            if ws & cons.rd: need = max(need, 5)
            if prod.trans and (wv & cons.rd): need = max(need, 1)
        if ck in ('salu', 'ctl', 'smem'):
            if ws & cons.rd: need = max(need, 4)
    if pk == 'salu':
        if 'm0' in prod.wr and 'm0' in cons.rd: need = max(need, 1)
    if pk == 'mfma':
        p4 = prod.passes == 4
        D = prod.wr
        if ck == 'mfma':
            if D & (cons.A | cons.B): need = max(need, 8 if p4 else 12)
            if D & cons.C:
                if not (cons.C == D and cons.passes == prod.passes): need = max(need, 6 if p4 else 10)
            if (D & cons.wr) and not (cons.wr == D and cons.C == D):
                need = max(need, 8 if p4 else 12)
        elif ck == 'valu' or ck == 'vmem' or ck == 'ds':
            if D & (cons.rd | cons.wr): need = max(need, 8 if p4 else 12)
        if ck == 'valu' and (prod.C & cons.wr): need = max(need, 3 if p4 else 7)
    if pk == 'vmem' and getattr(prod, 'store_wide', False):
        if ck == 'valu' and (prod.sdata & cons.wr): need = max(need, 2)
        elif ck in ('vmem', 'ds', 'mfma') and (prod.sdata & cons.wr): need = max(need, 1)
    if pk == 'ds' and prod.op in ('ds_write_b128', 'ds_write_b96', 'ds_write2_b64'):
        pass
    return need

MAXW = 12
def fix_hazards(lines):
    ins = [Ins(l) for l in lines]
    out = []
    hist = []
    nins = 0
    for i in ins:
        if i.kind == 'none':
            out.append(i.text)
            if i.is_label:
                pass
            continue
        dist = 0; need_extra = 0
        for p in reversed(hist):
            if dist >= MAXW: break
            req = required_wait(p, i) if p.kind != 'nop' else 0
            if req > dist: need_extra = max(need_extra, req - dist)
            dist += p.n if p.kind == 'nop' else 1
        while need_extra > 0:
            n = min(need_extra, 16)
            nop = Ins(f's_nop {n-1}')
            out.append(f'    s_nop {n-1}   ; hazard')
            hist.append(nop); nins += 1
            need_extra -= n
        out.append(i.text)
        hist.append(i)
        if len(hist) > 40: hist = hist[-30:]
    return out

class Asm:
    def __init__(self):
        self.lines = []
    def __call__(self, s):
        for l in s.split('\n'):
            l = l.strip()
            if not l: continue
            if l.endswith(':') or l.startswith('.'):
                self.lines.append(l)
            else:
                self.lines.append('    ' + l)
    def label(self, n): self.lines.append(n + ':')
    def comment(self, c): self.lines.append('; ' + c)
    def text(self):
        body = []
        for l in self.lines:
            body.append(l)
        fixed = fix_hazards(body)
        return '\n'.join(fixed) + '\n'

class Regs:
    def __init__(self, first, last):
        self.free = list(range(first, last + 1)); self.names = {}; self.maxused = first
    def alloc(self, name, n=1, align=1):
        if n > 1 and align == 1: align = 2
        for idx in range(len(self.free)):
            st = self.free[idx]
            if st % align: continue
            if all((st + k) in self.free for k in range(n)):
                for k in range(n): self.free.remove(st + k)
                self.names[name] = (st, n); self.maxused = max(self.maxused, st + n - 1)
                return st
        raise RuntimeError('out of regs for ' + name)
    def release(self, name):
        st, n = self.names.pop(name)
        self.free.extend(range(st, st + n)); self.free.sort()
def vr(st, n=1):
    return f'v{st}' if n == 1 else f'v[{st}:{st+n-1}]'
```

```python
import sys, struct, math
from asmlib import *

NAME = "sequential_preLN__ssm_conv_s4d__moe_arch_mod__prompt"
def f2u(x): return struct.unpack('<I', struct.pack('<f', x))[0]
def f32(x): return struct.unpack('<f', struct.pack('<f', x))[0]
def hx(x): return '0x%08x' % (x & 0xffffffff)

WS_EPOCH = 0x0
WS_F1 = 0x1000; R1 = 16
WS_F3 = 0x8000; R3 = 8
WS_KEY = 0x10000; RK = 8
WS_HID = 0x20000; RH = 4; HID_SZ = 56 * 512
WS_MISC = 0x10000
WS_STAT = 0x40000
WS_U = 0x100000
WS_Y = 0x300000
WS_H = 0x500000
WS_DBG = 0x800000
KC_SZ = 4160
L_KC = 0
L_UL = 16640; UL_SZ = 4608
L_TT = 25856; TT_SZ = 1536
L_RED = 28928
L_ST1 = L_RED
L_ST2 = L_RED + 512
L_RP = L_RED + 1024
L_IS = L_RED + 1280
L_WM = L_RED + 1344
L_CNT = L_RED + 1408
L_CL = L_RED + 1536
L_SEL = L_RED + 2048
L_FB = L_RED + 2560
L_D = L_RED + 4096
L_WR = L_RED + 5120
L_STG = L_RED + 6144; STG_SZ = 1536
L_BIG = L_STG + 8 * STG_SZ
FROW = 544
F_SZ = 16 * FROW; G_SZ = 48 * FROW; FG_SZ = F_SZ + G_SZ
L_PX = L_BIG + 2 * FG_SZ
PX_T = 1152; PX_C = 8 * PX_T + 64; PX_H = 2 * PX_C
LDS_TOTAL = L_PX + 2 * PX_H
assert LDS_TOTAL <= 163840, LDS_TOTAL
assert L_BIG % 16 == 0 and L_PX % 16 == 0

SPIN_LIMIT = 1 << 15

class Cfg:
    stop = 99
    dbg = 0
    stamps = 0

def gen(cfg):
    a = Asm()
    R = Regs(2, 255)
    al = R.alloc
    S_P, S_W8, S_TAG = 's3', 's4', 's5'
    P_X, P_LA, P_AI, P_CR, P_CI, P_DT, P_DS = 's[8:9]', 's[10:11]', 's[12:13]', 's[14:15]', 's[16:17]', 's[18:19]', 's[20:21]'
    P_WR, P_WG, P_WU, P_WD, P_OUT, P_DBG, P_WS = 's[24:25]', 's[26:27]', 's[28:29]', 's[30:31]', 's[32:33]', 's[34:35]', 's[36:37]'
    S_SPIN = 's60'
    S_L2E, S_L2ELO, S_I2PI, S_I2PILO, S_EPS, S_MASKHI = 's62', 's63', 's64', 's65', 's66', 's67'
    cfg.stamp_names = []
    G1 = ['start','kernarg','issued','x_arrived','ln1_prebar','ln1_fin','u_stored','kgen_valu','B_b','B_c','expand','B_d','conv_mfma','B_e','y_stored']
    G2 = ['start','u_stored','B_d','y_stored','y_acked','y_got','key_stored','s3_done','keys_got','top8','f3_ok','h_got','hid_stored','hid_got','final']
    sel = G1 if cfg.stamps == 1 else G2
    cfg.active = lambda name: cfg.stamps and name in sel
    def stamp(name):
        if not cfg.stamps or name not in sel: return
        i = len(cfg.stamp_names)
        assert 70 + 2 * i + 1 <= 101, 'too many stamps'
        a(f's_memtime s[{70+2*i}:{71+2*i}]')
        cfg.stamp_names.append(name)
    uid = [0]
    def lbl(p):
        uid[0] += 1
        return f'L_{p}_{uid[0]}'
    def if_role_a(else_lbl):
        a(f's_cmp_ge_u32 {S_W8}, 4'); a(f's_cbranch_scc1 {else_lbl}')
    def if_role_b(else_lbl):
        a(f's_cmp_lt_u32 {S_W8}, 4'); a(f's_cbranch_scc1 {else_lbl}')
    def stop_here(n):
        if cfg.stop == n:
            a('s_waitcnt vmcnt(0) lgkmcnt(0)'); a('s_branch L_fin')
            return True
        return False
    def poll_loop(issue, check_regs, tmp, name, first_issued=False, cmp_tag=False):
        l0 = lbl(name); l1 = lbl(name + 'ok')
        a(f's_mov_b32 {S_SPIN}, 0')
        if first_issued:
            lf = lbl(name + 'f'); a(f's_branch {lf}')
        a.label(l0)
        issue()
        if first_issued: a.label(lf)
        a('s_waitcnt vmcnt(0)')
        if cmp_tag:
            a(f'v_xor_b32 v{tmp}, {S_TAG}, v{check_regs[0]}')
            for r in check_regs[1:]:
                a(f'v_xor_b32 v{tmp+1}, {S_TAG}, v{r}'); a(f'v_or_b32 v{tmp}, v{tmp}, v{tmp+1}')
            a(f'v_cmp_ne_u32 vcc, 0, v{tmp}')
        else:
            rs = list(check_regs)
            a(f'v_max_u32 v{tmp}, v{rs[0]}, v{rs[1]}') if len(rs) > 1 else a(f'v_mov_b32 v{tmp}, v{rs[0]}')
            rs = rs[2:]
            while len(rs) >= 2:
                a(f'v_max3_u32 v{tmp}, v{tmp}, v{rs[0]}, v{rs[1]}'); rs = rs[2:]
            if rs: a(f'v_max_u32 v{tmp}, v{tmp}, v{rs[0]}')
            a(f'v_cmp_eq_u32 vcc, -1, v{tmp}')
        a(f's_cbranch_vccz {l1}')
        a(f's_add_u32 {S_SPIN}, {S_SPIN}, 1')
        a(f's_cmp_lt_u32 {S_SPIN}, {SPIN_LIMIT}')
        a(f's_cbranch_scc1 {l0}')
        a.label(l1)

    a('s_cmp_ge_u32 s2, 256')
    a('s_cbranch_scc1 L_end')
    a('s_load_dwordx16 s[8:23], s[0:1], 0')
    a('s_load_dwordx8 s[24:31], s[0:1], 64')
    a('s_load_dwordx4 s[32:35], s[0:1], 96')
    a('s_load_dwordx2 s[36:37], s[0:1], 112')
    if cfg.stamps:
        for i in range(70, 102): a(f's_mov_b32 s{i}, 0')
    stamp('start')
    vlane = 1
    vt0 = al('t0', 2); vt1 = vt0 + 1
    vt2 = al('t2', 2); vt3 = vt2 + 1
    a(f'v_lshrrev_b32 v{vt0}, 6, v0')
    a(f'v_and_b32 v{vlane}, 63, v0')
    a('s_and_b32 s6, s2, 7'); a('s_lshl_b32 s6, s6, 5'); a('s_lshr_b32 s7, s2, 3'); a(f's_add_u32 {S_P}, s6, s7')
    a(f'v_readfirstlane_b32 {S_W8}, v{vt0}')
    vtk = al('tk'); vcg = al('cg')
    a(f'v_and_b32 v{vtk}, 7, v{vlane}')
    a(f'v_lshrrev_b32 v{vcg}, 3, v{vlane}')
    vch = al('choff')
    a(f's_lshl_b32 s6, {S_W8}, 7')
    a(f'v_lshl_add_u32 v{vch}, v{vcg}, 4, s6')
    vrow = al('rowoff')
    a(f's_lshl_b32 s7, {S_P}, 13')
    a(f'v_lshl_add_u32 v{vrow}, v{vtk}, 10, s7')
    vxo = al('xoff')
    a(f'v_add_u32 v{vxo}, v{vrow}, v{vch}')
    vblk = al('blkoff')
    a(f'v_lshl_add_u32 v{vblk}, v0, 4, s7')
    vpo = al('paroff'); vpo2 = al('paroff2'); vdto = al('dtoff')
    a(f's_lshl_b32 s6, {S_P}, 9')
    a(f'v_lshl_add_u32 v{vpo}, v0, 1, s6')
    a(f'v_xor_b32 v{vpo2}, 128, v{vpo}')
    a(f's_lshl_b32 s6, {S_P}, 2')
    a(f'v_lshrrev_b32 v{vdto}, 7, v0')
    a(f'v_lshl_add_u32 v{vdto}, v{vdto}, 1, s6')
    a(f'v_lshlrev_b32 v{vt0}, 4, v{vlane}')
    vx = al('x', 4, 2); vpiv = al('piv', 2, 2); vD = al('D', 4, 2)
    vla = al('la'); vai = al('ai'); vcr = al('cr'); vci = al('ci'); vcr2 = al('cr2'); vci2 = al('ci2'); vldt = al('ldt')
    a('s_waitcnt lgkmcnt(0)')
    stamp('kernarg')
    a(f'global_load_dwordx4 {vr(vx,4)}, v{vxo}, {P_X}')
    a(f'global_load_ushort v{vpiv}, v{vrow}, {P_X}')
    a(f's_load_dword {S_TAG}, {P_WS}, {WS_EPOCH}')
    if_role_a('L_s0_nopar')
    a(f'global_load_ushort v{vla}, v{vpo}, {P_LA}')
    a(f'global_load_ushort v{vai}, v{vpo}, {P_AI}')
    a(f'global_load_ushort v{vcr}, v{vpo}, {P_CR}')
    a(f'global_load_ushort v{vci}, v{vpo}, {P_CI}')
    a(f'global_load_ushort v{vcr2}, v{vpo2}, {P_CR}')
    a(f'global_load_ushort v{vci2}, v{vpo2}, {P_CI}')
    a(f'global_load_ushort v{vldt}, v{vdto}, {P_DT}')
    a('s_branch L_s0_par')
    a.label('L_s0_nopar')
    a(f's_cmp_eq_u32 {S_W8}, 6'); a('s_cbranch_scc0 L_s0_n6')
    a(f'global_load_dwordx4 {vr(vD,4)}, v{vt0}, {P_DS}')
    a.label('L_s0_n6')
    a(f's_cmp_eq_u32 {S_W8}, 7'); a('s_cbranch_scc0 L_s0_par')
    a(f'global_load_dwordx4 {vr(vD,4)}, v{vt0}, {P_WR}')
    a.label('L_s0_par')
    R.release('paroff'); R.release('paroff2'); R.release('dtoff')
    vones = al('ones', 4, 2)
    for i in range(4): a(f'v_mov_b32 v{vones+i}, -1')
    a('s_mul_i32 s6, s2, 768'); a(f's_mul_i32 s7, {S_W8}, 96'); a('s_add_u32 s6, s6, s7'); a(f's_add_u32 s6, s6, {WS_MISC}')
    a(f'v_lshl_add_u32 v{vt1}, v{vlane}, 4, s6')
    a(f'v_add_u32 v{vt2}, {WS_U}, v{vblk}')
    a(f'v_add_u32 v{vt3}, {WS_Y}, v{vblk}')
    a(f'global_store_dwordx4 v{vt2}, {vr(vones,4)}, {P_WS} sc1')
    a(f'global_store_dwordx4 v{vt3}, {vr(vones,4)}, {P_WS} sc1')
    a('s_mov_b64 exec, 0x3f')
    a(f'global_store_dwordx4 v{vt1}, {vr(vones,4)}, {P_WS} sc1')
    a('s_mov_b64 exec, -1')
    stamp('issued')
    a(f's_mov_b32 {S_L2E}, {hx(f2u(1.4426950408889634))}')
    a(f's_mov_b32 {S_L2ELO}, {hx(f2u(1.4426950408889634 - f32(1.4426950408889634)))}')
    i2pi = 1.0 / (2 * math.pi)
    a(f's_mov_b32 {S_I2PI}, {hx(f2u(i2pi))}')
    a(f's_mov_b32 {S_I2PILO}, {hx(f2u(i2pi - f32(i2pi)))}')
    a(f's_mov_b32 {S_EPS}, {hx(f2u(1e-5))}')
    a(f's_mov_b32 {S_MASKHI}, 0xffff0000')
    vz = al('z', 4, 2)
    for i in range(4): a(f'v_mov_b32 v{vz+i}, 0')
    a(f's_cmp_eq_u32 {S_W8}, 4'); a('s_cbranch_scc0 L_s0_z1')
    a(f'v_lshlrev_b32 v{vt0}, 4, v{vlane}')
    a(f'v_add_u32 v{vt1}, {UL_SZ - 512}, v{vt0}')
    a(f'v_cmp_gt_u32 vcc, 32, v{vlane}')
    a(f'v_cndmask_b32 v{vt0}, v{vt1}, v{vt0}, vcc')
    a(f'ds_write_b128 v{vt0}, {vr(vz,4)} offset:{L_UL}')
    a.label('L_s0_z1')
    a(f's_cmp_eq_u32 {S_W8}, 5'); a('s_cbranch_scc0 L_s0_z2')
    a(f'v_lshrrev_b32 v{vt0}, 1, v{vlane}')
    a(f'v_mul_u32_u24 v{vt0}, {KC_SZ}, v{vt0}')
    a(f'v_and_b32 v{vt1}, 1, v{vlane}')
    a(f'v_lshl_add_u32 v{vt0}, v{vt1}, 4, v{vt0}')
    a('s_mov_b64 exec, 0xff')
    a(f'ds_write_b128 v{vt0}, {vr(vz,4)} offset:{L_KC + 4096}')
    a('s_mov_b64 exec, -1')
    a.label('L_s0_z2')
    R.release('z'); R.release('ones')

    vTw = al('Tw'); vTs = al('Ts')
    a(f'v_and_b32 v{vt0}, 15, v{vlane}')
    a(f'v_lshrrev_b32 v{vt1}, 4, v{vlane}')
    a(f's_cmp_ge_u32 {S_W8}, 4'); a('s_cbranch_scc1 L_s0_t2')
    a(f's_bitcmp1_b32 {S_W8}, 0'); a('s_cbranch_scc1 L_s0_t1')
    a(f'v_lshrrev_b32 v{vt2}, 3, v{vt0}'); a(f'v_lshlrev_b32 v{vt2}, 7, v{vt2}')
    a(f'v_and_b32 v{vt3}, 7, v{vt0}'); a(f'v_add_u32 v{vTw}, v{vt2}, v{vt3}')
    a(f'v_mov_b32 v{vTs}, 8')
    a('s_branch L_s0_td')
    a.label('L_s0_t1')
    a(f'v_lshrrev_b32 v{vt2}, 2, v{vt0}'); a(f'v_lshlrev_b32 v{vt2}, 6, v{vt2}')
    a(f'v_and_b32 v{vt3}, 3, v{vt0}'); a(f'v_add_u32 v{vt2}, v{vt2}, v{vt3}'); a(f'v_add_u32 v{vTw}, 256, v{vt2}')
    a(f'v_lshrrev_b32 v{vt2}, 1, v{vt0}'); a(f'v_lshlrev_b32 v{vt2}, 5, v{vt2}')
    a(f'v_and_b32 v{vt3}, 1, v{vt0}'); a(f'v_add_u32 v{vt2}, v{vt2}, v{vt3}'); a(f'v_add_u32 v{vt2}, 256, v{vt2}')
    a(f'v_cmp_gt_u32 vcc, 8, v{vt0}')
    a(f'v_cndmask_b32 v{vTw}, v{vt2}, v{vTw}, vcc')
    a(f'v_mov_b32 v{vt2}, 2'); a(f'v_mov_b32 v{vt3}, 4'); a(f'v_cndmask_b32 v{vTs}, v{vt2}, v{vt3}, vcc')
    a('s_branch L_s0_td')
    a.label('L_s0_t2')
    a(f'v_lshlrev_b32 v{vTw}, 4, v{vt0}'); a(f'v_add_u32 v{vTw}, 512, v{vTw}')
    a(f'v_mov_b32 v{vTs}, 1')
    a.label('L_s0_td')
    a(f'v_lshlrev_b32 v{vt1}, 2, v{vt1}')
    a(f'v_mul_u32_u24 v{vt1}, v{vt1}, v{vTs}')
    a(f'v_add_u32 v{vTw}, v{vTw}, v{vt1}')
    a(f'v_lshlrev_b32 v{vTw}, 1, v{vTw}')
    a(f'v_lshlrev_b32 v{vTs}, 1, v{vTs}')
    S_KC, S_KT = 's40', 's41'
    a(f's_lshr_b32 {S_KC}, {S_W8}, 1'); a(f's_and_b32 {S_KT}, {S_W8}, 1')
    a(f's_sub_u32 s6, {S_W8}, 4')
    a(f's_cmp_ge_u32 {S_W8}, 4'); a(f's_cselect_b32 {S_KC}, s6, {S_KC}'); a(f's_cselect_b32 {S_KT}, 2, {S_KT}')
    a(f's_mul_i32 s6, {S_KC}, {TT_SZ}'); a(f's_add_u32 s6, s6, {L_TT}')
    a(f'v_add_u32 v{vTw}, s6, v{vTw}')

    def unpack8(dst, src):
        for j in range(4):
            a(f'v_lshlrev_b32 v{dst+2*j}, 16, v{src+j}')
            a(f'v_and_b32 v{dst+2*j+1}, {S_MASKHI}, v{src+j}')
    def cvt4(dst, src, kind='bf16'):
        for j in range(4):
            a(f'v_cvt_pk_{kind}_f32 v{dst+j}, v{src+2*j}, v{src+2*j+1}')
    def xlane2(p, t, op='add_f32', pk=True):
        a(f'v_add_f32_dpp v{p}, v{p}, v{p} row_ror:8 row_mask:0xf bank_mask:0xf')
        a(f'v_add_f32_dpp v{p+1}, v{p+1}, v{p+1} row_ror:8 row_mask:0xf bank_mask:0xf')
        for sw in ('16', '32'):
            a(f'v_mov_b32 v{t}, v{p}'); a(f'v_mov_b32 v{t+1}, v{p+1}')
            a(f'v_permlane{sw}_swap_b32 v{t}, v{p}'); a(f'v_permlane{sw}_swap_b32 v{t+1}, v{p+1}')
            a(f'v_pk_add_f32 {vr(p,2)}, {vr(p,2)}, {vr(t,2)}')
    def xlane1(p, t, op, full=False):
        if full:
            for ror in (1, 2, 4):
                a(f'v_{op}_dpp v{p}, v{p}, v{p} row_ror:{ror} row_mask:0xf bank_mask:0xf')
        a(f'v_{op}_dpp v{p}, v{p}, v{p} row_ror:8 row_mask:0xf bank_mask:0xf')
        for sw in ('16', '32'):
            a(f'v_mov_b32 v{t}, v{p}')
            a(f'v_permlane{sw}_swap_b32 v{t}, v{p}')
            a(f'v_{op} v{p}, v{p}, v{t}')
    def ln_stats_partial(xf, piv, d, S, t, lds_off):
        for j in range(4):
            a(f'v_pk_add_f32 {vr(d+2*j,2)}, {vr(xf+2*j,2)}, {vr(piv,2)} op_sel_hi:[1,0] neg_lo:[0,1] neg_hi:[0,1]')
        a(f'v_pk_mul_f32 {vr(t,2)}, {vr(d,2)}, {vr(d,2)}')
        a(f'v_pk_add_f32 {vr(S,2)}, {vr(d,2)}, {vr(d+2,2)}')
        a(f'v_pk_fma_f32 {vr(t,2)}, {vr(d+2,2)}, {vr(d+2,2)}, {vr(t,2)}')
        a(f'v_pk_add_f32 {vr(d,2)}, {vr(d+4,2)}, {vr(d+6,2)}')
        a(f'v_pk_fma_f32 {vr(t,2)}, {vr(d+4,2)}, {vr(d+4,2)}, {vr(t,2)}')
        a(f'v_pk_add_f32 {vr(S,2)}, {vr(S,2)}, {vr(d,2)}')
        a(f'v_pk_fma_f32 {vr(t,2)}, {vr(d+6,2)}, {vr(d+6,2)}, {vr(t,2)}')
        a(f'v_add_f32 v{S}, v{S}, v{S+1}')
        a(f'v_add_f32 v{S+1}, v{t}, v{t+1}')
        xlane2(S, t)
        a(f's_lshl_b32 s6, {S_W8}, 3')
        a(f'v_lshl_add_u32 v{t}, v{vtk}, 6, s6')
        a('s_mov_b64 exec, 0xff')
        a(f'ds_write_b64 v{t}, {vr(S,2)} offset:{lds_off}')
        a('s_mov_b64 exec, -1')
    def ln_finish(xf, piv, d, S, t, lds_off, m, rs, sout):
        a(f'v_lshlrev_b32 v{t}, 6, v{vtk}')
        for j in range(4): a(f'ds_read_b128 {vr(d+4*j,4)}, v{t} offset:{lds_off + 16*j}')
        a('s_waitcnt lgkmcnt(0)')
        for j in (0, 4, 8, 12): a(f'v_pk_add_f32 {vr(d+j,2)}, {vr(d+j,2)}, {vr(d+j+2,2)}')
        a(f'v_pk_add_f32 {vr(d,2)}, {vr(d,2)}, {vr(d+4,2)}')
        a(f'v_pk_add_f32 {vr(d+8,2)}, {vr(d+8,2)}, {vr(d+12,2)}')
        a(f'v_pk_add_f32 {vr(S,2)}, {vr(d,2)}, {vr(d+8,2)}')
        inv = hx(f2u(1.0/512))
        a(f'v_mul_f32 v{S}, {inv}, v{S}')
        a(f'v_mul_f32 v{S+1}, {inv}, v{S+1}')
        a(f'v_fma_f32 v{S+1}, -v{S}, v{S}, v{S+1}')
        a(f'v_add_f32 v{S}, v{piv}, v{S}')
        a(f'v_max_f32 v{S+1}, 0, v{S+1}')
        a(f'v_cvt_pk_bf16_f32 v{t}, v{S}, v{S+1}')
        a(f'v_lshlrev_b32 v{m}, 16, v{t}')
        a(f'v_and_b32 v{t}, {S_MASKHI}, v{t}')
        a(f'v_add_f32 v{t}, {S_EPS}, v{t}')
        a(f'v_cvt_pk_bf16_f32 v{t}, v{t}, v{t}')
        a(f'v_lshlrev_b32 v{t}, 16, v{t}')
        a(f'v_sqrt_f32 v{t}, v{t}')
        a(f'v_cvt_pk_bf16_f32 v{t}, v{t}, v{t}')
        a(f'v_lshlrev_b32 v{sout}, 16, v{t}')
        a(f'v_rcp_f32 v{rs}, v{sout}')
        normalize(xf, m, rs, d)
    def normalize(xf, m, rs, d):
        for j in range(4):
            a(f'v_pk_add_f32 {vr(d+2*j,2)}, {vr(xf+2*j,2)}, {vr(m,2)} op_sel_hi:[1,0] neg_lo:[0,1] neg_hi:[0,1]')
        cvt4(d+8, d)
        unpack8(d, d+8)
        for j in range(4):
            a(f'v_pk_mul_f32 {vr(d+2*j,2)}, {vr(d+2*j,2)}, {vr(rs,2)} op_sel_hi:[1,0]')
        cvt4(d+8, d)

    vxf = al('xf', 8, 2); vud = al('ud', 8, 2); vm1 = al('m1', 2, 2)
    vd = al('d', 16, 4); vS = al('S', 2, 2); vt = al('t', 2, 2); vrs = al('rs', 2, 2); vs_ = al('s', 2, 2)
    stamp('precomp')
    a('s_waitcnt vmcnt(0)')
    stamp('x_arrived')
    unpack8(vxf, vx)
    a(f'v_lshlrev_b32 v{vpiv}, 16, v{vpiv}')
    a(f's_cmp_lt_u32 {S_W8}, 6'); a('s_cbranch_scc1 L_s1_nodw')
    a(f's_sub_u32 s6, {S_W8}, 6'); a('s_lshl_b32 s6, s6, 10'); a(f's_add_u32 s6, s6, {L_D}')
    a(f'v_lshl_add_u32 v{vt0}, v{vlane}, 4, s6')
    a(f'ds_write_b128 v{vt0}, {vr(vD,4)}')
    a.label('L_s1_nodw')
    ln_stats_partial(vxf, vpiv, vd, vS, vt, L_ST1)
    a('s_waitcnt lgkmcnt(0)')
    stamp('ln1_prebar')
    a('s_barrier')
    a(f's_add_u32 {S_TAG}, {S_TAG}, 1')
    if_role_b('L_s1_nof1')
    a(f's_sub_u32 s6, {S_W8}, 4'); a('s_lshl_b32 s6, s6, 12')
    a('s_lshl_b32 s7, s2, 2'); a('s_add_u32 s6, s6, s7'); a(f's_add_u32 s6, s6, {WS_F1}')
    a(f'v_lshl_add_u32 v{vt0}, v{vlane}, 10, s6')
    a(f'v_mov_b32 v{vt1}, {S_TAG}')
    a('s_mov_b64 exec, 0xf')
    a(f'global_store_dword v{vt0}, v{vt1}, {P_WS} sc1')
    a('s_mov_b64 exec, -1')
    a.label('L_s1_nof1')
    a(f'ds_read_b128 {vr(vD,4)}, v{vch} offset:{L_D}')
    ln_finish(vxf, vpiv, vd, vS, vt, L_ST1, vm1, vrs, vs_)
    stamp('ln1_fin')
    unpack8(vd, vd+8)
    cvt4(vd+12, vd, 'f16')
    S_STG = 's42'
    a(f's_mul_i32 {S_STG}, {S_W8}, {STG_SZ}'); a(f's_add_u32 {S_STG}, {S_STG}, {L_STG}')
    a(f'v_mul_u32_u24 v{vt0}, 192, v{vtk}')
    a(f'v_lshl_add_u32 v{vt0}, v{vcg}, 4, v{vt0}')
    a(f'v_add_u32 v{vt0}, {S_STG}, v{vt0}')
    a(f'ds_write_b128 v{vt0}, {vr(vd+12,4)}')
    a(f'v_bfe_u32 v{vt1}, v{vlane}, 2, 2')
    a(f'v_mul_u32_u24 v{vt1}, 192, v{vt1}')
    a(f'v_lshrrev_b32 v{vt2}, 4, v{vlane}')
    a(f'v_lshl_add_u32 v{vt1}, v{vt2}, 5, v{vt1}')
    a(f'v_and_b32 v{vt2}, 3, v{vlane}')
    a(f'v_lshl_add_u32 v{vt1}, v{vt2}, 3, v{vt1}')
    a(f'v_add_u32 v{vt1}, {S_STG}, v{vt1}')
    a(f'v_add_u32 v{vt2}, {WS_U}, v{vblk}')
    a('s_waitcnt lgkmcnt(0)')
    a(f'ds_read_b64_tr_b16 {vr(vd+8,2)}, v{vt1}')
    a(f'ds_read_b64_tr_b16 {vr(vd+10,2)}, v{vt1} offset:{4*192}')
    unpack8(vud, vD)
    for j in range(4): a(f'v_pk_mul_f32 {vr(vud+2*j,2)}, {vr(vud+2*j,2)}, {vr(vd+2*j,2)}')
    a('s_waitcnt lgkmcnt(0)')
    a(f'global_store_dwordx4 v{vt2}, {vr(vd+8,4)}, {P_WS} sc1')
    stamp('u_stored')
    cvt4(vd+12, vud)
    unpack8(vud, vd+12)
    R.release('x'); R.release('D'); R.release('piv')
    for n in ('d', 'S', 't', 'rs', 's'): R.release(n)
    if stop_here(1): return finish(a, R, cfg)

    if_role_a('L_k_roleB')
    kt = al('kt', 12, 2)
    def exp_acc(x, t1, t2):
        a(f'v_mul_f32 v{t1}, {S_L2E}, v{x}')
        a(f'v_fma_f32 v{t2}, v{x}, {S_L2E}, -v{t1}')
        a(f'v_fma_f32 v{t2}, v{x}, {S_L2ELO}, v{t2}')
        a(f'v_exp_f32 v{x}, v{t1}')
        a(f'v_mul_f32 v{t2}, {hx(f2u(math.log(2)))}, v{t2}')
        a(f'v_fma_f32 v{x}, v{x}, v{t2}, v{x}')
    for r in (vla, vai, vcr, vci, vcr2, vci2, vldt): a(f'v_lshlrev_b32 v{r}, 16, v{r}')
    exp_acc(vldt, kt, kt+1); exp_acc(vla, kt+2, kt+3)
    a(f'v_cvt_pk_bf16_f32 v{kt}, v{vldt}, v{vla}')
    vdt = vldt; vAr = vla
    a(f'v_lshlrev_b32 v{vdt}, 16, v{kt}')
    a(f'v_and_b32 v{vAr}, {S_MASKHI}, v{kt}')
    vsum = kt + 4
    a(f'v_add_f32 v{vsum}, |v{vcr}|, |v{vci}|')
    a(f'v_add_f32 v{kt+5}, |v{vcr2}|, |v{vci2}|')
    a(f'v_add_f32 v{vsum}, v{vsum}, v{kt+5}')
    xlane1(vsum, kt+5, 'add_f32', full=True)
    val_ = al('al'); vfh = al('fh'); vfl = al('fl'); v2dt = al('2dt')
    a(f'v_mul_f32 v{val_}, v{vAr}, v{vdt}')
    a(f'v_mul_f32 v{val_}, {S_L2E}, v{val_}')
    a(f'v_mul_f32 v{kt}, v{vai}, v{vdt}')
    a(f'v_mul_f32 v{vfh}, {S_I2PI}, v{kt}')
    a(f'v_fma_f32 v{vfl}, v{kt}, {S_I2PI}, -v{vfh}')
    a(f'v_fma_f32 v{vfl}, v{kt}, {S_I2PILO}, v{vfl}')
    a(f'v_add_f32 v{v2dt}, v{vdt}, v{vdt}')
    a(f'v_mul_f32 v{vsum}, v{vsum}, v{v2dt}')
    a(f'v_frexp_exp_i32_f32 v{kt+5}, v{vsum}')
    a(f'v_sub_u32 v{kt+6}, 15, v{kt+5}')
    a(f'v_ldexp_f32 v{v2dt}, v{v2dt}, v{kt+6}')
    a(f'v_subrev_u32 v{kt+5}, 15, v{kt+5}')
    a(f'v_mov_b32 v{kt+6}, 1.0')
    a(f'v_ldexp_f32 v{kt+6}, v{kt+6}, v{kt+5}')
    a(f's_lshr_b32 s6, {S_W8}, 1'); a('s_lshl_b32 s6, s6, 2'); a(f's_add_u32 s6, s6, {L_IS}')
    a(f'v_mov_b32 v{kt+7}, s6')
    a('s_mov_b64 exec, 1')
    a(f'ds_write_b32 v{kt+7}, v{kt+6}')
    a('s_mov_b64 exec, -1')
    E1 = al('E1', 2, 2); E8 = al('E8', 2, 2); E128 = al('E128', 2, 2)
    def anchor(E, p):
        a(f'v_mul_f32 v{kt}, {hx(f2u(-float(p)))}, v{val_}')
        a(f'v_mul_f32 v{kt+1}, {hx(f2u(float(p)))}, v{vfh}')
        a(f'v_exp_f32 v{kt}, v{kt}')
        a(f'v_fract_f32 v{kt+1}, v{kt+1}')
        a(f'v_fma_f32 v{kt+1}, v{vfl}, {hx(f2u(float(p))) if False else "v%d" % (kt+8)}, v{kt+1}') if False else None
        a(f'v_mov_b32 v{kt+2}, {hx(f2u(float(p)))}')
        a(f'v_fma_f32 v{kt+1}, v{vfl}, v{kt+2}, v{kt+1}')
        a(f'v_cos_f32 v{E}, v{kt+1}')
        a(f'v_sin_f32 v{E+1}, v{kt+1}')
        a(f'v_pk_mul_f32 {vr(E,2)}, {vr(E,2)}, {vr(kt,2)} op_sel_hi:[1,0]')
    anchor(E8, 8); anchor(E128, 128); anchor(E1, 1)
    def cmul(d, x, y):
        a(f'v_pk_mul_f32 {vr(d,2)}, {vr(x,2)}, {vr(y,2)} op_sel:[0,0] op_sel_hi:[0,1]')
        a(f'v_pk_fma_f32 {vr(d,2)}, {vr(x,2)}, {vr(y,2)}, {vr(d,2)} op_sel:[1,1,0] op_sel_hi:[1,0,1] neg_lo:[1,0,0]')
    vfa = al('fa')
    a(f's_lshr_b32 s6, {S_W8}, 1'); a(f's_mul_i32 s6, s6, {FG_SZ}'); a(f's_add_u32 s6, s6, {L_BIG}')
    a(f'v_and_b32 v{vfa}, 127, v0')
    a(f'v_lshl_add_u32 v{vfa}, v{vfa}, 2, s6')
    cv = [kt+8, kt+9, kt+10, kt+11]; cvi = [0]
    def put(row, val, isG):
        t = cv[cvi[0] % 4]; cvi[0] += 1
        if isG:
            a(f'v_cvt_pk_f16_f32 v{t}, v{val}, -v{val+1}')
            a(f'ds_write_b32 v{vfa}, v{t} offset:{F_SZ + row*FROW}')
        else:
            a(f'v_cvt_pk_f16_f32 v{t}, v{val}, v{val+1}')
            a(f'ds_write_b32 v{vfa}, v{t} offset:{row*FROW}')
    Fa = al('Fa', 2, 2); Fb = al('Fb', 2, 2); Ha = al('Ha', 2, 2); Hb = al('Hb', 2, 2)
    O = [None] + [al(f'O{i}', 2, 2) for i in range(1, 8)]
    Gt = [al('Gt0', 2, 2), al('Gt1', 2, 2)]
    a(f'v_mov_b32 v{O[1]}, v{E1}'); a(f'v_mov_b32 v{O[1]+1}, v{E1+1}')
    a(f'v_mov_b32 v{cv[0]}, 0x00003c00'); a(f'ds_write_b32 v{vfa}, v{cv[0]} offset:0'); cvi[0] = 1
    put(1, E8, False)
    a(f'v_mul_f32 v{Ha}, v{vcr}, v{v2dt}'); a(f'v_mul_f32 v{Ha+1}, v{vci}, v{v2dt}')
    cmul(O[2], O[1], O[1]); cmul(Fa, E8, E8); put(2, Fa, False)
    cmul(O[3], O[2], O[1]); cmul(O[4], O[2], O[2])
    cmul(O[5], O[4], O[1]); cmul(O[6], O[4], O[2]); cmul(O[7], O[4], O[3])
    Fcur, Fnx = Fa, Fb; Hcur, Hnx = Ha, Hb
    fj = 3
    def gcol(i, o):
        if i < 2: return 8*i + o
        if i < 4: return 16 + 4*(i-2) + o//2
        if i < 8: return 24 + 2*(i-4) + o//4
        return 32 + (i-8)
    gi = 0
    for i in range(0, 17):
        offs = list(range(8)) if i < 2 else ([0,2,4,6] if i < 4 else ([0,4] if i < 8 else [0]))
        put(gcol(i, 0), Hcur, True)
        if i < 16: cmul(Hnx, Hcur, E128)
        for o in offs[1:]:
            g = Gt[gi % 2]; gi += 1
            cmul(g, Hcur, O[o]); put(gcol(i, o), g, True)
        if fj <= 15:
            cmul(Fnx, Fcur, E8); put(fj, Fnx, False); Fcur, Fnx = Fnx, Fcur; fj += 1
        Hcur, Hnx = Hnx, Hcur
    assert fj == 16
    a('s_waitcnt lgkmcnt(0)')
    stamp('kgen_valu')
    for n in ['kt','al','fh','fl','2dt','E1','E8','E128','fa','Fa','Fb','Ha','Hb','Gt0','Gt1'] + [f'O{i}' for i in range(1,8)]: R.release(n)
    for n in ('la','ai','cr','ci','cr2','ci2','ldt'): R.release(n)
    a('s_branch L_k_bb')
    a.label('L_k_roleB')
    vTa = al('Ta', 10, 2); vKw = al('Kw'); vz8 = al('z8')
    vf = al('f1', 4, 2); vfo = al('f1off'); vug = al('ugoff'); vul = al('ulds')
    a('s_lshl_b32 s6, s2, 2'); a(f's_add_u32 s6, s6, {S_W8}'); a('s_and_b32 s6, s6, 15'); a('s_lshl_b32 s6, s6, 10'); a(f's_add_u32 s6, s6, {WS_F1}')
    a(f'v_lshl_add_u32 v{vfo}, v{vlane}, 4, s6')
    a(f'global_load_dwordx4 {vr(vf,4)}, v{vfo}, {P_WS} sc1')
    a(f'v_and_b32 v{vz8}, 255, v0')
    a(f'v_lshlrev_b32 v{vug}, 13, v{vz8}')
    a(f's_lshl_b32 s6, {S_P}, 5'); a(f's_add_u32 s6, s6, {WS_U}')
    a(f'v_add_u32 v{vug}, s6, v{vug}')
    a(f'v_lshlrev_b32 v{vul}, 4, v{vz8}')
    a(f'v_sub_u32 v{vKw}, 255, v{vz8}')
    a(f'v_lshlrev_b32 v{vKw}, 4, v{vKw}')
    a(f'v_lshlrev_b32 v{vz8}, 3, v{vz8}')
    a(f'v_add_u32 v{vz8}, 9, v{vz8}')
    for k in range(10):
        d = vTa + k
        a(f'v_subrev_u32 v{d}, {k}, v{vz8}')
        a(f'v_cvt_f32_u32 v{vt0}, v{d}')
        a(f'v_cvt_pk_bf16_f32 v{vt0}, v{vt0}, v{vt0}')
        a(f'v_and_b32 v{vt0}, 0xffff, v{vt0}')
        a(f'v_subrev_u32 v{vt0}, 17024, v{vt0}')
        a(f'v_min_u32 v{d}, 128, v{d}')
        a(f'v_max_i32 v{d}, v{vt0}, v{d}')
        a(f'v_lshlrev_b32 v{d}, 1, v{d}')
    R.release('z8')
    stamp('kgen_valu')  if False else None
    if cfg.active('kgen_valu'): a(f's_memtime s[{70+2*(len(cfg.stamp_names)-1)}:{71+2*(len(cfg.stamp_names)-1)}]')
    a.label('L_k_bb')
    a('s_barrier')
    stamp('B_b')
    vu = al('u', 8, 2)
    if_role_b('L_k_nog')
    poll_loop(lambda: a(f'global_load_dwordx4 {vr(vf,4)}, v{vfo}, {P_WS} sc1'), [vf, vf+1, vf+2, vf+3], vt0, 'f1', first_issued=True, cmp_tag=True)
    a(f'global_load_dwordx4 {vr(vu,4)}, v{vug}, {P_WS} sc1')
    a(f'global_load_dwordx4 {vr(vu+4,4)}, v{vug}, {P_WS} offset:16 sc1')
    a.label('L_k_nog')
    a(f's_cmp_ge_u32 {S_W8}, 6'); a('s_cbranch_scc1 L_k_nomf')
    vA = al('kA', 32, 4); vB = al('kB', 32, 4); vacc = al('kacc', 4, 4); vaa = al('kaa'); vba = al('kba')
    a(f's_mul_i32 s6, {S_KC}, {FG_SZ}'); a(f's_add_u32 s6, s6, {L_BIG}')
    a(f'v_and_b32 v{vt0}, 15, v{vlane}'); a(f'v_mul_u32_u24 v{vt0}, {FROW}, v{vt0}')
    a(f'v_lshrrev_b32 v{vt1}, 4, v{vlane}'); a(f'v_lshl_add_u32 v{vt0}, v{vt1}, 4, v{vt0}')
    a(f'v_add_u32 v{vaa}, s6, v{vt0}')
    a(f's_mul_i32 s7, {S_KT}, {16*FROW}'); a('s_add_u32 s6, s6, s7'); a(f's_add_u32 s6, s6, {F_SZ}')
    a(f'v_add_u32 v{vba}, s6, v{vt0}')
    for k in range(8):
        a(f'ds_read_b128 {vr(vA+4*k,4)}, v{vaa} offset:{64*k}')
        a(f'ds_read_b128 {vr(vB+4*k,4)}, v{vba} offset:{64*k}')
        if k == 6: a('s_waitcnt lgkmcnt(10)') if False else None
    for k in range(8):
        a(f's_waitcnt lgkmcnt({min(15, 2*(7-k))})')
        a(f'v_mfma_f32_16x16x32_f16 {vr(vacc,4)}, {vr(vA+4*k,4)}, {vr(vB+4*k,4)}, {"0" if k == 0 else vr(vacc,4)}')
    a(f'v_add_u32 v{vt0}, v{vTw}, v{vTs}')
    a(f'v_add_u32 v{vt1}, v{vt0}, v{vTs}')
    a(f'v_add_u32 v{vt2}, v{vt1}, v{vTs}')
    a(f'v_cvt_pk_f16_f32 v{vA}, v{vacc}, v{vacc+1}')
    a(f'v_cvt_pk_f16_f32 v{vA+1}, v{vacc+2}, v{vacc+3}')
    a(f'ds_write_b16 v{vTw}, v{vA}')
    a(f'ds_write_b16_d16_hi v{vt0}, v{vA}')
    a(f'ds_write_b16 v{vt1}, v{vA+1}')
    a(f'ds_write_b16_d16_hi v{vt2}, v{vA+1}')
    for n in ('kA','kB','kacc','kaa','kba'): R.release(n)
    a.label('L_k_nomf')
    a('s_waitcnt lgkmcnt(0)')
    a('s_barrier')
    stamp('B_c')
    R.release('Tw'); R.release('Ts')
    if_role_b('L_k_noexp')
    ve = al('e', 20, 2); vp = al('ep', 8, 4)
    for c in range(2):
        for k in range(10):
            a(f'ds_read_u16 v{ve+10*c+k}, v{vTa+k} offset:{L_TT + c*TT_SZ}')
    for c in range(2):
        e = ve + 10*c
        a(f's_waitcnt lgkmcnt({10 if c == 0 else 2})')
        for j in range(4): a(f'v_lshl_or_b32 v{vp+j}, v{e+2*j+2}, 16, v{e+2*j+1}')
        for j in range(4): a(f'v_lshl_or_b32 v{vp+4+j}, v{e+2*j+1}, 16, v{e+2*j}')
        a(f'ds_write_b128 v{vKw}, {vr(vp,4)} offset:{L_KC + (2*c)*KC_SZ}')
        a(f'ds_write_b128 v{vKw}, {vr(vp+4,4)} offset:{L_KC + (2*c+1)*KC_SZ}')
        a(f's_cmp_eq_u32 {S_W8}, 4'); l = lbl('tail'); a(f's_cbranch_scc0 {l}')
        a(f'v_lshl_or_b32 v{vt1}, v{e+9}, 16, v{e+8}')
        a(f'v_mov_b32 v{vt0}, 4096')
        a('s_mov_b64 exec, 1')
        a(f'ds_write_b32 v{vt0}, v{e+9} offset:{L_KC + (2*c)*KC_SZ}')
        a(f'ds_write_b32 v{vt0}, v{vt1} offset:{L_KC + (2*c+1)*KC_SZ}')
        a('s_mov_b64 exec, -1')
        a.label(l)
    R.release('e'); R.release('ep')
    stamp('expand')
    def issue_u():
        a(f'global_load_dwordx4 {vr(vu,4)}, v{vug}, {P_WS} sc1')
        a(f'global_load_dwordx4 {vr(vu+4,4)}, v{vug}, {P_WS} offset:16 sc1')
    poll_loop(issue_u, list(range(vu, vu+8)), vt0, 'u', first_issued=True)
    a(f'ds_write_b128 v{vul}, {vr(vu,4)} offset:{L_UL + 512}')
    a(f'ds_write_b128 v{vul}, {vr(vu+4,4)} offset:{L_UL + UL_SZ + 512}')
    a('s_branch L_k_bd')
    a.label('L_k_noexp')
    if cfg.active('expand'): a(f's_memtime s[{70+2*(len(cfg.stamp_names)-1)}:{71+2*(len(cfg.stamp_names)-1)}]')
    a.label('L_k_bd')
    for n in ('Ta','Kw','f1','f1off','ugoff','ulds','u'): R.release(n)
    a('s_waitcnt lgkmcnt(0)')
    a('s_barrier')
    stamp('B_d')
    if cfg.dbg:
        dv = al('dv', 4, 4); da = al('da');
        a(f's_lshl_b32 s6, {S_P}, 15'); a(f's_add_u32 s6, s6, 0x1000000')
        for it in range(3):
            a(f'v_lshlrev_b32 v{da}, 4, v0'); a(f'v_add_u32 v{da}, {it*8192}, v{da}')
            a(f'v_min_u32 v{da}, {L_UL + 2*UL_SZ - 16}, v{da}')
            a(f'ds_read_b128 {vr(dv,4)}, v{da}')
            a(f'v_add_u32 v{da}, s6, v{da}')
            a('s_waitcnt lgkmcnt(0)')
            a(f'global_store_dwordx4 v{da}, {vr(dv,4)}, {P_WS}')
            a('s_waitcnt vmcnt(0)')
        R.release('dv'); R.release('da')
    if stop_here(2): return finish(a, R, cfg)

    if_role_a('L_c_roleB')
    acc = al('acc', 32, 4)
    FA = [al('FA0', 32, 4), al('FA1', 32, 4)]; FB = [al('FB0', 32, 4), al('FB1', 32, 4)]
    vLA = al('LA', 4); vLB = al('LB')
    a(f's_lshr_b32 s6, {S_W8}, 1'); a(f's_and_b32 s7, {S_W8}, 1')
    a(f'v_and_b32 v{vt0}, 15, v{vlane}'); a(f'v_lshrrev_b32 v{vt1}, 4, v{vlane}')
    a(f'v_and_b32 v{vt2}, 1, v{vt0}')
    a(f'v_mul_u32_u24 v{vt3}, {KC_SZ + 2}, v{vt2}')
    a(f'v_lshl_add_u32 v{vt3}, v{vt1}, 4, v{vt3}')
    a(f'v_lshlrev_b32 v{vt2}, 1, v{vt0}')
    a(f'v_sub_u32 v{vt3}, v{vt3}, v{vt2}')
    a(f's_mul_i32 s38, s6, {2*KC_SZ}'); a('s_lshl_b32 s39, s7, 8');
    a('s_sub_u32 s38, s38, s39'); a(f's_add_u32 s38, s38, {L_KC + 4064 - 64*15}')
    a(f'v_add_u32 v{vLA}, s38, v{vt3}')
    for J in range(1, 4): a(f'v_subrev_u32 v{vLA+J}, {1024*J}, v{vLA}')
    a(f'v_lshl_add_u32 v{vt2}, v{vt0}, 1, v{vt1}')
    a(f's_mul_i32 s38, s6, {UL_SZ}'); a('s_sub_u32 s38, s38, s39'); a(f's_add_u32 s38, s38, {L_UL + 480 - 192}')
    a(f'v_lshl_add_u32 v{vLB}, v{vt2}, 4, s38')
    def frag_loads(rho, buf):
        L = []
        for j in range(8):
            J = j >> 1; o = 16 * (15 - (rho + 8 * (j & 1)))
            L.append(f'ds_read_b128 {vr(FB[buf]+4*j,4)}, v{vLB} offset:{512*j + 64*(3-rho)}')
            L.append(f'ds_read2_b32 {vr(FA[buf]+4*j,2)}, v{vLA+J} offset0:{o} offset1:{o+1}')
            L.append(f'ds_read2_b32 {vr(FA[buf]+4*j+2,2)}, v{vLA+J} offset0:{o+2} offset1:{o+3}')
        return L
    for l in frag_loads(0, 0): a(l)
    for rho in range(4):
        buf = rho & 1
        nxt = frag_loads(rho + 1, buf ^ 1) if rho < 3 else []
        a('s_waitcnt lgkmcnt(0)')
        k = 0
        for j in range(8):
            for tp in range(8 - j):
                t = j + tp
                src = '0' if (rho == 0 and j == 0) else vr(acc+4*t,4)
                a(f'v_mfma_f32_16x16x32_f16 {vr(acc+4*t,4)}, {vr(FA[buf]+4*j,4)}, {vr(FB[buf]+4*tp,4)}, {src}')
                if k < len(nxt): a(nxt[k])
                k += 1
    stamp('conv_mfma')
    a(f's_mul_i32 s38, s6, {PX_C}'); a(f's_mul_i32 s39, s7, {PX_H}'); a('s_add_u32 s38, s38, s39'); a(f's_add_u32 s38, s38, {L_PX}')
    a(f'v_lshrrev_b32 v{vt0}, 5, v{vlane}'); a(f'v_lshlrev_b32 v{vt0}, 7, v{vt0}')
    a(f'v_lshl_add_u32 v{vt0}, v{vlane}, 4, v{vt0}')
    a(f'v_add_u32 v{vt0}, s38, v{vt0}')
    for t in range(8): a(f'ds_write_b128 v{vt0}, {vr(acc+4*t,4)} offset:{t*PX_T}')
    for n in ('acc','FA0','FA1','FB0','FB1','LA','LB'): R.release(n)
    a('s_branch L_c_be')
    a.label('L_c_roleB')
    if cfg.active('conv_mfma'): a(f's_memtime s[{70+2*(len(cfg.stamp_names)-1)}:{71+2*(len(cfg.stamp_names)-1)}]')
    gen_roleB_conv(a, R, cfg, locals())
    a.label('L_c_be')
    a('s_waitcnt lgkmcnt(0)')
    a('s_barrier')
    stamp('B_e')
    ep = al('ep', 16, 4); vis = al('is', 2, 2)
    a(f'v_lshrrev_b32 v{vt0}, 1, v0')
    a(f'v_and_b32 v{vt1}, 1, v0')
    a(f'v_mul_u32_u24 v{vt2}, {PX_C}, v{vt1}')
    a(f'v_lshrrev_b32 v{vt3}, 5, v{vt0}'); a(f'v_mul_u32_u24 v{vt3}, {PX_T}, v{vt3}'); a(f'v_add_u32 v{vt2}, v{vt2}, v{vt3}')
    a(f'v_bfe_u32 v{vt3}, v{vt0}, 1, 4'); a(f'v_lshl_add_u32 v{vt2}, v{vt3}, 4, v{vt2}')
    a(f'v_and_b32 v{vt3}, 1, v{vt0}'); a(f'v_mul_u32_u24 v{vt3}, 640, v{vt3}'); a(f'v_add_u32 v{vt2}, v{vt2}, v{vt3}')
    a(f'v_lshlrev_b32 v{vt1}, 2, v{vt1}')
    a(f'v_add_u32 v{vt2}, {L_PX}, v{vt2}')
    a(f'ds_read_b128 {vr(ep,4)}, v{vt2}')
    a(f'ds_read_b128 {vr(ep+4,4)}, v{vt2} offset:256')
    a(f'ds_read_b128 {vr(ep+8,4)}, v{vt2} offset:{PX_H}')
    a(f'ds_read_b128 {vr(ep+12,4)}, v{vt2} offset:{PX_H + 256}')
    a(f'ds_read_b32 v{vis}, v{vt1} offset:{L_IS}')
    a(f'v_add_u32 v{vt3}, {WS_Y}, v{vblk}')
    a('s_waitcnt lgkmcnt(0)')
    for j in range(4): a(f'v_pk_add_f32 {vr(ep+2*j,2)}, {vr(ep+2*j,2)}, {vr(ep+8+2*j,2)}')
    for j in range(4): a(f'v_pk_mul_f32 {vr(ep+2*j,2)}, {vr(ep+2*j,2)}, {vr(vis,2)} op_sel_hi:[1,0]')
    cvt4(ep+8, ep)
    a(f'global_store_dwordx4 v{vt3}, {vr(ep+8,4)}, {P_WS} sc1')
    stamp('y_stored')
    R.release('ep'); R.release('is')
    if stop_here(3): return finish(a, R, cfg)

    gen_tail(a, R, cfg, locals())
    return finish(a, R, cfg)

def gen_roleB_conv(a, R, cfg, env):
    S_W8 = env['S_W8']; vlane = env['vlane']; vt0 = env['vt0']; vt1 = env['vt1']; lbl = env['lbl']
    P_WG, P_WU, P_WD = env['P_WG'], env['P_WU'], env['P_WD']
    a('s_cmp_lt_u32 s2, 56'); a('s_cbranch_scc0 L_w_not1')
    a(f's_sub_u32 s6, {S_W8}, 4')
    a(f'v_lshrrev_b32 v{vt0}, 2, v{vlane}')
    a(f'v_mul_u32_u24 v{vt0}, 3584, v{vt0}')
    a(f'v_and_b32 v{vt1}, 3, v{vlane}')
    a(f'v_lshl_add_u32 v{vt0}, v{vt1}, 4, v{vt0}')
    a('s_lshl_b32 s7, s2, 6')
    a('s_and_b32 s38, s6, 1'); a(f's_mul_i32 s39, s38, {256*3584}'); a('s_add_u32 s7, s7, s39')
    a(f'v_add_u32 v{vt0}, s7, v{vt0}')
    a('s_lshl_b32 s39, s6, 14'); a(f's_add_u32 s39, s39, {L_BIG}')
    a('s_cmp_ge_u32 s6, 2'); a('s_cbranch_scc1 L_w_up')
    for i in range(16):
        a('s_mov_b32 m0, s39'); a('s_add_u32 s39, s39, 1024')
        a(f'global_load_lds_dwordx4 v{vt0}, {P_WG}')
        if i < 15: a(f'v_add_u32 v{vt0}, {16*3584}, v{vt0}')
    a('s_branch L_w_done')
    a.label('L_w_up')
    for i in range(16):
        a('s_mov_b32 m0, s39'); a('s_add_u32 s39, s39, 1024')
        a(f'global_load_lds_dwordx4 v{vt0}, {P_WU}')
        if i < 15: a(f'v_add_u32 v{vt0}, {16*3584}, v{vt0}')
    a('s_branch L_w_done')
    a.label('L_w_not1')
    a('s_sub_u32 s7, s2, 64'); a('s_cmp_lt_u32 s7, 32'); a('s_cbranch_scc0 L_w_done')
    a(f's_sub_u32 s6, {S_W8}, 4')
    a(f'v_lshrrev_b32 v{vt0}, 1, v{vlane}')
    a(f'v_lshlrev_b32 v{vt0}, 10, v{vt0}')
    a(f'v_and_b32 v{vt1}, 1, v{vlane}')
    a(f'v_lshl_add_u32 v{vt0}, v{vt1}, 4, v{vt0}')
    a('s_lshl_b32 s7, s7, 5')
    a(f's_mul_i32 s39, s6, {448*1024}'); a('s_add_u32 s7, s7, s39')
    a(f'v_add_u32 v{vt0}, s7, v{vt0}')
    a(f's_mul_i32 s39, s6, {448*32}'); a(f's_add_u32 s39, s39, {L_BIG}')
    for i in range(14):
        a('s_mov_b32 m0, s39'); a('s_add_u32 s39, s39, 1024')
        a(f'global_load_lds_dwordx4 v{vt0}, {P_WD}')
        if i < 13: a(f'v_add_u32 v{vt0}, {32*1024}, v{vt0}')
    a.label('L_w_done')

def gen_tail(a, R, cfg, env):
    g = env
    al = R.alloc
    S_W8, S_P, S_TAG, S_MASKHI, S_STG, S_SPIN = g['S_W8'], g['S_P'], g['S_TAG'], g['S_MASKHI'], g['S_STG'], g['S_SPIN']
    S_L2E = g['S_L2E']
    P_WS, P_OUT = g['P_WS'], g['P_OUT']
    vlane, vt0, vt1, vt2, vt3, vtk, vcg, vch, vxo = (g[k] for k in ('vlane','vt0','vt1','vt2','vt3','vtk','vcg','vch','vxo'))
    vxf, vud, vm1 = g['vxf'], g['vud'], g['vm1']
    stamp, lbl, poll_loop, unpack8, cvt4, xlane1 = g['stamp'], g['lbl'], g['poll_loop'], g['unpack8'], g['cvt4'], g['xlane1']
    ln_stats_partial, ln_finish, normalize, stop_here = g['ln_stats_partial'], g['ln_finish'], g['normalize'], g['stop_here']
    vy = al('y', 4, 4); vyo = al('yoff'); vwr = al('wr', 4, 4)
    vd = al('d', 16, 4); vS = al('S', 2, 2); vt = al('t', 2, 2); vrs = al('rs', 2, 2); vs_ = al('s', 2, 2); vm2 = al('m2', 2, 2)
    vhf = al('hf', 8, 2); vhp = al('hp', 4, 4)
    a(f'v_lshrrev_b32 v{vyo}, 1, v0'); a(f'v_lshlrev_b32 v{vyo}, 13, v{vyo}')
    a(f'v_and_b32 v{vt0}, 1, v0'); a(f'v_lshl_add_u32 v{vyo}, v{vt0}, 4, v{vyo}')
    a(f's_lshl_b32 s6, {S_P}, 5'); a(f's_add_u32 s6, s6, {WS_Y}')
    a(f'v_add_u32 v{vyo}, s6, v{vyo}')
    a(f'ds_read_b128 {vr(vwr,4)}, v{vch} offset:{L_WR}')
    a(f'v_lshl_add_u32 v{vt2}, v{vlane}, 4, {S_STG}')
    a(f'v_lshrrev_b32 v{vt0}, 4, v{vlane}'); a(f'v_lshlrev_b32 v{vt3}, 8, v{vt0}')
    a(f'v_bfe_u32 v{vt0}, v{vlane}, 1, 1'); a(f'v_lshl_add_u32 v{vt3}, v{vt0}, 7, v{vt3}')
    a(f'v_bfe_u32 v{vt0}, v{vlane}, 2, 2'); a(f'v_lshl_add_u32 v{vt3}, v{vt0}, 4, v{vt3}')
    a(f'v_and_b32 v{vt0}, 1, v{vlane}'); a(f'v_lshl_add_u32 v{vt3}, v{vt0}, 3, v{vt3}')
    a(f'v_add_u32 v{vt3}, {S_STG}, v{vt3}')
    a('s_waitcnt vmcnt(0)')
    stamp('y_acked')
    poll_loop(lambda: a(f'global_load_dwordx4 {vr(vy,4)}, v{vyo}, {P_WS} sc1'), [vy, vy+1, vy+2, vy+3], vt0, 'y')
    stamp('y_got')
    a(f'ds_write_b128 v{vt2}, {vr(vy,4)}')
    a('s_waitcnt lgkmcnt(0)')
    a(f'ds_read_b64_tr_b16 {vr(vy,2)}, v{vt3}')
    a(f'ds_read_b64_tr_b16 {vr(vy+2,2)}, v{vt3} offset:64')
    a('s_waitcnt lgkmcnt(0)')
    unpack8(vd, vy)
    for j in range(4): a(f'v_pk_add_f32 {vr(vd+2*j,2)}, {vr(vd+2*j,2)}, {vr(vud+2*j,2)}')
    cvt4(vd+8, vd)
    unpack8(vd, vd+8)
    for j in range(4): a(f'v_pk_add_f32 {vr(vd+2*j,2)}, {vr(vd+2*j,2)}, {vr(vxf+2*j,2)}')
    cvt4(vhp, vd)
    unpack8(vhf, vhp)
    a(f'v_add_u32 v{vt0}, {WS_H}, v{vxo}')
    a(f'global_store_dwordx4 v{vt0}, {vr(vhp,4)}, {P_WS} sc1')
    ln_stats_partial(vhf, vm1, vd, vS, vt, L_ST2)
    a('s_waitcnt lgkmcnt(0)')
    a('s_barrier')
    ln_finish(vhf, vm1, vd, vS, vt, L_ST2, vm2, vrs, vs_)
    vr_ = al('r', 2, 2)
    a(f'v_dot2_f32_bf16 v{vr_}, v{vd+8}, v{vwr}, 0')
    a(f'v_dot2_f32_bf16 v{vr_+1}, v{vd+9}, v{vwr+1}, 0')
    a(f'v_dot2_f32_bf16 v{vr_}, v{vd+10}, v{vwr+2}, v{vr_}')
    a(f'v_dot2_f32_bf16 v{vr_+1}, v{vd+11}, v{vwr+3}, v{vr_+1}')
    a(f'v_add_f32 v{vr_}, v{vr_}, v{vr_+1}')
    xlane1(vr_, vt, 'add_f32')
    a(f's_lshl_b32 s6, {S_W8}, 2')
    a(f'v_lshl_add_u32 v{vt}, v{vtk}, 5, s6')
    a('s_mov_b64 exec, 0xff')
    a(f'ds_write_b32 v{vt}, v{vr_} offset:{L_RP}')
    a('s_mov_b64 exec, -1')
    unpack8(vd, vd+8)
    for j in range(4): a(f'v_pk_add_f32 {vr(vd+2*j,2)}, {vr(vd+2*j,2)}, {vr(vhf+2*j,2)}')
    cvt4(vd+12, vd)
    a('s_waitcnt lgkmcnt(0)')
    a('s_barrier')
    a(f's_cmp_eq_u32 {S_W8}, 0'); a('s_cbranch_scc0 L_s3_nokey')
    a(f'v_lshlrev_b32 v{vt}, 5, v{vtk}')
    a(f'ds_read_b128 {vr(vd,4)}, v{vt} offset:{L_RP}')
    a(f'ds_read_b128 {vr(vd+4,4)}, v{vt} offset:{L_RP+16}')
    a('s_waitcnt lgkmcnt(0)')
    a(f'v_pk_add_f32 {vr(vd,2)}, {vr(vd,2)}, {vr(vd+2,2)}'); a(f'v_pk_add_f32 {vr(vd+4,2)}, {vr(vd+4,2)}, {vr(vd+6,2)}')
    a(f'v_pk_add_f32 {vr(vd,2)}, {vr(vd,2)}, {vr(vd+4,2)}'); a(f'v_add_f32 v{vd}, v{vd}, v{vd+1}')
    a(f'v_cvt_pk_bf16_f32 v{vd}, v{vd}, v{vd}')
    a(f'v_and_b32 v{vd}, 0xffff, v{vd}')
    a(f'v_cmp_lt_u32 vcc, 0x7fff, v{vd}')
    a(f'v_xor_b32 v{vd+1}, 0xffff, v{vd}'); a(f'v_or_b32 v{vd+2}, 0x8000, v{vd}')
    a(f'v_cndmask_b32 v{vd}, v{vd+2}, v{vd+1}, vcc')
    a(f's_lshl_b32 s6, {S_P}, 3'); a('s_sub_u32 s7, 2047, s6')
    a(f'v_sub_u32 v{vd+1}, s7, v{vtk}')
    a(f'v_lshl_or_b32 v{vd}, v{vd}, 16, v{vd+1}')
    a('s_lshl_b32 s6, s6, 2'); a(f's_add_u32 s6, s6, {WS_KEY}')
    a(f'v_lshlrev_b32 v{vd+2}, 13, v{vcg}'); a(f'v_lshl_add_u32 v{vd+2}, v{vtk}, 2, v{vd+2}'); a(f'v_add_u32 v{vd+2}, s6, v{vd+2}')
    a(f'global_store_dword v{vd+2}, v{vd}, {P_WS} sc1')
    a.label('L_s3_nokey')
    stamp('key_stored')
    a(f'global_store_dwordx4 v{vxo}, {vr(vd+12,4)}, {P_OUT} sc1')
    a(f's_cmp_eq_u32 {S_W8}, 1'); a('s_cbranch_scc0 L_s3_nostat')
    a(f'v_lshrrev_b32 v{vd}, 16, v{vm2}'); a(f'v_and_or_b32 v{vd}, v{vs_}, {S_MASKHI}, v{vd}')
    a(f's_lshl_b32 s6, {S_P}, 5'); a(f's_add_u32 s6, s6, {WS_STAT}')
    a(f'v_lshl_add_u32 v{vd+1}, v{vtk}, 2, s6')
    a('s_mov_b64 exec, 0xff')
    a(f'global_store_dword v{vd+1}, v{vd}, {P_WS} sc1')
    a('s_mov_b64 exec, -1')
    a.label('L_s3_nostat')
    a('s_waitcnt vmcnt(0)')
    a('s_barrier')
    a(f's_cmp_eq_u32 {S_W8}, 2'); a('s_cbranch_scc0 L_s3_nof3')
    a(f's_lshl_b32 s6, {S_P}, 2'); a(f's_add_u32 s6, s6, {WS_F3}')
    a(f'v_lshl_add_u32 v{vd}, v{vlane}, 10, s6'); a(f'v_mov_b32 v{vd+1}, {S_TAG}')
    a('s_mov_b64 exec, 0xff')
    a(f'global_store_dword v{vd}, v{vd+1}, {P_WS} sc1')
    a('s_mov_b64 exec, -1')
    a.label('L_s3_nof3')
    stamp('s3_done')
    for n in ('y','yoff','wr','d','S','t','rs','s','m2','hf','hp','r','xf','ud','m1'): R.release(n)
    if stop_here(4): return
    S_ROLE = 's43'
    a(f's_mov_b32 {S_ROLE}, 1')
    a('s_cmp_lt_u32 s2, 56'); a('s_cbranch_scc1 L_f_go')
    a(f's_mov_b32 {S_ROLE}, 2')
    a('s_sub_u32 s7, s2, 64'); a('s_cmp_lt_u32 s7, 32'); a('s_cbranch_scc0 L_fin')
    a.label('L_f_go')
    vB = al('B', 32, 4); vba = al('ba')
    a(f'v_lshrrev_b32 v{vt0}, 4, v{vlane}'); a(f'v_lshlrev_b32 v{vt0}, 3, v{vt0}')
    a(f'v_bfe_u32 v{vt1}, v{vlane}, 2, 2'); a(f'v_add_u32 v{vt0}, v{vt0}, v{vt1}')
    a(f'v_and_b32 v{vt1}, 3, v{vlane}')
    a(f's_cmp_eq_u32 {S_ROLE}, 1'); a('s_cbranch_scc0 L_f_b2')
    a(f'v_lshlrev_b32 v{vba}, 6, v{vt0}'); a(f'v_lshl_add_u32 v{vba}, v{vt1}, 3, v{vba}')
    a(f's_lshl_b32 s6, {S_W8}, 12'); a(f's_add_u32 s6, s6, {L_BIG}')
    a(f'v_add_u32 v{vba}, s6, v{vba}')
    for kk in range(2):
        for nt in range(4):
            off = kk*2048 + (nt>>1)*32768 + (nt&1)*32
            d = vB + 4*(kk*4+nt)
            a(f'ds_read_b64_tr_b16 {vr(d,2)}, v{vba} offset:{off}')
            a(f'ds_read_b64_tr_b16 {vr(d+2,2)}, v{vba} offset:{off + 4*64}')
    a('s_branch L_f_bd')
    a.label('L_f_b2')
    a(f'v_lshlrev_b32 v{vba}, 5, v{vt0}'); a(f'v_lshl_add_u32 v{vba}, v{vt1}, 3, v{vba}')
    a(f's_mul_i32 s6, {S_W8}, {7*32*32}'); a(f's_add_u32 s6, s6, {L_BIG}')
    a(f'v_add_u32 v{vba}, s6, v{vba}')
    for kk in range(7):
        d = vB + 4*kk
        a(f'ds_read_b64_tr_b16 {vr(d,2)}, v{vba} offset:{kk*1024}')
        a(f'ds_read_b64_tr_b16 {vr(d+2,2)}, v{vba} offset:{kk*1024 + 4*32}')
    a.label('L_f_bd')
    R.release('ba')
    a(f's_cmp_eq_u32 {S_W8}, 0'); a('s_cbranch_scc0 L_f_nz')
    a(f'v_mov_b32 v{vt0}, 0'); a(f'v_lshlrev_b32 v{vt1}, 2, v{vlane}')
    a(f'ds_write_b32 v{vt1}, v{vt0} offset:{L_CL}')
    a(f'v_mov_b32 v{vt1}, {L_CNT}'); a(f'ds_write_b32 v{vt1}, v{vt0}')
    a.label('L_f_nz')
    vk = al('k', 4, 4); vko = al('koff'); vm = al('m', 2, 2)
    a('s_and_b32 s6, s2, 7'); a('s_lshl_b32 s6, s6, 13'); a(f's_add_u32 s6, s6, {WS_KEY}')
    a(f'v_lshl_add_u32 v{vko}, v0, 4, s6')
    poll_loop(lambda: a(f'global_load_dwordx4 {vr(vk,4)}, v{vko}, {P_WS} sc1'), [vk, vk+1, vk+2, vk+3], vm, 'key')
    stamp('keys_got')
    xlane1(vm, vm+1, 'max_u32', full=True)
    a(f's_lshl_b32 s6, {S_W8}, 2'); a(f's_add_u32 s6, s6, {L_WM}'); a(f'v_mov_b32 v{vt0}, s6')
    a('s_mov_b64 exec, 1')
    a(f'ds_write_b32 v{vt0}, v{vm}')
    a('s_mov_b64 exec, -1')
    a('s_waitcnt lgkmcnt(0)')
    a('s_barrier')
    vw = al('w8m', 8, 4)
    a(f'v_mov_b32 v{vt0}, {L_WM}')
    a(f'ds_read_b128 {vr(vw,4)}, v{vt0}'); a(f'ds_read_b128 {vr(vw+4,4)}, v{vt0} offset:16')
    a('s_waitcnt lgkmcnt(0)')
    a(f'v_min3_u32 v{vw}, v{vw}, v{vw+1}, v{vw+2}'); a(f'v_min3_u32 v{vw+3}, v{vw+3}, v{vw+4}, v{vw+5}')
    a(f'v_min3_u32 v{vw}, v{vw}, v{vw+6}, v{vw+7}'); a(f'v_min_u32 v{vw}, v{vw}, v{vw+3}')
    for j in range(4): a(f'v_cmp_ge_u32 s[{44+2*j}:{45+2*j}], v{vk+j}, v{vw}')
    for j in range(4): a(f's_bcnt1_i32_b64 s{52+j}, s[{44+2*j}:{45+2*j}]')
    a('s_add_u32 s56, s52, s53'); a('s_add_u32 s57, s54, s55'); a('s_add_u32 s56, s56, s57')
    a(f'v_mov_b32 v{vt0}, {L_CNT}'); a(f'v_mov_b32 v{vt1}, s56')
    a('s_mov_b64 exec, 1')
    a(f'ds_add_rtn_u32 v{vt2}, v{vt0}, v{vt1}')
    a('s_mov_b64 exec, -1')
    a('s_waitcnt lgkmcnt(0)')
    a(f'v_readfirstlane_b32 s57, v{vt2}')
    for j in range(4):
        a(f'v_mbcnt_lo_u32_b32 v{vt0}, s{44+2*j}, 0'); a(f'v_mbcnt_hi_u32_b32 v{vt0}, s{45+2*j}, v{vt0}')
        a(f'v_add_u32 v{vt0}, s57, v{vt0}')
        a(f'v_min_u32 v{vt0}, 64, v{vt0}')
        a(f'v_lshlrev_b32 v{vt0}, 2, v{vt0}')
        a(f's_mov_b64 exec, s[{44+2*j}:{45+2*j}]')
        a(f'ds_write_b32 v{vt0}, v{vk+j} offset:{L_CL}')
        a('s_mov_b64 exec, -1')
        a(f's_add_u32 s57, s57, s{52+j}')
    a('s_waitcnt lgkmcnt(0)')
    a('s_barrier')
    vc = al('cand'); vrank = al('rank'); vall = al('call', 4, 4)
    a(f'v_mov_b32 v{vt0}, {L_CNT}'); a(f'ds_read_b32 v{vt1}, v{vt0}')
    a(f'v_lshlrev_b32 v{vt2}, 2, v{vlane}'); a(f'ds_read_b32 v{vc}, v{vt2} offset:{L_CL}')
    a('s_waitcnt lgkmcnt(0)')
    a(f'v_readfirstlane_b32 s56, v{vt1}')
    a('s_cmp_gt_u32 s56, 64'); a('s_cbranch_scc1 L_f_fallback')
    a(f'v_mov_b32 v{vrank}, 0')
    a(f's_mov_b32 s57, 0'); a(f'v_mov_b32 v{vt0}, {L_CL}')
    a.label('L_f_rank')
    a(f'ds_read_b128 {vr(vall,4)}, v{vt0}')
    a(f'v_add_u32 v{vt0}, 16, v{vt0}')
    a('s_add_u32 s57, s57, 4')
    a('s_waitcnt lgkmcnt(0)')
    for j in range(4): a(f'v_cmp_gt_u32 s[{44+2*j}:{45+2*j}], v{vall+j}, v{vc}')
    for j in range(4): a(f'v_addc_co_u32 v{vrank}, vcc, 0, v{vrank}, s[{44+2*j}:{45+2*j}]')
    a('s_cmp_lt_u32 s57, s56'); a('s_cbranch_scc1 L_f_rank')
    a(f's_lshl_b32 s6, {S_W8}, 6'); a(f's_add_u32 s6, s6, {L_SEL}')
    a(f'v_lshl_add_u32 v{vt0}, v{vrank}, 2, s6')
    a(f'v_cmp_gt_u32 vcc, 8, v{vrank}')
    a('s_and_saveexec_b64 s[38:39], vcc')
    a(f'ds_write_b32 v{vt0}, v{vc}')
    a('s_mov_b64 exec, -1')
    a('s_branch L_f_sel')
    a.label('L_f_fallback')
    a('s_mov_b32 s57, 0')
    a.label('L_f_fb')
    a(f'v_max_u32 v{vm}, v{vk}, v{vk+1}'); a(f'v_max3_u32 v{vm}, v{vm}, v{vk+2}, v{vk+3}')
    xlane1(vm, vm+1, 'max_u32', full=True)
    a(f's_lshl_b32 s6, {S_W8}, 2'); a(f's_add_u32 s6, s6, {L_FB}'); a(f'v_mov_b32 v{vt0}, s6')
    a('s_barrier')
    a('s_mov_b64 exec, 1'); a(f'ds_write_b32 v{vt0}, v{vm}'); a('s_mov_b64 exec, -1')
    a('s_waitcnt lgkmcnt(0)'); a('s_barrier')
    a(f'v_mov_b32 v{vt0}, {L_FB}')
    a(f'ds_read_b128 {vr(vw,4)}, v{vt0}'); a(f'ds_read_b128 {vr(vw+4,4)}, v{vt0} offset:16')
    a('s_waitcnt lgkmcnt(0)')
    a(f'v_max3_u32 v{vw}, v{vw}, v{vw+1}, v{vw+2}'); a(f'v_max3_u32 v{vw+3}, v{vw+3}, v{vw+4}, v{vw+5}')
    a(f'v_max3_u32 v{vw}, v{vw}, v{vw+6}, v{vw+7}'); a(f'v_max_u32 v{vw}, v{vw}, v{vw+3}')
    for j in range(4):
        a(f'v_cmp_eq_u32 vcc, v{vk+j}, v{vw}'); a(f'v_cndmask_b32 v{vk+j}, v{vk+j}, 0, vcc') if False else None
        a(f'v_cmp_ne_u32 vcc, v{vk+j}, v{vw}'); a(f'v_cndmask_b32 v{vk+j}, 0, v{vk+j}, vcc')
    a(f's_lshl_b32 s6, {S_W8}, 6'); a(f's_add_u32 s6, s6, {L_SEL}'); a('s_lshl_b32 s7, s57, 2'); a('s_add_u32 s6, s6, s7')
    a(f'v_mov_b32 v{vt0}, s6')
    a('s_mov_b64 exec, 1'); a(f'ds_write_b32 v{vt0}, v{vw}'); a('s_mov_b64 exec, -1')
    a('s_add_u32 s57, s57, 1'); a('s_cmp_lt_u32 s57, 8'); a('s_cbranch_scc1 L_f_fb')
    a.label('L_f_sel')
    for n in ('k','koff','m','w8m','cand','rank','call'): R.release(n)
    vsel = al('sel'); vidx = al('idx')
    a(f's_lshl_b32 s6, {S_W8}, 6'); a(f's_add_u32 s6, s6, {L_SEL}')
    a(f'v_lshl_add_u32 v{vt0}, v{vtk}, 2, s6')
    a('s_waitcnt lgkmcnt(0)')
    a(f'ds_read_b32 v{vsel}, v{vt0}')
    a('s_waitcnt lgkmcnt(0)')
    a(f'v_and_b32 v{vidx}, 0xffff, v{vsel}'); a(f'v_sub_u32 v{vidx}, 2047, v{vidx}')
    stamp('top8')
    vf3 = al('f3'); vf3o = al('f3o')
    a('s_and_b32 s6, s2, 7'); a('s_lshl_b32 s6, s6, 10'); a(f's_add_u32 s6, s6, {WS_F3}')
    a(f'v_lshrrev_b32 v{vf3o}, 3, v{vidx}'); a(f'v_lshl_add_u32 v{vf3o}, v{vf3o}, 2, s6')
    poll_loop(lambda: a(f'global_load_dword v{vf3}, v{vf3o}, {P_WS} sc1'), [vf3], vt0, 'f3', cmp_tag=True)
    R.release('f3'); R.release('f3o')
    stamp('f3_ok')
    vst = al('stat'); vm2 = al('m2', 2, 2); vrs = al('rs', 2, 2)
    a(f'v_lshlrev_b32 v{vt0}, 2, v{vidx}'); a(f'v_add_u32 v{vt0}, {WS_STAT}, v{vt0}')
    a(f'global_load_dword v{vst}, v{vt0}, {P_WS} sc1')
    a(f's_cmp_eq_u32 {S_ROLE}, 1'); a('s_cbranch_scc0 L_f2')
    vh = al('h', 8, 4); vd = al('d', 16, 4); vhf = al('hf', 8, 2); vA = al('A', 8, 4); acc = al('acc', 16, 4)
    a(f'v_lshrrev_b32 v{vt0}, 4, v{vlane}'); a(f'v_lshlrev_b32 v{vt0}, 4, v{vt0}')
    a(f'v_lshl_add_u32 v{vt0}, v{vidx}, 10, v{vt0}')
    a(f's_lshl_b32 s6, {S_W8}, 7'); a(f's_add_u32 s6, s6, {WS_H}')
    a(f'v_add_u32 v{vt0}, s6, v{vt0}')
    a(f'global_load_dwordx4 {vr(vh,4)}, v{vt0}, {P_WS} sc1')
    a(f'global_load_dwordx4 {vr(vh+4,4)}, v{vt0}, {P_WS} offset:64 sc1')
    a('s_waitcnt vmcnt(0)')
    stamp('h_got')
    a(f'v_lshlrev_b32 v{vm2}, 16, v{vst}'); a(f'v_and_b32 v{vt1}, {S_MASKHI}, v{vst}'); a(f'v_rcp_f32 v{vrs}, v{vt1}')
    for kk in range(2):
        unpack8(vhf, vh+4*kk)
        normalize(vhf, vm2, vrs, vd)
        for j in range(4): a(f'v_mov_b32 v{vA+4*kk+j}, v{vd+8+j}')
    for kk in range(2):
        for nt in range(4):
            a(f'v_mfma_f32_16x16x32_bf16 {vr(acc+4*nt,4)}, {vr(vA+4*kk,4)}, {vr(vB+4*(kk*4+nt),4)}, {"0" if kk == 0 else vr(acc+4*nt,4)}')
    a(f's_lshl_b32 s6, {S_W8}, 11'); a(f's_add_u32 s6, s6, {L_PX}')
    a(f'v_lshl_add_u32 v{vt0}, v{vlane}, 4, s6')
    a('s_mov_b32 exec_hi, 0')
    for nt in range(4): a(f'ds_write_b128 v{vt0}, {vr(acc+4*nt,4)} offset:{nt*512}')
    a('s_mov_b32 exec_hi, -1')
    a('s_waitcnt lgkmcnt(0)')
    a('s_barrier')
    a(f's_cmp_ge_u32 {S_W8}, 4'); a('s_cbranch_scc1 L_fin')
    gp = al('gp', 16, 4)
    a(f's_lshr_b32 s6, {S_W8}, 1'); a('s_lshl_b32 s6, s6, 9'); a(f's_and_b32 s7, {S_W8}, 1'); a('s_lshl_b32 s7, s7, 8')
    a('s_add_u32 s6, s6, s7'); a(f's_add_u32 s6, s6, {L_PX}')
    a(f'v_lshl_add_u32 v{vt0}, v{vlane}, 2, s6')
    for w in range(8): a(f'ds_read_b32 v{gp+w}, v{vt0} offset:{w*2048}')
    for w in range(8): a(f'ds_read_b32 v{gp+8+w}, v{vt0} offset:{w*2048 + 1024}')
    a('s_waitcnt lgkmcnt(8)')
    for (x, y) in ((0,1),(2,3),(4,5),(6,7),(0,2),(4,6),(0,4)): a(f'v_add_f32 v{gp+x}, v{gp+x}, v{gp+y}')
    a('s_waitcnt lgkmcnt(0)')
    for (x, y) in ((0,1),(2,3),(4,5),(6,7),(0,2),(4,6),(0,4)): a(f'v_add_f32 v{gp+8+x}, v{gp+8+x}, v{gp+8+y}')
    a(f'v_cvt_pk_bf16_f32 v{gp+1}, v{gp}, v{gp+8}')
    a(f'v_lshlrev_b32 v{gp}, 16, v{gp+1}')
    a(f'v_and_b32 v{gp+8}, {S_MASKHI}, v{gp+1}')
    a(f'v_mul_f32 v{gp+2}, {hx(f2u(-1.4426950408889634))}, v{gp}')
    a(f'v_exp_f32 v{gp+2}, v{gp+2}')
    a(f'v_add_f32 v{gp+2}, 1.0, v{gp+2}')
    a(f'v_rcp_f32 v{gp+2}, v{gp+2}')
    a(f'v_mul_f32 v{gp}, v{gp}, v{gp+2}')
    a(f'v_cvt_pk_bf16_f32 v{gp}, v{gp}, v{gp}')
    a(f'v_lshlrev_b32 v{gp}, 16, v{gp}')
    a(f'v_mul_f32 v{gp}, v{gp}, v{gp+8}')
    a(f'v_cvt_pk_bf16_f32 v{gp}, v{gp}, v{gp}')
    a(f'v_and_b32 v{gp+1}, 3, v{vlane}'); a(f's_and_b32 s7, {S_W8}, 1'); a('s_lshl_b32 s7, s7, 2')
    a(f'v_add_u32 v{gp+1}, s7, v{gp+1}'); a(f'v_lshlrev_b32 v{gp+1}, 6, v{gp+1}')
    a(f'v_lshrrev_b32 v{gp+2}, 2, v{vlane}'); a(f's_lshr_b32 s6, {S_W8}, 1'); a('s_lshl_b32 s6, s6, 5')
    a(f'v_lshl_add_u32 v{gp+1}, v{gp+2}, 1, v{gp+1}'); a(f'v_add_u32 v{gp+1}, s6, v{gp+1}')
    a(f'ds_write_b16 v{gp+1}, v{gp} offset:{L_STG}')
    a('s_waitcnt lgkmcnt(0)')
    a('s_barrier')
    a(f's_cmp_eq_u32 {S_W8}, 0'); a('s_cbranch_scc0 L_fin')
    a(f'v_and_b32 v{gp+1}, 31, v{vlane}'); a(f'v_lshlrev_b32 v{gp+1}, 4, v{gp+1}')
    a(f'ds_read_b128 {vr(gp+4,4)}, v{gp+1} offset:{L_STG}')
    a(f'v_lshrrev_b32 v{gp+2}, 5, v{vlane}'); a(f'v_mul_u32_u24 v{gp+2}, {HID_SZ}, v{gp+2}')
    a(f'v_add_u32 v{gp+1}, v{gp+1}, v{gp+2}')
    a('s_lshl_b32 s6, s2, 9'); a(f's_add_u32 s6, s6, {WS_HID}')
    a(f'v_add_u32 v{gp+1}, s6, v{gp+1}'); a(f'v_add_u32 v{gp+2}, {2*HID_SZ}, v{gp+1}')
    a('s_waitcnt lgkmcnt(0)')
    a(f'global_store_dwordx4 v{gp+1}, {vr(gp+4,4)}, {P_WS} sc1')
    a(f'global_store_dwordx4 v{gp+2}, {vr(gp+4,4)}, {P_WS} sc1')
    stamp('hid_stored')
    a('s_branch L_fin')
    for n in ('h','d','hf','A','acc','gp'): R.release(n)
    a.label('L_f2')
    vA = al('A2', 28, 4); vho = al('ho'); acc = al('acc2', 4, 4); vhv = al('hv'); vst2 = al('st2'); vsel2 = al('sel2'); vix2 = al('ix2')
    a(f's_lshl_b32 s6, {S_W8}, 6'); a(f's_add_u32 s6, s6, {L_SEL}')
    a(f'v_lshrrev_b32 v{vt0}, 4, v0'); a(f'v_and_b32 v{vt0}, 7, v{vt0}')
    a(f'v_lshl_add_u32 v{vt0}, v{vt0}, 2, s6')
    a(f'ds_read_b32 v{vsel2}, v{vt0}')
    a('s_waitcnt lgkmcnt(0)')
    a(f'v_and_b32 v{vix2}, 0xffff, v{vsel2}'); a(f'v_sub_u32 v{vix2}, 2047, v{vix2}')
    a('s_sub_u32 s7, s2, 64'); a('s_lshl_b32 s7, s7, 5')
    a(f'v_and_b32 v{vt0}, 15, v{vlane}'); a(f'v_lshlrev_b32 v{vt0}, 1, v{vt0}')
    a(f'v_lshl_add_u32 v{vho}, v{vix2}, 10, v{vt0}'); a(f'v_add_u32 v{vho}, s7, v{vho}')
    a(f'v_add_u32 v{vt0}, {WS_H}, v{vho}')
    a(f'global_load_ushort v{vhv}, v{vt0}, {P_WS} sc1')
    a(f'v_lshlrev_b32 v{vt0}, 2, v{vix2}'); a(f'v_add_u32 v{vt0}, {WS_STAT}, v{vt0}')
    a(f'global_load_dword v{vst2}, v{vt0}, {P_WS} sc1')
    vhi = al('hio')
    a('s_and_b32 s6, s2, 3'); a(f's_mul_i32 s6, s6, {HID_SZ}'); a(f's_mul_i32 s7, {S_W8}, {7*512}'); a('s_add_u32 s6, s6, s7'); a(f's_add_u32 s6, s6, {WS_HID}')
    a(f'v_lshrrev_b32 v{vt0}, 4, v{vlane}'); a(f'v_lshlrev_b32 v{vt0}, 4, v{vt0}'); a(f'v_lshl_add_u32 v{vt0}, v{vtk}, 6, v{vt0}')
    a(f'v_add_u32 v{vhi}, s6, v{vt0}')
    def issue_hid():
        for kk in range(7): a(f'global_load_dwordx4 {vr(vA+4*kk,4)}, v{vhi}, {P_WS} offset:{kk*512} sc1')
    poll_loop(issue_hid, list(range(vA, vA+28)), vt0, 'hid')
    stamp('hid_got')
    for kk in range(7):
        a(f'v_mfma_f32_16x16x32_bf16 {vr(acc,4)}, {vr(vA+4*kk,4)}, {vr(vB+4*kk,4)}, {"0" if kk == 0 else vr(acc,4)}')
    a(f's_lshl_b32 s6, {S_W8}, 9'); a(f's_add_u32 s6, s6, {L_PX}')
    a(f'v_lshl_add_u32 v{vt0}, v{vlane}, 4, s6')
    a('s_mov_b32 exec_hi, 0')
    a(f'ds_write_b128 v{vt0}, {vr(acc,4)}')
    a('s_mov_b32 exec_hi, -1')
    a('s_waitcnt lgkmcnt(0)')
    a('s_barrier')
    a(f's_cmp_ge_u32 {S_W8}, 2'); a('s_cbranch_scc1 L_fin')
    fp = al('fp', 8, 4)
    a(f'v_lshrrev_b32 v{vt0}, 4, v0')
    a(f'v_lshrrev_b32 v{vt1}, 2, v{vt0}'); a(f'v_lshlrev_b32 v{vt1}, 8, v{vt1}')
    a(f'v_and_b32 v{vt0}, 3, v{vt0}'); a(f'v_lshl_add_u32 v{vt1}, v{vt0}, 2, v{vt1}')
    a(f'v_and_b32 v{vt0}, 15, v{vlane}'); a(f'v_lshl_add_u32 v{vt1}, v{vt0}, 4, v{vt1}')
    a(f'v_add_u32 v{vt1}, {L_PX}, v{vt1}')
    for w in range(8): a(f'ds_read_b32 v{fp+w}, v{vt1} offset:{w*512}')
    a(f'v_lshrrev_b32 v{vt0}, 16, v{vsel2}')
    a(f'v_cmp_lt_u32 vcc, 0x7fff, v{vt0}')
    a(f'v_and_b32 v{vt2}, 0x7fff, v{vt0}'); a(f'v_xor_b32 v{vt3}, 0xffff, v{vt0}')
    a(f'v_cndmask_b32 v{vt0}, v{vt3}, v{vt2}, vcc'); a(f'v_lshlrev_b32 v{vt0}, 16, v{vt0}')
    a(f'v_mul_f32 v{vt0}, {hx(f2u(-1.4426950408889634))}, v{vt0}')
    a(f'v_exp_f32 v{vt0}, v{vt0}'); a(f'v_add_f32 v{vt0}, 1.0, v{vt0}'); a(f'v_rcp_f32 v{vt0}, v{vt0}')
    a(f'v_cvt_pk_bf16_f32 v{vt0}, v{vt0}, v{vt0}'); a(f'v_lshlrev_b32 v{vt0}, 16, v{vt0}')
    a(f'v_lshlrev_b32 v{vhv}, 16, v{vhv}')
    a(f'v_lshlrev_b32 v{vt2}, 16, v{vst2}'); a(f'v_and_b32 v{vt3}, {S_MASKHI}, v{vst2}'); a(f'v_rcp_f32 v{vt3}, v{vt3}')
    a(f'v_sub_f32 v{vt2}, v{vhv}, v{vt2}'); a(f'v_cvt_pk_bf16_f32 v{vt2}, v{vt2}, v{vt2}'); a(f'v_lshlrev_b32 v{vt2}, 16, v{vt2}')
    a(f'v_mul_f32 v{vt2}, v{vt2}, v{vt3}'); a(f'v_cvt_pk_bf16_f32 v{vt2}, v{vt2}, v{vt2}'); a(f'v_lshlrev_b32 v{vt2}, 16, v{vt2}')
    a('s_waitcnt lgkmcnt(0)')
    for (x, y) in ((0,1),(2,3),(4,5),(6,7),(0,2),(4,6),(0,4)): a(f'v_add_f32 v{fp+x}, v{fp+x}, v{fp+y}')
    def rb(r): a(f'v_cvt_pk_bf16_f32 v{r}, v{r}, v{r}'); a(f'v_lshlrev_b32 v{r}, 16, v{r}')
    rb(fp)
    a(f'v_mul_f32 v{fp}, v{fp}, v{vt0}'); rb(fp)
    a(f'v_add_f32 v{fp}, v{fp}, v{vt2}'); rb(fp)
    a(f'v_add_f32 v{fp}, v{fp}, v{vhv}')
    a(f'v_cvt_pk_bf16_f32 v{fp}, v{fp}, v{fp}')
    a(f'global_store_short v{vho}, v{fp}, {P_OUT} sc1')
    stamp('final')

def finish(a, R, cfg):
    a.label('L_fin')
    if cfg.stamps:
        n = len(cfg.stamp_names)
        a('s_waitcnt lgkmcnt(0)')
        a('s_lshl_b32 s6, s2, 3'); a('s_add_u32 s6, s6, s4'); a('s_lshl_b32 s6, s6, 8'); a(f's_add_u32 s6, s6, {WS_DBG + 0x100000}')
        a('v_mov_b32 v2, s6')
        a('s_mov_b64 exec, 1')
        for i in range(n):
            a(f'v_mov_b32 v3, s{70+2*i}')
            a(f'global_store_dword v2, v3, s[36:37] offset:{4*i}')
        a('s_mov_b64 exec, -1')
    a('s_cmp_eq_u32 s2, 0'); a('s_cbranch_scc0 L_end')
    a('s_cmp_eq_u32 s4, 0'); a('s_cbranch_scc0 L_end')
    a(f'v_mov_b32 v2, {WS_EPOCH}'); a('v_mov_b32 v3, s5')
    a('s_mov_b64 exec, 1')
    a('global_store_dword v2, v3, s[36:37]')
    a.label('L_end')
    a('s_endpgm')
    body = a.text()
    nv = 256
    hdr = open('cdna_kernels/' + NAME + '.s.ref').read().split('; Override launch geometry')[0]
    s = hdr
    s += f'; @launch grid=(256,1,1) block=(512,1,1) lds={LDS_TOTAL}\n'
    s += '.amdgcn_target "amdgcn-amd-amdhsa--gfx950"\n.text\n'
    s += f'.globl {NAME}_kernel\n.p2align 8\n.type {NAME}_kernel,@function\n{NAME}_kernel:\n'
    s += body
    s += f'''.section .rodata,"a"
.p2align 6
.amdhsa_kernel {NAME}_kernel
  .amdhsa_next_free_vgpr {nv}
  .amdhsa_next_free_sgpr 102
  .amdhsa_accum_offset {nv}
  .amdhsa_group_segment_fixed_size 0
  .amdhsa_kernarg_size 120
  .amdhsa_user_sgpr_count 2
  .amdhsa_user_sgpr_kernarg_segment_ptr 1
  .amdhsa_system_sgpr_workgroup_id_x 1
.end_amdhsa_kernel
'''
    cfg.maxv = R.maxused
    return s

if __name__ == '__main__':
    cfg = Cfg()
    out = sys.argv[1]
    for arg in sys.argv[2:]:
        k, v = arg.split('=')
        setattr(cfg, k, int(v))
    open(out, 'w').write(gen(cfg))
    import os
    if cfg.stamps: open(out + '.stamps', 'w').write('\n'.join(cfg.stamp_names))
    elif os.path.exists(out + '.stamps'): os.remove(out + '.stamps')
    print('max vgpr', cfg.maxv, 'LDS', LDS_TOTAL)
```

```python
import sys, struct, math
from asmlib import *

NAME = "sequential_preLN__ssm_conv_s4d__moe_arch_mod__prompt"
def f2u(x): return struct.unpack('<I', struct.pack('<f', x))[0]
def f32(x): return struct.unpack('<f', struct.pack('<f', x))[0]
def hx(x): return '0x%08x' % (x & 0xffffffff)

WS_EPOCH = 0x0
WS_F1 = 0x1000; R1 = 16
WS_F3 = 0x8000; R3 = 8
WS_KEY = 0x10000; RK = 8
WS_HID = 0x20000; RH = 4; HID_SZ = 56 * 512
WS_MISC = 0x10000
WS_STAT = 0x40000
WS_U = 0x100000
WS_Y = 0x300000
WS_H = 0x500000
WS_DBG = 0x800000
KC_SZ = 4160
L_KC = 0
L_UL = 16640; UL_SZ = 4608
L_TT = 25856; TT_SZ = 1536
L_RED = 28928
L_ST1 = L_RED
L_ST2 = L_RED + 512
L_RP = L_RED + 1024
L_IS = L_RED + 1280
L_WM = L_RED + 1344
L_CNT = L_RED + 1408
L_CL = L_RED + 1536
L_SEL = L_RED + 2048
L_FB = L_RED + 2560
L_D = L_RED + 4096
L_WR = L_RED + 5120
L_STG = L_RED + 6144; STG_SZ = 1536
L_BIG = L_STG + 8 * STG_SZ
FROW = 544
F_SZ = 16 * FROW; G_SZ = 48 * FROW; FG_SZ = F_SZ + G_SZ
L_PX = L_BIG + 2 * FG_SZ
PX_T = 1152; PX_C = 8 * PX_T + 64; PX_H = 2 * PX_C
LDS_TOTAL = L_PX + 2 * PX_H
assert LDS_TOTAL <= 163840, LDS_TOTAL
assert L_BIG % 16 == 0 and L_PX % 16 == 0

SPIN_LIMIT = 1 << 15

class Cfg:
    stop = 99
    dbg = 0
    stamps = 0
    rt = 0

def gen(cfg):
    a = Asm()
    R = Regs(2, 255)
    al = R.alloc
    S_P, S_W8, S_TAG = 's3', 's4', 's5'
    P_X, P_LA, P_AI, P_CR, P_CI, P_DT, P_DS = 's[8:9]', 's[10:11]', 's[12:13]', 's[14:15]', 's[16:17]', 's[18:19]', 's[20:21]'
    P_WR, P_WG, P_WU, P_WD, P_OUT, P_DBG, P_WS = 's[24:25]', 's[26:27]', 's[28:29]', 's[30:31]', 's[32:33]', 's[34:35]', 's[36:37]'
    S_SPIN = 's60'
    S_L2E, S_L2ELO, S_I2PI, S_I2PILO, S_EPS, S_MASKHI = 's62', 's63', 's64', 's65', 's66', 's67'
    cfg.stamp_names = []
    cfg.tinstr = 's_memrealtime' if cfg.rt else 's_memtime'
    G1 = ['start','kernarg','issued','x_arrived','ln1_prebar','ln1_fin','u_stored','kgen_valu','B_b','B_c','expand','B_d','conv_mfma','B_e','y_stored']
    G2 = ['start','u_stored','B_d','y_stored','y_acked','y_got','key_stored','s3_done','keys_got','top8','f3_ok','h_got','hid_stored','hid_got','final']
    sel = G1 if cfg.stamps == 1 else G2
    cfg.active = lambda name: cfg.stamps and name in sel
    def stamp(name):
        if not cfg.stamps or name not in sel: return
        i = len(cfg.stamp_names)
        assert 70 + 2 * i + 1 <= 101, 'too many stamps'
        a(f'{cfg.tinstr} s[{70+2*i}:{71+2*i}]')
        cfg.stamp_names.append(name)
    uid = [0]
    def lbl(p):
        uid[0] += 1
        return f'L_{p}_{uid[0]}'
    def if_role_a(else_lbl):
        a(f's_cmp_ge_u32 {S_W8}, 4'); a(f's_cbranch_scc1 {else_lbl}')
    def if_role_b(else_lbl):
        a(f's_cmp_lt_u32 {S_W8}, 4'); a(f's_cbranch_scc1 {else_lbl}')
    def stop_here(n):
        if cfg.stop == n:
            a('s_waitcnt vmcnt(0) lgkmcnt(0)'); a('s_branch L_fin')
            return True
        return False
    def poll_loop(issue, check_regs, tmp, name, first_issued=False, cmp_tag=False):
        l0 = lbl(name); l1 = lbl(name + 'ok')
        a(f's_mov_b32 {S_SPIN}, 0')
        if first_issued:
            lf = lbl(name + 'f'); a(f's_branch {lf}')
        a.label(l0)
        issue()
        if first_issued: a.label(lf)
        a('s_waitcnt vmcnt(0)')
        if cmp_tag:
            a(f'v_xor_b32 v{tmp}, {S_TAG}, v{check_regs[0]}')
            for r in check_regs[1:]:
                a(f'v_xor_b32 v{tmp+1}, {S_TAG}, v{r}'); a(f'v_or_b32 v{tmp}, v{tmp}, v{tmp+1}')
            a(f'v_cmp_ne_u32 vcc, 0, v{tmp}')
        else:
            rs = list(check_regs)
            a(f'v_max_u32 v{tmp}, v{rs[0]}, v{rs[1]}') if len(rs) > 1 else a(f'v_mov_b32 v{tmp}, v{rs[0]}')
            rs = rs[2:]
            while len(rs) >= 2:
                a(f'v_max3_u32 v{tmp}, v{tmp}, v{rs[0]}, v{rs[1]}'); rs = rs[2:]
            if rs: a(f'v_max_u32 v{tmp}, v{tmp}, v{rs[0]}')
            a(f'v_cmp_eq_u32 vcc, -1, v{tmp}')
        a(f's_cbranch_vccz {l1}')
        a(f's_add_u32 {S_SPIN}, {S_SPIN}, 1')
        a(f's_cmp_lt_u32 {S_SPIN}, {SPIN_LIMIT}')
        a(f's_cbranch_scc1 {l0}')
        a.label(l1)

    a('s_cmp_ge_u32 s2, 256')
    a('s_cbranch_scc1 L_end')
    a('s_load_dwordx16 s[8:23], s[0:1], 0')
    a('s_load_dwordx8 s[24:31], s[0:1], 64')
    a('s_load_dwordx4 s[32:35], s[0:1], 96')
    a('s_load_dwordx2 s[36:37], s[0:1], 112')
    if cfg.stamps:
        for i in range(70, 102): a(f's_mov_b32 s{i}, 0')
    stamp('start')
    vlane = 1
    vt0 = al('t0', 2); vt1 = vt0 + 1
    vt2 = al('t2', 2); vt3 = vt2 + 1
    a(f'v_lshrrev_b32 v{vt0}, 6, v0')
    a(f'v_and_b32 v{vlane}, 63, v0')
    a('s_and_b32 s6, s2, 7'); a('s_lshl_b32 s6, s6, 5'); a('s_lshr_b32 s7, s2, 3'); a(f's_add_u32 {S_P}, s6, s7')
    a(f'v_readfirstlane_b32 {S_W8}, v{vt0}')
    vtk = al('tk'); vcg = al('cg')
    a(f'v_and_b32 v{vtk}, 7, v{vlane}')
    a(f'v_lshrrev_b32 v{vcg}, 3, v{vlane}')
    vch = al('choff')
    a(f's_lshl_b32 s6, {S_W8}, 7')
    a(f'v_lshl_add_u32 v{vch}, v{vcg}, 4, s6')
    vrow = al('rowoff')
    a(f's_lshl_b32 s7, {S_P}, 13')
    a(f'v_lshl_add_u32 v{vrow}, v{vtk}, 10, s7')
    vxo = al('xoff')
    a(f'v_add_u32 v{vxo}, v{vrow}, v{vch}')
    vblk = al('blkoff')
    a(f'v_lshl_add_u32 v{vblk}, v0, 4, s7')
    vpo = al('paroff'); vpo2 = al('paroff2'); vdto = al('dtoff')
    a(f's_lshl_b32 s6, {S_P}, 9')
    a(f'v_lshl_add_u32 v{vpo}, v0, 1, s6')
    a(f'v_xor_b32 v{vpo2}, 128, v{vpo}')
    a(f's_lshl_b32 s6, {S_P}, 2')
    a(f'v_lshrrev_b32 v{vdto}, 7, v0')
    a(f'v_lshl_add_u32 v{vdto}, v{vdto}, 1, s6')
    a(f'v_lshlrev_b32 v{vt0}, 4, v{vlane}')
    vx = al('x', 4, 2); vpiv = al('piv', 2, 2); vD = al('D', 4, 2)
    vla = al('la'); vai = al('ai'); vcr = al('cr'); vci = al('ci'); vcr2 = al('cr2'); vci2 = al('ci2'); vldt = al('ldt')
    a('s_waitcnt lgkmcnt(0)')
    stamp('kernarg')
    a(f'global_load_dwordx4 {vr(vx,4)}, v{vxo}, {P_X}')
    a(f'global_load_ushort v{vpiv}, v{vrow}, {P_X}')
    a(f's_load_dword {S_TAG}, {P_WS}, {WS_EPOCH}')
    if_role_a('L_s0_nopar')
    a(f'global_load_ushort v{vla}, v{vpo}, {P_LA}')
    a(f'global_load_ushort v{vai}, v{vpo}, {P_AI}')
    a(f'global_load_ushort v{vcr}, v{vpo}, {P_CR}')
    a(f'global_load_ushort v{vci}, v{vpo}, {P_CI}')
    a(f'global_load_ushort v{vcr2}, v{vpo2}, {P_CR}')
    a(f'global_load_ushort v{vci2}, v{vpo2}, {P_CI}')
    a(f'global_load_ushort v{vldt}, v{vdto}, {P_DT}')
    a('s_branch L_s0_par')
    a.label('L_s0_nopar')
    a(f's_cmp_eq_u32 {S_W8}, 6'); a('s_cbranch_scc0 L_s0_n6')
    a(f'global_load_dwordx4 {vr(vD,4)}, v{vt0}, {P_DS}')
    a.label('L_s0_n6')
    a(f's_cmp_eq_u32 {S_W8}, 7'); a('s_cbranch_scc0 L_s0_par')
    a(f'global_load_dwordx4 {vr(vD,4)}, v{vt0}, {P_WR}')
    a.label('L_s0_par')
    R.release('paroff'); R.release('paroff2'); R.release('dtoff')
    vones = al('ones', 4, 2)
    for i in range(4): a(f'v_mov_b32 v{vones+i}, -1')
    a('s_mul_i32 s6, s2, 768'); a(f's_mul_i32 s7, {S_W8}, 96'); a('s_add_u32 s6, s6, s7'); a(f's_add_u32 s6, s6, {WS_MISC}')
    a(f'v_lshl_add_u32 v{vt1}, v{vlane}, 4, s6')
    a(f'v_add_u32 v{vt2}, {WS_U}, v{vblk}')
    a(f'v_add_u32 v{vt3}, {WS_Y}, v{vblk}')
    a(f'global_store_dwordx4 v{vt2}, {vr(vones,4)}, {P_WS} sc1')
    a(f'global_store_dwordx4 v{vt3}, {vr(vones,4)}, {P_WS} sc1')
    a('s_mov_b64 exec, 0x3f')
    a(f'global_store_dwordx4 v{vt1}, {vr(vones,4)}, {P_WS} sc1')
    a('s_mov_b64 exec, -1')
    stamp('issued')
    a(f's_mov_b32 {S_L2E}, {hx(f2u(1.4426950408889634))}')
    a(f's_mov_b32 {S_L2ELO}, {hx(f2u(1.4426950408889634 - f32(1.4426950408889634)))}')
    i2pi = 1.0 / (2 * math.pi)
    a(f's_mov_b32 {S_I2PI}, {hx(f2u(i2pi))}')
    a(f's_mov_b32 {S_I2PILO}, {hx(f2u(i2pi - f32(i2pi)))}')
    a(f's_mov_b32 {S_EPS}, {hx(f2u(1e-5))}')
    a(f's_mov_b32 {S_MASKHI}, 0xffff0000')
    vz = al('z', 4, 2)
    for i in range(4): a(f'v_mov_b32 v{vz+i}, 0')
    a(f's_cmp_eq_u32 {S_W8}, 4'); a('s_cbranch_scc0 L_s0_z1')
    a(f'v_lshlrev_b32 v{vt0}, 4, v{vlane}')
    a(f'v_add_u32 v{vt1}, {UL_SZ - 512}, v{vt0}')
    a(f'v_cmp_gt_u32 vcc, 32, v{vlane}')
    a(f'v_cndmask_b32 v{vt0}, v{vt1}, v{vt0}, vcc')
    a(f'ds_write_b128 v{vt0}, {vr(vz,4)} offset:{L_UL}')
    a.label('L_s0_z1')
    a(f's_cmp_eq_u32 {S_W8}, 5'); a('s_cbranch_scc0 L_s0_z2')
    a(f'v_lshrrev_b32 v{vt0}, 1, v{vlane}')
    a(f'v_mul_u32_u24 v{vt0}, {KC_SZ}, v{vt0}')
    a(f'v_and_b32 v{vt1}, 1, v{vlane}')
    a(f'v_lshl_add_u32 v{vt0}, v{vt1}, 4, v{vt0}')
    a('s_mov_b64 exec, 0xff')
    a(f'ds_write_b128 v{vt0}, {vr(vz,4)} offset:{L_KC + 4096}')
    a('s_mov_b64 exec, -1')
    a.label('L_s0_z2')
    R.release('z'); R.release('ones')

    vTw = al('Tw'); vTs = al('Ts')
    a(f'v_and_b32 v{vt0}, 15, v{vlane}')
    a(f'v_lshrrev_b32 v{vt1}, 4, v{vlane}')
    a(f's_cmp_ge_u32 {S_W8}, 4'); a('s_cbranch_scc1 L_s0_t2')
    a(f's_bitcmp1_b32 {S_W8}, 0'); a('s_cbranch_scc1 L_s0_t1')
    a(f'v_lshrrev_b32 v{vt2}, 3, v{vt0}'); a(f'v_lshlrev_b32 v{vt2}, 7, v{vt2}')
    a(f'v_and_b32 v{vt3}, 7, v{vt0}'); a(f'v_add_u32 v{vTw}, v{vt2}, v{vt3}')
    a(f'v_mov_b32 v{vTs}, 8')
    a('s_branch L_s0_td')
    a.label('L_s0_t1')
    a(f'v_lshrrev_b32 v{vt2}, 2, v{vt0}'); a(f'v_lshlrev_b32 v{vt2}, 6, v{vt2}')
    a(f'v_and_b32 v{vt3}, 3, v{vt0}'); a(f'v_add_u32 v{vt2}, v{vt2}, v{vt3}'); a(f'v_add_u32 v{vTw}, 256, v{vt2}')
    a(f'v_lshrrev_b32 v{vt2}, 1, v{vt0}'); a(f'v_lshlrev_b32 v{vt2}, 5, v{vt2}')
    a(f'v_and_b32 v{vt3}, 1, v{vt0}'); a(f'v_add_u32 v{vt2}, v{vt2}, v{vt3}'); a(f'v_add_u32 v{vt2}, 256, v{vt2}')
    a(f'v_cmp_gt_u32 vcc, 8, v{vt0}')
    a(f'v_cndmask_b32 v{vTw}, v{vt2}, v{vTw}, vcc')
    a(f'v_mov_b32 v{vt2}, 2'); a(f'v_mov_b32 v{vt3}, 4'); a(f'v_cndmask_b32 v{vTs}, v{vt2}, v{vt3}, vcc')
    a('s_branch L_s0_td')
    a.label('L_s0_t2')
    a(f'v_lshlrev_b32 v{vTw}, 4, v{vt0}'); a(f'v_add_u32 v{vTw}, 512, v{vTw}')
    a(f'v_mov_b32 v{vTs}, 1')
    a.label('L_s0_td')
    a(f'v_lshlrev_b32 v{vt1}, 2, v{vt1}')
    a(f'v_mul_u32_u24 v{vt1}, v{vt1}, v{vTs}')
    a(f'v_add_u32 v{vTw}, v{vTw}, v{vt1}')
    a(f'v_lshlrev_b32 v{vTw}, 1, v{vTw}')
    a(f'v_lshlrev_b32 v{vTs}, 1, v{vTs}')
    S_KC, S_KT = 's40', 's41'
    a(f's_lshr_b32 {S_KC}, {S_W8}, 1'); a(f's_and_b32 {S_KT}, {S_W8}, 1')
    a(f's_sub_u32 s6, {S_W8}, 4')
    a(f's_cmp_ge_u32 {S_W8}, 4'); a(f's_cselect_b32 {S_KC}, s6, {S_KC}'); a(f's_cselect_b32 {S_KT}, 2, {S_KT}')
    a(f's_mul_i32 s6, {S_KC}, {TT_SZ}'); a(f's_add_u32 s6, s6, {L_TT}')
    a(f'v_add_u32 v{vTw}, s6, v{vTw}')

    def unpack8(dst, src):
        for j in range(4):
            a(f'v_lshlrev_b32 v{dst+2*j}, 16, v{src+j}')
            a(f'v_and_b32 v{dst+2*j+1}, {S_MASKHI}, v{src+j}')
    def cvt4(dst, src, kind='bf16'):
        for j in range(4):
            a(f'v_cvt_pk_{kind}_f32 v{dst+j}, v{src+2*j}, v{src+2*j+1}')
    def xlane2(p, t, op='add_f32', pk=True):
        a(f'v_add_f32_dpp v{p}, v{p}, v{p} row_ror:8 row_mask:0xf bank_mask:0xf')
        a(f'v_add_f32_dpp v{p+1}, v{p+1}, v{p+1} row_ror:8 row_mask:0xf bank_mask:0xf')
        for sw in ('16', '32'):
            a(f'v_mov_b32 v{t}, v{p}'); a(f'v_mov_b32 v{t+1}, v{p+1}')
            a(f'v_permlane{sw}_swap_b32 v{t}, v{p}'); a(f'v_permlane{sw}_swap_b32 v{t+1}, v{p+1}')
            a(f'v_pk_add_f32 {vr(p,2)}, {vr(p,2)}, {vr(t,2)}')
    def xlane1(p, t, op, full=False):
        if full:
            for ror in (1, 2, 4):
                a(f'v_{op}_dpp v{p}, v{p}, v{p} row_ror:{ror} row_mask:0xf bank_mask:0xf')
        a(f'v_{op}_dpp v{p}, v{p}, v{p} row_ror:8 row_mask:0xf bank_mask:0xf')
        for sw in ('16', '32'):
            a(f'v_mov_b32 v{t}, v{p}')
            a(f'v_permlane{sw}_swap_b32 v{t}, v{p}')
            a(f'v_{op} v{p}, v{p}, v{t}')
    def ln_stats_partial(xf, piv, d, S, t, lds_off):
        for j in range(4):
            a(f'v_pk_add_f32 {vr(d+2*j,2)}, {vr(xf+2*j,2)}, {vr(piv,2)} op_sel_hi:[1,0] neg_lo:[0,1] neg_hi:[0,1]')
        a(f'v_pk_mul_f32 {vr(t,2)}, {vr(d,2)}, {vr(d,2)}')
        a(f'v_pk_add_f32 {vr(S,2)}, {vr(d,2)}, {vr(d+2,2)}')
        a(f'v_pk_fma_f32 {vr(t,2)}, {vr(d+2,2)}, {vr(d+2,2)}, {vr(t,2)}')
        a(f'v_pk_add_f32 {vr(d,2)}, {vr(d+4,2)}, {vr(d+6,2)}')
        a(f'v_pk_fma_f32 {vr(t,2)}, {vr(d+4,2)}, {vr(d+4,2)}, {vr(t,2)}')
        a(f'v_pk_add_f32 {vr(S,2)}, {vr(S,2)}, {vr(d,2)}')
        a(f'v_pk_fma_f32 {vr(t,2)}, {vr(d+6,2)}, {vr(d+6,2)}, {vr(t,2)}')
        a(f'v_add_f32 v{S}, v{S}, v{S+1}')
        a(f'v_add_f32 v{S+1}, v{t}, v{t+1}')
        xlane2(S, t)
        a(f's_lshl_b32 s6, {S_W8}, 3')
        a(f'v_lshl_add_u32 v{t}, v{vtk}, 6, s6')
        a('s_mov_b64 exec, 0xff')
        a(f'ds_write_b64 v{t}, {vr(S,2)} offset:{lds_off}')
        a('s_mov_b64 exec, -1')
    def ln_finish(xf, piv, d, S, t, lds_off, m, rs, sout):
        a(f'v_lshlrev_b32 v{t}, 6, v{vtk}')
        for j in range(4): a(f'ds_read_b128 {vr(d+4*j,4)}, v{t} offset:{lds_off + 16*j}')
        a('s_waitcnt lgkmcnt(0)')
        for j in (0, 4, 8, 12): a(f'v_pk_add_f32 {vr(d+j,2)}, {vr(d+j,2)}, {vr(d+j+2,2)}')
        a(f'v_pk_add_f32 {vr(d,2)}, {vr(d,2)}, {vr(d+4,2)}')
        a(f'v_pk_add_f32 {vr(d+8,2)}, {vr(d+8,2)}, {vr(d+12,2)}')
        a(f'v_pk_add_f32 {vr(S,2)}, {vr(d,2)}, {vr(d+8,2)}')
        inv = hx(f2u(1.0/512))
        a(f'v_mul_f32 v{S}, {inv}, v{S}')
        a(f'v_mul_f32 v{S+1}, {inv}, v{S+1}')
        a(f'v_fma_f32 v{S+1}, -v{S}, v{S}, v{S+1}')
        a(f'v_add_f32 v{S}, v{piv}, v{S}')
        a(f'v_max_f32 v{S+1}, 0, v{S+1}')
        a(f'v_cvt_pk_bf16_f32 v{t}, v{S}, v{S+1}')
        a(f'v_lshlrev_b32 v{m}, 16, v{t}')
        a(f'v_and_b32 v{t}, {S_MASKHI}, v{t}')
        a(f'v_add_f32 v{t}, {S_EPS}, v{t}')
        a(f'v_cvt_pk_bf16_f32 v{t}, v{t}, v{t}')
        a(f'v_lshlrev_b32 v{t}, 16, v{t}')
        a(f'v_sqrt_f32 v{t}, v{t}')
        a(f'v_cvt_pk_bf16_f32 v{t}, v{t}, v{t}')
        a(f'v_lshlrev_b32 v{sout}, 16, v{t}')
        a(f'v_rcp_f32 v{rs}, v{sout}')
        normalize(xf, m, rs, d)
    def normalize(xf, m, rs, d):
        for j in range(4):
            a(f'v_pk_add_f32 {vr(d+2*j,2)}, {vr(xf+2*j,2)}, {vr(m,2)} op_sel_hi:[1,0] neg_lo:[0,1] neg_hi:[0,1]')
        cvt4(d+8, d)
        unpack8(d, d+8)
        for j in range(4):
            a(f'v_pk_mul_f32 {vr(d+2*j,2)}, {vr(d+2*j,2)}, {vr(rs,2)} op_sel_hi:[1,0]')
        cvt4(d+8, d)

    vxf = al('xf', 8, 2); vud = al('ud', 8, 2); vm1 = al('m1', 2, 2)
    vd = al('d', 16, 4); vS = al('S', 2, 2); vt = al('t', 2, 2); vrs = al('rs', 2, 2); vs_ = al('s', 2, 2)
    stamp('precomp')
    a('s_waitcnt vmcnt(0)')
    stamp('x_arrived')
    unpack8(vxf, vx)
    a(f'v_lshlrev_b32 v{vpiv}, 16, v{vpiv}')
    a(f's_cmp_lt_u32 {S_W8}, 6'); a('s_cbranch_scc1 L_s1_nodw')
    a(f's_sub_u32 s6, {S_W8}, 6'); a('s_lshl_b32 s6, s6, 10'); a(f's_add_u32 s6, s6, {L_D}')
    a(f'v_lshl_add_u32 v{vt0}, v{vlane}, 4, s6')
    a(f'ds_write_b128 v{vt0}, {vr(vD,4)}')
    a.label('L_s1_nodw')
    ln_stats_partial(vxf, vpiv, vd, vS, vt, L_ST1)
    a('s_waitcnt lgkmcnt(0)')
    stamp('ln1_prebar')
    a('s_barrier')
    a(f's_add_u32 {S_TAG}, {S_TAG}, 1')
    if_role_b('L_s1_nof1')
    a(f's_sub_u32 s6, {S_W8}, 4'); a('s_lshl_b32 s6, s6, 12')
    a('s_lshl_b32 s7, s2, 2'); a('s_add_u32 s6, s6, s7'); a(f's_add_u32 s6, s6, {WS_F1}')
    a(f'v_lshl_add_u32 v{vt0}, v{vlane}, 10, s6')
    a(f'v_mov_b32 v{vt1}, {S_TAG}')
    a('s_mov_b64 exec, 0xf')
    a(f'global_store_dword v{vt0}, v{vt1}, {P_WS} sc1')
    a('s_mov_b64 exec, -1')
    a.label('L_s1_nof1')
    a(f'ds_read_b128 {vr(vD,4)}, v{vch} offset:{L_D}')
    ln_finish(vxf, vpiv, vd, vS, vt, L_ST1, vm1, vrs, vs_)
    stamp('ln1_fin')
    unpack8(vd, vd+8)
    cvt4(vd+12, vd, 'f16')
    S_STG = 's42'
    a(f's_mul_i32 {S_STG}, {S_W8}, {STG_SZ}'); a(f's_add_u32 {S_STG}, {S_STG}, {L_STG}')
    a(f'v_mul_u32_u24 v{vt0}, 192, v{vtk}')
    a(f'v_lshl_add_u32 v{vt0}, v{vcg}, 4, v{vt0}')
    a(f'v_add_u32 v{vt0}, {S_STG}, v{vt0}')
    a(f'ds_write_b128 v{vt0}, {vr(vd+12,4)}')
    a(f'v_bfe_u32 v{vt1}, v{vlane}, 2, 2')
    a(f'v_mul_u32_u24 v{vt1}, 192, v{vt1}')
    a(f'v_lshrrev_b32 v{vt2}, 4, v{vlane}')
    a(f'v_lshl_add_u32 v{vt1}, v{vt2}, 5, v{vt1}')
    a(f'v_and_b32 v{vt2}, 3, v{vlane}')
    a(f'v_lshl_add_u32 v{vt1}, v{vt2}, 3, v{vt1}')
    a(f'v_add_u32 v{vt1}, {S_STG}, v{vt1}')
    a(f'v_add_u32 v{vt2}, {WS_U}, v{vblk}')
    a('s_waitcnt lgkmcnt(0)')
    a(f'ds_read_b64_tr_b16 {vr(vd+8,2)}, v{vt1}')
    a(f'ds_read_b64_tr_b16 {vr(vd+10,2)}, v{vt1} offset:{4*192}')
    unpack8(vud, vD)
    for j in range(4): a(f'v_pk_mul_f32 {vr(vud+2*j,2)}, {vr(vud+2*j,2)}, {vr(vd+2*j,2)}')
    a('s_waitcnt lgkmcnt(0)')
    a(f'global_store_dwordx4 v{vt2}, {vr(vd+8,4)}, {P_WS} sc1')
    stamp('u_stored')
    cvt4(vd+12, vud)
    unpack8(vud, vd+12)
    R.release('x'); R.release('D'); R.release('piv')
    for n in ('d', 'S', 't', 'rs', 's'): R.release(n)
    if stop_here(1): return finish(a, R, cfg)

    if_role_a('L_k_roleB')
    kt = al('kt', 12, 2)
    def exp_acc(x, t1, t2):
        a(f'v_mul_f32 v{t1}, {S_L2E}, v{x}')
        a(f'v_fma_f32 v{t2}, v{x}, {S_L2E}, -v{t1}')
        a(f'v_fma_f32 v{t2}, v{x}, {S_L2ELO}, v{t2}')
        a(f'v_exp_f32 v{x}, v{t1}')
        a(f'v_mul_f32 v{t2}, {hx(f2u(math.log(2)))}, v{t2}')
        a(f'v_fma_f32 v{x}, v{x}, v{t2}, v{x}')
    for r in (vla, vai, vcr, vci, vcr2, vci2, vldt): a(f'v_lshlrev_b32 v{r}, 16, v{r}')
    exp_acc(vldt, kt, kt+1); exp_acc(vla, kt+2, kt+3)
    a(f'v_cvt_pk_bf16_f32 v{kt}, v{vldt}, v{vla}')
    vdt = vldt; vAr = vla
    a(f'v_lshlrev_b32 v{vdt}, 16, v{kt}')
    a(f'v_and_b32 v{vAr}, {S_MASKHI}, v{kt}')
    vsum = kt + 4
    a(f'v_add_f32 v{vsum}, |v{vcr}|, |v{vci}|')
    a(f'v_add_f32 v{kt+5}, |v{vcr2}|, |v{vci2}|')
    a(f'v_add_f32 v{vsum}, v{vsum}, v{kt+5}')
    xlane1(vsum, kt+5, 'add_f32', full=True)
    val_ = al('al'); vfh = al('fh'); vfl = al('fl'); v2dt = al('2dt')
    a(f'v_mul_f32 v{val_}, v{vAr}, v{vdt}')
    a(f'v_mul_f32 v{val_}, {S_L2E}, v{val_}')
    a(f'v_mul_f32 v{kt}, v{vai}, v{vdt}')
    a(f'v_mul_f32 v{vfh}, {S_I2PI}, v{kt}')
    a(f'v_fma_f32 v{vfl}, v{kt}, {S_I2PI}, -v{vfh}')
    a(f'v_fma_f32 v{vfl}, v{kt}, {S_I2PILO}, v{vfl}')
    a(f'v_add_f32 v{v2dt}, v{vdt}, v{vdt}')
    a(f'v_mul_f32 v{vsum}, v{vsum}, v{v2dt}')
    a(f'v_frexp_exp_i32_f32 v{kt+5}, v{vsum}')
    a(f'v_sub_u32 v{kt+6}, 15, v{kt+5}')
    a(f'v_ldexp_f32 v{v2dt}, v{v2dt}, v{kt+6}')
    a(f'v_subrev_u32 v{kt+5}, 15, v{kt+5}')
    a(f'v_mov_b32 v{kt+6}, 1.0')
    a(f'v_ldexp_f32 v{kt+6}, v{kt+6}, v{kt+5}')
    a(f's_lshr_b32 s6, {S_W8}, 1'); a('s_lshl_b32 s6, s6, 2'); a(f's_add_u32 s6, s6, {L_IS}')
    a(f'v_mov_b32 v{kt+7}, s6')
    a('s_mov_b64 exec, 1')
    a(f'ds_write_b32 v{kt+7}, v{kt+6}')
    a('s_mov_b64 exec, -1')
    E1 = al('E1', 2, 2); E8 = al('E8', 2, 2); E128 = al('E128', 2, 2)
    def anchor(E, p):
        a(f'v_mul_f32 v{kt}, {hx(f2u(-float(p)))}, v{val_}')
        a(f'v_mul_f32 v{kt+1}, {hx(f2u(float(p)))}, v{vfh}')
        a(f'v_exp_f32 v{kt}, v{kt}')
        a(f'v_fract_f32 v{kt+1}, v{kt+1}')
        a(f'v_fma_f32 v{kt+1}, v{vfl}, {hx(f2u(float(p))) if False else "v%d" % (kt+8)}, v{kt+1}') if False else None
        a(f'v_mov_b32 v{kt+2}, {hx(f2u(float(p)))}')
        a(f'v_fma_f32 v{kt+1}, v{vfl}, v{kt+2}, v{kt+1}')
        a(f'v_cos_f32 v{E}, v{kt+1}')
        a(f'v_sin_f32 v{E+1}, v{kt+1}')
        a(f'v_pk_mul_f32 {vr(E,2)}, {vr(E,2)}, {vr(kt,2)} op_sel_hi:[1,0]')
    anchor(E8, 8); anchor(E128, 128); anchor(E1, 1)
    def cmul(d, x, y):
        a(f'v_pk_mul_f32 {vr(d,2)}, {vr(x,2)}, {vr(y,2)} op_sel:[0,0] op_sel_hi:[0,1]')
        a(f'v_pk_fma_f32 {vr(d,2)}, {vr(x,2)}, {vr(y,2)}, {vr(d,2)} op_sel:[1,1,0] op_sel_hi:[1,0,1] neg_lo:[1,0,0]')
    vfa = al('fa')
    a(f's_lshr_b32 s6, {S_W8}, 1'); a(f's_mul_i32 s6, s6, {FG_SZ}'); a(f's_add_u32 s6, s6, {L_BIG}')
    a(f'v_and_b32 v{vfa}, 127, v0')
    a(f'v_lshl_add_u32 v{vfa}, v{vfa}, 2, s6')
    cv = [kt+8, kt+9, kt+10, kt+11]; cvi = [0]
    def put(row, val, isG):
        t = cv[cvi[0] % 4]; cvi[0] += 1
        if isG:
            a(f'v_cvt_pk_f16_f32 v{t}, v{val}, -v{val+1}')
            a(f'ds_write_b32 v{vfa}, v{t} offset:{F_SZ + row*FROW}')
        else:
            a(f'v_cvt_pk_f16_f32 v{t}, v{val}, v{val+1}')
            a(f'ds_write_b32 v{vfa}, v{t} offset:{row*FROW}')
    Fa = al('Fa', 2, 2); Fb = al('Fb', 2, 2); Ha = al('Ha', 2, 2); Hb = al('Hb', 2, 2)
    O = [None] + [al(f'O{i}', 2, 2) for i in range(1, 8)]
    Gt = [al('Gt0', 2, 2), al('Gt1', 2, 2)]
    a(f'v_mov_b32 v{O[1]}, v{E1}'); a(f'v_mov_b32 v{O[1]+1}, v{E1+1}')
    a(f'v_mov_b32 v{cv[0]}, 0x00003c00'); a(f'ds_write_b32 v{vfa}, v{cv[0]} offset:0'); cvi[0] = 1
    put(1, E8, False)
    a(f'v_mul_f32 v{Ha}, v{vcr}, v{v2dt}'); a(f'v_mul_f32 v{Ha+1}, v{vci}, v{v2dt}')
    cmul(O[2], O[1], O[1]); cmul(Fa, E8, E8); put(2, Fa, False)
    cmul(O[3], O[2], O[1]); cmul(O[4], O[2], O[2])
    cmul(O[5], O[4], O[1]); cmul(O[6], O[4], O[2]); cmul(O[7], O[4], O[3])
    Fcur, Fnx = Fa, Fb; Hcur, Hnx = Ha, Hb
    fj = 3
    def gcol(i, o):
        if i < 2: return 8*i + o
        if i < 4: return 16 + 4*(i-2) + o//2
        if i < 8: return 24 + 2*(i-4) + o//4
        return 32 + (i-8)
    gi = 0
    for i in range(0, 17):
        offs = list(range(8)) if i < 2 else ([0,2,4,6] if i < 4 else ([0,4] if i < 8 else [0]))
        put(gcol(i, 0), Hcur, True)
        if i < 16: cmul(Hnx, Hcur, E128)
        for o in offs[1:]:
            g = Gt[gi % 2]; gi += 1
            cmul(g, Hcur, O[o]); put(gcol(i, o), g, True)
        if fj <= 15:
            cmul(Fnx, Fcur, E8); put(fj, Fnx, False); Fcur, Fnx = Fnx, Fcur; fj += 1
        Hcur, Hnx = Hnx, Hcur
    assert fj == 16
    a('s_waitcnt lgkmcnt(0)')
    stamp('kgen_valu')
    for n in ['kt','al','fh','fl','2dt','E1','E8','E128','fa','Fa','Fb','Ha','Hb','Gt0','Gt1'] + [f'O{i}' for i in range(1,8)]: R.release(n)
    for n in ('la','ai','cr','ci','cr2','ci2','ldt'): R.release(n)
    a('s_branch L_k_bb')
    a.label('L_k_roleB')
    vTa = al('Ta', 10, 2); vKw = al('Kw'); vz8 = al('z8')
    vf = al('f1', 4, 2); vfo = al('f1off'); vug = al('ugoff'); vul = al('ulds')
    a('s_lshl_b32 s6, s2, 2'); a(f's_add_u32 s6, s6, {S_W8}'); a('s_and_b32 s6, s6, 15'); a('s_lshl_b32 s6, s6, 10'); a(f's_add_u32 s6, s6, {WS_F1}')
    a(f'v_lshl_add_u32 v{vfo}, v{vlane}, 4, s6')
    a(f'global_load_dwordx4 {vr(vf,4)}, v{vfo}, {P_WS} sc1')
    a(f'v_and_b32 v{vz8}, 255, v0')
    a(f'v_lshlrev_b32 v{vug}, 13, v{vz8}')
    a(f's_lshl_b32 s6, {S_P}, 5'); a(f's_add_u32 s6, s6, {WS_U}')
    a(f'v_add_u32 v{vug}, s6, v{vug}')
    a(f'v_lshlrev_b32 v{vul}, 4, v{vz8}')
    a(f'v_sub_u32 v{vKw}, 255, v{vz8}')
    a(f'v_lshlrev_b32 v{vKw}, 4, v{vKw}')
    a(f'v_lshlrev_b32 v{vz8}, 3, v{vz8}')
    a(f'v_add_u32 v{vz8}, 9, v{vz8}')
    for k in range(10):
        d = vTa + k
        a(f'v_subrev_u32 v{d}, {k}, v{vz8}')
        a(f'v_cvt_f32_u32 v{vt0}, v{d}')
        a(f'v_cvt_pk_bf16_f32 v{vt0}, v{vt0}, v{vt0}')
        a(f'v_and_b32 v{vt0}, 0xffff, v{vt0}')
        a(f'v_subrev_u32 v{vt0}, 17024, v{vt0}')
        a(f'v_min_u32 v{d}, 128, v{d}')
        a(f'v_max_i32 v{d}, v{vt0}, v{d}')
        a(f'v_lshlrev_b32 v{d}, 1, v{d}')
    R.release('z8')
    stamp('kgen_valu')  if False else None
    if cfg.active('kgen_valu'): a(f'{cfg.tinstr} s[{70+2*(len(cfg.stamp_names)-1)}:{71+2*(len(cfg.stamp_names)-1)}]')
    a.label('L_k_bb')
    a('s_barrier')
    stamp('B_b')
    vu = al('u', 8, 2)
    if_role_b('L_k_nog')
    poll_loop(lambda: a(f'global_load_dwordx4 {vr(vf,4)}, v{vfo}, {P_WS} sc1'), [vf, vf+1, vf+2, vf+3], vt0, 'f1', first_issued=True, cmp_tag=True)
    a(f'global_load_dwordx4 {vr(vu,4)}, v{vug}, {P_WS} sc1')
    a(f'global_load_dwordx4 {vr(vu+4,4)}, v{vug}, {P_WS} offset:16 sc1')
    a.label('L_k_nog')
    a(f's_cmp_ge_u32 {S_W8}, 6'); a('s_cbranch_scc1 L_k_nomf')
    vA = al('kA', 32, 4); vB = al('kB', 32, 4); vacc = al('kacc', 4, 4); vaa = al('kaa'); vba = al('kba')
    a(f's_mul_i32 s6, {S_KC}, {FG_SZ}'); a(f's_add_u32 s6, s6, {L_BIG}')
    a(f'v_and_b32 v{vt0}, 15, v{vlane}'); a(f'v_mul_u32_u24 v{vt0}, {FROW}, v{vt0}')
    a(f'v_lshrrev_b32 v{vt1}, 4, v{vlane}'); a(f'v_lshl_add_u32 v{vt0}, v{vt1}, 4, v{vt0}')
    a(f'v_add_u32 v{vaa}, s6, v{vt0}')
    a(f's_mul_i32 s7, {S_KT}, {16*FROW}'); a('s_add_u32 s6, s6, s7'); a(f's_add_u32 s6, s6, {F_SZ}')
    a(f'v_add_u32 v{vba}, s6, v{vt0}')
    for k in range(8):
        a(f'ds_read_b128 {vr(vA+4*k,4)}, v{vaa} offset:{64*k}')
        a(f'ds_read_b128 {vr(vB+4*k,4)}, v{vba} offset:{64*k}')
        if k == 6: a('s_waitcnt lgkmcnt(10)') if False else None
    for k in range(8):
        a(f's_waitcnt lgkmcnt({min(15, 2*(7-k))})')
        a(f'v_mfma_f32_16x16x32_f16 {vr(vacc,4)}, {vr(vA+4*k,4)}, {vr(vB+4*k,4)}, {"0" if k == 0 else vr(vacc,4)}')
    a(f'v_add_u32 v{vt0}, v{vTw}, v{vTs}')
    a(f'v_add_u32 v{vt1}, v{vt0}, v{vTs}')
    a(f'v_add_u32 v{vt2}, v{vt1}, v{vTs}')
    a(f'v_cvt_pk_f16_f32 v{vA}, v{vacc}, v{vacc+1}')
    a(f'v_cvt_pk_f16_f32 v{vA+1}, v{vacc+2}, v{vacc+3}')
    a(f'ds_write_b16 v{vTw}, v{vA}')
    a(f'ds_write_b16_d16_hi v{vt0}, v{vA}')
    a(f'ds_write_b16 v{vt1}, v{vA+1}')
    a(f'ds_write_b16_d16_hi v{vt2}, v{vA+1}')
    for n in ('kA','kB','kacc','kaa','kba'): R.release(n)
    a.label('L_k_nomf')
    a('s_waitcnt lgkmcnt(0)')
    a('s_barrier')
    stamp('B_c')
    R.release('Tw'); R.release('Ts')
    if_role_b('L_k_noexp')
    ve = al('e', 20, 2); vp = al('ep', 8, 4)
    for c in range(2):
        for k in range(10):
            a(f'ds_read_u16 v{ve+10*c+k}, v{vTa+k} offset:{L_TT + c*TT_SZ}')
    for c in range(2):
        e = ve + 10*c
        a(f's_waitcnt lgkmcnt({10 if c == 0 else 2})')
        for j in range(4): a(f'v_lshl_or_b32 v{vp+j}, v{e+2*j+2}, 16, v{e+2*j+1}')
        for j in range(4): a(f'v_lshl_or_b32 v{vp+4+j}, v{e+2*j+1}, 16, v{e+2*j}')
        a(f'ds_write_b128 v{vKw}, {vr(vp,4)} offset:{L_KC + (2*c)*KC_SZ}')
        a(f'ds_write_b128 v{vKw}, {vr(vp+4,4)} offset:{L_KC + (2*c+1)*KC_SZ}')
        a(f's_cmp_eq_u32 {S_W8}, 4'); l = lbl('tail'); a(f's_cbranch_scc0 {l}')
        a(f'v_lshl_or_b32 v{vt1}, v{e+9}, 16, v{e+8}')
        a(f'v_mov_b32 v{vt0}, 4096')
        a('s_mov_b64 exec, 1')
        a(f'ds_write_b32 v{vt0}, v{e+9} offset:{L_KC + (2*c)*KC_SZ}')
        a(f'ds_write_b32 v{vt0}, v{vt1} offset:{L_KC + (2*c+1)*KC_SZ}')
        a('s_mov_b64 exec, -1')
        a.label(l)
    R.release('e'); R.release('ep')
    stamp('expand')
    def issue_u():
        a(f'global_load_dwordx4 {vr(vu,4)}, v{vug}, {P_WS} sc1')
        a(f'global_load_dwordx4 {vr(vu+4,4)}, v{vug}, {P_WS} offset:16 sc1')
    poll_loop(issue_u, list(range(vu, vu+8)), vt0, 'u', first_issued=True)
    a(f'ds_write_b128 v{vul}, {vr(vu,4)} offset:{L_UL + 512}')
    a(f'ds_write_b128 v{vul}, {vr(vu+4,4)} offset:{L_UL + UL_SZ + 512}')
    a('s_branch L_k_bd')
    a.label('L_k_noexp')
    if cfg.active('expand'): a(f'{cfg.tinstr} s[{70+2*(len(cfg.stamp_names)-1)}:{71+2*(len(cfg.stamp_names)-1)}]')
    a.label('L_k_bd')
    for n in ('Ta','Kw','f1','f1off','ugoff','ulds','u'): R.release(n)
    a('s_waitcnt lgkmcnt(0)')
    a('s_barrier')
    stamp('B_d')
    if cfg.dbg:
        dv = al('dv', 4, 4); da = al('da');
        a(f's_lshl_b32 s6, {S_P}, 15'); a(f's_add_u32 s6, s6, 0x1000000')
        for it in range(3):
            a(f'v_lshlrev_b32 v{da}, 4, v0'); a(f'v_add_u32 v{da}, {it*8192}, v{da}')
            a(f'v_min_u32 v{da}, {L_UL + 2*UL_SZ - 16}, v{da}')
            a(f'ds_read_b128 {vr(dv,4)}, v{da}')
            a(f'v_add_u32 v{da}, s6, v{da}')
            a('s_waitcnt lgkmcnt(0)')
            a(f'global_store_dwordx4 v{da}, {vr(dv,4)}, {P_WS}')
            a('s_waitcnt vmcnt(0)')
        R.release('dv'); R.release('da')
    if stop_here(2): return finish(a, R, cfg)

    if_role_a('L_c_roleB')
    acc = al('acc', 32, 4)
    FA = [al('FA0', 32, 4), al('FA1', 32, 4)]; FB = [al('FB0', 32, 4), al('FB1', 32, 4)]
    vLA = al('LA', 4); vLB = al('LB')
    a(f's_lshr_b32 s6, {S_W8}, 1'); a(f's_and_b32 s7, {S_W8}, 1')
    a(f'v_and_b32 v{vt0}, 15, v{vlane}'); a(f'v_lshrrev_b32 v{vt1}, 4, v{vlane}')
    a(f'v_and_b32 v{vt2}, 1, v{vt0}')
    a(f'v_mul_u32_u24 v{vt3}, {KC_SZ + 2}, v{vt2}')
    a(f'v_lshl_add_u32 v{vt3}, v{vt1}, 4, v{vt3}')
    a(f'v_lshlrev_b32 v{vt2}, 1, v{vt0}')
    a(f'v_sub_u32 v{vt3}, v{vt3}, v{vt2}')
    a(f's_mul_i32 s38, s6, {2*KC_SZ}'); a('s_lshl_b32 s39, s7, 8');
    a('s_sub_u32 s38, s38, s39'); a(f's_add_u32 s38, s38, {L_KC + 4064 - 64*15}')
    a(f'v_add_u32 v{vLA}, s38, v{vt3}')
    for J in range(1, 4): a(f'v_subrev_u32 v{vLA+J}, {1024*J}, v{vLA}')
    a(f'v_lshl_add_u32 v{vt2}, v{vt0}, 1, v{vt1}')
    a(f's_mul_i32 s38, s6, {UL_SZ}'); a('s_sub_u32 s38, s38, s39'); a(f's_add_u32 s38, s38, {L_UL + 480 - 192}')
    a(f'v_lshl_add_u32 v{vLB}, v{vt2}, 4, s38')
    def frag_loads(rho, buf):
        L = []
        for j in range(8):
            J = j >> 1; o = 16 * (15 - (rho + 8 * (j & 1)))
            L.append(f'ds_read_b128 {vr(FB[buf]+4*j,4)}, v{vLB} offset:{512*j + 64*(3-rho)}')
            L.append(f'ds_read2_b32 {vr(FA[buf]+4*j,2)}, v{vLA+J} offset0:{o} offset1:{o+1}')
            L.append(f'ds_read2_b32 {vr(FA[buf]+4*j+2,2)}, v{vLA+J} offset0:{o+2} offset1:{o+3}')
        return L
    for l in frag_loads(0, 0): a(l)
    for rho in range(4):
        buf = rho & 1
        nxt = frag_loads(rho + 1, buf ^ 1) if rho < 3 else []
        a('s_waitcnt lgkmcnt(0)')
        k = 0
        for j in range(8):
            for tp in range(8 - j):
                t = j + tp
                src = '0' if (rho == 0 and j == 0) else vr(acc+4*t,4)
                a(f'v_mfma_f32_16x16x32_f16 {vr(acc+4*t,4)}, {vr(FA[buf]+4*j,4)}, {vr(FB[buf]+4*tp,4)}, {src}')
                if k < len(nxt): a(nxt[k])
                k += 1
    stamp('conv_mfma')
    a(f's_mul_i32 s38, s6, {PX_C}'); a(f's_mul_i32 s39, s7, {PX_H}'); a('s_add_u32 s38, s38, s39'); a(f's_add_u32 s38, s38, {L_PX}')
    a(f'v_lshrrev_b32 v{vt0}, 5, v{vlane}'); a(f'v_lshlrev_b32 v{vt0}, 7, v{vt0}')
    a(f'v_lshl_add_u32 v{vt0}, v{vlane}, 4, v{vt0}')
    a(f'v_add_u32 v{vt0}, s38, v{vt0}')
    for t in range(8): a(f'ds_write_b128 v{vt0}, {vr(acc+4*t,4)} offset:{t*PX_T}')
    for n in ('acc','FA0','FA1','FB0','FB1','LA','LB'): R.release(n)
    a('s_branch L_c_be')
    a.label('L_c_roleB')
    if cfg.active('conv_mfma'): a(f'{cfg.tinstr} s[{70+2*(len(cfg.stamp_names)-1)}:{71+2*(len(cfg.stamp_names)-1)}]')
    gen_roleB_conv(a, R, cfg, locals())
    a.label('L_c_be')
    a('s_waitcnt lgkmcnt(0)')
    a('s_barrier')
    stamp('B_e')
    ep = al('ep', 16, 4); vis = al('is', 2, 2)
    a(f'v_lshrrev_b32 v{vt0}, 1, v0')
    a(f'v_and_b32 v{vt1}, 1, v0')
    a(f'v_mul_u32_u24 v{vt2}, {PX_C}, v{vt1}')
    a(f'v_lshrrev_b32 v{vt3}, 5, v{vt0}'); a(f'v_mul_u32_u24 v{vt3}, {PX_T}, v{vt3}'); a(f'v_add_u32 v{vt2}, v{vt2}, v{vt3}')
    a(f'v_bfe_u32 v{vt3}, v{vt0}, 1, 4'); a(f'v_lshl_add_u32 v{vt2}, v{vt3}, 4, v{vt2}')
    a(f'v_and_b32 v{vt3}, 1, v{vt0}'); a(f'v_mul_u32_u24 v{vt3}, 640, v{vt3}'); a(f'v_add_u32 v{vt2}, v{vt2}, v{vt3}')
    a(f'v_lshlrev_b32 v{vt1}, 2, v{vt1}')
    a(f'v_add_u32 v{vt2}, {L_PX}, v{vt2}')
    a(f'ds_read_b128 {vr(ep,4)}, v{vt2}')
    a(f'ds_read_b128 {vr(ep+4,4)}, v{vt2} offset:256')
    a(f'ds_read_b128 {vr(ep+8,4)}, v{vt2} offset:{PX_H}')
    a(f'ds_read_b128 {vr(ep+12,4)}, v{vt2} offset:{PX_H + 256}')
    a(f'ds_read_b32 v{vis}, v{vt1} offset:{L_IS}')
    a(f'v_add_u32 v{vt3}, {WS_Y}, v{vblk}')
    a('s_waitcnt lgkmcnt(0)')
    for j in range(4): a(f'v_pk_add_f32 {vr(ep+2*j,2)}, {vr(ep+2*j,2)}, {vr(ep+8+2*j,2)}')
    for j in range(4): a(f'v_pk_mul_f32 {vr(ep+2*j,2)}, {vr(ep+2*j,2)}, {vr(vis,2)} op_sel_hi:[1,0]')
    cvt4(ep+8, ep)
    a(f'global_store_dwordx4 v{vt3}, {vr(ep+8,4)}, {P_WS} sc1')
    stamp('y_stored')
    R.release('ep'); R.release('is')
    if stop_here(3): return finish(a, R, cfg)

    gen_tail(a, R, cfg, locals())
    return finish(a, R, cfg)

def gen_roleB_conv(a, R, cfg, env):
    S_W8 = env['S_W8']; vlane = env['vlane']; vt0 = env['vt0']; vt1 = env['vt1']; lbl = env['lbl']
    P_WG, P_WU, P_WD = env['P_WG'], env['P_WU'], env['P_WD']
    a('s_cmp_lt_u32 s2, 56'); a('s_cbranch_scc0 L_w_not1')
    a(f's_sub_u32 s6, {S_W8}, 4')
    a(f'v_lshrrev_b32 v{vt0}, 2, v{vlane}')
    a(f'v_mul_u32_u24 v{vt0}, 3584, v{vt0}')
    a(f'v_and_b32 v{vt1}, 3, v{vlane}')
    a(f'v_lshl_add_u32 v{vt0}, v{vt1}, 4, v{vt0}')
    a('s_lshl_b32 s7, s2, 6')
    a('s_and_b32 s38, s6, 1'); a(f's_mul_i32 s39, s38, {256*3584}'); a('s_add_u32 s7, s7, s39')
    a(f'v_add_u32 v{vt0}, s7, v{vt0}')
    a('s_lshl_b32 s39, s6, 14'); a(f's_add_u32 s39, s39, {L_BIG}')
    a('s_cmp_ge_u32 s6, 2'); a('s_cbranch_scc1 L_w_up')
    for i in range(16):
        a('s_mov_b32 m0, s39'); a('s_add_u32 s39, s39, 1024')
        a(f'global_load_lds_dwordx4 v{vt0}, {P_WG}')
        if i < 15: a(f'v_add_u32 v{vt0}, {16*3584}, v{vt0}')
    a('s_branch L_w_done')
    a.label('L_w_up')
    for i in range(16):
        a('s_mov_b32 m0, s39'); a('s_add_u32 s39, s39, 1024')
        a(f'global_load_lds_dwordx4 v{vt0}, {P_WU}')
        if i < 15: a(f'v_add_u32 v{vt0}, {16*3584}, v{vt0}')
    a('s_branch L_w_done')
    a.label('L_w_not1')
    a('s_sub_u32 s7, s2, 64'); a('s_cmp_lt_u32 s7, 32'); a('s_cbranch_scc0 L_w_done')
    a(f's_sub_u32 s6, {S_W8}, 4')
    a(f'v_lshrrev_b32 v{vt0}, 1, v{vlane}')
    a(f'v_lshlrev_b32 v{vt0}, 10, v{vt0}')
    a(f'v_and_b32 v{vt1}, 1, v{vlane}')
    a(f'v_lshl_add_u32 v{vt0}, v{vt1}, 4, v{vt0}')
    a('s_lshl_b32 s7, s7, 5')
    a(f's_mul_i32 s39, s6, {448*1024}'); a('s_add_u32 s7, s7, s39')
    a(f'v_add_u32 v{vt0}, s7, v{vt0}')
    a(f's_mul_i32 s39, s6, {448*32}'); a(f's_add_u32 s39, s39, {L_BIG}')
    for i in range(14):
        a('s_mov_b32 m0, s39'); a('s_add_u32 s39, s39, 1024')
        a(f'global_load_lds_dwordx4 v{vt0}, {P_WD}')
        if i < 13: a(f'v_add_u32 v{vt0}, {32*1024}, v{vt0}')
    a.label('L_w_done')

def gen_tail(a, R, cfg, env):
    g = env
    al = R.alloc
    S_W8, S_P, S_TAG, S_MASKHI, S_STG, S_SPIN = g['S_W8'], g['S_P'], g['S_TAG'], g['S_MASKHI'], g['S_STG'], g['S_SPIN']
    S_L2E = g['S_L2E']
    P_WS, P_OUT = g['P_WS'], g['P_OUT']
    vlane, vt0, vt1, vt2, vt3, vtk, vcg, vch, vxo = (g[k] for k in ('vlane','vt0','vt1','vt2','vt3','vtk','vcg','vch','vxo'))
    vxf, vud, vm1 = g['vxf'], g['vud'], g['vm1']
    stamp, lbl, poll_loop, unpack8, cvt4, xlane1 = g['stamp'], g['lbl'], g['poll_loop'], g['unpack8'], g['cvt4'], g['xlane1']
    ln_stats_partial, ln_finish, normalize, stop_here = g['ln_stats_partial'], g['ln_finish'], g['normalize'], g['stop_here']
    vy = al('y', 4, 4); vyo = al('yoff'); vwr = al('wr', 4, 4)
    vd = al('d', 16, 4); vS = al('S', 2, 2); vt = al('t', 2, 2); vrs = al('rs', 2, 2); vs_ = al('s', 2, 2); vm2 = al('m2', 2, 2)
    vhf = al('hf', 8, 2); vhp = al('hp', 4, 4)
    a(f'v_lshrrev_b32 v{vyo}, 1, v0'); a(f'v_lshlrev_b32 v{vyo}, 13, v{vyo}')
    a(f'v_and_b32 v{vt0}, 1, v0'); a(f'v_lshl_add_u32 v{vyo}, v{vt0}, 4, v{vyo}')
    a(f's_lshl_b32 s6, {S_P}, 5'); a(f's_add_u32 s6, s6, {WS_Y}')
    a(f'v_add_u32 v{vyo}, s6, v{vyo}')
    a(f'ds_read_b128 {vr(vwr,4)}, v{vch} offset:{L_WR}')
    a(f'v_lshl_add_u32 v{vt2}, v{vlane}, 4, {S_STG}')
    a(f'v_lshrrev_b32 v{vt0}, 4, v{vlane}'); a(f'v_lshlrev_b32 v{vt3}, 8, v{vt0}')
    a(f'v_bfe_u32 v{vt0}, v{vlane}, 1, 1'); a(f'v_lshl_add_u32 v{vt3}, v{vt0}, 7, v{vt3}')
    a(f'v_bfe_u32 v{vt0}, v{vlane}, 2, 2'); a(f'v_lshl_add_u32 v{vt3}, v{vt0}, 4, v{vt3}')
    a(f'v_and_b32 v{vt0}, 1, v{vlane}'); a(f'v_lshl_add_u32 v{vt3}, v{vt0}, 3, v{vt3}')
    a(f'v_add_u32 v{vt3}, {S_STG}, v{vt3}')
    a('s_waitcnt vmcnt(0)')
    stamp('y_acked')
    poll_loop(lambda: a(f'global_load_dwordx4 {vr(vy,4)}, v{vyo}, {P_WS} sc1'), [vy, vy+1, vy+2, vy+3], vt0, 'y')
    stamp('y_got')
    a(f'ds_write_b128 v{vt2}, {vr(vy,4)}')
    a('s_waitcnt lgkmcnt(0)')
    a(f'ds_read_b64_tr_b16 {vr(vy,2)}, v{vt3}')
    a(f'ds_read_b64_tr_b16 {vr(vy+2,2)}, v{vt3} offset:64')
    a('s_waitcnt lgkmcnt(0)')
    unpack8(vd, vy)
    for j in range(4): a(f'v_pk_add_f32 {vr(vd+2*j,2)}, {vr(vd+2*j,2)}, {vr(vud+2*j,2)}')
    cvt4(vd+8, vd)
    unpack8(vd, vd+8)
    for j in range(4): a(f'v_pk_add_f32 {vr(vd+2*j,2)}, {vr(vd+2*j,2)}, {vr(vxf+2*j,2)}')
    cvt4(vhp, vd)
    unpack8(vhf, vhp)
    a(f'v_add_u32 v{vt0}, {WS_H}, v{vxo}')
    a(f'global_store_dwordx4 v{vt0}, {vr(vhp,4)}, {P_WS} sc1')
    ln_stats_partial(vhf, vm1, vd, vS, vt, L_ST2)
    a('s_waitcnt lgkmcnt(0)')
    a('s_barrier')
    ln_finish(vhf, vm1, vd, vS, vt, L_ST2, vm2, vrs, vs_)
    vr_ = al('r', 2, 2)
    a(f'v_dot2_f32_bf16 v{vr_}, v{vd+8}, v{vwr}, 0')
    a(f'v_dot2_f32_bf16 v{vr_+1}, v{vd+9}, v{vwr+1}, 0')
    a(f'v_dot2_f32_bf16 v{vr_}, v{vd+10}, v{vwr+2}, v{vr_}')
    a(f'v_dot2_f32_bf16 v{vr_+1}, v{vd+11}, v{vwr+3}, v{vr_+1}')
    a(f'v_add_f32 v{vr_}, v{vr_}, v{vr_+1}')
    xlane1(vr_, vt, 'add_f32')
    a(f's_lshl_b32 s6, {S_W8}, 2')
    a(f'v_lshl_add_u32 v{vt}, v{vtk}, 5, s6')
    a('s_mov_b64 exec, 0xff')
    a(f'ds_write_b32 v{vt}, v{vr_} offset:{L_RP}')
    a('s_mov_b64 exec, -1')
    unpack8(vd, vd+8)
    for j in range(4): a(f'v_pk_add_f32 {vr(vd+2*j,2)}, {vr(vd+2*j,2)}, {vr(vhf+2*j,2)}')
    cvt4(vd+12, vd)
    a('s_waitcnt lgkmcnt(0)')
    a('s_barrier')
    a(f's_cmp_eq_u32 {S_W8}, 0'); a('s_cbranch_scc0 L_s3_nokey')
    a(f'v_lshlrev_b32 v{vt}, 5, v{vtk}')
    a(f'ds_read_b128 {vr(vd,4)}, v{vt} offset:{L_RP}')
    a(f'ds_read_b128 {vr(vd+4,4)}, v{vt} offset:{L_RP+16}')
    a('s_waitcnt lgkmcnt(0)')
    a(f'v_pk_add_f32 {vr(vd,2)}, {vr(vd,2)}, {vr(vd+2,2)}'); a(f'v_pk_add_f32 {vr(vd+4,2)}, {vr(vd+4,2)}, {vr(vd+6,2)}')
    a(f'v_pk_add_f32 {vr(vd,2)}, {vr(vd,2)}, {vr(vd+4,2)}'); a(f'v_add_f32 v{vd}, v{vd}, v{vd+1}')
    a(f'v_cvt_pk_bf16_f32 v{vd}, v{vd}, v{vd}')
    a(f'v_and_b32 v{vd}, 0xffff, v{vd}')
    a(f'v_cmp_lt_u32 vcc, 0x7fff, v{vd}')
    a(f'v_xor_b32 v{vd+1}, 0xffff, v{vd}'); a(f'v_or_b32 v{vd+2}, 0x8000, v{vd}')
    a(f'v_cndmask_b32 v{vd}, v{vd+2}, v{vd+1}, vcc')
    a(f's_lshl_b32 s6, {S_P}, 3'); a('s_sub_u32 s7, 2047, s6')
    a(f'v_sub_u32 v{vd+1}, s7, v{vtk}')
    a(f'v_lshl_or_b32 v{vd}, v{vd}, 16, v{vd+1}')
    a('s_lshl_b32 s6, s6, 2'); a(f's_add_u32 s6, s6, {WS_KEY}')
    a(f'v_lshlrev_b32 v{vd+2}, 13, v{vcg}'); a(f'v_lshl_add_u32 v{vd+2}, v{vtk}, 2, v{vd+2}'); a(f'v_add_u32 v{vd+2}, s6, v{vd+2}')
    a(f'global_store_dword v{vd+2}, v{vd}, {P_WS} sc1')
    a.label('L_s3_nokey')
    stamp('key_stored')
    a(f'global_store_dwordx4 v{vxo}, {vr(vd+12,4)}, {P_OUT} sc1')
    a(f's_cmp_eq_u32 {S_W8}, 1'); a('s_cbranch_scc0 L_s3_nostat')
    a(f'v_lshrrev_b32 v{vd}, 16, v{vm2}'); a(f'v_and_or_b32 v{vd}, v{vs_}, {S_MASKHI}, v{vd}')
    a(f's_lshl_b32 s6, {S_P}, 5'); a(f's_add_u32 s6, s6, {WS_STAT}')
    a(f'v_lshl_add_u32 v{vd+1}, v{vtk}, 2, s6')
    a('s_mov_b64 exec, 0xff')
    a(f'global_store_dword v{vd+1}, v{vd}, {P_WS} sc1')
    a('s_mov_b64 exec, -1')
    a.label('L_s3_nostat')
    a('s_waitcnt vmcnt(0)')
    a('s_barrier')
    a(f's_cmp_eq_u32 {S_W8}, 2'); a('s_cbranch_scc0 L_s3_nof3')
    a(f's_lshl_b32 s6, {S_P}, 2'); a(f's_add_u32 s6, s6, {WS_F3}')
    a(f'v_lshl_add_u32 v{vd}, v{vlane}, 10, s6'); a(f'v_mov_b32 v{vd+1}, {S_TAG}')
    a('s_mov_b64 exec, 0xff')
    a(f'global_store_dword v{vd}, v{vd+1}, {P_WS} sc1')
    a('s_mov_b64 exec, -1')
    a.label('L_s3_nof3')
    stamp('s3_done')
    for n in ('y','yoff','wr','d','S','t','rs','s','m2','hf','hp','r','xf','ud','m1'): R.release(n)
    if stop_here(4): return
    S_ROLE = 's43'
    a(f's_mov_b32 {S_ROLE}, 1')
    a('s_cmp_lt_u32 s2, 56'); a('s_cbranch_scc1 L_f_go')
    a(f's_mov_b32 {S_ROLE}, 2')
    a('s_sub_u32 s7, s2, 64'); a('s_cmp_lt_u32 s7, 32'); a('s_cbranch_scc0 L_fin')
    a.label('L_f_go')
    vB = al('B', 32, 4); vba = al('ba')
    a(f'v_lshrrev_b32 v{vt0}, 4, v{vlane}'); a(f'v_lshlrev_b32 v{vt0}, 3, v{vt0}')
    a(f'v_bfe_u32 v{vt1}, v{vlane}, 2, 2'); a(f'v_add_u32 v{vt0}, v{vt0}, v{vt1}')
    a(f'v_and_b32 v{vt1}, 3, v{vlane}')
    a(f's_cmp_eq_u32 {S_ROLE}, 1'); a('s_cbranch_scc0 L_f_b2')
    a(f'v_lshlrev_b32 v{vba}, 6, v{vt0}'); a(f'v_lshl_add_u32 v{vba}, v{vt1}, 3, v{vba}')
    a(f's_lshl_b32 s6, {S_W8}, 12'); a(f's_add_u32 s6, s6, {L_BIG}')
    a(f'v_add_u32 v{vba}, s6, v{vba}')
    for kk in range(2):
        for nt in range(4):
            off = kk*2048 + (nt>>1)*32768 + (nt&1)*32
            d = vB + 4*(kk*4+nt)
            a(f'ds_read_b64_tr_b16 {vr(d,2)}, v{vba} offset:{off}')
            a(f'ds_read_b64_tr_b16 {vr(d+2,2)}, v{vba} offset:{off + 4*64}')
    a('s_branch L_f_bd')
    a.label('L_f_b2')
    a(f'v_lshlrev_b32 v{vba}, 5, v{vt0}'); a(f'v_lshl_add_u32 v{vba}, v{vt1}, 3, v{vba}')
    a(f's_mul_i32 s6, {S_W8}, {7*32*32}'); a(f's_add_u32 s6, s6, {L_BIG}')
    a(f'v_add_u32 v{vba}, s6, v{vba}')
    for kk in range(7):
        d = vB + 4*kk
        a(f'ds_read_b64_tr_b16 {vr(d,2)}, v{vba} offset:{kk*1024}')
        a(f'ds_read_b64_tr_b16 {vr(d+2,2)}, v{vba} offset:{kk*1024 + 4*32}')
    a.label('L_f_bd')
    R.release('ba')
    a(f's_cmp_eq_u32 {S_W8}, 0'); a('s_cbranch_scc0 L_f_nz')
    a(f'v_mov_b32 v{vt0}, 0'); a(f'v_lshlrev_b32 v{vt1}, 2, v{vlane}')
    a(f'ds_write_b32 v{vt1}, v{vt0} offset:{L_CL}')
    a(f'v_mov_b32 v{vt1}, {L_CNT}'); a(f'ds_write_b32 v{vt1}, v{vt0}')
    a.label('L_f_nz')
    vk = al('k', 4, 4); vko = al('koff'); vm = al('m', 2, 2)
    a('s_and_b32 s6, s2, 7'); a('s_lshl_b32 s6, s6, 13'); a(f's_add_u32 s6, s6, {WS_KEY}')
    a(f'v_lshl_add_u32 v{vko}, v0, 4, s6')
    poll_loop(lambda: a(f'global_load_dwordx4 {vr(vk,4)}, v{vko}, {P_WS} sc1'), [vk, vk+1, vk+2, vk+3], vm, 'key')
    stamp('keys_got')
    xlane1(vm, vm+1, 'max_u32', full=True)
    a(f's_lshl_b32 s6, {S_W8}, 2'); a(f's_add_u32 s6, s6, {L_WM}'); a(f'v_mov_b32 v{vt0}, s6')
    a('s_mov_b64 exec, 1')
    a(f'ds_write_b32 v{vt0}, v{vm}')
    a('s_mov_b64 exec, -1')
    a('s_waitcnt lgkmcnt(0)')
    a('s_barrier')
    vw = al('w8m', 8, 4)
    a(f'v_mov_b32 v{vt0}, {L_WM}')
    a(f'ds_read_b128 {vr(vw,4)}, v{vt0}'); a(f'ds_read_b128 {vr(vw+4,4)}, v{vt0} offset:16')
    a('s_waitcnt lgkmcnt(0)')
    a(f'v_min3_u32 v{vw}, v{vw}, v{vw+1}, v{vw+2}'); a(f'v_min3_u32 v{vw+3}, v{vw+3}, v{vw+4}, v{vw+5}')
    a(f'v_min3_u32 v{vw}, v{vw}, v{vw+6}, v{vw+7}'); a(f'v_min_u32 v{vw}, v{vw}, v{vw+3}')
    for j in range(4): a(f'v_cmp_ge_u32 s[{44+2*j}:{45+2*j}], v{vk+j}, v{vw}')
    for j in range(4): a(f's_bcnt1_i32_b64 s{52+j}, s[{44+2*j}:{45+2*j}]')
    a('s_add_u32 s56, s52, s53'); a('s_add_u32 s57, s54, s55'); a('s_add_u32 s56, s56, s57')
    a(f'v_mov_b32 v{vt0}, {L_CNT}'); a(f'v_mov_b32 v{vt1}, s56')
    a('s_mov_b64 exec, 1')
    a(f'ds_add_rtn_u32 v{vt2}, v{vt0}, v{vt1}')
    a('s_mov_b64 exec, -1')
    a('s_waitcnt lgkmcnt(0)')
    a(f'v_readfirstlane_b32 s57, v{vt2}')
    for j in range(4):
        a(f'v_mbcnt_lo_u32_b32 v{vt0}, s{44+2*j}, 0'); a(f'v_mbcnt_hi_u32_b32 v{vt0}, s{45+2*j}, v{vt0}')
        a(f'v_add_u32 v{vt0}, s57, v{vt0}')
        a(f'v_min_u32 v{vt0}, 64, v{vt0}')
        a(f'v_lshlrev_b32 v{vt0}, 2, v{vt0}')
        a(f's_mov_b64 exec, s[{44+2*j}:{45+2*j}]')
        a(f'ds_write_b32 v{vt0}, v{vk+j} offset:{L_CL}')
        a('s_mov_b64 exec, -1')
        a(f's_add_u32 s57, s57, s{52+j}')
    a('s_waitcnt lgkmcnt(0)')
    a('s_barrier')
    vc = al('cand'); vrank = al('rank'); vall = al('call', 4, 4)
    a(f'v_mov_b32 v{vt0}, {L_CNT}'); a(f'ds_read_b32 v{vt1}, v{vt0}')
    a(f'v_lshlrev_b32 v{vt2}, 2, v{vlane}'); a(f'ds_read_b32 v{vc}, v{vt2} offset:{L_CL}')
    a('s_waitcnt lgkmcnt(0)')
    a(f'v_readfirstlane_b32 s56, v{vt1}')
    a('s_cmp_gt_u32 s56, 64'); a('s_cbranch_scc1 L_f_fallback')
    a(f'v_mov_b32 v{vrank}, 0')
    a(f's_mov_b32 s57, 0'); a(f'v_mov_b32 v{vt0}, {L_CL}')
    a.label('L_f_rank')
    a(f'ds_read_b128 {vr(vall,4)}, v{vt0}')
    a(f'v_add_u32 v{vt0}, 16, v{vt0}')
    a('s_add_u32 s57, s57, 4')
    a('s_waitcnt lgkmcnt(0)')
    for j in range(4): a(f'v_cmp_gt_u32 s[{44+2*j}:{45+2*j}], v{vall+j}, v{vc}')
    for j in range(4): a(f'v_addc_co_u32 v{vrank}, vcc, 0, v{vrank}, s[{44+2*j}:{45+2*j}]')
    a('s_cmp_lt_u32 s57, s56'); a('s_cbranch_scc1 L_f_rank')
    a(f's_lshl_b32 s6, {S_W8}, 6'); a(f's_add_u32 s6, s6, {L_SEL}')
    a(f'v_lshl_add_u32 v{vt0}, v{vrank}, 2, s6')
    a(f'v_cmp_gt_u32 vcc, 8, v{vrank}')
    a('s_and_saveexec_b64 s[38:39], vcc')
    a(f'ds_write_b32 v{vt0}, v{vc}')
    a('s_mov_b64 exec, -1')
    a('s_branch L_f_sel')
    a.label('L_f_fallback')
    a('s_mov_b32 s57, 0')
    a.label('L_f_fb')
    a(f'v_max_u32 v{vm}, v{vk}, v{vk+1}'); a(f'v_max3_u32 v{vm}, v{vm}, v{vk+2}, v{vk+3}')
    xlane1(vm, vm+1, 'max_u32', full=True)
    a(f's_lshl_b32 s6, {S_W8}, 2'); a(f's_add_u32 s6, s6, {L_FB}'); a(f'v_mov_b32 v{vt0}, s6')
    a('s_barrier')
    a('s_mov_b64 exec, 1'); a(f'ds_write_b32 v{vt0}, v{vm}'); a('s_mov_b64 exec, -1')
    a('s_waitcnt lgkmcnt(0)'); a('s_barrier')
    a(f'v_mov_b32 v{vt0}, {L_FB}')
    a(f'ds_read_b128 {vr(vw,4)}, v{vt0}'); a(f'ds_read_b128 {vr(vw+4,4)}, v{vt0} offset:16')
    a('s_waitcnt lgkmcnt(0)')
    a(f'v_max3_u32 v{vw}, v{vw}, v{vw+1}, v{vw+2}'); a(f'v_max3_u32 v{vw+3}, v{vw+3}, v{vw+4}, v{vw+5}')
    a(f'v_max3_u32 v{vw}, v{vw}, v{vw+6}, v{vw+7}'); a(f'v_max_u32 v{vw}, v{vw}, v{vw+3}')
    for j in range(4):
        a(f'v_cmp_eq_u32 vcc, v{vk+j}, v{vw}'); a(f'v_cndmask_b32 v{vk+j}, v{vk+j}, 0, vcc') if False else None
        a(f'v_cmp_ne_u32 vcc, v{vk+j}, v{vw}'); a(f'v_cndmask_b32 v{vk+j}, 0, v{vk+j}, vcc')
    a(f's_lshl_b32 s6, {S_W8}, 6'); a(f's_add_u32 s6, s6, {L_SEL}'); a('s_lshl_b32 s7, s57, 2'); a('s_add_u32 s6, s6, s7')
    a(f'v_mov_b32 v{vt0}, s6')
    a('s_mov_b64 exec, 1'); a(f'ds_write_b32 v{vt0}, v{vw}'); a('s_mov_b64 exec, -1')
    a('s_add_u32 s57, s57, 1'); a('s_cmp_lt_u32 s57, 8'); a('s_cbranch_scc1 L_f_fb')
    a.label('L_f_sel')
    for n in ('k','koff','m','w8m','cand','rank','call'): R.release(n)
    vsel = al('sel'); vidx = al('idx')
    a(f's_lshl_b32 s6, {S_W8}, 6'); a(f's_add_u32 s6, s6, {L_SEL}')
    a(f'v_lshl_add_u32 v{vt0}, v{vtk}, 2, s6')
    a('s_waitcnt lgkmcnt(0)')
    a(f'ds_read_b32 v{vsel}, v{vt0}')
    a('s_waitcnt lgkmcnt(0)')
    a(f'v_and_b32 v{vidx}, 0xffff, v{vsel}'); a(f'v_sub_u32 v{vidx}, 2047, v{vidx}')
    stamp('top8')
    vf3 = al('f3'); vf3o = al('f3o')
    a('s_and_b32 s6, s2, 7'); a('s_lshl_b32 s6, s6, 10'); a(f's_add_u32 s6, s6, {WS_F3}')
    a(f'v_lshrrev_b32 v{vf3o}, 3, v{vidx}'); a(f'v_lshl_add_u32 v{vf3o}, v{vf3o}, 2, s6')
    poll_loop(lambda: a(f'global_load_dword v{vf3}, v{vf3o}, {P_WS} sc1'), [vf3], vt0, 'f3', cmp_tag=True)
    R.release('f3'); R.release('f3o')
    stamp('f3_ok')
    vst = al('stat'); vm2 = al('m2', 2, 2); vrs = al('rs', 2, 2)
    a(f'v_lshlrev_b32 v{vt0}, 2, v{vidx}'); a(f'v_add_u32 v{vt0}, {WS_STAT}, v{vt0}')
    a(f'global_load_dword v{vst}, v{vt0}, {P_WS} sc1')
    a(f's_cmp_eq_u32 {S_ROLE}, 1'); a('s_cbranch_scc0 L_f2')
    vh = al('h', 8, 4); vd = al('d', 16, 4); vhf = al('hf', 8, 2); vA = al('A', 8, 4); acc = al('acc', 16, 4)
    a(f'v_lshrrev_b32 v{vt0}, 4, v{vlane}'); a(f'v_lshlrev_b32 v{vt0}, 4, v{vt0}')
    a(f'v_lshl_add_u32 v{vt0}, v{vidx}, 10, v{vt0}')
    a(f's_lshl_b32 s6, {S_W8}, 7'); a(f's_add_u32 s6, s6, {WS_H}')
    a(f'v_add_u32 v{vt0}, s6, v{vt0}')
    a(f'global_load_dwordx4 {vr(vh,4)}, v{vt0}, {P_WS} sc1')
    a(f'global_load_dwordx4 {vr(vh+4,4)}, v{vt0}, {P_WS} offset:64 sc1')
    a('s_waitcnt vmcnt(0)')
    stamp('h_got')
    a(f'v_lshlrev_b32 v{vm2}, 16, v{vst}'); a(f'v_and_b32 v{vt1}, {S_MASKHI}, v{vst}'); a(f'v_rcp_f32 v{vrs}, v{vt1}')
    for kk in range(2):
        unpack8(vhf, vh+4*kk)
        normalize(vhf, vm2, vrs, vd)
        for j in range(4): a(f'v_mov_b32 v{vA+4*kk+j}, v{vd+8+j}')
    for kk in range(2):
        for nt in range(4):
            a(f'v_mfma_f32_16x16x32_bf16 {vr(acc+4*nt,4)}, {vr(vA+4*kk,4)}, {vr(vB+4*(kk*4+nt),4)}, {"0" if kk == 0 else vr(acc+4*nt,4)}')
    a(f's_lshl_b32 s6, {S_W8}, 11'); a(f's_add_u32 s6, s6, {L_PX}')
    a(f'v_lshl_add_u32 v{vt0}, v{vlane}, 4, s6')
    a('s_mov_b32 exec_hi, 0')
    for nt in range(4): a(f'ds_write_b128 v{vt0}, {vr(acc+4*nt,4)} offset:{nt*512}')
    a('s_mov_b32 exec_hi, -1')
    a('s_waitcnt lgkmcnt(0)')
    a('s_barrier')
    a(f's_cmp_ge_u32 {S_W8}, 4'); a('s_cbranch_scc1 L_fin')
    gp = al('gp', 16, 4)
    a(f's_lshr_b32 s6, {S_W8}, 1'); a('s_lshl_b32 s6, s6, 9'); a(f's_and_b32 s7, {S_W8}, 1'); a('s_lshl_b32 s7, s7, 8')
    a('s_add_u32 s6, s6, s7'); a(f's_add_u32 s6, s6, {L_PX}')
    a(f'v_lshl_add_u32 v{vt0}, v{vlane}, 2, s6')
    for w in range(8): a(f'ds_read_b32 v{gp+w}, v{vt0} offset:{w*2048}')
    for w in range(8): a(f'ds_read_b32 v{gp+8+w}, v{vt0} offset:{w*2048 + 1024}')
    a('s_waitcnt lgkmcnt(8)')
    for (x, y) in ((0,1),(2,3),(4,5),(6,7),(0,2),(4,6),(0,4)): a(f'v_add_f32 v{gp+x}, v{gp+x}, v{gp+y}')
    a('s_waitcnt lgkmcnt(0)')
    for (x, y) in ((0,1),(2,3),(4,5),(6,7),(0,2),(4,6),(0,4)): a(f'v_add_f32 v{gp+8+x}, v{gp+8+x}, v{gp+8+y}')
    a(f'v_cvt_pk_bf16_f32 v{gp+1}, v{gp}, v{gp+8}')
    a(f'v_lshlrev_b32 v{gp}, 16, v{gp+1}')
    a(f'v_and_b32 v{gp+8}, {S_MASKHI}, v{gp+1}')
    a(f'v_mul_f32 v{gp+2}, {hx(f2u(-1.4426950408889634))}, v{gp}')
    a(f'v_exp_f32 v{gp+2}, v{gp+2}')
    a(f'v_add_f32 v{gp+2}, 1.0, v{gp+2}')
    a(f'v_rcp_f32 v{gp+2}, v{gp+2}')
    a(f'v_mul_f32 v{gp}, v{gp}, v{gp+2}')
    a(f'v_cvt_pk_bf16_f32 v{gp}, v{gp}, v{gp}')
    a(f'v_lshlrev_b32 v{gp}, 16, v{gp}')
    a(f'v_mul_f32 v{gp}, v{gp}, v{gp+8}')
    a(f'v_cvt_pk_bf16_f32 v{gp}, v{gp}, v{gp}')
    a(f'v_and_b32 v{gp+1}, 3, v{vlane}'); a(f's_and_b32 s7, {S_W8}, 1'); a('s_lshl_b32 s7, s7, 2')
    a(f'v_add_u32 v{gp+1}, s7, v{gp+1}'); a(f'v_lshlrev_b32 v{gp+1}, 6, v{gp+1}')
    a(f'v_lshrrev_b32 v{gp+2}, 2, v{vlane}'); a(f's_lshr_b32 s6, {S_W8}, 1'); a('s_lshl_b32 s6, s6, 5')
    a(f'v_lshl_add_u32 v{gp+1}, v{gp+2}, 1, v{gp+1}'); a(f'v_add_u32 v{gp+1}, s6, v{gp+1}')
    a(f'ds_write_b16 v{gp+1}, v{gp} offset:{L_STG}')
    a('s_waitcnt lgkmcnt(0)')
    a('s_barrier')
    a(f's_cmp_eq_u32 {S_W8}, 0'); a('s_cbranch_scc0 L_fin')
    a(f'v_and_b32 v{gp+1}, 31, v{vlane}'); a(f'v_lshlrev_b32 v{gp+1}, 4, v{gp+1}')
    a(f'ds_read_b128 {vr(gp+4,4)}, v{gp+1} offset:{L_STG}')
    a(f'v_lshrrev_b32 v{gp+2}, 5, v{vlane}'); a(f'v_mul_u32_u24 v{gp+2}, {HID_SZ}, v{gp+2}')
    a(f'v_add_u32 v{gp+1}, v{gp+1}, v{gp+2}')
    a('s_lshl_b32 s6, s2, 9'); a(f's_add_u32 s6, s6, {WS_HID}')
    a(f'v_add_u32 v{gp+1}, s6, v{gp+1}'); a(f'v_add_u32 v{gp+2}, {2*HID_SZ}, v{gp+1}')
    a('s_waitcnt lgkmcnt(0)')
    a(f'global_store_dwordx4 v{gp+1}, {vr(gp+4,4)}, {P_WS} sc1')
    a(f'global_store_dwordx4 v{gp+2}, {vr(gp+4,4)}, {P_WS} sc1')
    stamp('hid_stored')
    a('s_branch L_fin')
    for n in ('h','d','hf','A','acc','gp'): R.release(n)
    a.label('L_f2')
    vA = al('A2', 28, 4); vho = al('ho'); acc = al('acc2', 4, 4); vhv = al('hv'); vst2 = al('st2'); vsel2 = al('sel2'); vix2 = al('ix2')
    a(f's_lshl_b32 s6, {S_W8}, 6'); a(f's_add_u32 s6, s6, {L_SEL}')
    a(f'v_lshrrev_b32 v{vt0}, 4, v0'); a(f'v_and_b32 v{vt0}, 7, v{vt0}')
    a(f'v_lshl_add_u32 v{vt0}, v{vt0}, 2, s6')
    a(f'ds_read_b32 v{vsel2}, v{vt0}')
    a('s_waitcnt lgkmcnt(0)')
    a(f'v_and_b32 v{vix2}, 0xffff, v{vsel2}'); a(f'v_sub_u32 v{vix2}, 2047, v{vix2}')
    a('s_sub_u32 s7, s2, 64'); a('s_lshl_b32 s7, s7, 5')
    a(f'v_and_b32 v{vt0}, 15, v{vlane}'); a(f'v_lshlrev_b32 v{vt0}, 1, v{vt0}')
    a(f'v_lshl_add_u32 v{vho}, v{vix2}, 10, v{vt0}'); a(f'v_add_u32 v{vho}, s7, v{vho}')
    a(f'v_add_u32 v{vt0}, {WS_H}, v{vho}')
    a(f'global_load_ushort v{vhv}, v{vt0}, {P_WS} sc1')
    a(f'v_lshlrev_b32 v{vt0}, 2, v{vix2}'); a(f'v_add_u32 v{vt0}, {WS_STAT}, v{vt0}')
    a(f'global_load_dword v{vst2}, v{vt0}, {P_WS} sc1')
    vhi = al('hio')
    a('s_and_b32 s6, s2, 3'); a(f's_mul_i32 s6, s6, {HID_SZ}'); a(f's_mul_i32 s7, {S_W8}, {7*512}'); a('s_add_u32 s6, s6, s7'); a(f's_add_u32 s6, s6, {WS_HID}')
    a(f'v_lshrrev_b32 v{vt0}, 4, v{vlane}'); a(f'v_lshlrev_b32 v{vt0}, 4, v{vt0}'); a(f'v_lshl_add_u32 v{vt0}, v{vtk}, 6, v{vt0}')
    a(f'v_add_u32 v{vhi}, s6, v{vt0}')
    def issue_hid():
        for kk in range(7): a(f'global_load_dwordx4 {vr(vA+4*kk,4)}, v{vhi}, {P_WS} offset:{kk*512} sc1')
    poll_loop(issue_hid, list(range(vA, vA+28)), vt0, 'hid')
    stamp('hid_got')
    for kk in range(7):
        a(f'v_mfma_f32_16x16x32_bf16 {vr(acc,4)}, {vr(vA+4*kk,4)}, {vr(vB+4*kk,4)}, {"0" if kk == 0 else vr(acc,4)}')
    a(f's_lshl_b32 s6, {S_W8}, 9'); a(f's_add_u32 s6, s6, {L_PX}')
    a(f'v_lshl_add_u32 v{vt0}, v{vlane}, 4, s6')
    a('s_mov_b32 exec_hi, 0')
    a(f'ds_write_b128 v{vt0}, {vr(acc,4)}')
    a('s_mov_b32 exec_hi, -1')
    a('s_waitcnt lgkmcnt(0)')
    a('s_barrier')
    a(f's_cmp_ge_u32 {S_W8}, 2'); a('s_cbranch_scc1 L_fin')
    fp = al('fp', 8, 4)
    a(f'v_lshrrev_b32 v{vt0}, 4, v0')
    a(f'v_lshrrev_b32 v{vt1}, 2, v{vt0}'); a(f'v_lshlrev_b32 v{vt1}, 8, v{vt1}')
    a(f'v_and_b32 v{vt0}, 3, v{vt0}'); a(f'v_lshl_add_u32 v{vt1}, v{vt0}, 2, v{vt1}')
    a(f'v_and_b32 v{vt0}, 15, v{vlane}'); a(f'v_lshl_add_u32 v{vt1}, v{vt0}, 4, v{vt1}')
    a(f'v_add_u32 v{vt1}, {L_PX}, v{vt1}')
    for w in range(8): a(f'ds_read_b32 v{fp+w}, v{vt1} offset:{w*512}')
    a(f'v_lshrrev_b32 v{vt0}, 16, v{vsel2}')
    a(f'v_cmp_lt_u32 vcc, 0x7fff, v{vt0}')
    a(f'v_and_b32 v{vt2}, 0x7fff, v{vt0}'); a(f'v_xor_b32 v{vt3}, 0xffff, v{vt0}')
    a(f'v_cndmask_b32 v{vt0}, v{vt3}, v{vt2}, vcc'); a(f'v_lshlrev_b32 v{vt0}, 16, v{vt0}')
    a(f'v_mul_f32 v{vt0}, {hx(f2u(-1.4426950408889634))}, v{vt0}')
    a(f'v_exp_f32 v{vt0}, v{vt0}'); a(f'v_add_f32 v{vt0}, 1.0, v{vt0}'); a(f'v_rcp_f32 v{vt0}, v{vt0}')
    a(f'v_cvt_pk_bf16_f32 v{vt0}, v{vt0}, v{vt0}'); a(f'v_lshlrev_b32 v{vt0}, 16, v{vt0}')
    a(f'v_lshlrev_b32 v{vhv}, 16, v{vhv}')
    a(f'v_lshlrev_b32 v{vt2}, 16, v{vst2}'); a(f'v_and_b32 v{vt3}, {S_MASKHI}, v{vst2}'); a(f'v_rcp_f32 v{vt3}, v{vt3}')
    a(f'v_sub_f32 v{vt2}, v{vhv}, v{vt2}'); a(f'v_cvt_pk_bf16_f32 v{vt2}, v{vt2}, v{vt2}'); a(f'v_lshlrev_b32 v{vt2}, 16, v{vt2}')
    a(f'v_mul_f32 v{vt2}, v{vt2}, v{vt3}'); a(f'v_cvt_pk_bf16_f32 v{vt2}, v{vt2}, v{vt2}'); a(f'v_lshlrev_b32 v{vt2}, 16, v{vt2}')
    a('s_waitcnt lgkmcnt(0)')
    for (x, y) in ((0,1),(2,3),(4,5),(6,7),(0,2),(4,6),(0,4)): a(f'v_add_f32 v{fp+x}, v{fp+x}, v{fp+y}')
    def rb(r): a(f'v_cvt_pk_bf16_f32 v{r}, v{r}, v{r}'); a(f'v_lshlrev_b32 v{r}, 16, v{r}')
    rb(fp)
    a(f'v_mul_f32 v{fp}, v{fp}, v{vt0}'); rb(fp)
    a(f'v_add_f32 v{fp}, v{fp}, v{vt2}'); rb(fp)
    a(f'v_add_f32 v{fp}, v{fp}, v{vhv}')
    a(f'v_cvt_pk_bf16_f32 v{fp}, v{fp}, v{fp}')
    a(f'global_store_short v{vho}, v{fp}, {P_OUT} sc1')
    stamp('final')

def finish(a, R, cfg):
    a.label('L_fin')
    if cfg.stamps and cfg.rt:
        n = len(cfg.stamp_names)
        a('s_memrealtime s[68:69]')
        a('s_waitcnt lgkmcnt(0)')
        a('v_mov_b32 v2, 0')
        a('s_mov_b64 exec, 1')
        a('s_not_b32 s70, s70')
        for i in range(n):
            a(f'v_mov_b32 v3, s{70+2*i}')
            a(f'global_atomic_umax v2, v3, s[34:35] offset:{4*i}')
        a('v_mov_b32 v3, s68')
        a(f'global_atomic_umax v2, v3, s[34:35] offset:60')
        a('s_mov_b64 exec, -1')
    elif cfg.stamps:
        n = len(cfg.stamp_names)
        a('s_waitcnt lgkmcnt(0)')
        a('s_lshl_b32 s6, s2, 3'); a('s_add_u32 s6, s6, s4'); a('s_lshl_b32 s6, s6, 8'); a(f's_add_u32 s6, s6, {WS_DBG + 0x100000}')
        a('v_mov_b32 v2, s6')
        a('s_mov_b64 exec, 1')
        for i in range(n):
            a(f'v_mov_b32 v3, s{70+2*i}')
            a(f'global_store_dword v2, v3, s[36:37] offset:{4*i}')
        a('s_mov_b64 exec, -1')
    a('s_cmp_eq_u32 s2, 0'); a('s_cbranch_scc0 L_end')
    a('s_cmp_eq_u32 s4, 0'); a('s_cbranch_scc0 L_end')
    a(f'v_mov_b32 v2, {WS_EPOCH}'); a('v_mov_b32 v3, s5')
    a('s_mov_b64 exec, 1')
    a('global_store_dword v2, v3, s[36:37]')
    a.label('L_end')
    a('s_endpgm')
    body = a.text()
    nv = 256
    hdr = open('cdna_kernels/' + NAME + '.s.ref').read().split('; Override launch geometry')[0]
    s = hdr
    s += f'; @launch grid=(256,1,1) block=(512,1,1) lds={LDS_TOTAL}\n'
    s += '.amdgcn_target "amdgcn-amd-amdhsa--gfx950"\n.text\n'
    s += f'.globl {NAME}_kernel\n.p2align 8\n.type {NAME}_kernel,@function\n{NAME}_kernel:\n'
    s += body
    s += f'''.section .rodata,"a"
.p2align 6
.amdhsa_kernel {NAME}_kernel
  .amdhsa_next_free_vgpr {nv}
  .amdhsa_next_free_sgpr 102
  .amdhsa_accum_offset {nv}
  .amdhsa_group_segment_fixed_size 0
  .amdhsa_kernarg_size 120
  .amdhsa_user_sgpr_count 2
  .amdhsa_user_sgpr_kernarg_segment_ptr 1
  .amdhsa_system_sgpr_workgroup_id_x 1
.end_amdhsa_kernel
'''
    cfg.maxv = R.maxused
    return s

if __name__ == '__main__':
    cfg = Cfg()
    out = sys.argv[1]
    for arg in sys.argv[2:]:
        k, v = arg.split('=')
        setattr(cfg, k, int(v))
    open(out, 'w').write(gen(cfg))
    import os
    if cfg.stamps: open(out + '.stamps', 'w').write('\n'.join(cfg.stamp_names))
    elif os.path.exists(out + '.stamps'): os.remove(out + '.stamps')
    print('max vgpr', cfg.maxv, 'LDS', LDS_TOTAL)
```

```python
import sys, struct, math
from asmlib import *

NAME = "sequential_preLN__ssm_conv_s4d__moe_arch_mod__prompt"
def f2u(x): return struct.unpack('<I', struct.pack('<f', x))[0]
def f32(x): return struct.unpack('<f', struct.pack('<f', x))[0]
def hx(x): return '0x%08x' % (x & 0xffffffff)

WS_EPOCH = 0x0
WS_F1 = 0x50000; R1 = 8
WS_F3 = 0x8000; R3 = 8
WS_F3B = 0x58000
WS_KEY = 0x10000; RK = 8
WS_HID = 0x20000; RH = 4; HID_SZ = 56 * 512
WS_MISC = 0x10000
WS_STAT = 0x40000
WS_U = 0x100000
WS_Y = 0x300000
WS_H = 0x500000
WS_DBG = 0x800000
KC_SZ = 4160
L_KC = 0
L_UL = 16640; UL_SZ = 4608
L_TT = 25856; TT_SZ = 1536
L_RED = 28928
L_ST1 = L_RED
L_ST2 = L_RED + 512
L_RP = L_RED + 1024
L_IS = L_RED + 1280
L_WM = L_RED + 1344
L_CNT = L_RED + 1408
L_CL = L_RED + 1536
L_SEL = L_RED + 2048
L_FB = L_RED + 2560
L_D = L_RED + 4096
L_WR = L_RED + 5120
L_STG = L_RED + 6144; STG_SZ = 1536
L_BIG = L_STG + 8 * STG_SZ
FROW = 544
F_SZ = 16 * FROW; G_SZ = 48 * FROW; FG_SZ = F_SZ + G_SZ
L_PX = L_BIG + 2 * FG_SZ
PX_T = 1152; PX_C = 8 * PX_T + 64; PX_H = 2 * PX_C
LDS_TOTAL = L_PX + 2 * PX_H
assert LDS_TOTAL <= 163840, LDS_TOTAL
assert L_BIG % 16 == 0 and L_PX % 16 == 0

SPIN_LIMIT = 1 << 15

class Cfg:
    stop = 99
    dbg = 0
    stamps = 0
    rt = 0
    codepf = 2
    wtouch = 2
    dmac = 0
    dsleep = 0
    hlate = 1
    xbar = 1
    nokwait = 0

def gen(cfg):
    a = Asm()
    R = Regs(2, 255)
    al = R.alloc
    S_P, S_W8, S_TAG = 's3', 's4', 's5'
    P_X, P_LA, P_AI, P_CR, P_CI, P_DT, P_DS = 's[8:9]', 's[10:11]', 's[12:13]', 's[14:15]', 's[16:17]', 's[18:19]', 's[20:21]'
    P_WR, P_WG, P_WU, P_WD, P_OUT, P_DBG, P_WS = 's[24:25]', 's[26:27]', 's[28:29]', 's[30:31]', 's[32:33]', 's[34:35]', 's[36:37]'
    S_SPIN = 's60'
    S_L2E, S_L2ELO, S_I2PI, S_I2PILO, S_EPS, S_MASKHI = 's62', 's63', 's64', 's65', 's66', 's67'
    S_ONE2 = 's68'
    cfg.stamp_names = []
    cfg.tinstr = 's_memrealtime' if cfg.rt else 's_memtime'
    G1 = ['start','kernarg','issued','x_arrived','ln1_prebar','ln1_fin','u_stored','kgen_valu','B_b','B_c','expand','B_d','conv_mfma','B_e','y_stored']
    G2 = ['start','u_stored','B_d','y_stored','y_acked','y_got','key_stored','s3_done','keys_got','top8','f3_ok','h_got','hid_stored','hid_got','final']
    G3 = ['start','keys_got','t8_max','t8_bar1','t8_atom','t8_bar2','t8_rank','top8','h_got','f1_norm','f1_mfma','f1_bar','f1_red','f1_silu','hid_stored']
    G5 = ['start','u_stored','kgen_valu','B_b','k_mf','B_c','expand','B_d','c_pro','c_r0','c_r1','c_r3','c_wr','B_e','y_stored']
    G6 = ['start','y_got','s3_h','key_stored','k_wait','keys_got','k_spin','t8_bar1','t8_bar2','top8','t4','h_got','hid_stored','hid_got','final']
    G4 = ['start','y_acked','y_got','s3_tr','s3_h','s3_part','s3_bar1','s3_fin','s3_rp','s3_bar2','key_stored','s3_done','keys_got','hid_got','final']
    sel = {1: G1, 2: G2, 3: G3, 4: G4, 5: G5, 6: G6}.get(cfg.stamps, G1)
    cfg.active = lambda name: cfg.stamps and name in sel
    def stamp(name):
        if not cfg.stamps or name not in sel: return
        i = len(cfg.stamp_names)
        assert 70 + 2 * i + 1 <= 101, 'too many stamps'
        a(f'{cfg.tinstr} s[{70+2*i}:{71+2*i}]')
        cfg.stamp_names.append(name)
    uid = [0]
    def lbl(p):
        uid[0] += 1
        return f'L_{p}_{uid[0]}'
    def if_role_a(else_lbl):
        a(f's_cmp_ge_u32 {S_W8}, 4'); a(f's_cbranch_scc1 {else_lbl}')
    def if_role_b(else_lbl):
        a(f's_cmp_lt_u32 {S_W8}, 4'); a(f's_cbranch_scc1 {else_lbl}')
    def stop_here(n):
        if cfg.stop == n:
            a('s_waitcnt vmcnt(0) lgkmcnt(0)'); a('s_branch L_fin')
            return True
        return False
    def poll_loop(issue, check_regs, tmp, name, first_issued=False, cmp_tag=False):
        l0 = lbl(name); l1 = lbl(name + 'ok')
        a(f's_mov_b32 {S_SPIN}, 0')
        if first_issued:
            lf = lbl(name + 'f'); a(f's_branch {lf}')
        a.label(l0)
        issue()
        if first_issued: a.label(lf)
        a('s_waitcnt vmcnt(0)')
        if cmp_tag:
            a(f'v_xor_b32 v{tmp}, {S_TAG}, v{check_regs[0]}')
            for r in check_regs[1:]:
                a(f'v_xor_b32 v{tmp+1}, {S_TAG}, v{r}'); a(f'v_or_b32 v{tmp}, v{tmp}, v{tmp+1}')
            a(f'v_cmp_ne_u32 vcc, 0, v{tmp}')
        else:
            rs = list(check_regs)
            a(f'v_max_u32 v{tmp}, v{rs[0]}, v{rs[1]}') if len(rs) > 1 else a(f'v_mov_b32 v{tmp}, v{rs[0]}')
            rs = rs[2:]
            while len(rs) >= 2:
                a(f'v_max3_u32 v{tmp}, v{tmp}, v{rs[0]}, v{rs[1]}'); rs = rs[2:]
            if rs: a(f'v_max_u32 v{tmp}, v{tmp}, v{rs[0]}')
            a(f'v_cmp_eq_u32 vcc, -1, v{tmp}')
        a(f's_cbranch_vccz {l1}')
        a('s_mov_b64 exec, vcc')
        a(f's_add_u32 {S_SPIN}, {S_SPIN}, 1')
        a(f's_cmp_lt_u32 {S_SPIN}, {SPIN_LIMIT}')
        a(f's_cbranch_scc1 {l0}')
        a.label(l1)
        a('s_mov_b64 exec, -1')

    a('s_cmp_ge_u32 s2, 256')
    a('s_cbranch_scc1 L_end')
    a('s_load_dwordx16 s[8:23], s[0:1], 0')
    a('s_load_dwordx8 s[24:31], s[0:1], 64')
    a('s_load_dwordx4 s[32:35], s[0:1], 96')
    a('s_load_dwordx2 s[36:37], s[0:1], 112')
    if cfg.stamps:
        for i in range(70, 102): a(f's_mov_b32 s{i}, 0')
    stamp('start')
    vlane = 1
    vt0 = al('t0', 2); vt1 = vt0 + 1
    vt2 = al('t2', 2); vt3 = vt2 + 1
    a(f'v_lshrrev_b32 v{vt0}, 6, v0')
    a(f'v_and_b32 v{vlane}, 63, v0')
    a('s_and_b32 s6, s2, 7'); a('s_lshl_b32 s6, s6, 5'); a('s_lshr_b32 s7, s2, 3'); a(f's_add_u32 {S_P}, s6, s7')
    a(f'v_readfirstlane_b32 {S_W8}, v{vt0}')
    S_FC = 's61'
    a('s_and_b32 s6, s2, 7'); a('s_mul_i32 s7, s6, 7'); a(f's_lshr_b32 {S_FC}, s2, 3'); a(f's_add_u32 s7, s7, {S_FC}')
    a('s_lshl_b32 s6, s6, 2'); a(f's_add_u32 s6, s6, {S_FC}'); a('s_sub_u32 s6, s6, 8')
    a('s_cmp_lt_u32 s2, 56'); a(f's_cselect_b32 {S_FC}, s7, s6')
    vjunk = al('junk'); vja = al('junkaddr')
    vtk = al('tk'); vcg = al('cg')
    a(f'v_and_b32 v{vtk}, 7, v{vlane}')
    a(f'v_lshrrev_b32 v{vcg}, 3, v{vlane}')
    vch = al('choff')
    a(f's_lshl_b32 s6, {S_W8}, 7')
    a(f'v_lshl_add_u32 v{vch}, v{vcg}, 4, s6')
    vrow = al('rowoff')
    a(f's_lshl_b32 s7, {S_P}, 13')
    a(f'v_lshl_add_u32 v{vrow}, v{vtk}, 10, s7')
    vxo = al('xoff')
    a(f'v_add_u32 v{vxo}, v{vrow}, v{vch}')
    vblk = al('blkoff')
    a(f'v_lshl_add_u32 v{vblk}, v0, 4, s7')
    vpo = al('paroff'); vpo2 = al('paroff2'); vdto = al('dtoff')
    a(f's_lshl_b32 s6, {S_P}, 9')
    a(f'v_lshl_add_u32 v{vpo}, v0, 1, s6')
    a(f'v_xor_b32 v{vpo2}, 128, v{vpo}')
    a(f's_lshl_b32 s6, {S_P}, 2')
    a(f'v_lshrrev_b32 v{vdto}, 7, v0')
    a(f'v_lshl_add_u32 v{vdto}, v{vdto}, 1, s6')
    a(f'v_lshlrev_b32 v{vt0}, 4, v{vlane}')
    vx = al('x', 4, 2); vD = al('D', 4, 2)
    vla = al('la'); vai = al('ai'); vcr = al('cr'); vci = al('ci'); vcr2 = al('cr2'); vci2 = al('ci2'); vldt = al('ldt')
    a('s_waitcnt lgkmcnt(0)')
    stamp('kernarg')
    a(f'global_load_dwordx4 {vr(vx,4)}, v{vxo}, {P_X}')
    a(f's_load_dword {S_TAG}, {P_WS}, {WS_EPOCH}')
    a(f's_cmp_eq_u32 {S_W8}, 6'); a('s_cbranch_scc0 L_s0_n6')
    a(f'global_load_dwordx4 {vr(vD,4)}, v{vt0}, {P_DS}')
    a.label('L_s0_n6')
    a(f's_cmp_eq_u32 {S_W8}, 7'); a('s_cbranch_scc0 L_s0_n7')
    a(f'global_load_dwordx4 {vr(vD,4)}, v{vt0}, {P_WR}')
    a.label('L_s0_n7')
    if cfg.xbar: a('s_barrier')
    vones = al('ones', 4, 2)
    for i in range(4): a(f'v_mov_b32 v{vones+i}, -1')
    a('s_mul_i32 s6, s2, 768'); a(f's_mul_i32 s7, {S_W8}, 96'); a('s_add_u32 s6, s6, s7'); a(f's_add_u32 s6, s6, {WS_MISC}')
    a(f'v_lshl_add_u32 v{vt1}, v{vlane}, 4, s6')
    a(f'v_add_u32 v{vt2}, {WS_U}, v{vblk}')
    a(f'v_add_u32 v{vt3}, {WS_Y}, v{vblk}')
    a(f'global_store_dwordx4 v{vt2}, {vr(vones,4)}, {P_WS} sc1')
    a(f'global_store_dwordx4 v{vt3}, {vr(vones,4)}, {P_WS} sc1')
    a('s_mov_b64 exec, 0x3f')
    a(f'global_store_dwordx4 v{vt1}, {vr(vones,4)}, {P_WS} sc1')
    a('s_mov_b64 exec, -1')
    if_role_a('L_s0_nopar')
    a(f'global_load_ushort v{vla}, v{vpo}, {P_LA}')
    a(f'global_load_ushort v{vai}, v{vpo}, {P_AI}')
    a(f'global_load_ushort v{vcr}, v{vpo}, {P_CR}')
    a(f'global_load_ushort v{vci}, v{vpo}, {P_CI}')
    a(f'global_load_ushort v{vcr2}, v{vpo2}, {P_CR}')
    a(f'global_load_ushort v{vci2}, v{vpo2}, {P_CI}')
    a(f'global_load_ushort v{vldt}, v{vdto}, {P_DT}')
    a('s_branch L_s0_par')
    a.label('L_s0_nopar')
    a(f's_cmp_ge_u32 {S_W8}, 6'); a('s_cbranch_scc1 L_s0_par')
    a('s_getpc_b64 s[38:39]')
    a.label('L_pc_here')
    a(f's_sub_u32 s6, {S_W8}, 4'); a('s_lshl_b32 s6, s6, 13')
    a(f'v_lshl_add_u32 v{vja}, v{vlane}, 7, s6')
    a(f'v_min_u32 v{vja}, L_end-L_pc_here, v{vja}')
    a(f'global_load_dword v{vjunk}, v{vja}, s[38:39]')
    a.label('L_s0_par')
    R.release('paroff'); R.release('paroff2'); R.release('dtoff')
    stamp('issued')
    a(f's_mov_b32 {S_L2E}, {hx(f2u(1.4426950408889634))}')
    a(f's_mov_b32 {S_L2ELO}, {hx(f2u(1.4426950408889634 - f32(1.4426950408889634)))}')
    i2pi = 1.0 / (2 * math.pi)
    a(f's_mov_b32 {S_I2PI}, {hx(f2u(i2pi))}')
    a(f's_mov_b32 {S_I2PILO}, {hx(f2u(i2pi - f32(i2pi)))}')
    a(f's_mov_b32 {S_EPS}, {hx(f2u(1e-5))}')
    a(f's_mov_b32 {S_MASKHI}, 0xffff0000')
    a(f's_mov_b32 {S_ONE2}, 0x3f803f80')
    vz = al('z', 4, 2)
    for i in range(4): a(f'v_mov_b32 v{vz+i}, 0')
    a(f's_cmp_eq_u32 {S_W8}, 4'); a('s_cbranch_scc0 L_s0_z1')
    a(f'v_lshlrev_b32 v{vt0}, 4, v{vlane}')
    a(f'v_add_u32 v{vt1}, {UL_SZ - 512}, v{vt0}')
    a(f'v_cmp_gt_u32 vcc, 32, v{vlane}')
    a(f'v_cndmask_b32 v{vt0}, v{vt1}, v{vt0}, vcc')
    a(f'ds_write_b128 v{vt0}, {vr(vz,4)} offset:{L_UL}')
    a.label('L_s0_z1')
    a(f's_cmp_eq_u32 {S_W8}, 5'); a('s_cbranch_scc0 L_s0_z2')
    a(f'v_lshrrev_b32 v{vt0}, 1, v{vlane}')
    a(f'v_mul_u32_u24 v{vt0}, {KC_SZ}, v{vt0}')
    a(f'v_and_b32 v{vt1}, 1, v{vlane}')
    a(f'v_lshl_add_u32 v{vt0}, v{vt1}, 4, v{vt0}')
    a('s_mov_b64 exec, 0xff')
    a(f'ds_write_b128 v{vt0}, {vr(vz,4)} offset:{L_KC + 4096}')
    a('s_mov_b64 exec, -1')
    a.label('L_s0_z2')
    R.release('z')

    vTw = al('Tw'); vTs = al('Ts')
    a(f'v_and_b32 v{vt0}, 15, v{vlane}')
    a(f'v_lshrrev_b32 v{vt1}, 4, v{vlane}')
    a(f's_cmp_ge_u32 {S_W8}, 4'); a('s_cbranch_scc1 L_s0_t2')
    a(f's_bitcmp1_b32 {S_W8}, 0'); a('s_cbranch_scc1 L_s0_t1')
    a(f'v_lshrrev_b32 v{vt2}, 3, v{vt0}'); a(f'v_lshlrev_b32 v{vt2}, 7, v{vt2}')
    a(f'v_and_b32 v{vt3}, 7, v{vt0}'); a(f'v_add_u32 v{vTw}, v{vt2}, v{vt3}')
    a(f'v_mov_b32 v{vTs}, 8')
    a('s_branch L_s0_td')
    a.label('L_s0_t1')
    a(f'v_lshrrev_b32 v{vt2}, 2, v{vt0}'); a(f'v_lshlrev_b32 v{vt2}, 6, v{vt2}')
    a(f'v_and_b32 v{vt3}, 3, v{vt0}'); a(f'v_add_u32 v{vt2}, v{vt2}, v{vt3}'); a(f'v_add_u32 v{vTw}, 256, v{vt2}')
    a(f'v_lshrrev_b32 v{vt2}, 1, v{vt0}'); a(f'v_lshlrev_b32 v{vt2}, 5, v{vt2}')
    a(f'v_and_b32 v{vt3}, 1, v{vt0}'); a(f'v_add_u32 v{vt2}, v{vt2}, v{vt3}'); a(f'v_add_u32 v{vt2}, 256, v{vt2}')
    a(f'v_cmp_gt_u32 vcc, 8, v{vt0}')
    a(f'v_cndmask_b32 v{vTw}, v{vt2}, v{vTw}, vcc')
    a(f'v_mov_b32 v{vt2}, 2'); a(f'v_mov_b32 v{vt3}, 4'); a(f'v_cndmask_b32 v{vTs}, v{vt2}, v{vt3}, vcc')
    a('s_branch L_s0_td')
    a.label('L_s0_t2')
    a(f'v_lshlrev_b32 v{vTw}, 4, v{vt0}'); a(f'v_add_u32 v{vTw}, 512, v{vTw}')
    a(f'v_mov_b32 v{vTs}, 1')
    a.label('L_s0_td')
    a(f'v_lshlrev_b32 v{vt1}, 2, v{vt1}')
    a(f'v_mul_u32_u24 v{vt1}, v{vt1}, v{vTs}')
    a(f'v_add_u32 v{vTw}, v{vTw}, v{vt1}')
    a(f'v_lshlrev_b32 v{vTw}, 1, v{vTw}')
    a(f'v_lshlrev_b32 v{vTs}, 1, v{vTs}')
    S_KC, S_KT = 's40', 's41'
    a(f's_lshr_b32 {S_KC}, {S_W8}, 1'); a(f's_and_b32 {S_KT}, {S_W8}, 1')
    a(f's_sub_u32 s6, {S_W8}, 4')
    a(f's_cmp_ge_u32 {S_W8}, 4'); a(f's_cselect_b32 {S_KC}, s6, {S_KC}'); a(f's_cselect_b32 {S_KT}, 2, {S_KT}')
    a(f's_mul_i32 s6, {S_KC}, {TT_SZ}'); a(f's_add_u32 s6, s6, {L_TT}')
    a(f'v_add_u32 v{vTw}, s6, v{vTw}')

    vTa = al('Ta', 10, 2); vKw = al('Kw'); vz8 = al('z8')
    vf = al('f1', 12, 2); vfo = al('f1off'); vug = al('ugoff'); vul = al('ulds')
    a(f'v_and_b32 v{vz8}, 255, v0')
    a(f'v_lshlrev_b32 v{vug}, 13, v{vz8}')
    a(f's_lshl_b32 s6, {S_P}, 5'); a(f's_add_u32 s6, s6, {WS_U}')
    a(f'v_add_u32 v{vug}, s6, v{vug}')
    a('s_and_b32 s6, s2, 7'); a('s_lshl_b32 s6, s6, 12'); a(f's_add_u32 s6, s6, {WS_F1}')
    a(f'v_lshl_add_u32 v{vfo}, v{vlane}, 4, s6')
    if_role_b('L_s0_noexp')
    a(f'v_lshlrev_b32 v{vul}, 4, v{vz8}')
    a(f'v_sub_u32 v{vKw}, 255, v{vz8}')
    a(f'v_lshlrev_b32 v{vKw}, 4, v{vKw}')
    a(f'v_lshlrev_b32 v{vz8}, 3, v{vz8}')
    a(f'v_add_u32 v{vz8}, 9, v{vz8}')
    for k in range(10):
        d = vTa + k
        a(f'v_subrev_u32 v{d}, {k}, v{vz8}')
        a(f'v_cvt_f32_u32 v{vt0}, v{d}')
        a(f'v_cvt_pk_bf16_f32 v{vt0}, v{vt0}, v{vt0}')
        a(f'v_and_b32 v{vt0}, 0xffff, v{vt0}')
        a(f'v_subrev_u32 v{vt0}, 17024, v{vt0}')
        a(f'v_min_u32 v{d}, 128, v{d}')
        a(f'v_max_i32 v{d}, v{vt0}, v{d}')
        a(f'v_lshlrev_b32 v{d}, 1, v{d}')
    a.label('L_s0_noexp')
    R.release('z8')

    vEP = al('EP'); vISa = al('ISa'); vYa = al('Ya')
    a(f'v_lshrrev_b32 v{vt0}, 1, v0')
    a(f'v_and_b32 v{vt1}, 1, v0')
    a(f'v_mul_u32_u24 v{vEP}, {PX_C}, v{vt1}')
    a(f'v_lshrrev_b32 v{vt3}, 5, v{vt0}'); a(f'v_mul_u32_u24 v{vt3}, {PX_T}, v{vt3}'); a(f'v_add_u32 v{vEP}, v{vEP}, v{vt3}')
    a(f'v_bfe_u32 v{vt3}, v{vt0}, 1, 4'); a(f'v_lshl_add_u32 v{vEP}, v{vt3}, 4, v{vEP}')
    a(f'v_and_b32 v{vt3}, 1, v{vt0}'); a(f'v_mul_u32_u24 v{vt3}, 640, v{vt3}'); a(f'v_add_u32 v{vEP}, v{vEP}, v{vt3}')
    a(f'v_add_u32 v{vEP}, {L_PX}, v{vEP}')
    a(f'v_lshlrev_b32 v{vISa}, 2, v{vt1}')
    a(f'v_add_u32 v{vYa}, {WS_Y}, v{vblk}')
    vLA = al('LA', 4); vLB = al('LB'); vPW = al('PW')
    if_role_a('L_s0_nocv')
    a(f's_lshr_b32 s6, {S_W8}, 1'); a(f's_and_b32 s7, {S_W8}, 1')
    a(f'v_and_b32 v{vt0}, 15, v{vlane}'); a(f'v_lshrrev_b32 v{vt1}, 4, v{vlane}')
    a(f'v_and_b32 v{vt2}, 1, v{vt0}')
    a(f'v_mul_u32_u24 v{vt3}, {KC_SZ + 2}, v{vt2}')
    a(f'v_lshl_add_u32 v{vt3}, v{vt1}, 4, v{vt3}')
    a(f'v_lshlrev_b32 v{vt2}, 1, v{vt0}')
    a(f'v_sub_u32 v{vt3}, v{vt3}, v{vt2}')
    a(f's_mul_i32 s38, s6, {2*KC_SZ}'); a('s_lshl_b32 s39, s7, 8')
    a('s_sub_u32 s38, s38, s39'); a(f's_add_u32 s38, s38, {L_KC + 4064 - 64*15}')
    a(f'v_add_u32 v{vLA}, s38, v{vt3}')
    for J in range(1, 4): a(f'v_subrev_u32 v{vLA+J}, {1024*J}, v{vLA}')
    a(f'v_lshl_add_u32 v{vt2}, v{vt0}, 1, v{vt1}')
    a(f's_mul_i32 s38, s6, {UL_SZ}'); a('s_sub_u32 s38, s38, s39'); a(f's_add_u32 s38, s38, {L_UL + 480 - 192}')
    a(f'v_lshl_add_u32 v{vLB}, v{vt2}, 4, s38')
    a(f's_mul_i32 s38, s6, {PX_C}'); a(f's_mul_i32 s39, s7, {PX_H}'); a('s_add_u32 s38, s38, s39'); a(f's_add_u32 s38, s38, {L_PX}')
    a(f'v_lshrrev_b32 v{vt0}, 5, v{vlane}'); a(f'v_lshlrev_b32 v{vt0}, 7, v{vt0}')
    a(f'v_lshl_add_u32 v{vt0}, v{vlane}, 4, v{vt0}')
    a(f'v_add_u32 v{vPW}, s38, v{vt0}')
    a.label('L_s0_nocv')

    def unpack8(dst, src):
        for j in range(4):
            a(f'v_lshlrev_b32 v{dst+2*j}, 16, v{src+j}')
            a(f'v_and_b32 v{dst+2*j+1}, {S_MASKHI}, v{src+j}')
    def cvt4(dst, src, kind='bf16'):
        for j in range(4):
            a(f'v_cvt_pk_{kind}_f32 v{dst+j}, v{src+2*j}, v{src+2*j+1}')
    def xlane2(p, t, op='add_f32', pk=True):
        a(f'v_add_f32_dpp v{p}, v{p}, v{p} row_ror:8 row_mask:0xf bank_mask:0xf')
        a(f'v_add_f32_dpp v{p+1}, v{p+1}, v{p+1} row_ror:8 row_mask:0xf bank_mask:0xf')
        for sw in ('16', '32'):
            a(f'v_mov_b32 v{t}, v{p}'); a(f'v_mov_b32 v{t+1}, v{p+1}')
            a(f'v_permlane{sw}_swap_b32 v{t}, v{p}'); a(f'v_permlane{sw}_swap_b32 v{t+1}, v{p+1}')
            a(f'v_pk_add_f32 {vr(p,2)}, {vr(p,2)}, {vr(t,2)}')
    def xlane1(p, t, op, full=False):
        if full:
            for ror in (1, 2, 4):
                a(f'v_{op}_dpp v{p}, v{p}, v{p} row_ror:{ror} row_mask:0xf bank_mask:0xf')
        a(f'v_{op}_dpp v{p}, v{p}, v{p} row_ror:8 row_mask:0xf bank_mask:0xf')
        for sw in ('16', '32'):
            a(f'v_mov_b32 v{t}, v{p}')
            a(f'v_permlane{sw}_swap_b32 v{t}, v{p}')
            a(f'v_{op} v{p}, v{p}, v{t}')
    def ln_stats_partial(pk, S, t, lds_off):
        a(f'v_dot2_f32_bf16 v{S}, v{pk}, {S_ONE2}, 0')
        a(f'v_dot2_f32_bf16 v{S+1}, v{pk}, v{pk}, 0')
        for j in range(1, 4):
            a(f'v_dot2_f32_bf16 v{S}, v{pk+j}, {S_ONE2}, v{S}')
            a(f'v_dot2_f32_bf16 v{S+1}, v{pk+j}, v{pk+j}, v{S+1}')
        a(f's_lshl_b32 s6, {S_W8}, 3')
        xlane2(S, t)
        a(f'v_lshl_add_u32 v{t}, v{vtk}, 6, s6')
        a('s_mov_b64 exec, 0xff')
        a(f'ds_write_b64 v{t}, {vr(S,2)} offset:{lds_off}')
        a('s_mov_b64 exec, -1')
    def ln_finish(xf, d, S, t, lds_off, m, rs, sout):
        a(f'v_lshlrev_b32 v{t}, 6, v{vtk}')
        for j in range(4): a(f'ds_read_b128 {vr(d+4*j,4)}, v{t} offset:{lds_off + 16*j}')
        a('s_waitcnt lgkmcnt(0)')
        for j in (0, 4, 8, 12): a(f'v_pk_add_f32 {vr(d+j,2)}, {vr(d+j,2)}, {vr(d+j+2,2)}')
        a(f'v_pk_add_f32 {vr(d,2)}, {vr(d,2)}, {vr(d+4,2)}')
        a(f'v_pk_add_f32 {vr(d+8,2)}, {vr(d+8,2)}, {vr(d+12,2)}')
        a(f'v_pk_add_f32 {vr(S,2)}, {vr(d,2)}, {vr(d+8,2)}')
        inv = hx(f2u(1.0/512))
        a(f'v_mul_f32 v{S}, {inv}, v{S}')
        a(f'v_mul_f32 v{S+1}, {inv}, v{S+1}')
        a(f'v_fma_f32 v{S+1}, -v{S}, v{S}, v{S+1}')
        a(f'v_max_f32 v{S+1}, 0, v{S+1}')
        a(f'v_cvt_pk_bf16_f32 v{t}, v{S}, v{S+1}')
        a(f'v_lshlrev_b32 v{m}, 16, v{t}')
        a(f'v_and_b32 v{t}, {S_MASKHI}, v{t}')
        a(f'v_add_f32 v{t}, {S_EPS}, v{t}')
        a(f'v_cvt_pk_bf16_f32 v{t}, v{t}, v{t}')
        a(f'v_lshlrev_b32 v{t}, 16, v{t}')
        a(f'v_sqrt_f32 v{t}, v{t}')
        a(f'v_cvt_pk_bf16_f32 v{t}, v{t}, v{t}')
        a(f'v_lshlrev_b32 v{sout}, 16, v{t}')
        a(f'v_rcp_f32 v{rs}, v{sout}')
        normalize(xf, m, rs, d)
    def normalize(xf, m, rs, d):
        for j in range(4):
            a(f'v_pk_add_f32 {vr(d+2*j,2)}, {vr(xf+2*j,2)}, {vr(m,2)} op_sel_hi:[1,0] neg_lo:[0,1] neg_hi:[0,1]')
        cvt4(d+8, d)
        unpack8(d, d+8)
        for j in range(4):
            a(f'v_pk_mul_f32 {vr(d+2*j,2)}, {vr(d+2*j,2)}, {vr(rs,2)} op_sel_hi:[1,0]')
        cvt4(d+8, d)

    vxf = al('xf', 8, 2); vud = al('ud', 8, 2); vm1 = al('m1', 2, 2)
    vd = al('d', 16, 4); vS = al('S', 2, 2); vt = al('t', 2, 2); vrs = al('rs', 2, 2); vs_ = al('s', 2, 2)
    if cfg.wtouch:
        vtw = al('tw')
        a('s_and_b32 s6, s2, 7'); a('s_lshr_b32 s7, s2, 3')
        a('s_mul_i32 s38, s6, 448'); a('s_and_b32 s38, s38, 0xffffff80')
        a(f's_mul_i32 s39, s7, {16*3584}'); a('s_add_u32 s38, s38, s39')
        a(f'v_lshrrev_b32 v{vtw}, 2, v{vlane}'); a(f'v_mul_u32_u24 v{vtw}, 3584, v{vtw}')
        a(f'v_and_b32 v{vt0}, 3, v{vlane}'); a(f'v_lshl_add_u32 v{vtw}, v{vt0}, 7, v{vtw}')
        a(f'v_add_u32 v{vtw}, s38, v{vtw}')
        a(f'v_min_u32 v{vtw}, {512*3584 - 4}, v{vtw}')
        a('s_lshl_b32 s38, s6, 7'); a(f's_mul_i32 s39, s7, {56*1024}'); a('s_add_u32 s38, s38, s39')
        a(f's_and_b32 s39, {S_W8}, 1'); a(f's_mul_i32 s39, s39, {28*1024}'); a('s_add_u32 s38, s38, s39')
        a(f'v_min_u32 v{vt0}, 27, v{vlane}'); a(f'v_lshl_add_u32 v{vt0}, v{vt0}, 10, s38')
        a(f's_cmp_ge_u32 {S_W8}, 2'); a('s_cselect_b64 vcc, -1, 0')
        a(f'v_cndmask_b32 v{vtw}, v{vtw}, v{vt0}, vcc')
        a(f's_cmp_eq_u32 {S_W8}, 1'); a('s_cselect_b32 s44, s28, s26'); a('s_cselect_b32 s45, s29, s27')
        a(f's_cmp_ge_u32 {S_W8}, 2'); a('s_cselect_b32 s44, s30, s44'); a('s_cselect_b32 s45, s31, s45')
    stamp('precomp')
    a(f's_cmp_lt_u32 {S_W8}, 4'); a('s_cbranch_scc1 L_s1_wa')
    a(f's_cmp_lt_u32 {S_W8}, 6'); a('s_cbranch_scc1 L_s1_wb')
    a('s_waitcnt vmcnt(3)'); a('s_branch L_s1_wd')
    a.label('L_s1_wb'); a('s_waitcnt vmcnt(4)'); a('s_branch L_s1_wd')
    a.label('L_s1_wa'); a('s_waitcnt vmcnt(10)')
    a.label('L_s1_wd')
    stamp('x_arrived')
    R.release('ones')
    if cfg.wtouch == 1:
        if_role_a('L_tw_done')
        a(f'global_load_dword v{vjunk}, v{vtw}, s[44:45]')
        a.label('L_tw_done')
        R.release('tw')
    ln_stats_partial(vx, vS, vt, L_ST1)
    unpack8(vxf, vx)
    a(f's_cmp_lt_u32 {S_W8}, 6'); a('s_cbranch_scc1 L_s1_nodw')
    a(f's_sub_u32 s6, {S_W8}, 6'); a('s_lshl_b32 s6, s6, 10'); a(f's_add_u32 s6, s6, {L_D}')
    a(f'v_lshl_add_u32 v{vt0}, v{vlane}, 4, s6')
    a(f'ds_write_b128 v{vt0}, {vr(vD,4)}')
    a.label('L_s1_nodw')
    a(f's_cmp_lt_u32 {S_W8}, 4'); a('s_cbranch_scc1 L_s1_ca')
    a(f's_cmp_lt_u32 {S_W8}, 6'); a('s_cbranch_scc1 L_s1_cb')
    a('s_waitcnt vmcnt(0) lgkmcnt(0)'); a('s_branch L_s1_cd')
    a.label('L_s1_cb'); a('s_waitcnt vmcnt(1) lgkmcnt(0)'); a('s_branch L_s1_cd')
    a.label('L_s1_ca'); a(f's_waitcnt vmcnt({7 + (1 if cfg.wtouch == 1 else 0)}) lgkmcnt(0)')
    a.label('L_s1_cd')
    stamp('ln1_prebar')
    a('s_barrier')
    a(f's_add_u32 {S_TAG}, {S_TAG}, 1')
    a(f's_cmp_eq_u32 {S_W8}, 4'); a('s_cbranch_scc0 L_s1_nof1')
    a('s_lshl_b32 s7, s2, 4'); a(f's_add_u32 s6, s7, {WS_F1}')
    a(f'v_lshl_add_u32 v{vt0}, v{vlane}, 12, s6')
    a(f'v_mov_b32 v{vt1}, {S_TAG}')
    a('s_mov_b64 exec, 0xff')
    a(f'global_store_dword v{vt0}, v{vt1}, {P_WS} sc1')
    a('s_mov_b64 exec, -1')
    a.label('L_s1_nof1')
    a(f'ds_read_b128 {vr(vD,4)}, v{vch} offset:{L_D}')
    ln_finish(vxf, vd, vS, vt, L_ST1, vm1, vrs, vs_)
    stamp('ln1_fin')
    unpack8(vd, vd+8)
    cvt4(vd+12, vd, 'f16')
    S_STG = 's42'
    a(f's_mul_i32 {S_STG}, {S_W8}, {STG_SZ}'); a(f's_add_u32 {S_STG}, {S_STG}, {L_STG}')
    a(f'v_mul_u32_u24 v{vt0}, 192, v{vtk}')
    a(f'v_lshl_add_u32 v{vt0}, v{vcg}, 4, v{vt0}')
    a(f'v_add_u32 v{vt0}, {S_STG}, v{vt0}')
    a(f'ds_write_b128 v{vt0}, {vr(vd+12,4)}')
    a(f'v_bfe_u32 v{vt1}, v{vlane}, 2, 2')
    a(f'v_mul_u32_u24 v{vt1}, 192, v{vt1}')
    a(f'v_lshrrev_b32 v{vt2}, 4, v{vlane}')
    a(f'v_lshl_add_u32 v{vt1}, v{vt2}, 5, v{vt1}')
    a(f'v_and_b32 v{vt2}, 3, v{vlane}')
    a(f'v_lshl_add_u32 v{vt1}, v{vt2}, 3, v{vt1}')
    a(f'v_add_u32 v{vt1}, {S_STG}, v{vt1}')
    a(f'v_add_u32 v{vt2}, {WS_U}, v{vblk}')
    a('s_waitcnt lgkmcnt(0)')
    a(f'ds_read_b64_tr_b16 {vr(vd+8,2)}, v{vt1}')
    a(f'ds_read_b64_tr_b16 {vr(vd+10,2)}, v{vt1} offset:{4*192}')
    unpack8(vud, vD)
    for j in range(4): a(f'v_pk_mul_f32 {vr(vud+2*j,2)}, {vr(vud+2*j,2)}, {vr(vd+2*j,2)}')
    a('s_waitcnt lgkmcnt(0)')
    a(f'global_store_dwordx4 v{vt2}, {vr(vd+8,4)}, {P_WS} sc1')
    stamp('u_stored')
    cvt4(vd+12, vud)
    unpack8(vud, vd+12)
    R.release('x'); R.release('D')
    for n in ('d', 'S', 't', 'rs', 's'): R.release(n)
    if stop_here(1): return finish(a, R, cfg)

    if_role_a('L_k_roleB')
    a(f's_waitcnt vmcnt({1 + (1 if cfg.wtouch == 1 else 0)})')
    kt = al('kt', 12, 2)
    def exp_acc(x, t1, t2):
        a(f'v_mul_f32 v{t1}, {S_L2E}, v{x}')
        a(f'v_fma_f32 v{t2}, v{x}, {S_L2E}, -v{t1}')
        a(f'v_fma_f32 v{t2}, v{x}, {S_L2ELO}, v{t2}')
        a(f'v_exp_f32 v{x}, v{t1}')
        a(f'v_mul_f32 v{t2}, {hx(f2u(math.log(2)))}, v{t2}')
        a(f'v_fma_f32 v{x}, v{x}, v{t2}, v{x}')
    for r in (vla, vai, vcr, vci, vcr2, vci2, vldt): a(f'v_lshlrev_b32 v{r}, 16, v{r}')
    exp_acc(vldt, kt, kt+1); exp_acc(vla, kt+2, kt+3)
    a(f'v_cvt_pk_bf16_f32 v{kt}, v{vldt}, v{vla}')
    vdt = vldt; vAr = vla
    a(f'v_lshlrev_b32 v{vdt}, 16, v{kt}')
    a(f'v_and_b32 v{vAr}, {S_MASKHI}, v{kt}')
    vsum = kt + 4
    a(f'v_add_f32 v{vsum}, |v{vcr}|, |v{vci}|')
    a(f'v_add_f32 v{kt+5}, |v{vcr2}|, |v{vci2}|')
    a(f'v_add_f32 v{vsum}, v{vsum}, v{kt+5}')
    xlane1(vsum, kt+5, 'add_f32', full=True)
    val_ = al('al'); vfh = al('fh'); vfl = al('fl'); v2dt = al('2dt')
    a(f'v_mul_f32 v{val_}, v{vAr}, v{vdt}')
    a(f'v_mul_f32 v{val_}, {S_L2E}, v{val_}')
    a(f'v_mul_f32 v{kt}, v{vai}, v{vdt}')
    a(f'v_mul_f32 v{vfh}, {S_I2PI}, v{kt}')
    a(f'v_fma_f32 v{vfl}, v{kt}, {S_I2PI}, -v{vfh}')
    a(f'v_fma_f32 v{vfl}, v{kt}, {S_I2PILO}, v{vfl}')
    a(f'v_add_f32 v{v2dt}, v{vdt}, v{vdt}')
    a(f'v_mul_f32 v{vsum}, v{vsum}, v{v2dt}')
    a(f'v_frexp_exp_i32_f32 v{kt+5}, v{vsum}')
    a(f'v_sub_u32 v{kt+6}, 15, v{kt+5}')
    a(f'v_ldexp_f32 v{v2dt}, v{v2dt}, v{kt+6}')
    a(f'v_subrev_u32 v{kt+5}, 15, v{kt+5}')
    a(f'v_mov_b32 v{kt+6}, 1.0')
    a(f'v_ldexp_f32 v{kt+6}, v{kt+6}, v{kt+5}')
    a(f's_lshr_b32 s6, {S_W8}, 1'); a('s_lshl_b32 s6, s6, 2'); a(f's_add_u32 s6, s6, {L_IS}')
    a(f'v_mov_b32 v{kt+7}, s6')
    a('s_mov_b64 exec, 1')
    a(f'ds_write_b32 v{kt+7}, v{kt+6}')
    a('s_mov_b64 exec, -1')
    E1 = al('E1', 2, 2); E8 = al('E8', 2, 2); E128 = al('E128', 2, 2)
    def anchor(E, p):
        a(f'v_mul_f32 v{kt}, {hx(f2u(-float(p)))}, v{val_}')
        a(f'v_mul_f32 v{kt+1}, {hx(f2u(float(p)))}, v{vfh}')
        a(f'v_exp_f32 v{kt}, v{kt}')
        a(f'v_fract_f32 v{kt+1}, v{kt+1}')
        a(f'v_fma_f32 v{kt+1}, v{vfl}, {hx(f2u(float(p))) if False else "v%d" % (kt+8)}, v{kt+1}') if False else None
        a(f'v_mov_b32 v{kt+2}, {hx(f2u(float(p)))}')
        a(f'v_fma_f32 v{kt+1}, v{vfl}, v{kt+2}, v{kt+1}')
        a(f'v_cos_f32 v{E}, v{kt+1}')
        a(f'v_sin_f32 v{E+1}, v{kt+1}')
        a(f'v_pk_mul_f32 {vr(E,2)}, {vr(E,2)}, {vr(kt,2)} op_sel_hi:[1,0]')
    anchor(E8, 8); anchor(E128, 128); anchor(E1, 1)
    def cmul(d, x, y):
        a(f'v_pk_mul_f32 {vr(d,2)}, {vr(x,2)}, {vr(y,2)} op_sel:[0,0] op_sel_hi:[0,1]')
        a(f'v_pk_fma_f32 {vr(d,2)}, {vr(x,2)}, {vr(y,2)}, {vr(d,2)} op_sel:[1,1,0] op_sel_hi:[1,0,1] neg_lo:[1,0,0]')
    vfa = al('fa')
    a(f's_lshr_b32 s6, {S_W8}, 1'); a(f's_mul_i32 s6, s6, {FG_SZ}'); a(f's_add_u32 s6, s6, {L_BIG}')
    a(f'v_and_b32 v{vfa}, 127, v0')
    a(f'v_lshl_add_u32 v{vfa}, v{vfa}, 2, s6')
    cv = [kt+8, kt+9, kt+10, kt+11]; cvi = [0]
    def put(row, val, isG):
        t = cv[cvi[0] % 4]; cvi[0] += 1
        if isG:
            a(f'v_cvt_pk_f16_f32 v{t}, v{val}, -v{val+1}')
            a(f'ds_write_b32 v{vfa}, v{t} offset:{F_SZ + row*FROW}')
        else:
            a(f'v_cvt_pk_f16_f32 v{t}, v{val}, v{val+1}')
            a(f'ds_write_b32 v{vfa}, v{t} offset:{row*FROW}')
    Fa = al('Fa', 2, 2); Fb = al('Fb', 2, 2); Ha = al('Ha', 2, 2); Hb = al('Hb', 2, 2)
    O = [None] + [al(f'O{i}', 2, 2) for i in range(1, 8)]
    Gt = [al('Gt0', 2, 2), al('Gt1', 2, 2)]
    a(f'v_mov_b32 v{O[1]}, v{E1}'); a(f'v_mov_b32 v{O[1]+1}, v{E1+1}')
    a(f'v_mov_b32 v{cv[0]}, 0x00003c00'); a(f'ds_write_b32 v{vfa}, v{cv[0]} offset:0'); cvi[0] = 1
    put(1, E8, False)
    a(f'v_mul_f32 v{Ha}, v{vcr}, v{v2dt}'); a(f'v_mul_f32 v{Ha+1}, v{vci}, v{v2dt}')
    cmul(O[2], O[1], O[1]); cmul(Fa, E8, E8); put(2, Fa, False)
    cmul(O[3], O[2], O[1]); cmul(O[4], O[2], O[2])
    cmul(O[5], O[4], O[1]); cmul(O[6], O[4], O[2]); cmul(O[7], O[4], O[3])
    Fcur, Fnx = Fa, Fb; Hcur, Hnx = Ha, Hb
    fj = 3
    def gcol(i, o):
        if i < 2: return 8*i + o
        if i < 4: return 16 + 4*(i-2) + o//2
        if i < 8: return 24 + 2*(i-4) + o//4
        return 32 + (i-8)
    gi = 0
    for i in range(0, 17):
        offs = list(range(8)) if i < 2 else ([0,2,4,6] if i < 4 else ([0,4] if i < 8 else [0]))
        put(gcol(i, 0), Hcur, True)
        if i < 16: cmul(Hnx, Hcur, E128)
        for o in offs[1:]:
            g = Gt[gi % 2]; gi += 1
            cmul(g, Hcur, O[o]); put(gcol(i, o), g, True)
        if fj <= 15:
            cmul(Fnx, Fcur, E8); put(fj, Fnx, False); Fcur, Fnx = Fnx, Fcur; fj += 1
        Hcur, Hnx = Hnx, Hcur
    assert fj == 16
    a('s_waitcnt lgkmcnt(0)')
    stamp('kgen_valu')
    for n in ['kt','al','fh','fl','2dt','E1','E8','E128','fa','Fa','Fb','Ha','Hb','Gt0','Gt1'] + [f'O{i}' for i in range(1,8)]: R.release(n)
    for n in ('la','ai','cr','ci','cr2','ci2','ldt'): R.release(n)
    a('s_branch L_k_bb')
    a.label('L_k_roleB')
    vu = al('u', 8, 2)
    a(f's_cmp_eq_u32 {S_W8}, 4'); a('s_cbranch_scc0 L_k_nof1p')
    def f1issue():
        for j in range(4): a(f'global_load_dword v{vf+j}, v{vfo}, {P_WS} offset:{1024*j} sc1')
    poll_loop(f1issue, [vf, vf+1, vf+2, vf+3], vt0, 'f1', cmp_tag=True)
    a.label('L_k_nof1p')
    if cfg.active('kgen_valu'): a(f'{cfg.tinstr} s[{70+2*(len(cfg.stamp_names)-1)}:{71+2*(len(cfg.stamp_names)-1)}]')
    a.label('L_k_bb')
    a('s_barrier')
    stamp('B_b')
    if cfg.wtouch == 3:
        if_role_a('L_tw3'); a(f'global_load_dword v{vjunk}, v{vtw}, s[44:45]'); a.label('L_tw3')
    if_role_b('L_k_nog')
    a(f'global_load_dwordx4 {vr(vu,4)}, v{vug}, {P_WS} sc1')
    a(f'global_load_dwordx4 {vr(vu+4,4)}, v{vug}, {P_WS} offset:16 sc1')
    a.label('L_k_nog')
    a(f's_cmp_ge_u32 {S_W8}, 6'); a('s_cbranch_scc1 L_k_nomf')
    vA = al('kA', 32, 4); vB = al('kB', 32, 4); vacc = al('kacc', 4, 4); vaa = al('kaa'); vba = al('kba')
    a(f's_mul_i32 s6, {S_KC}, {FG_SZ}'); a(f's_add_u32 s6, s6, {L_BIG}')
    a(f'v_and_b32 v{vt0}, 15, v{vlane}'); a(f'v_mul_u32_u24 v{vt0}, {FROW}, v{vt0}')
    a(f'v_lshrrev_b32 v{vt1}, 4, v{vlane}'); a(f'v_lshl_add_u32 v{vt0}, v{vt1}, 4, v{vt0}')
    a(f'v_add_u32 v{vaa}, s6, v{vt0}')
    a(f's_mul_i32 s7, {S_KT}, {16*FROW}'); a('s_add_u32 s6, s6, s7'); a(f's_add_u32 s6, s6, {F_SZ}')
    a(f'v_add_u32 v{vba}, s6, v{vt0}')
    for k in range(8):
        a(f'ds_read_b128 {vr(vA+4*k,4)}, v{vaa} offset:{64*k}')
        a(f'ds_read_b128 {vr(vB+4*k,4)}, v{vba} offset:{64*k}')
        if k == 6: a('s_waitcnt lgkmcnt(10)') if False else None
    for k in range(8):
        a(f's_waitcnt lgkmcnt({min(15, 2*(7-k))})')
        a(f'v_mfma_f32_16x16x32_f16 {vr(vacc,4)}, {vr(vA+4*k,4)}, {vr(vB+4*k,4)}, {"0" if k == 0 else vr(vacc,4)}')
    a(f'v_add_u32 v{vt0}, v{vTw}, v{vTs}')
    a(f'v_add_u32 v{vt1}, v{vt0}, v{vTs}')
    a(f'v_add_u32 v{vt2}, v{vt1}, v{vTs}')
    a(f'v_cvt_pk_f16_f32 v{vA}, v{vacc}, v{vacc+1}')
    a(f'v_cvt_pk_f16_f32 v{vA+1}, v{vacc+2}, v{vacc+3}')
    a(f'ds_write_b16 v{vTw}, v{vA}')
    a(f'ds_write_b16_d16_hi v{vt0}, v{vA}')
    a(f'ds_write_b16 v{vt1}, v{vA+1}')
    a(f'ds_write_b16_d16_hi v{vt2}, v{vA+1}')
    for n in ('kA','kB','kacc','kaa','kba'): R.release(n)
    a.label('L_k_nomf')
    a('s_waitcnt lgkmcnt(0)')
    stamp('k_mf')
    a('s_barrier')
    stamp('B_c')
    if cfg.wtouch == 4:
        if_role_a('L_tw4'); a(f'global_load_dword v{vjunk}, v{vtw}, s[44:45]'); a.label('L_tw4')
    R.release('Tw'); R.release('Ts')
    if_role_b('L_k_noexp')
    ve = al('e', 20, 2); vp = al('ep', 8, 4)
    for c in range(2):
        for k in range(10):
            a(f'ds_read_u16 v{ve+10*c+k}, v{vTa+k} offset:{L_TT + c*TT_SZ}')
    for c in range(2):
        e = ve + 10*c
        a(f's_waitcnt lgkmcnt({10 if c == 0 else 2})')
        for j in range(4): a(f'v_lshl_or_b32 v{vp+j}, v{e+2*j+2}, 16, v{e+2*j+1}')
        for j in range(4): a(f'v_lshl_or_b32 v{vp+4+j}, v{e+2*j+1}, 16, v{e+2*j}')
        a(f'ds_write_b128 v{vKw}, {vr(vp,4)} offset:{L_KC + (2*c)*KC_SZ}')
        a(f'ds_write_b128 v{vKw}, {vr(vp+4,4)} offset:{L_KC + (2*c+1)*KC_SZ}')
        a(f's_cmp_eq_u32 {S_W8}, 4'); l = lbl('tail'); a(f's_cbranch_scc0 {l}')
        a(f'v_lshl_or_b32 v{vt1}, v{e+9}, 16, v{e+8}')
        a(f'v_mov_b32 v{vt0}, 4096')
        a('s_mov_b64 exec, 1')
        a(f'ds_write_b32 v{vt0}, v{e+9} offset:{L_KC + (2*c)*KC_SZ}')
        a(f'ds_write_b32 v{vt0}, v{vt1} offset:{L_KC + (2*c+1)*KC_SZ}')
        a('s_mov_b64 exec, -1')
        a.label(l)
    R.release('e'); R.release('ep')
    stamp('expand')
    def issue_u():
        a(f'global_load_dwordx4 {vr(vu,4)}, v{vug}, {P_WS} sc1')
        a(f'global_load_dwordx4 {vr(vu+4,4)}, v{vug}, {P_WS} offset:16 sc1')
    poll_loop(issue_u, list(range(vu, vu+8)), vt0, 'u', first_issued=True)
    a(f'ds_write_b128 v{vul}, {vr(vu,4)} offset:{L_UL + 512}')
    a(f'ds_write_b128 v{vul}, {vr(vu+4,4)} offset:{L_UL + UL_SZ + 512}')
    a('s_branch L_k_bd')
    a.label('L_k_noexp')
    if cfg.active('expand'): a(f'{cfg.tinstr} s[{70+2*(len(cfg.stamp_names)-1)}:{71+2*(len(cfg.stamp_names)-1)}]')
    a.label('L_k_bd')
    for n in ('Ta','Kw','f1','f1off','ugoff','ulds','u'): R.release(n)
    a('s_waitcnt lgkmcnt(0)')
    a('s_barrier')
    stamp('B_d')
    if cfg.dbg:
        dv = al('dv', 4, 4); da = al('da');
        a(f's_lshl_b32 s6, {S_P}, 15'); a(f's_add_u32 s6, s6, 0x1000000')
        for it in range(3):
            a(f'v_lshlrev_b32 v{da}, 4, v0'); a(f'v_add_u32 v{da}, {it*8192}, v{da}')
            a(f'v_min_u32 v{da}, {L_UL + 2*UL_SZ - 16}, v{da}')
            a(f'ds_read_b128 {vr(dv,4)}, v{da}')
            a(f'v_add_u32 v{da}, s6, v{da}')
            a('s_waitcnt lgkmcnt(0)')
            a(f'global_store_dwordx4 v{da}, {vr(dv,4)}, {P_WS}')
            a('s_waitcnt vmcnt(0)')
        R.release('dv'); R.release('da')
    if stop_here(2): return finish(a, R, cfg)

    if_role_a('L_c_roleB')
    if cfg.wtouch == 2:
        a(f'global_load_dword v{vjunk}, v{vtw}, s[44:45]')
    if cfg.wtouch >= 2: R.release('tw')
    acc = al('acc', 32, 4)
    FA = [al('FA0', 32, 4), al('FA1', 32, 4)]; FB = [al('FB0', 32, 4), al('FB1', 32, 4)]
    def frag_group(rho, buf, j):
        J = j >> 1; o = 16 * (15 - (rho + 8 * (j & 1)))
        return [f'ds_read_b128 {vr(FB[buf]+4*j,4)}, v{vLB} offset:{512*j + 64*(3-rho)}',
                f'ds_read2_b32 {vr(FA[buf]+4*j,2)}, v{vLA+J} offset0:{o} offset1:{o+1}',
                f'ds_read2_b32 {vr(FA[buf]+4*j+2,2)}, v{vLA+J} offset0:{o+2} offset1:{o+3}']
    def frag_loads(rho, buf):
        L = []
        for j in range(8): L += frag_group(rho, buf, j)
        return L
    first = set()
    def mf(buf, j, tp):
        t = j + tp
        src = vr(acc+4*t,4) if t in first else '0'
        first.add(t)
        a(f'v_mfma_f32_16x16x32_f16 {vr(acc+4*t,4)}, {vr(FA[buf]+4*j,4)}, {vr(FB[buf]+4*tp,4)}, {src}')
    for j in range(5):
        for l in frag_group(0, 0, j): a(l)
    shells = [[(j, tp) for j in range(8) for tp in range(8 - j) if max(j, tp) == sh] for sh in range(8)]
    nxt = frag_loads(1, 1); k = 0
    nostamp = True
    for sh in range(8):
        if sh <= 3: a('s_waitcnt lgkmcnt(12)')
        elif sh == 4: a('s_waitcnt lgkmcnt(9)')
        elif sh == 5: a('s_waitcnt lgkmcnt(0)')
        for idx, (j, tp) in enumerate(shells[sh]):
            mf(0, j, tp)
            if sh <= 2 and idx == 0:
                for l in frag_group(0, 0, sh + 5): a(l)
            if sh >= 5:
                for _ in range(2):
                    if k < len(nxt): a(nxt[k]); k += 1
    for rho in range(1, 4):
        buf = rho & 1
        nxt = frag_loads(rho + 1, buf ^ 1) if rho < 3 else []
        a('s_waitcnt lgkmcnt(0)')
        if rho == 1: stamp('c_r0')
        if rho == 2: stamp('c_r1')
        if rho < 3:
            k = 0
            for j in range(8):
                for tp in range(8 - j):
                    mf(buf, j, tp)
                    if k < len(nxt): a(nxt[k])
                    k += 1
        else:
            done = []; cnt = 0; wr = 0
            for t in range(8):
                for j in range(t + 1):
                    mf(buf, j, t - j); cnt += 1
                    if wr < len(done) and cnt - done[wr][1] >= 9:
                        a(f'ds_write_b128 v{vPW}, {vr(acc+4*done[wr][0],4)} offset:{done[wr][0]*PX_T}'); wr += 1
                done.append((t, cnt))
            stamp('conv_mfma'); stamp('c_r3')
            while wr < 8:
                a(f'ds_write_b128 v{vPW}, {vr(acc+4*done[wr][0],4)} offset:{done[wr][0]*PX_T}'); wr += 1
    stamp('c_wr')
    for n in ('acc','FA0','FA1','FB0','FB1','LA','LB','PW'): R.release(n)
    a('s_branch L_c_be')
    a.label('L_c_roleB')
    if cfg.active('conv_mfma'): a(f'{cfg.tinstr} s[{70+2*(len(cfg.stamp_names)-1)}:{71+2*(len(cfg.stamp_names)-1)}]')
    gen_roleB_conv(a, R, cfg, locals())
    a.label('L_c_be')
    a('s_waitcnt lgkmcnt(0)')
    a('s_barrier')
    stamp('B_e')
    ep = al('ep', 16, 4); vis = al('is', 2, 2)
    a(f'ds_read_b128 {vr(ep,4)}, v{vEP}')
    a(f'ds_read_b128 {vr(ep+8,4)}, v{vEP} offset:{PX_H}')
    a(f'ds_read_b128 {vr(ep+4,4)}, v{vEP} offset:256')
    a(f'ds_read_b128 {vr(ep+12,4)}, v{vEP} offset:{PX_H + 256}')
    a(f'ds_read_b32 v{vis}, v{vISa} offset:{L_IS}')
    a('s_waitcnt lgkmcnt(0)')
    for j in range(4): a(f'v_pk_add_f32 {vr(ep+2*j,2)}, {vr(ep+2*j,2)}, {vr(ep+8+2*j,2)}')
    for j in range(4): a(f'v_pk_mul_f32 {vr(ep+2*j,2)}, {vr(ep+2*j,2)}, {vr(vis,2)} op_sel_hi:[1,0]')
    cvt4(ep+8, ep)
    a(f'global_store_dwordx4 v{vYa}, {vr(ep+8,4)}, {P_WS} sc1')
    R.release('EP'); R.release('ISa'); R.release('Ya')
    stamp('y_stored')
    R.release('ep'); R.release('is')
    if stop_here(3): return finish(a, R, cfg)

    gen_tail(a, R, cfg, locals())
    return finish(a, R, cfg)

def gen_roleB_conv(a, R, cfg, env):
    S_W8 = env['S_W8']; vlane = env['vlane']; vt0 = env['vt0']; vt1 = env['vt1']; lbl = env['lbl']
    P_WG, P_WU, P_WD = env['P_WG'], env['P_WU'], env['P_WD']
    vblk = env['vblk']; S_P = env['S_P']; P_WS = env['P_WS']
    vo = R.alloc('ones2', 4, 2); vca = R.alloc('clra')
    for i in range(4): a(f'v_mov_b32 v{vo+i}, -1')
    a(f'v_add_u32 v{vca}, {WS_H - 4096}, v{vblk}')
    a(f'global_store_dwordx4 v{vca}, v[{vo}:{vo+3}], {P_WS} sc1')
    a(f'v_add_u32 v{vca}, 4096, v{vca}')
    a(f'global_store_dwordx4 v{vca}, v[{vo}:{vo+3}], {P_WS} sc1')
    a(f's_lshl_b32 s6, {S_P}, 5'); a(f's_add_u32 s6, s6, {WS_STAT}')
    a(f'v_lshl_add_u32 v{vca}, v{vlane}, 2, s6')
    a('s_mov_b64 exec, 0xff')
    a(f'global_store_dword v{vca}, v{vo}, {P_WS} sc1')
    a('s_mov_b64 exec, -1')
    R.release('ones2'); R.release('clra')
    if cfg.dmac:
        a('s_cmp_lt_u32 s2, 56'); a('s_cbranch_scc1 L_dc_go')
        a('s_sub_u32 s7, s2, 64'); a('s_cmp_lt_u32 s7, 32'); a('s_cbranch_scc0 L_dc_done')
        a.label('L_dc_go')
        n = cfg.dsleep
        while n > 0:
            a(f's_sleep {min(n,100)}'); n -= min(n, 100)
        gen_dma(a, R, cfg, env)
        a.label('L_dc_done')

def gen_dma(a, R, cfg, env):
    S_W8 = env['S_W8']; vlane = env['vlane']; vt0 = env['vt0']; vt1 = env['vt1']
    P_WG, P_WU, P_WD = env['P_WG'], env['P_WU'], env['P_WD']; S_FC = env['S_FC']
    a('s_cmp_lt_u32 s2, 56'); a('s_cbranch_scc0 L_w_not1')
    a(f's_sub_u32 s6, {S_W8}, 4')
    a(f'v_lshrrev_b32 v{vt0}, 2, v{vlane}')
    a(f'v_mul_u32_u24 v{vt0}, 3584, v{vt0}')
    a(f'v_and_b32 v{vt1}, 3, v{vlane}')
    a(f'v_lshl_add_u32 v{vt0}, v{vt1}, 4, v{vt0}')
    a(f's_lshl_b32 s7, {S_FC}, 6')
    a('s_and_b32 s38, s6, 1'); a(f's_mul_i32 s39, s38, {256*3584}'); a('s_add_u32 s7, s7, s39')
    a(f'v_add_u32 v{vt0}, s7, v{vt0}')
    a('s_lshl_b32 s39, s6, 14'); a(f's_add_u32 s39, s39, {L_BIG}')
    a('s_cmp_ge_u32 s6, 2'); a('s_cselect_b32 s44, s28, s26'); a('s_cselect_b32 s45, s29, s27')
    a('s_mov_b32 s38, 16'); a(f's_mov_b32 s7, {16*3584}')
    a('s_branch L_w_loop')
    a.label('L_w_not1')
    a(f's_sub_u32 s6, {S_W8}, 4')
    a(f'v_lshrrev_b32 v{vt0}, 1, v{vlane}')
    a(f'v_lshlrev_b32 v{vt0}, 10, v{vt0}')
    a(f'v_and_b32 v{vt1}, 1, v{vlane}')
    a(f'v_lshl_add_u32 v{vt0}, v{vt1}, 4, v{vt0}')
    a(f's_lshl_b32 s7, {S_FC}, 5')
    a(f's_mul_i32 s39, s6, {448*1024}'); a('s_add_u32 s7, s7, s39')
    a(f'v_add_u32 v{vt0}, s7, v{vt0}')
    a(f's_mul_i32 s39, s6, {448*32}'); a(f's_add_u32 s39, s39, {L_BIG}')
    a('s_mov_b32 s44, s30'); a('s_mov_b32 s45, s31')
    a('s_mov_b32 s38, 14'); a(f's_mov_b32 s7, {32*1024}')
    a.label('L_w_loop')
    a('s_mov_b32 m0, s39'); a('s_add_u32 s39, s39, 1024')
    a(f'global_load_lds_dwordx4 v{vt0}, s[44:45]')
    a(f'v_add_u32 v{vt0}, s7, v{vt0}')
    a('s_sub_u32 s38, s38, 1'); a('s_cmp_lg_u32 s38, 0'); a('s_cbranch_scc1 L_w_loop')

def gen_tail(a, R, cfg, env):
    g = env
    al = R.alloc
    S_W8, S_P, S_TAG, S_MASKHI, S_STG, S_SPIN = g['S_W8'], g['S_P'], g['S_TAG'], g['S_MASKHI'], g['S_STG'], g['S_SPIN']
    S_L2E = g['S_L2E']
    P_WS, P_OUT = g['P_WS'], g['P_OUT']
    vlane, vt0, vt1, vt2, vt3, vtk, vcg, vch, vxo = (g[k] for k in ('vlane','vt0','vt1','vt2','vt3','vtk','vcg','vch','vxo'))
    vxf, vud, vm1 = g['vxf'], g['vud'], g['vm1']
    stamp, lbl, poll_loop, unpack8, cvt4, xlane1 = g['stamp'], g['lbl'], g['poll_loop'], g['unpack8'], g['cvt4'], g['xlane1']
    ln_stats_partial, ln_finish, normalize, stop_here = g['ln_stats_partial'], g['ln_finish'], g['normalize'], g['stop_here']
    vy = al('y', 4, 4); vyo = al('yoff'); vwr = al('wr', 4, 4)
    vd = al('d', 16, 4); vS = al('S', 2, 2); vt = al('t', 2, 2); vrs = al('rs', 2, 2); vs_ = al('s', 2, 2); vm2 = al('m2', 2, 2)
    vhf = al('hf', 8, 2); vhp = al('hp', 4, 4)
    a(f'v_lshrrev_b32 v{vyo}, 1, v0'); a(f'v_lshlrev_b32 v{vyo}, 13, v{vyo}')
    a(f'v_and_b32 v{vt0}, 1, v0'); a(f'v_lshl_add_u32 v{vyo}, v{vt0}, 4, v{vyo}')
    a(f's_lshl_b32 s6, {S_P}, 5'); a(f's_add_u32 s6, s6, {WS_Y}')
    a(f'v_add_u32 v{vyo}, s6, v{vyo}')
    a(f'ds_read_b128 {vr(vwr,4)}, v{vch} offset:{L_WR}')
    a(f'v_lshl_add_u32 v{vt2}, v{vlane}, 4, {S_STG}')
    a(f'v_lshrrev_b32 v{vt0}, 4, v{vlane}'); a(f'v_lshlrev_b32 v{vt3}, 8, v{vt0}')
    a(f'v_bfe_u32 v{vt0}, v{vlane}, 1, 1'); a(f'v_lshl_add_u32 v{vt3}, v{vt0}, 7, v{vt3}')
    a(f'v_bfe_u32 v{vt0}, v{vlane}, 2, 2'); a(f'v_lshl_add_u32 v{vt3}, v{vt0}, 4, v{vt3}')
    a(f'v_and_b32 v{vt0}, 1, v{vlane}'); a(f'v_lshl_add_u32 v{vt3}, v{vt0}, 3, v{vt3}')
    a(f'v_add_u32 v{vt3}, {S_STG}, v{vt3}')
    a('s_waitcnt vmcnt(0)')
    stamp('y_acked')
    poll_loop(lambda: a(f'global_load_dwordx4 {vr(vy,4)}, v{vyo}, {P_WS} sc1'), [vy, vy+1, vy+2, vy+3], vt0, 'y')
    stamp('y_got')
    a(f'ds_write_b128 v{vt2}, {vr(vy,4)}')
    a('s_waitcnt lgkmcnt(0)')
    a(f'ds_read_b64_tr_b16 {vr(vy,2)}, v{vt3}')
    a(f'ds_read_b64_tr_b16 {vr(vy+2,2)}, v{vt3} offset:64')
    a('s_waitcnt lgkmcnt(0)')
    stamp('s3_tr')
    unpack8(vd, vy)
    for j in range(4): a(f'v_pk_add_f32 {vr(vd+2*j,2)}, {vr(vd+2*j,2)}, {vr(vud+2*j,2)}')
    cvt4(vd+8, vd)
    unpack8(vd, vd+8)
    for j in range(4): a(f'v_pk_add_f32 {vr(vd+2*j,2)}, {vr(vd+2*j,2)}, {vr(vxf+2*j,2)}')
    cvt4(vhp, vd)
    if not cfg.hlate:
        a(f'v_add_u32 v{vt0}, {WS_H}, v{vxo}')
        a(f'global_store_dwordx4 v{vt0}, {vr(vhp,4)}, {P_WS} sc1')
    stamp('s3_h')
    ln_stats_partial(vhp, vS, vt, L_ST2)
    unpack8(vhf, vhp)
    a('s_waitcnt lgkmcnt(0)')
    stamp('s3_part')
    a('s_barrier')
    stamp('s3_bar1')
    ln_finish(vhf, vd, vS, vt, L_ST2, vm2, vrs, vs_)
    stamp('s3_fin')
    vr_ = al('r', 2, 2)
    a(f'v_dot2_f32_bf16 v{vr_}, v{vd+8}, v{vwr}, 0')
    a(f'v_dot2_f32_bf16 v{vr_+1}, v{vd+9}, v{vwr+1}, 0')
    a(f'v_dot2_f32_bf16 v{vr_}, v{vd+10}, v{vwr+2}, v{vr_}')
    a(f'v_dot2_f32_bf16 v{vr_+1}, v{vd+11}, v{vwr+3}, v{vr_+1}')
    a(f'v_add_f32 v{vr_}, v{vr_}, v{vr_+1}')
    xlane1(vr_, vt, 'add_f32')
    a(f's_lshl_b32 s6, {S_W8}, 2')
    a(f'v_lshl_add_u32 v{vt}, v{vtk}, 5, s6')
    a('s_mov_b64 exec, 0xff')
    a(f'ds_write_b32 v{vt}, v{vr_} offset:{L_RP}')
    a('s_mov_b64 exec, -1')
    stamp('s3_rp')
    unpack8(vd, vd+8)
    for j in range(4): a(f'v_pk_add_f32 {vr(vd+2*j,2)}, {vr(vd+2*j,2)}, {vr(vhf+2*j,2)}')
    cvt4(vd+12, vd)
    a('s_waitcnt lgkmcnt(0)')
    a('s_barrier')
    stamp('s3_bar2')
    a(f's_cmp_eq_u32 {S_W8}, 0'); a('s_cbranch_scc0 L_s3_nokey')
    a(f'v_lshlrev_b32 v{vt}, 5, v{vtk}')
    a(f'ds_read_b128 {vr(vd,4)}, v{vt} offset:{L_RP}')
    a(f'ds_read_b128 {vr(vd+4,4)}, v{vt} offset:{L_RP+16}')
    a('s_waitcnt lgkmcnt(0)')
    a(f'v_pk_add_f32 {vr(vd,2)}, {vr(vd,2)}, {vr(vd+2,2)}'); a(f'v_pk_add_f32 {vr(vd+4,2)}, {vr(vd+4,2)}, {vr(vd+6,2)}')
    a(f'v_pk_add_f32 {vr(vd,2)}, {vr(vd,2)}, {vr(vd+4,2)}'); a(f'v_add_f32 v{vd}, v{vd}, v{vd+1}')
    a(f'v_cvt_pk_bf16_f32 v{vd}, v{vd}, v{vd}')
    a(f'v_and_b32 v{vd}, 0xffff, v{vd}')
    a(f'v_cmp_lt_u32 vcc, 0x7fff, v{vd}')
    a(f'v_xor_b32 v{vd+1}, 0xffff, v{vd}'); a(f'v_or_b32 v{vd+2}, 0x8000, v{vd}')
    a(f'v_cndmask_b32 v{vd}, v{vd+2}, v{vd+1}, vcc')
    a(f'v_mov_b32_dpp v{vd+1}, v{vd} quad_perm:[1,0,3,2] row_mask:0xf bank_mask:0xf')
    a(f's_lshl_b32 s6, {S_P}, 4'); a(f's_add_u32 s6, s6, {WS_KEY}')
    a(f'v_lshlrev_b32 v{vd+2}, 12, v{vcg}'); a(f'v_lshl_add_u32 v{vd+2}, v{vtk}, 1, v{vd+2}'); a(f'v_add_u32 v{vd+2}, s6, v{vd+2}')
    a(f'v_lshl_or_b32 v{vd}, v{vd+1}, 16, v{vd}')
    a('s_mov_b32 exec_lo, 0x55555555'); a('s_mov_b32 exec_hi, 0x55555555')
    a(f'global_store_dword v{vd+2}, v{vd}, {P_WS} sc1')
    a('s_mov_b64 exec, -1')
    a.label('L_s3_nokey')
    stamp('key_stored')
    if cfg.hlate == 1:
        a(f'v_add_u32 v{vt0}, {WS_H}, v{vxo}')
        a(f'global_store_dwordx4 v{vt0}, {vr(vhp,4)}, {P_WS} sc1')
    if cfg.hlate == 2:
        vhk = al('hkeep', 4, 4); vha_ = al('hkaddr')
        for j in range(4): a(f'v_mov_b32 v{vhk+j}, v{vhp+j}')
        a(f'v_add_u32 v{vha_}, {WS_H}, v{vxo}')
    vout = al('outp', 4, 4)
    for j in range(4): a(f'v_mov_b32 v{vout+j}, v{vd+12+j}')
    a(f's_cmp_eq_u32 {S_W8}, 1'); a('s_cbranch_scc0 L_s3_nostat')
    a(f'v_lshrrev_b32 v{vd}, 16, v{vm2}'); a(f'v_and_or_b32 v{vd}, v{vs_}, {S_MASKHI}, v{vd}')
    a(f's_lshl_b32 s6, {S_P}, 5'); a(f's_add_u32 s6, s6, {WS_STAT}')
    a(f'v_lshl_add_u32 v{vd+1}, v{vtk}, 2, s6')
    a('s_mov_b64 exec, 0xff')
    a(f'global_store_dword v{vd+1}, v{vd}, {P_WS} sc1')
    a('s_mov_b64 exec, -1')
    a.label('L_s3_nostat')
    for n in ('y','yoff','wr','d','S','t','rs','s','m2','hf','hp','r','xf','ud','m1'): R.release(n)
    S_ROLE = 's43'
    a(f's_mov_b32 {S_ROLE}, 1')
    a('s_cmp_lt_u32 s2, 56'); a('s_cbranch_scc1 L_f_go')
    a(f's_mov_b32 {S_ROLE}, 2')
    a('s_sub_u32 s7, s2, 64'); a('s_cmp_lt_u32 s7, 32'); a('s_cbranch_scc1 L_f_go')
    a(f's_mov_b32 {S_ROLE}, 0')
    a('s_branch L_f_nokey')
    a.label('L_f_go')
    a.label('L_f_nokey')
    stamp('s3_done')
    def out_store_and_flag(tag):
        if cfg.hlate == 2: a(f'global_store_dwordx4 v{vha_}, {vr(vhk,4)}, {P_WS} sc1')
        a(f'global_store_dwordx4 v{vxo}, {vr(vout,4)}, {P_OUT} sc1')
    def publish_f3b(tag):
        a('s_waitcnt vmcnt(0)')
        a('s_barrier')
        l = lbl('f3b')
        a(f's_cmp_eq_u32 {S_W8}, 2'); a(f's_cbranch_scc0 {l}')
        a(f's_lshl_b32 s6, {S_P}, 4'); a(f's_add_u32 s6, s6, {WS_F3B}')
        a(f'v_lshl_add_u32 v{vt0}, v{vlane}, 12, s6'); a(f'v_mov_b32 v{vt1}, {S_TAG}')
        a('s_mov_b64 exec, 0xff')
        a(f'global_store_dword v{vt0}, v{vt1}, {P_WS} sc1')
        a('s_mov_b64 exec, -1')
        a.label(l)
    a(f's_cmp_eq_u32 {S_ROLE}, 0'); a('s_cbranch_scc0 L_f_roles')
    if cfg.hlate == 2:
        a('s_waitcnt vmcnt(0)'); a('s_barrier')
    out_store_and_flag('n'); publish_f3b('n')
    a('s_branch L_fin')
    a.label('L_f_roles')
    if cfg.stop == 4:
        out_store_and_flag('n'); publish_f3b('n'); a('s_branch L_fin'); return
    a(f's_cmp_ge_u32 {S_W8}, 4'); a('s_cbranch_scc1 L_t_roleB')
    vk = al('k', 8, 4); vko = al('koff'); vm = al('m', 2, 2); vkr = al('kraw', 4, 4); vkb = al('kbase')
    a('s_and_b32 s6, s2, 7'); a('s_lshl_b32 s6, s6, 12'); a(f's_add_u32 s6, s6, {WS_KEY}')
    a(f'v_lshl_add_u32 v{vko}, v0, 4, s6')
    a(f'v_lshlrev_b32 v{vkb}, 3, v0'); a(f'v_sub_u32 v{vkb}, 2047, v{vkb}')
    a(f's_cmp_eq_u32 {S_W8}, 0'); a('s_cbranch_scc0 L_t_nz')
    a(f'v_mov_b32 v{vt0}, 0'); a(f'v_lshlrev_b32 v{vt1}, 2, v{vlane}')
    a(f'ds_write_b32 v{vt1}, v{vt0} offset:{L_CL}')
    a(f'v_mov_b32 v{vt1}, {L_CNT}'); a(f'ds_write_b32 v{vt1}, v{vt0}')
    a.label('L_t_nz')
    if not cfg.nokwait: a('s_waitcnt vmcnt(0)')
    stamp('k_wait')
    poll_loop(lambda: a(f'global_load_dwordx4 {vr(vkr,4)}, v{vko}, {P_WS} sc1'), list(range(vkr, vkr+4)), vm, 'key')
    stamp('keys_got')
    if cfg.active('k_spin'):
        i = len(cfg.stamp_names); cfg.stamp_names.append('k_spin')
        a('s_waitcnt lgkmcnt(0)'); a(f's_mul_i32 s{70+2*i}, {S_SPIN}, 100'); a(f's_add_u32 s{70+2*i}, s{70+2*i}, s70')
    for j in range(4):
        a(f'v_subrev_u32 v{vt0}, {2*j}, v{vkb}'); a(f'v_subrev_u32 v{vt1}, {2*j+1}, v{vkb}')
        a(f'v_lshl_or_b32 v{vk+2*j}, v{vkr+j}, 16, v{vt0}')
        a(f'v_and_or_b32 v{vk+2*j+1}, v{vkr+j}, {S_MASKHI}, v{vt1}')
    a(f'v_max3_u32 v{vm}, v{vk}, v{vk+1}, v{vk+2}'); a(f'v_max3_u32 v{vm+1}, v{vk+3}, v{vk+4}, v{vk+5}')
    a(f'v_max3_u32 v{vm}, v{vm}, v{vk+6}, v{vk+7}'); a(f'v_max_u32 v{vm}, v{vm}, v{vm+1}')
    R.release('kraw'); R.release('kbase')
    out_store_and_flag('a')
    for ror in (1, 2, 4, 8): a(f'v_max_u32_dpp v{vm}, v{vm}, v{vm} row_ror:{ror} row_mask:0xf bank_mask:0xf')
    a(f'v_mov_b32 v{vm+1}, v{vm}'); a(f'v_permlane16_swap_b32 v{vm+1}, v{vm}'); a(f'v_max_u32 v{vm}, v{vm}, v{vm+1}')
    a(f's_lshl_b32 s6, {S_W8}, 3'); a(f's_add_u32 s6, s6, {L_WM}')
    a(f'v_lshrrev_b32 v{vt0}, 5, v{vlane}'); a(f'v_lshl_add_u32 v{vt0}, v{vt0}, 2, s6')
    a('s_mov_b32 exec_lo, 1'); a('s_mov_b32 exec_hi, 1')
    a(f'ds_write_b32 v{vt0}, v{vm}')
    a('s_mov_b64 exec, -1')
    stamp('t8_max')
    vw = al('w8m', 8, 4)
    a(f'v_mov_b32 v{vt0}, {L_WM}'); a(f'v_mov_b32 v{vt2}, {L_CNT}')
    a('s_waitcnt lgkmcnt(0)')
    a('s_barrier')
    stamp('t8_bar1')
    a(f'ds_read_b128 {vr(vw,4)}, v{vt0}'); a(f'ds_read_b128 {vr(vw+4,4)}, v{vt0} offset:16')
    a('s_waitcnt lgkmcnt(0)')
    a(f'v_min3_u32 v{vw}, v{vw}, v{vw+1}, v{vw+2}'); a(f'v_min3_u32 v{vw+3}, v{vw+3}, v{vw+4}, v{vw+5}')
    a(f'v_min3_u32 v{vw}, v{vw}, v{vw+6}, v{vw+7}'); a(f'v_min_u32 v{vw}, v{vw}, v{vw+3}')
    for j in range(8): a(f'v_cmp_ge_u32 s[{44+2*j}:{45+2*j}], v{vk+j}, v{vw}')
    a('s_bcnt1_i32_b64 s7, s[44:45]')
    for j in range(1, 8):
        a(f's_bcnt1_i32_b64 s6, s[{44+2*j}:{45+2*j}]'); a('s_add_u32 s7, s7, s6')
    a(f'v_mov_b32 v{vt1}, s7')
    a('s_mov_b64 exec, 1')
    a(f'ds_add_rtn_u32 v{vt3}, v{vt2}, v{vt1}')
    a('s_mov_b64 exec, -1')
    vpos = al('pos', 8)
    a('s_mov_b32 s7, 0')
    for j in range(8):
        a(f'v_mbcnt_lo_u32_b32 v{vpos+j}, s{44+2*j}, 0'); a(f'v_mbcnt_hi_u32_b32 v{vpos+j}, s{45+2*j}, v{vpos+j}')
        if j: a(f'v_add_u32 v{vpos+j}, s7, v{vpos+j}')
        if j < 7:
            a(f's_bcnt1_i32_b64 s6, s[{44+2*j}:{45+2*j}]'); a('s_add_u32 s7, s7, s6')
    a('s_waitcnt lgkmcnt(0)')
    a(f'v_readfirstlane_b32 s7, v{vt3}')
    stamp('t8_atom')
    for j in range(8):
        a(f'v_add_u32 v{vpos+j}, s7, v{vpos+j}')
        a(f'v_min_u32 v{vpos+j}, 64, v{vpos+j}')
        a(f'v_lshlrev_b32 v{vpos+j}, 2, v{vpos+j}')
    for j in range(8):
        a(f's_mov_b64 exec, s[{44+2*j}:{45+2*j}]')
        a(f'ds_write_b32 v{vpos+j}, v{vk+j} offset:{L_CL}')
    a('s_mov_b64 exec, -1')
    vc = al('cand'); vrank = al('rank'); vall = al('call', 64, 4)
    a(f'v_lshlrev_b32 v{vt2}, 2, v{vlane}'); a(f'v_mov_b32 v{vt0}, {L_CL}'); a(f'v_mov_b32 v{vrank}, 0'); a(f'v_mov_b32 v{vt3}, {L_CNT}')
    a('s_waitcnt lgkmcnt(0)')
    a('s_barrier')
    stamp('t8_bar2')
    a(f's_cmp_eq_u32 {S_W8}, 0'); a('s_cbranch_scc0 L_t_norank')
    a(f'v_and_b32 v{vt2}, 31, v{vlane}'); a(f'v_lshlrev_b32 v{vt2}, 2, v{vt2}')
    a(f'v_lshrrev_b32 v{vw}, 5, v{vlane}'); a(f'v_lshlrev_b32 v{vw}, 6, v{vw}')
    a(f'ds_read_b32 v{vt1}, v{vt3}')
    a(f'ds_read_b32 v{vc}, v{vt2} offset:{L_CL}')
    for q in range(4): a(f'ds_read_b128 {vr(vall+4*q,4)}, v{vw} offset:{L_CL + 16*q}')
    a('s_waitcnt lgkmcnt(0)')
    a(f'v_readfirstlane_b32 s44, v{vt1}')
    def rank_group(base):
        for j in range(4): a(f'v_cmp_gt_u32 s[{46+2*j}:{47+2*j}], v{base+j}, v{vc}')
        for j in range(4): a(f'v_addc_co_u32 v{vrank}, vcc, 0, v{vrank}, s[{46+2*j}:{47+2*j}]')
    for q in range(4): rank_group(vall + 4*q)
    a(f'v_mov_b32 v{vt1}, v{vrank}'); a(f'v_permlane32_swap_b32 v{vt1}, v{vrank}'); a(f'v_add_u32 v{vrank}, v{vrank}, v{vt1}')
    a('s_cmp_le_u32 s44, 32'); a('s_cbranch_scc0 L_t_slow')
    a('s_mov_b32 exec_hi, 0')
    a(f'v_lshlrev_b32 v{vt0}, 2, v{vrank}')
    a(f'v_cmp_gt_u32 vcc, 8, v{vrank}')
    a('s_and_b64 exec, exec, vcc')
    a(f'ds_write_b32 v{vt0}, v{vc} offset:{L_SEL}')
    a('s_mov_b64 exec, -1')
    a('s_branch L_t_norank')
    a.label('L_t_slow')
    a('s_cmp_gt_u32 s44, 64'); a('s_cbranch_scc1 L_f_fallback')
    a(f'v_lshlrev_b32 v{vt2}, 2, v{vlane}'); a(f'v_mov_b32 v{vrank}, 0')
    a(f'ds_read_b32 v{vc}, v{vt2} offset:{L_CL}')
    for q in range(16): a(f'ds_read_b128 {vr(vall+4*q,4)}, v{vt0} offset:{16*q}')
    for q in range(16):
        if q >= 8:
            a(f's_cmp_le_u32 s44, {4*q}'); a('s_cbranch_scc1 L_f_rankd')
        a(f's_waitcnt lgkmcnt({min(15, 15-q)})')
        rank_group(vall + 4*q)
    a.label('L_f_rankd')
    a('s_nop 0')
    stamp('t8_rank')
    a(f'v_lshlrev_b32 v{vt0}, 2, v{vrank}')
    a(f'v_cmp_gt_u32 vcc, 8, v{vrank}')
    a('s_and_saveexec_b64 s[38:39], vcc')
    a(f'ds_write_b32 v{vt0}, v{vc} offset:{L_SEL}')
    a('s_mov_b64 exec, -1')
    a('s_branch L_t_norank')
    a.label('L_f_fallback')
    a('s_waitcnt lgkmcnt(0)')
    a('s_and_b32 s6, s2, 7'); a('s_lshl_b32 s6, s6, 12'); a(f's_add_u32 s6, s6, {WS_KEY}')
    a(f'v_lshl_add_u32 v{vt0}, v{vlane}, 6, s6')
    for q in range(4): a(f'global_load_dwordx4 {vr(vall+32+4*q,4)}, v{vt0}, {P_WS} offset:{16*q} sc1')
    a(f'v_lshlrev_b32 v{vt2}, 5, v{vlane}'); a(f'v_sub_u32 v{vt2}, 2047, v{vt2}')
    a('s_waitcnt vmcnt(0)')
    for q in range(16):
        a(f'v_subrev_u32 v{vt0}, {2*q}, v{vt2}'); a(f'v_subrev_u32 v{vt1}, {2*q+1}, v{vt2}')
        a(f'v_lshl_or_b32 v{vall+2*q}, v{vall+32+q}, 16, v{vt0}')
        a(f'v_and_or_b32 v{vall+2*q+1}, v{vall+32+q}, {S_MASKHI}, v{vt1}')
    a('s_mov_b32 s44, 0')
    a.label('L_f_fb')
    a(f'v_max_u32 v{vm}, v{vall}, v{vall+1}')
    for q in range(2, 32, 2): a(f'v_max3_u32 v{vm}, v{vm}, v{vall+q}, v{vall+q+1}')
    xlane1(vm, vm+1, 'max_u32', full=True)
    for q in range(32):
        a(f'v_cmp_ne_u32 vcc, v{vall+q}, v{vm}'); a(f'v_cndmask_b32 v{vall+q}, 0, v{vall+q}, vcc')
    a('s_lshl_b32 s6, s44, 2'); a(f's_add_u32 s6, s6, {L_SEL}'); a(f'v_mov_b32 v{vt0}, s6')
    a('s_mov_b64 exec, 1'); a(f'ds_write_b32 v{vt0}, v{vm}'); a('s_mov_b64 exec, -1')
    a('s_add_u32 s44, s44, 1'); a('s_cmp_lt_u32 s44, 8'); a('s_cbranch_scc1 L_f_fb')
    a.label('L_t_norank')
    a('s_waitcnt lgkmcnt(0)')
    a('s_barrier')
    a('s_branch L_t_join')
    a.label('L_t_roleB')
    out_store_and_flag('b')
    if not cfg.dmac: gen_dma(a, R, cfg, env)
    a('s_barrier')
    a('s_barrier')
    a('s_barrier')
    a.label('L_t_join')
    for n in ('k','koff','m','w8m','cand','rank','call','pos'): R.release(n)
    vsel = al('sel'); vidx = al('idx')
    a(f'v_lshlrev_b32 v{vt0}, 2, v{vtk}')
    a(f'ds_read_b32 v{vsel}, v{vt0} offset:{L_SEL}')
    vB = al('B', 32, 4); vba = al('ba')
    a(f'v_lshrrev_b32 v{vt0}, 4, v{vlane}'); a(f'v_lshlrev_b32 v{vt0}, 3, v{vt0}')
    a(f'v_bfe_u32 v{vt1}, v{vlane}, 2, 2'); a(f'v_add_u32 v{vt0}, v{vt0}, v{vt1}')
    a(f'v_and_b32 v{vt1}, 3, v{vlane}')
    a('s_waitcnt lgkmcnt(0)')
    a(f'v_and_b32 v{vidx}, 0xffff, v{vsel}'); a(f'v_sub_u32 v{vidx}, 2047, v{vidx}')
    stamp('top8')
    def bfrags(role):
        if role == 1:
            a(f'v_lshlrev_b32 v{vba}, 6, v{vbrow}'); a(f'v_lshl_add_u32 v{vba}, v{vbcol}, 3, v{vba}')
            a(f's_lshl_b32 s6, {S_W8}, 12'); a(f's_add_u32 s6, s6, {L_BIG}')
            a(f'v_add_u32 v{vba}, s6, v{vba}')
            for kk in range(2):
                for nt in range(4):
                    off = kk*2048 + (nt>>1)*32768 + (nt&1)*32
                    d = vB + 4*(kk*4+nt)
                    a(f'ds_read_b64_tr_b16 {vr(d,2)}, v{vba} offset:{off}')
                    a(f'ds_read_b64_tr_b16 {vr(d+2,2)}, v{vba} offset:{off + 4*64}')
        else:
            a(f'v_lshlrev_b32 v{vba}, 5, v{vbrow}'); a(f'v_lshl_add_u32 v{vba}, v{vbcol}, 3, v{vba}')
            a(f's_mul_i32 s6, {S_W8}, {7*32*32}'); a(f's_add_u32 s6, s6, {L_BIG}')
            a(f'v_add_u32 v{vba}, s6, v{vba}')
            for kk in range(7):
                d = vB + 4*kk
                a(f'ds_read_b64_tr_b16 {vr(d,2)}, v{vba} offset:{kk*1024}')
                a(f'ds_read_b64_tr_b16 {vr(d+2,2)}, v{vba} offset:{kk*1024 + 4*32}')
    vbrow = al('brow'); vbcol = al('bcol')
    a(f'v_mov_b32 v{vbrow}, v{vt0}'); a(f'v_mov_b32 v{vbcol}, v{vt1}')
    stamp('f3_ok')
    vst = al('stat'); vm2 = al('m2', 2, 2); vrs = al('rs', 2, 2)
    vsto = al('stato')
    a(f'v_lshlrev_b32 v{vsto}, 2, v{vidx}'); a(f'v_add_u32 v{vsto}, {WS_STAT}, v{vsto}')
    a(f's_cmp_eq_u32 {S_ROLE}, 1'); a('s_cbranch_scc0 L_f2')
    vh = al('h', 8, 4); vd = al('d', 8, 4); vhf = al('hf', 8, 2); vA = al('A', 8, 4); acc = al('acc', 16, 4)
    a(f'v_lshrrev_b32 v{vt0}, 4, v{vlane}'); a(f'v_lshlrev_b32 v{vt0}, 4, v{vt0}')
    a(f'v_lshl_add_u32 v{vt0}, v{vidx}, 10, v{vt0}')
    a(f's_lshl_b32 s6, {S_W8}, 7'); a(f's_add_u32 s6, s6, {WS_H}')
    vhoff = al('hoff')
    a(f'v_add_u32 v{vhoff}, s6, v{vt0}')
    def issue_h():
        a(f'global_load_dword v{vst}, v{vsto}, {P_WS} sc1')
        a(f'global_load_dwordx4 {vr(vh,4)}, v{vhoff}, {P_WS} sc1')
        a(f'global_load_dwordx4 {vr(vh+4,4)}, v{vhoff}, {P_WS} offset:64 sc1')
    issue_h()
    a('s_waitcnt vmcnt(3)')
    a('s_barrier')
    stamp('t4')
    bfrags(1)
    poll_loop(issue_h, [vst] + list(range(vh, vh+8)), vt1, 'h', first_issued=True)
    R.release('hoff')
    stamp('h_got')
    a(f'v_lshlrev_b32 v{vm2}, 16, v{vst}'); a(f'v_and_b32 v{vt1}, {S_MASKHI}, v{vst}'); a(f'v_rcp_f32 v{vrs}, v{vt1}')
    vd2 = al('d2', 8, 2); vhf2 = al('hf2', 8, 2)
    prs = ((vhf, vd), (vhf2, vd2))
    for kk, (hf, dd) in enumerate(prs): unpack8(hf, vh+4*kk)
    for kk, (hf, dd) in enumerate(prs):
        for j in range(4): a(f'v_pk_add_f32 {vr(dd+2*j,2)}, {vr(hf+2*j,2)}, {vr(vm2,2)} op_sel_hi:[1,0] neg_lo:[0,1] neg_hi:[0,1]')
    for kk, (hf, dd) in enumerate(prs): cvt4(vA+4*kk, dd)
    for kk, (hf, dd) in enumerate(prs): unpack8(dd, vA+4*kk)
    for kk, (hf, dd) in enumerate(prs):
        for j in range(4): a(f'v_pk_mul_f32 {vr(dd+2*j,2)}, {vr(dd+2*j,2)}, {vr(vrs,2)} op_sel_hi:[1,0]')
    for kk, (hf, dd) in enumerate(prs): cvt4(vA+4*kk, dd)
    R.release('d2'); R.release('hf2')
    a(f's_lshl_b32 s6, {S_W8}, 11'); a(f's_add_u32 s6, s6, {L_PX}')
    a(f'v_lshl_add_u32 v{vt0}, v{vlane}, 4, s6')
    a('s_waitcnt lgkmcnt(0)')
    stamp('f1_norm')
    for kk in range(2):
        for nt in range(4):
            a(f'v_mfma_f32_16x16x32_bf16 {vr(acc+4*nt,4)}, {vr(vA+4*kk,4)}, {vr(vB+4*(kk*4+nt),4)}, {"0" if kk == 0 else vr(acc+4*nt,4)}')
    stamp('f1_mfma')
    a('s_mov_b32 exec_hi, 0')
    for nt in range(4): a(f'ds_write_b128 v{vt0}, {vr(acc+4*nt,4)} offset:{nt*512}')
    a('s_mov_b32 exec_hi, -1')
    gp = al('gp', 16, 4)
    a(f's_lshr_b32 s6, {S_W8}, 1'); a('s_lshl_b32 s6, s6, 9'); a(f's_and_b32 s7, {S_W8}, 1'); a('s_lshl_b32 s7, s7, 8')
    a('s_add_u32 s6, s6, s7'); a(f's_add_u32 s6, s6, {L_PX}')
    a(f'v_lshl_add_u32 v{vt2}, v{vlane}, 2, s6')
    a('s_waitcnt lgkmcnt(0)')
    a('s_barrier')
    stamp('f1_bar')
    a(f's_cmp_eq_u32 {S_W8}, 5'); a('s_cbranch_scc0 L_f1_nof3b')
    a(f's_lshl_b32 s6, {S_P}, 4'); a(f's_add_u32 s6, s6, {WS_F3B}')
    a(f'v_lshl_add_u32 v{vt0}, v{vlane}, 12, s6'); a(f'v_mov_b32 v{vt1}, {S_TAG}')
    a('s_mov_b64 exec, 0xff')
    a(f'global_store_dword v{vt0}, v{vt1}, {P_WS} sc1')
    a('s_mov_b64 exec, -1')
    a.label('L_f1_nof3b')
    a(f's_cmp_ge_u32 {S_W8}, 4'); a('s_cbranch_scc1 L_fin')
    for w in range(0, 8, 2): a(f'ds_read2st64_b32 {vr(gp+w,2)}, v{vt2} offset0:{w*8} offset1:{(w+1)*8}')
    for w in range(0, 8, 2): a(f'ds_read2st64_b32 {vr(gp+8+w,2)}, v{vt2} offset0:{w*8+4} offset1:{(w+1)*8+4}')
    vsa1 = al('hsa')
    a(f'v_and_b32 v{vsa1}, 3, v{vlane}'); a(f's_and_b32 s7, {S_W8}, 1'); a('s_lshl_b32 s7, s7, 2')
    a(f'v_add_u32 v{vsa1}, s7, v{vsa1}'); a(f'v_lshlrev_b32 v{vsa1}, 6, v{vsa1}')
    a(f'v_lshrrev_b32 v{vt0}, 2, v{vlane}'); a(f'v_lshl_add_u32 v{vsa1}, v{vt0}, 1, v{vsa1}')
    a(f's_lshr_b32 s6, {S_W8}, 1'); a('s_lshl_b32 s6, s6, 5'); a(f's_lshl_b32 s7, {g["S_FC"]}, 9'); a('s_add_u32 s6, s6, s7'); a(f's_add_u32 s6, s6, {WS_HID}')
    a(f'v_add_u32 v{vsa1}, s6, v{vsa1}')
    a('s_waitcnt lgkmcnt(4)' if not cfg.stamps else 's_waitcnt lgkmcnt(0)')
    for (x, y) in ((0,1),(2,3),(4,5),(6,7),(0,2),(4,6),(0,4)): a(f'v_add_f32 v{gp+x}, v{gp+x}, v{gp+y}')
    a('s_waitcnt lgkmcnt(0)')
    for (x, y) in ((0,1),(2,3),(4,5),(6,7),(0,2),(4,6),(0,4)): a(f'v_add_f32 v{gp+8+x}, v{gp+8+x}, v{gp+8+y}')
    stamp('f1_red')
    a(f'v_cvt_pk_bf16_f32 v{gp+1}, v{gp}, v{gp+8}')
    a(f'v_lshlrev_b32 v{gp}, 16, v{gp+1}')
    a(f'v_and_b32 v{gp+8}, {S_MASKHI}, v{gp+1}')
    a(f'v_mul_f32 v{gp+2}, {hx(f2u(-1.4426950408889634))}, v{gp}')
    a(f'v_exp_f32 v{gp+2}, v{gp+2}')
    a(f'v_add_f32 v{gp+2}, 1.0, v{gp+2}')
    a(f'v_rcp_f32 v{gp+2}, v{gp+2}')
    a(f'v_mul_f32 v{gp}, v{gp}, v{gp+2}')
    a(f'v_cvt_pk_bf16_f32 v{gp}, v{gp}, v{gp}')
    a(f'v_lshlrev_b32 v{gp}, 16, v{gp}')
    a(f'v_mul_f32 v{gp}, v{gp}, v{gp+8}')
    a(f'v_mov_b32_dpp v{gp+1}, v{gp} row_shl:4 row_mask:0xf bank_mask:0xf')
    a(f'v_cvt_pk_bf16_f32 v{gp}, v{gp}, v{gp+1}')
    stamp('f1_silu')
    a('s_mov_b32 exec_lo, 0x0f0f0f0f'); a('s_mov_b32 exec_hi, 0x0f0f0f0f')
    for rep in range(RH):
        a(f'global_store_dword v{vsa1}, v{gp}, {P_WS} sc1')
        if rep < RH - 1: a(f'v_add_u32 v{vsa1}, {HID_SZ}, v{vsa1}')
    a('s_mov_b64 exec, -1')
    stamp('hid_stored')
    R.release('hsa')
    a('s_branch L_fin')
    for n in ('h','d','hf','A','acc','gp'): R.release(n)
    a.label('L_f2')
    vA = al('A2', 28, 4); vho = al('ho'); acc = al('acc2', 4, 4); vhv = al('hv'); vst2 = al('st2'); vsel2 = al('sel2'); vix2 = al('ix2')
    a(f'v_lshrrev_b32 v{vt0}, 4, v0'); a(f'v_and_b32 v{vt0}, 7, v{vt0}'); a(f'v_lshlrev_b32 v{vt0}, 2, v{vt0}')
    a(f'ds_read_b32 v{vsel2}, v{vt0} offset:{L_SEL}')
    a('s_waitcnt lgkmcnt(0)')
    a(f'v_and_b32 v{vix2}, 0xffff, v{vsel2}'); a(f'v_sub_u32 v{vix2}, 2047, v{vix2}')
    a(f's_lshl_b32 s7, {g["S_FC"]}, 5')
    a(f'v_and_b32 v{vt0}, 15, v{vlane}'); a(f'v_lshlrev_b32 v{vt0}, 1, v{vt0}')
    a(f'v_lshl_add_u32 v{vho}, v{vix2}, 10, v{vt0}'); a(f'v_add_u32 v{vho}, s7, v{vho}')
    vha = al('ha'); vsa = al('sa')
    a(f'v_and_b32 v{vha}, 0xfffffffc, v{vho}'); a(f'v_add_u32 v{vha}, {WS_H}, v{vha}')
    a(f'v_lshlrev_b32 v{vsa}, 2, v{vix2}'); a(f'v_add_u32 v{vsa}, {WS_STAT}, v{vsa}')
    def issue_h2():
        a(f'global_load_dword v{vhv}, v{vha}, {P_WS} sc1')
        a(f'global_load_dword v{vst2}, v{vsa}, {P_WS} sc1')
    poll_loop(issue_h2, [vhv, vst2], vt0, 'h2')
    a(f'v_and_b32 v{vt0}, 1, v{vlane}'); a(f'v_cmp_eq_u32 vcc, 1, v{vt0}')
    a(f'v_lshrrev_b32 v{vt0}, 16, v{vhv}'); a(f'v_and_b32 v{vhv}, 0xffff, v{vhv}')
    a(f'v_cndmask_b32 v{vhv}, v{vhv}, v{vt0}, vcc')
    R.release('ha'); R.release('sa')
    publish_f3b('f2')
    bfrags(2)
    vf3b = al('f3b'); vf3bo = al('f3bo')
    a('s_and_b32 s6, s2, 7'); a('s_lshl_b32 s6, s6, 12'); a(f's_add_u32 s6, s6, {WS_F3B}')
    a(f'v_lshrrev_b32 v{vf3bo}, 3, v{vidx}'); a(f'v_lshl_add_u32 v{vf3bo}, v{vf3bo}, 4, s6')
    vrsig = al('rsig'); vxn = al('xn')
    a(f'v_lshrrev_b32 v{vt0}, 16, v{vsel2}')
    a(f'v_cmp_lt_u32 vcc, 0x7fff, v{vt0}')
    a(f'v_and_b32 v{vt2}, 0x7fff, v{vt0}'); a(f'v_xor_b32 v{vt3}, 0xffff, v{vt0}')
    a(f'v_cndmask_b32 v{vt0}, v{vt3}, v{vt2}, vcc'); a(f'v_lshlrev_b32 v{vt0}, 16, v{vt0}')
    a(f'v_mul_f32 v{vt0}, {hx(f2u(-1.4426950408889634))}, v{vt0}')
    a(f'v_exp_f32 v{vt0}, v{vt0}'); a(f'v_add_f32 v{vt0}, 1.0, v{vt0}'); a(f'v_rcp_f32 v{vt0}, v{vt0}')
    a(f'v_cvt_pk_bf16_f32 v{vt0}, v{vt0}, v{vt0}'); a(f'v_lshlrev_b32 v{vrsig}, 16, v{vt0}')
    a(f'v_lshlrev_b32 v{vhv}, 16, v{vhv}')
    a(f'v_lshlrev_b32 v{vt2}, 16, v{vst2}'); a(f'v_and_b32 v{vt3}, {S_MASKHI}, v{vst2}'); a(f'v_rcp_f32 v{vt3}, v{vt3}')
    a(f'v_sub_f32 v{vt2}, v{vhv}, v{vt2}'); a(f'v_cvt_pk_bf16_f32 v{vt2}, v{vt2}, v{vt2}'); a(f'v_lshlrev_b32 v{vt2}, 16, v{vt2}')
    a(f'v_mul_f32 v{vt2}, v{vt2}, v{vt3}'); a(f'v_cvt_pk_bf16_f32 v{vt2}, v{vt2}, v{vt2}'); a(f'v_lshlrev_b32 v{vxn}, 16, v{vt2}')
    vhi = al('hio'); vpw = al('pw'); vpr = al('pr')
    a('s_and_b32 s6, s2, 3'); a(f's_mul_i32 s6, s6, {HID_SZ}'); a(f's_mul_i32 s7, {S_W8}, {7*512}'); a('s_add_u32 s6, s6, s7'); a(f's_add_u32 s6, s6, {WS_HID}')
    a(f'v_lshrrev_b32 v{vt0}, 4, v{vlane}'); a(f'v_lshlrev_b32 v{vt0}, 4, v{vt0}'); a(f'v_lshl_add_u32 v{vt0}, v{vtk}, 6, v{vt0}')
    a(f'v_add_u32 v{vhi}, s6, v{vt0}')
    a(f's_lshl_b32 s6, {S_W8}, 9'); a(f's_add_u32 s6, s6, {L_PX}')
    a(f'v_lshl_add_u32 v{vpw}, v{vlane}, 4, s6')
    a(f'v_lshrrev_b32 v{vt0}, 4, v0')
    a(f'v_lshrrev_b32 v{vt1}, 2, v{vt0}'); a(f'v_lshlrev_b32 v{vt1}, 8, v{vt1}')
    a(f'v_and_b32 v{vt0}, 3, v{vt0}'); a(f'v_lshl_add_u32 v{vt1}, v{vt0}, 2, v{vt1}')
    a(f'v_and_b32 v{vt0}, 15, v{vlane}'); a(f'v_lshl_add_u32 v{vt1}, v{vt0}, 4, v{vt1}')
    a(f'v_add_u32 v{vpr}, {L_PX}, v{vt1}')
    a(f's_cmp_ge_u32 {S_W8}, 2'); a('s_cbranch_scc1 L_f2_nof3b')
    poll_loop(lambda: a(f'global_load_dword v{vf3b}, v{vf3bo}, {P_WS} sc1'), [vf3b], vt0, 'f3b', cmp_tag=True)
    a.label('L_f2_nof3b')
    def issue_hid():
        for kk in range(7): a(f'global_load_dwordx4 {vr(vA+4*kk,4)}, v{vhi}, {P_WS} offset:{kk*512} sc1')
    poll_loop(lambda: a(f'global_load_dwordx4 {vr(vA+24,4)}, v{vhi}, {P_WS} offset:{6*512} sc1'), list(range(vA+24, vA+28)), vt0, 'hidp')
    poll_loop(issue_hid, list(range(vA, vA+28)), vt0, 'hid')
    stamp('hid_got')
    acc2 = al('acc2b', 4, 4)
    for kk in range(7):
        d = acc if kk % 2 == 0 else acc2
        a(f'v_mfma_f32_16x16x32_bf16 {vr(d,4)}, {vr(vA+4*kk,4)}, {vr(vB+4*kk,4)}, {"0" if kk < 2 else vr(d,4)}')
    a(f'v_pk_add_f32 {vr(acc,2)}, {vr(acc,2)}, {vr(acc2,2)}'); a(f'v_pk_add_f32 {vr(acc+2,2)}, {vr(acc+2,2)}, {vr(acc2+2,2)}')
    a('s_mov_b32 exec_hi, 0')
    a(f'ds_write_b128 v{vpw}, {vr(acc,4)}')
    a('s_mov_b32 exec_hi, -1')
    a('s_waitcnt lgkmcnt(0)')
    a('s_barrier')
    a(f's_cmp_ge_u32 {S_W8}, 2'); a('s_cbranch_scc1 L_fin')
    fp = al('fp', 8, 4)
    for w in range(0, 8, 2): a(f'ds_read2st64_b32 {vr(fp+w,2)}, v{vpr} offset0:{w*2} offset1:{(w+1)*2}')
    a('s_waitcnt lgkmcnt(0)')
    for (x, y) in ((0,1),(2,3),(4,5),(6,7),(0,2),(4,6),(0,4)): a(f'v_add_f32 v{fp+x}, v{fp+x}, v{fp+y}')
    def rb(r): a(f'v_cvt_pk_bf16_f32 v{r}, v{r}, v{r}'); a(f'v_lshlrev_b32 v{r}, 16, v{r}')
    rb(fp)
    a(f'v_mul_f32 v{fp}, v{fp}, v{vrsig}'); rb(fp)
    a(f'v_add_f32 v{fp}, v{fp}, v{vxn}'); rb(fp)
    a(f'v_add_f32 v{fp}, v{fp}, v{vhv}')
    a(f'v_cvt_pk_bf16_f32 v{fp}, v{fp}, v{fp}')
    a(f'global_store_short v{vho}, v{fp}, {P_OUT} sc1')
    stamp('final')

def finish(a, R, cfg):
    a.label('L_fin')
    if cfg.stamps and cfg.rt == 1:
        n = len(cfg.stamp_names)
        a('s_memrealtime s[68:69]')
        a('s_waitcnt lgkmcnt(0)')
        a('v_mov_b32 v2, 0')
        a('s_mov_b64 exec, 1')
        a('s_not_b32 s70, s70')
        for i in range(n):
            a(f'v_mov_b32 v3, s{70+2*i}')
            a(f'global_atomic_umax v2, v3, s[34:35] offset:{4*i}')
        a('v_mov_b32 v3, s68')
        a(f'global_atomic_umax v2, v3, s[34:35] offset:60')
        a('s_mov_b64 exec, -1')
    elif cfg.stamps:
        n = len(cfg.stamp_names)
        a(f'{cfg.tinstr} s[{70+2*n}:{71+2*n}]') if 71+2*n <= 101 else None
        if 71+2*n <= 101: n += 1; cfg.stamp_names.append('END')
        a('s_waitcnt lgkmcnt(0)')
        a('s_lshl_b32 s6, s2, 3'); a('s_add_u32 s6, s6, s4'); a('s_lshl_b32 s6, s6, 8'); a(f's_add_u32 s6, s6, {WS_DBG + 0x100000}')
        a('v_mov_b32 v2, s6')
        a('s_mov_b64 exec, 1')
        for i in range(n):
            a(f'v_mov_b32 v3, s{70+2*i}')
            a(f'global_store_dword v2, v3, s[36:37] offset:{4*i}')
        a('s_mov_b64 exec, -1')
    a('s_cmp_eq_u32 s2, 0'); a('s_cbranch_scc0 L_end')
    a('s_cmp_eq_u32 s4, 0'); a('s_cbranch_scc0 L_end')
    a(f'v_mov_b32 v2, {WS_EPOCH}'); a('v_mov_b32 v3, s5')
    a('s_mov_b64 exec, 1')
    a('global_store_dword v2, v3, s[36:37]')
    a.label('L_end')
    a('s_endpgm')
    body = a.text()
    nv = 256
    hdr = open('cdna_kernels/' + NAME + '.s.ref').read().split('; Override launch geometry')[0]
    s = hdr
    s += f'; @launch grid=(256,1,1) block=(512,1,1) lds={LDS_TOTAL}\n'
    s += '.amdgcn_target "amdgcn-amd-amdhsa--gfx950"\n.text\n'
    s += f'.globl {NAME}_kernel\n.p2align 8\n.type {NAME}_kernel,@function\n{NAME}_kernel:\n'
    s += body
    s += f'''.section .rodata,"a"
.p2align 6
.amdhsa_kernel {NAME}_kernel
  .amdhsa_next_free_vgpr {nv}
  .amdhsa_next_free_sgpr 102
  .amdhsa_accum_offset {nv}
  .amdhsa_group_segment_fixed_size 0
  .amdhsa_kernarg_size 120
  .amdhsa_user_sgpr_count 2
  .amdhsa_user_sgpr_kernarg_segment_ptr 1
  .amdhsa_system_sgpr_workgroup_id_x 1
.end_amdhsa_kernel
'''
    cfg.maxv = R.maxused
    return s

if __name__ == '__main__':
    cfg = Cfg()
    out = sys.argv[1]
    for arg in sys.argv[2:]:
        k, v = arg.split('=')
        setattr(cfg, k, int(v))
    open(out, 'w').write(gen(cfg))
    import os
    if cfg.stamps: open(out + '.stamps', 'w').write('\n'.join(cfg.stamp_names))
    elif os.path.exists(out + '.stamps'): os.remove(out + '.stamps')
    print('max vgpr', cfg.maxv, 'LDS', LDS_TOTAL)
```

```python
import sys, struct, math
from asmlib import *

NAME = "sequential_preLN__ssm_conv_s4d__moe_arch_mod__prompt"
def f2u(x): return struct.unpack('<I', struct.pack('<f', x))[0]
def f32(x): return struct.unpack('<f', struct.pack('<f', x))[0]
def hx(x): return '0x%08x' % (x & 0xffffffff)

WS_EPOCH = 0x0
WS_F1 = 0x50000; R1 = 8
WS_F3 = 0x8000; R3 = 8
WS_F3B = 0x58000
WS_KEY = 0x10000; RK = 8
WS_HID = 0x20000; RH = 4; HID_SZ = 56 * 512
WS_MISC = 0x10000
WS_STAT = 0x40000
WS_U = 0x100000
WS_Y = 0x300000
WS_H = 0x500000
WS_DBG = 0x800000
KC_SZ = 4160
L_KC = 0
L_UL = 16640; UL_SZ = 4608
L_TT = 25856; TT_SZ = 1536
L_RED = 28928
L_ST1 = L_RED
L_ST2 = L_RED + 512
L_RP = L_RED + 1024
L_IS = L_RED + 1280
L_WM = L_RED + 1344
L_CNT = L_RED + 1408
L_CL = L_RED + 1536
L_SEL = L_RED + 2048
L_FB = L_RED + 2560
L_D = L_RED + 4096
L_WR = L_RED + 5120
L_STG = L_RED + 6144; STG_SZ = 1536
L_BIG = L_STG + 8 * STG_SZ
FROW = 544
F_SZ = 16 * FROW; G_SZ = 48 * FROW; FG_SZ = F_SZ + G_SZ
L_PX = L_BIG + 2 * FG_SZ
PX_T = 1152; PX_C = 8 * PX_T + 64; PX_H = 2 * PX_C
LDS_TOTAL = L_PX + 2 * PX_H
assert LDS_TOTAL <= 163840, LDS_TOTAL
assert L_BIG % 16 == 0 and L_PX % 16 == 0

SPIN_LIMIT = 1 << 15

class Cfg:
    stop = 99
    dbg = 0
    stamps = 0
    rt = 0
    codepf = 2
    wtouch = 2
    dmac = 0
    dsleep = 0
    hlate = 1
    xbar = 1
    probe = 0
    upipe = 0
    trank = 7
    nokwait = 0

def gen(cfg):
    a = Asm()
    R = Regs(2, 255)
    al = R.alloc
    S_P, S_W8, S_TAG = 's3', 's4', 's5'
    P_X, P_LA, P_AI, P_CR, P_CI, P_DT, P_DS = 's[8:9]', 's[10:11]', 's[12:13]', 's[14:15]', 's[16:17]', 's[18:19]', 's[20:21]'
    P_WR, P_WG, P_WU, P_WD, P_OUT, P_DBG, P_WS = 's[24:25]', 's[26:27]', 's[28:29]', 's[30:31]', 's[32:33]', 's[34:35]', 's[36:37]'
    S_SPIN = 's60'
    S_L2E, S_L2ELO, S_I2PI, S_I2PILO, S_EPS, S_MASKHI = 's62', 's63', 's64', 's65', 's66', 's67'
    S_ONE2 = 's68'
    cfg.stamp_names = []
    cfg.tinstr = 's_memrealtime' if cfg.rt else 's_memtime'
    G1 = ['start','kernarg','issued','x_arrived','ln1_prebar','ln1_fin','u_stored','kgen_valu','B_b','B_c','expand','B_d','conv_mfma','B_e','y_stored']
    G2 = ['start','u_stored','B_d','y_stored','y_acked','y_got','key_stored','s3_done','keys_got','top8','f3_ok','h_got','hid_stored','hid_got','final']
    G3 = ['start','keys_got','t8_max','t8_bar1','t8_atom','t8_bar2','t8_rank','top8','h_got','f1_norm','f1_mfma','f1_bar','f1_red','f1_silu','hid_stored']
    G5 = ['start','u_stored','kg_start','kg_anch','kg_ch','kgen_valu','B_b','k_mf','B_c','expand','B_d','c_r0','c_r3','B_e','y_stored']
    G6 = ['start','y_got','s3_h','key_stored','k_wait','keys_got','k_spin','t8_bar1','t8_bar2','top8','t4','h_got','hid_stored','hid_got','final']
    G4 = ['start','y_acked','y_got','s3_tr','s3_h','s3_part','s3_bar1','s3_fin','s3_rp','s3_bar2','key_stored','s3_done','keys_got','hid_got','final']
    sel = {1: G1, 2: G2, 3: G3, 4: G4, 5: G5, 6: G6}.get(cfg.stamps, G1)
    cfg.active = lambda name: cfg.stamps and name in sel
    def stamp(name):
        if not cfg.stamps or name not in sel: return
        i = len(cfg.stamp_names)
        assert 70 + 2 * i + 1 <= 101, 'too many stamps'
        a(f'{cfg.tinstr} s[{70+2*i}:{71+2*i}]')
        cfg.stamp_names.append(name)
    uid = [0]
    def lbl(p):
        uid[0] += 1
        return f'L_{p}_{uid[0]}'
    def if_role_a(else_lbl):
        a(f's_cmp_ge_u32 {S_W8}, 4'); a(f's_cbranch_scc1 {else_lbl}')
    def if_role_b(else_lbl):
        a(f's_cmp_lt_u32 {S_W8}, 4'); a(f's_cbranch_scc1 {else_lbl}')
    def stop_here(n):
        if cfg.stop == n:
            a('s_waitcnt vmcnt(0) lgkmcnt(0)'); a('s_branch L_fin')
            return True
        return False
    def poll_loop(issue, check_regs, tmp, name, first_issued=False, cmp_tag=False):
        l0 = lbl(name); l1 = lbl(name + 'ok')
        a(f's_mov_b32 {S_SPIN}, 0')
        if first_issued:
            lf = lbl(name + 'f'); a(f's_branch {lf}')
        a.label(l0)
        issue()
        if first_issued: a.label(lf)
        a('s_waitcnt vmcnt(0)')
        if cmp_tag:
            a(f'v_xor_b32 v{tmp}, {S_TAG}, v{check_regs[0]}')
            for r in check_regs[1:]:
                a(f'v_xor_b32 v{tmp+1}, {S_TAG}, v{r}'); a(f'v_or_b32 v{tmp}, v{tmp}, v{tmp+1}')
            a(f'v_cmp_ne_u32 vcc, 0, v{tmp}')
        else:
            rs = list(check_regs)
            a(f'v_max_u32 v{tmp}, v{rs[0]}, v{rs[1]}') if len(rs) > 1 else a(f'v_mov_b32 v{tmp}, v{rs[0]}')
            rs = rs[2:]
            while len(rs) >= 2:
                a(f'v_max3_u32 v{tmp}, v{tmp}, v{rs[0]}, v{rs[1]}'); rs = rs[2:]
            if rs: a(f'v_max_u32 v{tmp}, v{tmp}, v{rs[0]}')
            a(f'v_cmp_eq_u32 vcc, -1, v{tmp}')
        a(f's_cbranch_vccz {l1}')
        a('s_mov_b64 exec, vcc')
        a(f's_add_u32 {S_SPIN}, {S_SPIN}, 1')
        a(f's_cmp_lt_u32 {S_SPIN}, {SPIN_LIMIT}')
        a(f's_cbranch_scc1 {l0}')
        a.label(l1)
        a('s_mov_b64 exec, -1')

    a('s_cmp_ge_u32 s2, 256')
    a('s_cbranch_scc1 L_end')
    a('s_load_dwordx16 s[8:23], s[0:1], 0')
    a('s_load_dwordx8 s[24:31], s[0:1], 64')
    a('s_load_dwordx4 s[32:35], s[0:1], 96')
    a('s_load_dwordx2 s[36:37], s[0:1], 112')
    if cfg.stamps:
        for i in range(70, 102): a(f's_mov_b32 s{i}, 0')
    stamp('start')
    vlane = 1
    vt0 = al('t0', 2); vt1 = vt0 + 1
    vt2 = al('t2', 2); vt3 = vt2 + 1
    a(f'v_lshrrev_b32 v{vt0}, 6, v0')
    a(f'v_and_b32 v{vlane}, 63, v0')
    a('s_and_b32 s6, s2, 7'); a('s_lshl_b32 s6, s6, 5'); a('s_lshr_b32 s7, s2, 3'); a(f's_add_u32 {S_P}, s6, s7')
    a(f'v_readfirstlane_b32 {S_W8}, v{vt0}')
    S_FC = 's61'
    a('s_and_b32 s6, s2, 7'); a('s_mul_i32 s7, s6, 7'); a(f's_lshr_b32 {S_FC}, s2, 3'); a(f's_add_u32 s7, s7, {S_FC}')
    a('s_lshl_b32 s6, s6, 2'); a(f's_add_u32 s6, s6, {S_FC}'); a('s_sub_u32 s6, s6, 8')
    a('s_cmp_lt_u32 s2, 56'); a(f's_cselect_b32 {S_FC}, s7, s6')
    vjunk = al('junk'); vja = al('junkaddr')
    vtk = al('tk'); vcg = al('cg')
    a(f'v_and_b32 v{vtk}, 7, v{vlane}')
    a(f'v_lshrrev_b32 v{vcg}, 3, v{vlane}')
    vch = al('choff')
    a(f's_lshl_b32 s6, {S_W8}, 7')
    a(f'v_lshl_add_u32 v{vch}, v{vcg}, 4, s6')
    vrow = al('rowoff')
    a(f's_lshl_b32 s7, {S_P}, 13')
    a(f'v_lshl_add_u32 v{vrow}, v{vtk}, 10, s7')
    vxo = al('xoff')
    a(f'v_add_u32 v{vxo}, v{vrow}, v{vch}')
    vblk = al('blkoff')
    a(f'v_lshl_add_u32 v{vblk}, v0, 4, s7')
    vpo = al('paroff'); vpo2 = al('paroff2'); vdto = al('dtoff')
    a(f's_lshl_b32 s6, {S_P}, 9')
    a(f'v_and_b32 v{vpo}, 255, v0')
    a(f'v_lshl_add_u32 v{vpo}, v{vpo}, 1, s6')
    a(f'v_xor_b32 v{vpo2}, 128, v{vpo}')
    a(f's_lshl_b32 s6, {S_P}, 2')
    a(f'v_bfe_u32 v{vdto}, v0, 7, 1')
    a(f'v_lshl_add_u32 v{vdto}, v{vdto}, 1, s6')
    a(f'v_lshlrev_b32 v{vt0}, 4, v{vlane}')
    vx = al('x', 4, 2); vD = al('D', 4, 2)
    vla = al('la'); vai = al('ai'); vcr = al('cr'); vci = al('ci'); vcr2 = al('cr2'); vci2 = al('ci2'); vldt = al('ldt')
    a('s_waitcnt lgkmcnt(0)')
    stamp('kernarg')
    a(f'global_load_dwordx4 {vr(vx,4)}, v{vxo}, {P_X}')
    a(f's_load_dword {S_TAG}, {P_WS}, {WS_EPOCH}')
    a(f's_cmp_eq_u32 {S_W8}, 6'); a('s_cbranch_scc0 L_s0_n6')
    a(f'global_load_dwordx4 {vr(vD,4)}, v{vt0}, {P_DS}')
    a.label('L_s0_n6')
    a(f's_cmp_eq_u32 {S_W8}, 7'); a('s_cbranch_scc0 L_s0_n7')
    a(f'global_load_dwordx4 {vr(vD,4)}, v{vt0}, {P_WR}')
    a.label('L_s0_n7')
    if cfg.xbar: a('s_barrier')
    vones = al('ones', 4, 2)
    for i in range(4): a(f'v_mov_b32 v{vones+i}, -1')
    a('s_mul_i32 s6, s2, 768'); a(f's_mul_i32 s7, {S_W8}, 96'); a('s_add_u32 s6, s6, s7'); a(f's_add_u32 s6, s6, {WS_MISC}')
    a(f'v_lshl_add_u32 v{vt1}, v{vlane}, 4, s6')
    a(f'v_add_u32 v{vt2}, {WS_U}, v{vblk}')
    a(f'v_add_u32 v{vt3}, {WS_Y}, v{vblk}')
    a(f'global_store_dwordx4 v{vt2}, {vr(vones,4)}, {P_WS} sc1')
    a(f'global_store_dwordx4 v{vt3}, {vr(vones,4)}, {P_WS} sc1')
    a('s_mov_b64 exec, 0x3f')
    a(f'global_store_dwordx4 v{vt1}, {vr(vones,4)}, {P_WS} sc1')
    a('s_mov_b64 exec, -1')
    if_role_a('L_s0_nopar')
    a(f'global_load_ushort v{vla}, v{vpo}, {P_LA}')
    a(f'global_load_ushort v{vai}, v{vpo}, {P_AI}')
    a(f'global_load_ushort v{vcr}, v{vpo}, {P_CR}')
    a(f'global_load_ushort v{vci}, v{vpo}, {P_CI}')
    a(f'global_load_ushort v{vcr2}, v{vpo2}, {P_CR}')
    a(f'global_load_ushort v{vci2}, v{vpo2}, {P_CI}')
    a(f'global_load_ushort v{vldt}, v{vdto}, {P_DT}')
    a('s_branch L_s0_par')
    a.label('L_s0_nopar')
    a(f's_cmp_ge_u32 {S_W8}, 6'); a('s_cbranch_scc1 L_s0_parB')
    a('s_getpc_b64 s[38:39]')
    a.label('L_pc_here')
    a(f's_sub_u32 s6, {S_W8}, 4'); a('s_lshl_b32 s6, s6, 13')
    a(f'v_lshl_add_u32 v{vja}, v{vlane}, 7, s6')
    a(f'v_min_u32 v{vja}, L_end-L_pc_here, v{vja}')
    a(f'global_load_dword v{vjunk}, v{vja}, s[38:39]')
    a.label('L_s0_parB')
    a(f'global_load_ushort v{vla}, v{vpo}, {P_LA}')
    a(f'global_load_ushort v{vai}, v{vpo}, {P_AI}')
    a(f'global_load_ushort v{vldt}, v{vdto}, {P_DT}')
    a.label('L_s0_par')
    R.release('paroff'); R.release('paroff2'); R.release('dtoff')
    stamp('issued')
    a(f's_mov_b32 {S_L2E}, {hx(f2u(1.4426950408889634))}')
    a(f's_mov_b32 {S_L2ELO}, {hx(f2u(1.4426950408889634 - f32(1.4426950408889634)))}')
    i2pi = 1.0 / (2 * math.pi)
    a(f's_mov_b32 {S_I2PI}, {hx(f2u(i2pi))}')
    a(f's_mov_b32 {S_I2PILO}, {hx(f2u(i2pi - f32(i2pi)))}')
    a(f's_mov_b32 {S_EPS}, {hx(f2u(1e-5))}')
    a(f's_mov_b32 {S_MASKHI}, 0xffff0000')
    a(f's_mov_b32 {S_ONE2}, 0x3f803f80')
    vz = al('z', 4, 2)
    for i in range(4): a(f'v_mov_b32 v{vz+i}, 0')
    a(f's_cmp_eq_u32 {S_W8}, 4'); a('s_cbranch_scc0 L_s0_z1')
    a(f'v_lshlrev_b32 v{vt0}, 4, v{vlane}')
    a(f'v_add_u32 v{vt1}, {UL_SZ - 512}, v{vt0}')
    a(f'v_cmp_gt_u32 vcc, 32, v{vlane}')
    a(f'v_cndmask_b32 v{vt0}, v{vt1}, v{vt0}, vcc')
    a(f'ds_write_b128 v{vt0}, {vr(vz,4)} offset:{L_UL}')
    a.label('L_s0_z1')
    a(f's_cmp_eq_u32 {S_W8}, 5'); a('s_cbranch_scc0 L_s0_z2')
    a(f'v_lshrrev_b32 v{vt0}, 1, v{vlane}')
    a(f'v_mul_u32_u24 v{vt0}, {KC_SZ}, v{vt0}')
    a(f'v_and_b32 v{vt1}, 1, v{vlane}')
    a(f'v_lshl_add_u32 v{vt0}, v{vt1}, 4, v{vt0}')
    a('s_mov_b64 exec, 0xff')
    a(f'ds_write_b128 v{vt0}, {vr(vz,4)} offset:{L_KC + 4096}')
    a('s_mov_b64 exec, -1')
    a.label('L_s0_z2')
    R.release('z')

    vTw = al('Tw'); vTs = al('Ts')
    a(f'v_and_b32 v{vt0}, 15, v{vlane}')
    a(f'v_lshrrev_b32 v{vt1}, 4, v{vlane}')
    a(f's_cmp_ge_u32 {S_W8}, 4'); a('s_cbranch_scc1 L_s0_t2')
    a(f's_bitcmp1_b32 {S_W8}, 0'); a('s_cbranch_scc1 L_s0_t1')
    a(f'v_lshrrev_b32 v{vt2}, 3, v{vt0}'); a(f'v_lshlrev_b32 v{vt2}, 7, v{vt2}')
    a(f'v_and_b32 v{vt3}, 7, v{vt0}'); a(f'v_add_u32 v{vTw}, v{vt2}, v{vt3}')
    a(f'v_mov_b32 v{vTs}, 8')
    a('s_branch L_s0_td')
    a.label('L_s0_t1')
    a(f'v_lshrrev_b32 v{vt2}, 2, v{vt0}'); a(f'v_lshlrev_b32 v{vt2}, 6, v{vt2}')
    a(f'v_and_b32 v{vt3}, 3, v{vt0}'); a(f'v_add_u32 v{vt2}, v{vt2}, v{vt3}'); a(f'v_add_u32 v{vTw}, 256, v{vt2}')
    a(f'v_lshrrev_b32 v{vt2}, 1, v{vt0}'); a(f'v_lshlrev_b32 v{vt2}, 5, v{vt2}')
    a(f'v_and_b32 v{vt3}, 1, v{vt0}'); a(f'v_add_u32 v{vt2}, v{vt2}, v{vt3}'); a(f'v_add_u32 v{vt2}, 256, v{vt2}')
    a(f'v_cmp_gt_u32 vcc, 8, v{vt0}')
    a(f'v_cndmask_b32 v{vTw}, v{vt2}, v{vTw}, vcc')
    a(f'v_mov_b32 v{vt2}, 2'); a(f'v_mov_b32 v{vt3}, 4'); a(f'v_cndmask_b32 v{vTs}, v{vt2}, v{vt3}, vcc')
    a('s_branch L_s0_td')
    a.label('L_s0_t2')
    a(f'v_lshlrev_b32 v{vTw}, 4, v{vt0}'); a(f'v_add_u32 v{vTw}, 512, v{vTw}')
    a(f'v_mov_b32 v{vTs}, 1')
    a.label('L_s0_td')
    a(f'v_lshlrev_b32 v{vt1}, 2, v{vt1}')
    a(f'v_mul_u32_u24 v{vt1}, v{vt1}, v{vTs}')
    a(f'v_add_u32 v{vTw}, v{vTw}, v{vt1}')
    a(f'v_lshlrev_b32 v{vTw}, 1, v{vTw}')
    a(f'v_lshlrev_b32 v{vTs}, 1, v{vTs}')
    S_KC, S_KT = 's40', 's41'
    a(f's_lshr_b32 {S_KC}, {S_W8}, 1'); a(f's_and_b32 {S_KT}, {S_W8}, 1')
    a(f's_sub_u32 s6, {S_W8}, 4')
    a(f's_cmp_ge_u32 {S_W8}, 4'); a(f's_cselect_b32 {S_KC}, s6, {S_KC}'); a(f's_cselect_b32 {S_KT}, 2, {S_KT}')
    a(f's_mul_i32 s6, {S_KC}, {TT_SZ}'); a(f's_add_u32 s6, s6, {L_TT}')
    a(f'v_add_u32 v{vTw}, s6, v{vTw}')
    vaa = al('kaa'); vba = al('kba')
    a(f's_mul_i32 s6, {S_KC}, {FG_SZ}'); a(f's_add_u32 s6, s6, {L_BIG}')
    a(f'v_and_b32 v{vt0}, 15, v{vlane}'); a(f'v_mul_u32_u24 v{vt0}, {FROW}, v{vt0}')
    a(f'v_lshrrev_b32 v{vt1}, 4, v{vlane}'); a(f'v_lshl_add_u32 v{vt0}, v{vt1}, 4, v{vt0}')
    a(f'v_add_u32 v{vaa}, s6, v{vt0}')
    a(f's_mul_i32 s7, {S_KT}, {16*FROW}'); a('s_add_u32 s6, s6, s7'); a(f's_add_u32 s6, s6, {F_SZ}')
    a(f'v_add_u32 v{vba}, s6, v{vt0}')

    vTa = al('Ta', 10, 2); vKw = al('Kw'); vz8 = al('z8')
    vf = al('f1', 12, 2); vfo = al('f1off'); vug = al('ugoff'); vul = al('ulds')
    a(f'v_and_b32 v{vz8}, 255, v0')
    a(f'v_lshlrev_b32 v{vug}, 13, v{vz8}')
    a(f's_lshl_b32 s6, {S_P}, 5'); a(f's_add_u32 s6, s6, {WS_U}')
    a(f'v_add_u32 v{vug}, s6, v{vug}')
    a('s_and_b32 s6, s2, 7'); a('s_lshl_b32 s6, s6, 12'); a(f's_add_u32 s6, s6, {WS_F1}')
    a(f'v_lshl_add_u32 v{vfo}, v{vlane}, 4, s6')
    a(f'v_lshlrev_b32 v{vul}, 4, v{vz8}')
    if_role_a('L_s0_noexp')
    a(f'v_sub_u32 v{vKw}, 255, v{vz8}')
    a(f'v_lshlrev_b32 v{vKw}, 4, v{vKw}')
    a(f'v_lshlrev_b32 v{vz8}, 3, v{vz8}')
    a(f'v_add_u32 v{vz8}, 9, v{vz8}')
    for k in range(10):
        d = vTa + k
        a(f'v_subrev_u32 v{d}, {k}, v{vz8}')
        a(f'v_cvt_f32_u32 v{vt0}, v{d}')
        a(f'v_cvt_pk_bf16_f32 v{vt0}, v{vt0}, v{vt0}')
        a(f'v_and_b32 v{vt0}, 0xffff, v{vt0}')
        a(f'v_subrev_u32 v{vt0}, 17024, v{vt0}')
        a(f'v_min_u32 v{d}, 128, v{d}')
        a(f'v_max_i32 v{d}, v{vt0}, v{d}')
        a(f'v_lshlrev_b32 v{d}, 1, v{d}')
    a.label('L_s0_noexp')
    R.release('z8')

    vEP = al('EP'); vISa = al('ISa'); vYa = al('Ya')
    a(f'v_lshrrev_b32 v{vt0}, 1, v0')
    a(f'v_and_b32 v{vt1}, 1, v0')
    a(f'v_mul_u32_u24 v{vEP}, {PX_C}, v{vt1}')
    a(f'v_lshrrev_b32 v{vt3}, 5, v{vt0}'); a(f'v_mul_u32_u24 v{vt3}, {PX_T}, v{vt3}'); a(f'v_add_u32 v{vEP}, v{vEP}, v{vt3}')
    a(f'v_bfe_u32 v{vt3}, v{vt0}, 1, 4'); a(f'v_lshl_add_u32 v{vEP}, v{vt3}, 4, v{vEP}')
    a(f'v_and_b32 v{vt3}, 1, v{vt0}'); a(f'v_mul_u32_u24 v{vt3}, 640, v{vt3}'); a(f'v_add_u32 v{vEP}, v{vEP}, v{vt3}')
    a(f'v_add_u32 v{vEP}, {L_PX}, v{vEP}')
    a(f'v_lshlrev_b32 v{vISa}, 2, v{vt1}')
    a(f'v_add_u32 v{vYa}, {WS_Y}, v{vblk}')
    vLA = al('LA', 4); vLB = al('LB'); vPW = al('PW')
    if_role_a('L_s0_nocv')
    a(f's_lshr_b32 s6, {S_W8}, 1'); a(f's_and_b32 s7, {S_W8}, 1')
    a(f'v_and_b32 v{vt0}, 15, v{vlane}'); a(f'v_lshrrev_b32 v{vt1}, 4, v{vlane}')
    a(f'v_and_b32 v{vt2}, 1, v{vt0}')
    a(f'v_mul_u32_u24 v{vt3}, {KC_SZ + 2}, v{vt2}')
    a(f'v_lshl_add_u32 v{vt3}, v{vt1}, 4, v{vt3}')
    a(f'v_lshlrev_b32 v{vt2}, 1, v{vt0}')
    a(f'v_sub_u32 v{vt3}, v{vt3}, v{vt2}')
    a(f's_mul_i32 s38, s6, {2*KC_SZ}'); a('s_lshl_b32 s39, s7, 8')
    a('s_sub_u32 s38, s38, s39'); a(f's_add_u32 s38, s38, {L_KC + 4064 - 64*15}')
    a(f'v_add_u32 v{vLA}, s38, v{vt3}')
    for J in range(1, 4): a(f'v_subrev_u32 v{vLA+J}, {1024*J}, v{vLA}')
    a(f'v_lshl_add_u32 v{vt2}, v{vt0}, 1, v{vt1}')
    a(f's_mul_i32 s38, s6, {UL_SZ}'); a('s_sub_u32 s38, s38, s39'); a(f's_add_u32 s38, s38, {L_UL + 480 - 192}')
    a(f'v_lshl_add_u32 v{vLB}, v{vt2}, 4, s38')
    a(f's_mul_i32 s38, s6, {PX_C}'); a(f's_mul_i32 s39, s7, {PX_H}'); a('s_add_u32 s38, s38, s39'); a(f's_add_u32 s38, s38, {L_PX}')
    a(f'v_lshrrev_b32 v{vt0}, 5, v{vlane}'); a(f'v_lshlrev_b32 v{vt0}, 7, v{vt0}')
    a(f'v_lshl_add_u32 v{vt0}, v{vlane}, 4, v{vt0}')
    a(f'v_add_u32 v{vPW}, s38, v{vt0}')
    a.label('L_s0_nocv')

    def unpack8(dst, src):
        for j in range(4):
            a(f'v_lshlrev_b32 v{dst+2*j}, 16, v{src+j}')
            a(f'v_and_b32 v{dst+2*j+1}, {S_MASKHI}, v{src+j}')
    def cvt4(dst, src, kind='bf16'):
        for j in range(4):
            a(f'v_cvt_pk_{kind}_f32 v{dst+j}, v{src+2*j}, v{src+2*j+1}')
    def xlane2(p, t, op='add_f32', pk=True):
        a(f'v_add_f32_dpp v{p}, v{p}, v{p} row_ror:8 row_mask:0xf bank_mask:0xf')
        a(f'v_add_f32_dpp v{p+1}, v{p+1}, v{p+1} row_ror:8 row_mask:0xf bank_mask:0xf')
        for sw in ('16', '32'):
            a(f'v_mov_b32 v{t}, v{p}'); a(f'v_mov_b32 v{t+1}, v{p+1}')
            a(f'v_permlane{sw}_swap_b32 v{t}, v{p}'); a(f'v_permlane{sw}_swap_b32 v{t+1}, v{p+1}')
            a(f'v_pk_add_f32 {vr(p,2)}, {vr(p,2)}, {vr(t,2)}')
    def xlane1(p, t, op, full=False):
        if full:
            for ror in (1, 2, 4):
                a(f'v_{op}_dpp v{p}, v{p}, v{p} row_ror:{ror} row_mask:0xf bank_mask:0xf')
        a(f'v_{op}_dpp v{p}, v{p}, v{p} row_ror:8 row_mask:0xf bank_mask:0xf')
        for sw in ('16', '32'):
            a(f'v_mov_b32 v{t}, v{p}')
            a(f'v_permlane{sw}_swap_b32 v{t}, v{p}')
            a(f'v_{op} v{p}, v{p}, v{t}')
    def ln_stats_partial(pk, S, t, lds_off):
        a(f'v_dot2_f32_bf16 v{S}, v{pk}, {S_ONE2}, 0')
        a(f'v_dot2_f32_bf16 v{S+1}, v{pk}, v{pk}, 0')
        for j in range(1, 4):
            a(f'v_dot2_f32_bf16 v{S}, v{pk+j}, {S_ONE2}, v{S}')
            a(f'v_dot2_f32_bf16 v{S+1}, v{pk+j}, v{pk+j}, v{S+1}')
        a(f's_lshl_b32 s6, {S_W8}, 3')
        xlane2(S, t)
        a(f'v_lshl_add_u32 v{t}, v{vtk}, 6, s6')
        a('s_mov_b64 exec, 0xff')
        a(f'ds_write_b64 v{t}, {vr(S,2)} offset:{lds_off}')
        a('s_mov_b64 exec, -1')
    def ln_finish(xf, d, S, t, lds_off, m, rs, sout):
        a(f'v_lshlrev_b32 v{t}, 6, v{vtk}')
        for j in range(4): a(f'ds_read_b128 {vr(d+4*j,4)}, v{t} offset:{lds_off + 16*j}')
        a('s_waitcnt lgkmcnt(0)')
        for j in (0, 4, 8, 12): a(f'v_pk_add_f32 {vr(d+j,2)}, {vr(d+j,2)}, {vr(d+j+2,2)}')
        a(f'v_pk_add_f32 {vr(d,2)}, {vr(d,2)}, {vr(d+4,2)}')
        a(f'v_pk_add_f32 {vr(d+8,2)}, {vr(d+8,2)}, {vr(d+12,2)}')
        a(f'v_pk_add_f32 {vr(S,2)}, {vr(d,2)}, {vr(d+8,2)}')
        inv = hx(f2u(1.0/512))
        a(f'v_mul_f32 v{S}, {inv}, v{S}')
        a(f'v_mul_f32 v{S+1}, {inv}, v{S+1}')
        a(f'v_fma_f32 v{S+1}, -v{S}, v{S}, v{S+1}')
        a(f'v_max_f32 v{S+1}, 0, v{S+1}')
        a(f'v_cvt_pk_bf16_f32 v{t}, v{S}, v{S+1}')
        a(f'v_lshlrev_b32 v{m}, 16, v{t}')
        a(f'v_and_b32 v{t}, {S_MASKHI}, v{t}')
        a(f'v_add_f32 v{t}, {S_EPS}, v{t}')
        a(f'v_cvt_pk_bf16_f32 v{t}, v{t}, v{t}')
        a(f'v_lshlrev_b32 v{t}, 16, v{t}')
        a(f'v_sqrt_f32 v{t}, v{t}')
        a(f'v_cvt_pk_bf16_f32 v{t}, v{t}, v{t}')
        a(f'v_lshlrev_b32 v{sout}, 16, v{t}')
        a(f'v_rcp_f32 v{rs}, v{sout}')
        normalize(xf, m, rs, d)
    def normalize(xf, m, rs, d):
        for j in range(4):
            a(f'v_pk_add_f32 {vr(d+2*j,2)}, {vr(xf+2*j,2)}, {vr(m,2)} op_sel_hi:[1,0] neg_lo:[0,1] neg_hi:[0,1]')
        cvt4(d+8, d)
        unpack8(d, d+8)
        for j in range(4):
            a(f'v_pk_mul_f32 {vr(d+2*j,2)}, {vr(d+2*j,2)}, {vr(rs,2)} op_sel_hi:[1,0]')
        cvt4(d+8, d)

    vxf = al('xf', 8, 2); vud = al('ud', 8, 2); vm1 = al('m1', 2, 2)
    vd = al('d', 16, 4); vS = al('S', 2, 2); vt = al('t', 2, 2); vrs = al('rs', 2, 2); vs_ = al('s', 2, 2)
    if cfg.wtouch:
        vtw = al('tw')
        a('s_and_b32 s6, s2, 7'); a('s_lshr_b32 s7, s2, 3')
        a('s_mul_i32 s38, s6, 448'); a('s_and_b32 s38, s38, 0xffffff80')
        a(f's_mul_i32 s39, s7, {16*3584}'); a('s_add_u32 s38, s38, s39')
        a(f'v_lshrrev_b32 v{vtw}, 2, v{vlane}'); a(f'v_mul_u32_u24 v{vtw}, 3584, v{vtw}')
        a(f'v_and_b32 v{vt0}, 3, v{vlane}'); a(f'v_lshl_add_u32 v{vtw}, v{vt0}, 7, v{vtw}')
        a(f'v_add_u32 v{vtw}, s38, v{vtw}')
        a(f'v_min_u32 v{vtw}, {512*3584 - 4}, v{vtw}')
        a('s_lshl_b32 s38, s6, 7'); a(f's_mul_i32 s39, s7, {56*1024}'); a('s_add_u32 s38, s38, s39')
        a(f's_and_b32 s39, {S_W8}, 1'); a(f's_mul_i32 s39, s39, {28*1024}'); a('s_add_u32 s38, s38, s39')
        a(f'v_min_u32 v{vt0}, 27, v{vlane}'); a(f'v_lshl_add_u32 v{vt0}, v{vt0}, 10, s38')
        a(f's_cmp_ge_u32 {S_W8}, 2'); a('s_cselect_b64 vcc, -1, 0')
        a(f'v_cndmask_b32 v{vtw}, v{vtw}, v{vt0}, vcc')
        a(f's_cmp_eq_u32 {S_W8}, 1'); a('s_cselect_b32 s44, s28, s26'); a('s_cselect_b32 s45, s29, s27')
        a(f's_cmp_ge_u32 {S_W8}, 2'); a('s_cselect_b32 s44, s30, s44'); a('s_cselect_b32 s45, s31, s45')
    stamp('precomp')
    a(f's_cmp_lt_u32 {S_W8}, 4'); a('s_cbranch_scc1 L_s1_wa')
    a(f's_cmp_lt_u32 {S_W8}, 6'); a('s_cbranch_scc1 L_s1_wb')
    a('s_waitcnt vmcnt(6)'); a('s_branch L_s1_wd')
    a.label('L_s1_wb'); a('s_waitcnt vmcnt(7)'); a('s_branch L_s1_wd')
    a.label('L_s1_wa'); a('s_waitcnt vmcnt(10)')
    a.label('L_s1_wd')
    stamp('x_arrived')
    R.release('ones')
    if cfg.wtouch == 1:
        if_role_a('L_tw_done')
        a(f'global_load_dword v{vjunk}, v{vtw}, s[44:45]')
        a.label('L_tw_done')
        R.release('tw')
    ln_stats_partial(vx, vS, vt, L_ST1)
    unpack8(vxf, vx)
    a(f's_cmp_lt_u32 {S_W8}, 6'); a('s_cbranch_scc1 L_s1_nodw')
    a(f's_sub_u32 s6, {S_W8}, 6'); a('s_lshl_b32 s6, s6, 10'); a(f's_add_u32 s6, s6, {L_D}')
    a(f'v_lshl_add_u32 v{vt0}, v{vlane}, 4, s6')
    a(f'ds_write_b128 v{vt0}, {vr(vD,4)}')
    a.label('L_s1_nodw')
    a(f's_cmp_lt_u32 {S_W8}, 4'); a('s_cbranch_scc1 L_s1_ca')
    a(f's_cmp_lt_u32 {S_W8}, 6'); a('s_cbranch_scc1 L_s1_cb')
    a('s_waitcnt vmcnt(3) lgkmcnt(0)'); a('s_branch L_s1_cd')
    a.label('L_s1_cb'); a('s_waitcnt vmcnt(4) lgkmcnt(0)'); a('s_branch L_s1_cd')
    a.label('L_s1_ca'); a(f's_waitcnt vmcnt({7 + (1 if cfg.wtouch == 1 else 0)}) lgkmcnt(0)')
    a.label('L_s1_cd')
    stamp('ln1_prebar')
    a('s_barrier')
    a(f's_add_u32 {S_TAG}, {S_TAG}, 1')
    a(f's_cmp_eq_u32 {S_W8}, 4'); a('s_cbranch_scc0 L_s1_nof1')
    a('s_lshl_b32 s7, s2, 4'); a(f's_add_u32 s6, s7, {WS_F1}')
    a(f'v_lshl_add_u32 v{vt0}, v{vlane}, 12, s6')
    a(f'v_mov_b32 v{vt1}, {S_TAG}')
    a('s_mov_b64 exec, 0xff')
    a(f'global_store_dword v{vt0}, v{vt1}, {P_WS} sc1')
    a('s_mov_b64 exec, -1')
    a.label('L_s1_nof1')
    a(f'ds_read_b128 {vr(vD,4)}, v{vch} offset:{L_D}')
    ln_finish(vxf, vd, vS, vt, L_ST1, vm1, vrs, vs_)
    stamp('ln1_fin')
    unpack8(vd, vd+8)
    cvt4(vd+12, vd, 'f16')
    S_STG = 's42'
    a(f's_mul_i32 {S_STG}, {S_W8}, {STG_SZ}'); a(f's_add_u32 {S_STG}, {S_STG}, {L_STG}')
    a(f'v_mul_u32_u24 v{vt0}, 192, v{vtk}')
    a(f'v_lshl_add_u32 v{vt0}, v{vcg}, 4, v{vt0}')
    a(f'v_add_u32 v{vt0}, {S_STG}, v{vt0}')
    a(f'ds_write_b128 v{vt0}, {vr(vd+12,4)}')
    a(f'v_bfe_u32 v{vt1}, v{vlane}, 2, 2')
    a(f'v_mul_u32_u24 v{vt1}, 192, v{vt1}')
    a(f'v_lshrrev_b32 v{vt2}, 4, v{vlane}')
    a(f'v_lshl_add_u32 v{vt1}, v{vt2}, 5, v{vt1}')
    a(f'v_and_b32 v{vt2}, 3, v{vlane}')
    a(f'v_lshl_add_u32 v{vt1}, v{vt2}, 3, v{vt1}')
    a(f'v_add_u32 v{vt1}, {S_STG}, v{vt1}')
    a(f'v_add_u32 v{vt2}, {WS_U}, v{vblk}')
    a('s_waitcnt lgkmcnt(0)')
    a(f'ds_read_b64_tr_b16 {vr(vd+8,2)}, v{vt1}')
    a(f'ds_read_b64_tr_b16 {vr(vd+10,2)}, v{vt1} offset:{4*192}')
    unpack8(vud, vD)
    for j in range(4): a(f'v_pk_mul_f32 {vr(vud+2*j,2)}, {vr(vud+2*j,2)}, {vr(vd+2*j,2)}')
    a('s_waitcnt lgkmcnt(0)')
    a(f'global_store_dwordx4 v{vt2}, {vr(vd+8,4)}, {P_WS} sc1')
    stamp('u_stored')
    cvt4(vd+12, vud)
    unpack8(vud, vd+12)
    R.release('x'); R.release('D')
    for n in ('d', 'S', 't', 'rs', 's'): R.release(n)
    if stop_here(1): return finish(a, R, cfg)

    a(f's_waitcnt vmcnt({1 + (1 if cfg.wtouch == 1 else 0)})')
    stamp('kg_start')
    kt = al('kt', 12, 2)
    def exp_acc(x, t1, t2):
        a(f'v_mul_f32 v{t1}, {S_L2E}, v{x}')
        a(f'v_fma_f32 v{t2}, v{x}, {S_L2E}, -v{t1}')
        a(f'v_fma_f32 v{t2}, v{x}, {S_L2ELO}, v{t2}')
        a(f'v_exp_f32 v{x}, v{t1}')
        a(f'v_mul_f32 v{t2}, {hx(f2u(math.log(2)))}, v{t2}')
        a(f'v_fma_f32 v{x}, v{x}, v{t2}, v{x}')
    for r in (vla, vai, vldt): a(f'v_lshlrev_b32 v{r}, 16, v{r}')
    exp_acc(vldt, kt, kt+1); exp_acc(vla, kt+2, kt+3)
    a(f'v_cvt_pk_bf16_f32 v{kt}, v{vldt}, v{vla}')
    vdt = vldt; vAr = vla
    a(f'v_lshlrev_b32 v{vdt}, 16, v{kt}')
    a(f'v_and_b32 v{vAr}, {S_MASKHI}, v{kt}')
    val_ = al('al'); vfh = al('fh'); vfl = al('fl'); v2dt = al('2dt')
    a(f'v_mul_f32 v{val_}, v{vAr}, v{vdt}')
    a(f'v_mul_f32 v{kt}, v{vai}, v{vdt}')
    a(f'v_mul_f32 v{val_}, {S_L2E}, v{val_}')
    a(f'v_mul_f32 v{vfh}, {S_I2PI}, v{kt}')
    a(f'v_fma_f32 v{vfl}, v{kt}, {S_I2PI}, -v{vfh}')
    a(f'v_fma_f32 v{vfl}, v{kt}, {S_I2PILO}, v{vfl}')
    def anchor(E, p):
        a(f'v_mul_f32 v{kt}, {hx(f2u(-float(p)))}, v{val_}')
        a(f'v_mul_f32 v{kt+1}, {hx(f2u(float(p)))}, v{vfh}')
        a(f'v_exp_f32 v{kt}, v{kt}')
        a(f'v_fract_f32 v{kt+1}, v{kt+1}')
        a(f'v_mov_b32 v{kt+2}, {hx(f2u(float(p)))}')
        a(f'v_fma_f32 v{kt+1}, v{vfl}, v{kt+2}, v{kt+1}')
        a(f'v_cos_f32 v{E}, v{kt+1}')
        a(f'v_sin_f32 v{E+1}, v{kt+1}')
        a(f'v_pk_mul_f32 {vr(E,2)}, {vr(E,2)}, {vr(kt,2)} op_sel_hi:[1,0]')
    def cmul(d, x, y):
        a(f'v_pk_mul_f32 {vr(d,2)}, {vr(x,2)}, {vr(y,2)} op_sel:[0,0] op_sel_hi:[0,1]')
        a(f'v_pk_fma_f32 {vr(d,2)}, {vr(x,2)}, {vr(y,2)}, {vr(d,2)} op_sel:[1,1,0] op_sel_hi:[1,0,1] neg_lo:[1,0,0]')
    XOF = 20000
    a(f's_bfe_u32 s6, {S_W8}, 0x10001'); a(f's_mul_i32 s6, s6, {FG_SZ}'); a(f's_add_u32 s6, s6, {L_BIG - XOF}')
    a(f's_and_b32 s7, {S_W8}, 1'); a('s_lshl_b32 s7, s7, 8'); a('s_add_u32 s6, s6, s7')
    a('s_mov_b32 m0, s6')
    cv = [kt+8, kt+9, kt+10, kt+11]; cvi = [0]
    def put(row, val, isG):
        t = cv[cvi[0] % 4]; cvi[0] += 1
        if isG:
            a(f'v_cvt_pk_f16_f32 v{t}, v{val}, -v{val+1}')
            a(f'ds_write_addtid_b32 v{t} offset:{XOF + F_SZ + row*FROW}')
        else:
            a(f'v_cvt_pk_f16_f32 v{t}, v{val}, v{val+1}')
            a(f'ds_write_addtid_b32 v{t} offset:{XOF + row*FROW}')
    E1 = al('E1', 2, 2); E8 = al('E8', 2, 2); E128 = al('E128', 2, 2)
    Fa = al('Fa', 2, 2); Fb = al('Fb', 2, 2); Ha = al('Ha', 2, 2); Hb = al('Hb', 2, 2)
    O = [None] + [al(f'O{i}', 2, 2) for i in range(1, 8)]
    Gt = [al('Gt0', 2, 2), al('Gt1', 2, 2)]
    if_role_a('L_k_roleB')
    for r in (vcr, vci, vcr2, vci2): a(f'v_lshlrev_b32 v{r}, 16, v{r}')
    vsum = kt + 4
    a(f'v_add_f32 v{vsum}, |v{vcr}|, |v{vci}|')
    a(f'v_add_f32 v{kt+5}, |v{vcr2}|, |v{vci2}|')
    a(f'v_add_f32 v{vsum}, v{vsum}, v{kt+5}')
    xlane1(vsum, kt+5, 'add_f32', full=True)
    anchor(E128, 128); anchor(E1, 1)
    a(f'v_add_f32 v{v2dt}, v{vdt}, v{vdt}')
    a(f'v_mul_f32 v{vsum}, v{vsum}, v{v2dt}')
    a(f'v_frexp_exp_i32_f32 v{kt+5}, v{vsum}')
    a(f'v_sub_u32 v{kt+6}, 15, v{kt+5}')
    a(f'v_ldexp_f32 v{v2dt}, v{v2dt}, v{kt+6}')
    a(f'v_subrev_u32 v{kt+5}, 15, v{kt+5}')
    a(f'v_mov_b32 v{kt+6}, 1.0')
    a(f'v_ldexp_f32 v{kt+6}, v{kt+6}, v{kt+5}')
    a(f's_lshr_b32 s6, {S_W8}, 1'); a('s_lshl_b32 s6, s6, 2'); a(f's_add_u32 s6, s6, {L_IS}')
    a(f'v_mov_b32 v{kt+7}, s6')
    a('s_mov_b64 exec, 1')
    a(f'ds_write_b32 v{kt+7}, v{kt+6}')
    a('s_mov_b64 exec, -1')
    stamp('kg_anch')
    a(f'v_mul_f32 v{Ha}, v{vcr}, v{v2dt}'); a(f'v_mul_f32 v{Ha+1}, v{vci}, v{v2dt}')
    O[1] = E1
    cmul(O[2], O[1], O[1]); cmul(Hb, Ha, E128); put(0, Ha, True)
    cmul(O[3], O[2], O[1]); cmul(O[4], O[2], O[2])
    cmul(O[5], O[4], O[1]); cmul(O[6], O[4], O[2]); cmul(O[7], O[4], O[3])
    def gcol(i, o):
        if i < 2: return 8*i + o
        if i < 4: return 16 + 4*(i-2) + o//2
        if i < 8: return 24 + 2*(i-4) + o//4
        return 32 + (i-8)
    Hcur, Hnx = Ha, Hb
    gi = 0
    for i in range(0, 17):
        offs = list(range(8)) if i < 2 else ([0,2,4,6] if i < 4 else ([0,4] if i < 8 else [0]))
        if i > 0:
            put(gcol(i, 0), Hcur, True)
            if i < 16: cmul(Hnx, Hcur, E128)
        for o in offs[1:]:
            gg = Gt[gi % 2]; gi += 1
            cmul(gg, Hcur, O[o]); put(gcol(i, o), gg, True)
        Hcur, Hnx = Hnx, Hcur
    stamp('kg_ch')
    a('s_waitcnt lgkmcnt(0)')
    stamp('kgen_valu')
    a('s_branch L_k_bb')
    a.label('L_k_roleB')
    anchor(E8, 8)
    a(f'v_mov_b32 v{cv[0]}, 0x00003c00'); a(f'ds_write_addtid_b32 v{cv[0]} offset:{XOF}'); cvi[0] = 1
    put(1, E8, False)
    cmul(Fa, E8, E8); put(2, Fa, False)
    Fcur, Fnx = Fa, Fb
    for fj in range(3, 16):
        cmul(Fnx, Fcur, E8); put(fj, Fnx, False); Fcur, Fnx = Fnx, Fcur
    vu = al('u', 8, 2)
    a(f's_cmp_eq_u32 {S_W8}, 4'); a('s_cbranch_scc0 L_k_nof1p')
    def f1issue():
        for j in range(4): a(f'global_load_dword v{vf+j}, v{vfo}, {P_WS} offset:{1024*j} sc1')
    poll_loop(f1issue, [vf, vf+1, vf+2, vf+3], vt0, 'f1', cmp_tag=True)
    a.label('L_k_nof1p')
    a('s_waitcnt lgkmcnt(0)')
    if cfg.active('kgen_valu'): a(f'{cfg.tinstr} s[{70+2*(len(cfg.stamp_names)-1)}:{71+2*(len(cfg.stamp_names)-1)}]')
    for n in ['kt','al','fh','fl','2dt','E1','E8','E128','Fa','Fb','Ha','Hb','Gt0','Gt1'] + [f'O{i}' for i in range(1,8)]: R.release(n)
    for n in ('la','ai','cr','ci','cr2','ci2','ldt'): R.release(n)
    a.label('L_k_bb')
    a('s_barrier')
    stamp('B_b')
    if cfg.wtouch == 3:
        if_role_a('L_tw3'); a(f'global_load_dword v{vjunk}, v{vtw}, s[44:45]'); a.label('L_tw3')
    if_role_b('L_k_nog')
    a(f'global_load_dwordx4 {vr(vu,4)}, v{vug}, {P_WS} sc1')
    a(f'global_load_dwordx4 {vr(vu+4,4)}, v{vug}, {P_WS} offset:16 sc1')
    a.label('L_k_nog')
    a(f's_cmp_ge_u32 {S_W8}, 6'); a('s_cbranch_scc1 L_k_nomf')
    vA = al('kA', 32, 4); vB = al('kB', 32, 4); vacc = al('kacc', 4, 4)
    for k in range(8):
        a(f'ds_read_b128 {vr(vA+4*k,4)}, v{vaa} offset:{64*k}')
        a(f'ds_read_b128 {vr(vB+4*k,4)}, v{vba} offset:{64*k}')
        if k == 6: a('s_waitcnt lgkmcnt(10)') if False else None
    a(f'v_add_u32 v{vt0}, v{vTw}, v{vTs}')
    a(f'v_add_u32 v{vt1}, v{vt0}, v{vTs}')
    a(f'v_add_u32 v{vt2}, v{vt1}, v{vTs}')
    for k in range(8):
        a(f's_waitcnt lgkmcnt({min(15, 2*(7-k))})')
        a(f'v_mfma_f32_16x16x32_f16 {vr(vacc,4)}, {vr(vA+4*k,4)}, {vr(vB+4*k,4)}, {"0" if k == 0 else vr(vacc,4)}')
    a(f'v_cvt_pk_f16_f32 v{vA}, v{vacc}, v{vacc+1}')
    a(f'v_cvt_pk_f16_f32 v{vA+1}, v{vacc+2}, v{vacc+3}')
    a(f'ds_write_b16 v{vTw}, v{vA}')
    a(f'ds_write_b16_d16_hi v{vt0}, v{vA}')
    a(f'ds_write_b16 v{vt1}, v{vA+1}')
    a(f'ds_write_b16_d16_hi v{vt2}, v{vA+1}')
    for n in ('kA','kB','kacc','kaa','kba'): R.release(n)
    a.label('L_k_nomf')
    a('s_waitcnt lgkmcnt(0)')
    stamp('k_mf')
    a('s_barrier')
    stamp('B_c')
    if cfg.wtouch == 4:
        if_role_a('L_tw4'); a(f'global_load_dword v{vjunk}, v{vtw}, s[44:45]'); a.label('L_tw4')
    R.release('Tw'); R.release('Ts')
    if_role_a('L_k_noexp')
    ve = al('e', 20, 2); vp = al('ep', 8, 4)
    for c in range(2):
        for k in range(10):
            a(f'ds_read_u16 v{ve+10*c+k}, v{vTa+k} offset:{L_TT + c*TT_SZ}')
    for c in range(2):
        e = ve + 10*c
        a(f's_waitcnt lgkmcnt({10 if c == 0 else 2})')
        for j in range(4): a(f'v_lshl_or_b32 v{vp+j}, v{e+2*j+2}, 16, v{e+2*j+1}')
        for j in range(4): a(f'v_lshl_or_b32 v{vp+4+j}, v{e+2*j+1}, 16, v{e+2*j}')
        a(f'ds_write_b128 v{vKw}, {vr(vp,4)} offset:{L_KC + (2*c)*KC_SZ}')
        a(f'ds_write_b128 v{vKw}, {vr(vp+4,4)} offset:{L_KC + (2*c+1)*KC_SZ}')
        a(f's_cmp_eq_u32 {S_W8}, 0'); l = lbl('tail'); a(f's_cbranch_scc0 {l}')
        a(f'v_lshl_or_b32 v{vt1}, v{e+9}, 16, v{e+8}')
        a(f'v_mov_b32 v{vt0}, 4096')
        a('s_mov_b64 exec, 1')
        a(f'ds_write_b32 v{vt0}, v{e+9} offset:{L_KC + (2*c)*KC_SZ}')
        a(f'ds_write_b32 v{vt0}, v{vt1} offset:{L_KC + (2*c+1)*KC_SZ}')
        a('s_mov_b64 exec, -1')
        a.label(l)
    R.release('e'); R.release('ep')
    stamp('expand')
    a('s_branch L_k_bd')
    a.label('L_k_noexp')
    def issue_u():
        a(f'global_load_dwordx4 {vr(vu,4)}, v{vug}, {P_WS} sc1')
        a(f'global_load_dwordx4 {vr(vu+4,4)}, v{vug}, {P_WS} offset:16 sc1')
    if cfg.upipe:
        vu2 = al('u2', 8, 2)
        a(f'global_load_dwordx4 {vr(vu2,4)}, v{vug}, {P_WS} sc1')
        a(f'global_load_dwordx4 {vr(vu2+4,4)}, v{vug}, {P_WS} offset:16 sc1')
        a('s_waitcnt vmcnt(2)')
        a(f'v_max_u32 v{vt0}, v{vu}, v{vu+1}')
        for j in (2, 4, 6): a(f'v_max3_u32 v{vt0}, v{vt0}, v{vu+j}, v{vu+j+1}')
        a(f'v_cmp_eq_u32 vcc, -1, v{vt0}')
        a('s_cbranch_vccz L_u_ok1')
        a('s_mov_b64 exec, vcc')
        a('s_waitcnt vmcnt(0)')
        for j in range(8): a(f'v_mov_b32 v{vu+j}, v{vu2+j}')
        a('s_mov_b64 exec, -1')
        poll_loop(issue_u, list(range(vu, vu+8)), vt0, 'u', first_issued=True)
        a.label('L_u_ok1')
        R.release('u2')
    else:
        poll_loop(issue_u, list(range(vu, vu+8)), vt0, 'u', first_issued=True)
    a(f'ds_write_b128 v{vul}, {vr(vu,4)} offset:{L_UL + 512}')
    a(f'ds_write_b128 v{vul}, {vr(vu+4,4)} offset:{L_UL + UL_SZ + 512}')
    if cfg.active('expand'): a(f'{cfg.tinstr} s[{70+2*(len(cfg.stamp_names)-1)}:{71+2*(len(cfg.stamp_names)-1)}]')
    a.label('L_k_bd')
    for n in ('Ta','Kw','f1','f1off','ugoff','ulds','u'): R.release(n)
    a('s_waitcnt lgkmcnt(0)')
    a('s_barrier')
    stamp('B_d')
    if cfg.dbg:
        dv = al('dv', 4, 4); da = al('da');
        a(f's_lshl_b32 s6, {S_P}, 15'); a(f's_add_u32 s6, s6, 0x1000000')
        for it in range(3):
            a(f'v_lshlrev_b32 v{da}, 4, v0'); a(f'v_add_u32 v{da}, {it*8192}, v{da}')
            a(f'v_min_u32 v{da}, {L_UL + 2*UL_SZ - 16}, v{da}')
            a(f'ds_read_b128 {vr(dv,4)}, v{da}')
            a(f'v_add_u32 v{da}, s6, v{da}')
            a('s_waitcnt lgkmcnt(0)')
            a(f'global_store_dwordx4 v{da}, {vr(dv,4)}, {P_WS}')
            a('s_waitcnt vmcnt(0)')
        R.release('dv'); R.release('da')
    if stop_here(2): return finish(a, R, cfg)

    if_role_a('L_c_roleB')
    if cfg.wtouch == 2:
        a(f'global_load_dword v{vjunk}, v{vtw}, s[44:45]')
    if cfg.wtouch >= 2: R.release('tw')
    acc = al('acc', 32, 4)
    FA = [al('FA0', 32, 4), al('FA1', 32, 4)]; FB = [al('FB0', 32, 4), al('FB1', 32, 4)]
    def frag_group(rho, buf, j):
        J = j >> 1; o = 16 * (15 - (rho + 8 * (j & 1)))
        return [f'ds_read_b128 {vr(FB[buf]+4*j,4)}, v{vLB} offset:{512*j + 64*(3-rho)}',
                f'ds_read2_b32 {vr(FA[buf]+4*j,2)}, v{vLA+J} offset0:{o} offset1:{o+1}',
                f'ds_read2_b32 {vr(FA[buf]+4*j+2,2)}, v{vLA+J} offset0:{o+2} offset1:{o+3}']
    def frag_loads(rho, buf):
        L = []
        for j in range(8): L += frag_group(rho, buf, j)
        return L
    first = set()
    def mf(buf, j, tp):
        t = j + tp
        src = vr(acc+4*t,4) if t in first else '0'
        first.add(t)
        a(f'v_mfma_f32_16x16x32_f16 {vr(acc+4*t,4)}, {vr(FA[buf]+4*j,4)}, {vr(FB[buf]+4*tp,4)}, {src}')
    for j in range(5):
        for l in frag_group(0, 0, j): a(l)
    shells = [[(j, tp) for j in range(8) for tp in range(8 - j) if max(j, tp) == sh] for sh in range(8)]
    nxt = frag_loads(1, 1); k = 0
    nostamp = True
    for sh in range(8):
        if sh <= 3: a('s_waitcnt lgkmcnt(12)')
        elif sh == 4: a('s_waitcnt lgkmcnt(9)')
        elif sh == 5: a('s_waitcnt lgkmcnt(0)')
        for idx, (j, tp) in enumerate(shells[sh]):
            mf(0, j, tp)
            if sh <= 2 and idx == 0:
                for l in frag_group(0, 0, sh + 5): a(l)
            if sh >= 5:
                for _ in range(2):
                    if k < len(nxt): a(nxt[k]); k += 1
    for rho in range(1, 4):
        buf = rho & 1
        nxt = frag_loads(rho + 1, buf ^ 1) if rho < 3 else []
        a('s_waitcnt lgkmcnt(0)')
        if rho == 1: stamp('c_r0')
        if rho == 2: stamp('c_r1')
        if rho < 3:
            k = 0
            for j in range(8):
                for tp in range(8 - j):
                    mf(buf, j, tp)
                    if k < len(nxt): a(nxt[k])
                    k += 1
        else:
            done = []; cnt = 0; wr = 0
            for t in range(8):
                for j in range(t + 1):
                    mf(buf, j, t - j); cnt += 1
                    if wr < len(done) and cnt - done[wr][1] >= 9:
                        a(f'ds_write_b128 v{vPW}, {vr(acc+4*done[wr][0],4)} offset:{done[wr][0]*PX_T}'); wr += 1
                done.append((t, cnt))
            stamp('conv_mfma'); stamp('c_r3')
            while wr < 8:
                a(f'ds_write_b128 v{vPW}, {vr(acc+4*done[wr][0],4)} offset:{done[wr][0]*PX_T}'); wr += 1
    stamp('c_wr')
    for n in ('acc','FA0','FA1','FB0','FB1','LA','LB','PW'): R.release(n)
    a('s_branch L_c_be')
    a.label('L_c_roleB')
    if cfg.active('conv_mfma'): a(f'{cfg.tinstr} s[{70+2*(len(cfg.stamp_names)-1)}:{71+2*(len(cfg.stamp_names)-1)}]')
    gen_roleB_conv(a, R, cfg, locals())
    a.label('L_c_be')
    a('s_waitcnt lgkmcnt(0)')
    a('s_barrier')
    stamp('B_e')
    ep = al('ep', 16, 4); vis = al('is', 2, 2)
    a(f'ds_read_b128 {vr(ep,4)}, v{vEP}')
    a(f'ds_read_b128 {vr(ep+8,4)}, v{vEP} offset:{PX_H}')
    a(f'ds_read_b128 {vr(ep+4,4)}, v{vEP} offset:256')
    a(f'ds_read_b128 {vr(ep+12,4)}, v{vEP} offset:{PX_H + 256}')
    a(f'ds_read_b32 v{vis}, v{vISa} offset:{L_IS}')
    a('s_waitcnt lgkmcnt(0)')
    for j in range(4): a(f'v_pk_add_f32 {vr(ep+2*j,2)}, {vr(ep+2*j,2)}, {vr(ep+8+2*j,2)}')
    for j in range(4): a(f'v_pk_mul_f32 {vr(ep+2*j,2)}, {vr(ep+2*j,2)}, {vr(vis,2)} op_sel_hi:[1,0]')
    cvt4(ep+8, ep)
    a(f'global_store_dwordx4 v{vYa}, {vr(ep+8,4)}, {P_WS} sc1')
    R.release('EP'); R.release('ISa'); R.release('Ya')
    stamp('y_stored')
    R.release('ep'); R.release('is')
    if stop_here(3): return finish(a, R, cfg)

    gen_tail(a, R, cfg, locals())
    return finish(a, R, cfg)

def gen_roleB_conv(a, R, cfg, env):
    S_W8 = env['S_W8']; vlane = env['vlane']; vt0 = env['vt0']; vt1 = env['vt1']; lbl = env['lbl']
    P_WG, P_WU, P_WD = env['P_WG'], env['P_WU'], env['P_WD']
    vblk = env['vblk']; S_P = env['S_P']; P_WS = env['P_WS']
    a('s_waitcnt vmcnt(0)')
    vo = R.alloc('ones2', 4, 2); vca = R.alloc('clra')
    for i in range(4): a(f'v_mov_b32 v{vo+i}, -1')
    a(f'v_add_u32 v{vca}, {WS_H - 4096}, v{vblk}')
    a(f'global_store_dwordx4 v{vca}, v[{vo}:{vo+3}], {P_WS} sc1')
    a(f'v_add_u32 v{vca}, 4096, v{vca}')
    a(f'global_store_dwordx4 v{vca}, v[{vo}:{vo+3}], {P_WS} sc1')
    a(f's_lshl_b32 s6, {S_P}, 5'); a(f's_add_u32 s6, s6, {WS_STAT}')
    a(f'v_lshl_add_u32 v{vca}, v{vlane}, 2, s6')
    a('s_mov_b64 exec, 0xff')
    a(f'global_store_dword v{vca}, v{vo}, {P_WS} sc1')
    a('s_mov_b64 exec, -1')
    R.release('ones2'); R.release('clra')
    if cfg.dmac:
        a('s_cmp_lt_u32 s2, 56'); a('s_cbranch_scc1 L_dc_go')
        a('s_sub_u32 s7, s2, 64'); a('s_cmp_lt_u32 s7, 32'); a('s_cbranch_scc0 L_dc_done')
        a.label('L_dc_go')
        n = cfg.dsleep
        while n > 0:
            a(f's_sleep {min(n,100)}'); n -= min(n, 100)
        gen_dma(a, R, cfg, env)
        a.label('L_dc_done')

def gen_dma(a, R, cfg, env):
    S_W8 = env['S_W8']; vlane = env['vlane']; vt0 = env['vt0']; vt1 = env['vt1']
    P_WG, P_WU, P_WD = env['P_WG'], env['P_WU'], env['P_WD']; S_FC = env['S_FC']
    a('s_cmp_lt_u32 s2, 56'); a('s_cbranch_scc0 L_w_not1')
    a(f's_sub_u32 s6, {S_W8}, 4')
    a(f'v_lshrrev_b32 v{vt0}, 2, v{vlane}')
    a(f'v_mul_u32_u24 v{vt0}, 3584, v{vt0}')
    a(f'v_and_b32 v{vt1}, 3, v{vlane}')
    a(f'v_lshl_add_u32 v{vt0}, v{vt1}, 4, v{vt0}')
    a(f's_lshl_b32 s7, {S_FC}, 6')
    a('s_and_b32 s38, s6, 1'); a(f's_mul_i32 s39, s38, {256*3584}'); a('s_add_u32 s7, s7, s39')
    a(f'v_add_u32 v{vt0}, s7, v{vt0}')
    a('s_lshl_b32 s39, s6, 14'); a(f's_add_u32 s39, s39, {L_BIG}')
    a('s_cmp_ge_u32 s6, 2'); a('s_cselect_b32 s44, s28, s26'); a('s_cselect_b32 s45, s29, s27')
    a('s_mov_b32 s38, 16'); a(f's_mov_b32 s7, {16*3584}')
    a('s_branch L_w_loop')
    a.label('L_w_not1')
    a(f's_sub_u32 s6, {S_W8}, 4')
    a(f'v_lshrrev_b32 v{vt0}, 1, v{vlane}')
    a(f'v_lshlrev_b32 v{vt0}, 10, v{vt0}')
    a(f'v_and_b32 v{vt1}, 1, v{vlane}')
    a(f'v_lshl_add_u32 v{vt0}, v{vt1}, 4, v{vt0}')
    a(f's_lshl_b32 s7, {S_FC}, 5')
    a(f's_mul_i32 s39, s6, {448*1024}'); a('s_add_u32 s7, s7, s39')
    a(f'v_add_u32 v{vt0}, s7, v{vt0}')
    a(f's_mul_i32 s39, s6, {448*32}'); a(f's_add_u32 s39, s39, {L_BIG}')
    a('s_mov_b32 s44, s30'); a('s_mov_b32 s45, s31')
    a('s_mov_b32 s38, 14'); a(f's_mov_b32 s7, {32*1024}')
    a.label('L_w_loop')
    a('s_mov_b32 m0, s39'); a('s_add_u32 s39, s39, 1024')
    a(f'global_load_lds_dwordx4 v{vt0}, s[44:45]')
    a(f'v_add_u32 v{vt0}, s7, v{vt0}')
    a('s_sub_u32 s38, s38, 1'); a('s_cmp_lg_u32 s38, 0'); a('s_cbranch_scc1 L_w_loop')

def gen_tail(a, R, cfg, env):
    g = env
    al = R.alloc
    S_W8, S_P, S_TAG, S_MASKHI, S_STG, S_SPIN = g['S_W8'], g['S_P'], g['S_TAG'], g['S_MASKHI'], g['S_STG'], g['S_SPIN']
    S_L2E = g['S_L2E']
    P_WS, P_OUT = g['P_WS'], g['P_OUT']
    vlane, vt0, vt1, vt2, vt3, vtk, vcg, vch, vxo = (g[k] for k in ('vlane','vt0','vt1','vt2','vt3','vtk','vcg','vch','vxo'))
    vxf, vud, vm1 = g['vxf'], g['vud'], g['vm1']
    stamp, lbl, poll_loop, unpack8, cvt4, xlane1 = g['stamp'], g['lbl'], g['poll_loop'], g['unpack8'], g['cvt4'], g['xlane1']
    ln_stats_partial, ln_finish, normalize, stop_here = g['ln_stats_partial'], g['ln_finish'], g['normalize'], g['stop_here']
    vy = al('y', 4, 4); vyo = al('yoff'); vwr = al('wr', 4, 4)
    vd = al('d', 16, 4); vS = al('S', 2, 2); vt = al('t', 2, 2); vrs = al('rs', 2, 2); vs_ = al('s', 2, 2); vm2 = al('m2', 2, 2)
    vhf = al('hf', 8, 2); vhp = al('hp', 4, 4)
    a(f'v_lshrrev_b32 v{vyo}, 1, v0'); a(f'v_lshlrev_b32 v{vyo}, 13, v{vyo}')
    a(f'v_and_b32 v{vt0}, 1, v0'); a(f'v_lshl_add_u32 v{vyo}, v{vt0}, 4, v{vyo}')
    a(f's_lshl_b32 s6, {S_P}, 5'); a(f's_add_u32 s6, s6, {WS_Y}')
    a(f'v_add_u32 v{vyo}, s6, v{vyo}')
    a(f'ds_read_b128 {vr(vwr,4)}, v{vch} offset:{L_WR}')
    a(f'v_lshl_add_u32 v{vt2}, v{vlane}, 4, {S_STG}')
    a(f'v_lshrrev_b32 v{vt0}, 4, v{vlane}'); a(f'v_lshlrev_b32 v{vt3}, 8, v{vt0}')
    a(f'v_bfe_u32 v{vt0}, v{vlane}, 1, 1'); a(f'v_lshl_add_u32 v{vt3}, v{vt0}, 7, v{vt3}')
    a(f'v_bfe_u32 v{vt0}, v{vlane}, 2, 2'); a(f'v_lshl_add_u32 v{vt3}, v{vt0}, 4, v{vt3}')
    a(f'v_and_b32 v{vt0}, 1, v{vlane}'); a(f'v_lshl_add_u32 v{vt3}, v{vt0}, 3, v{vt3}')
    a(f'v_add_u32 v{vt3}, {S_STG}, v{vt3}')
    a('s_waitcnt vmcnt(0)')
    stamp('y_acked')
    poll_loop(lambda: a(f'global_load_dwordx4 {vr(vy,4)}, v{vyo}, {P_WS} sc1'), [vy, vy+1, vy+2, vy+3], vt0, 'y')
    stamp('y_got')
    a(f'ds_write_b128 v{vt2}, {vr(vy,4)}')
    a('s_waitcnt lgkmcnt(0)')
    a(f'ds_read_b64_tr_b16 {vr(vy,2)}, v{vt3}')
    a(f'ds_read_b64_tr_b16 {vr(vy+2,2)}, v{vt3} offset:64')
    a('s_waitcnt lgkmcnt(0)')
    stamp('s3_tr')
    unpack8(vd, vy)
    for j in range(4): a(f'v_pk_add_f32 {vr(vd+2*j,2)}, {vr(vd+2*j,2)}, {vr(vud+2*j,2)}')
    cvt4(vd+8, vd)
    unpack8(vd, vd+8)
    for j in range(4): a(f'v_pk_add_f32 {vr(vd+2*j,2)}, {vr(vd+2*j,2)}, {vr(vxf+2*j,2)}')
    cvt4(vhp, vd)
    if not cfg.hlate:
        a(f'v_add_u32 v{vt0}, {WS_H}, v{vxo}')
        a(f'global_store_dwordx4 v{vt0}, {vr(vhp,4)}, {P_WS} sc1')
    stamp('s3_h')
    ln_stats_partial(vhp, vS, vt, L_ST2)
    unpack8(vhf, vhp)
    a('s_waitcnt lgkmcnt(0)')
    stamp('s3_part')
    a('s_barrier')
    stamp('s3_bar1')
    ln_finish(vhf, vd, vS, vt, L_ST2, vm2, vrs, vs_)
    stamp('s3_fin')
    vr_ = al('r', 2, 2)
    a(f'v_dot2_f32_bf16 v{vr_}, v{vd+8}, v{vwr}, 0')
    a(f'v_dot2_f32_bf16 v{vr_+1}, v{vd+9}, v{vwr+1}, 0')
    a(f'v_dot2_f32_bf16 v{vr_}, v{vd+10}, v{vwr+2}, v{vr_}')
    a(f'v_dot2_f32_bf16 v{vr_+1}, v{vd+11}, v{vwr+3}, v{vr_+1}')
    a(f'v_add_f32 v{vr_}, v{vr_}, v{vr_+1}')
    xlane1(vr_, vt, 'add_f32')
    a(f's_lshl_b32 s6, {S_W8}, 2')
    a(f'v_lshl_add_u32 v{vt}, v{vtk}, 5, s6')
    a('s_mov_b64 exec, 0xff')
    a(f'ds_write_b32 v{vt}, v{vr_} offset:{L_RP}')
    a('s_mov_b64 exec, -1')
    stamp('s3_rp')
    unpack8(vd, vd+8)
    for j in range(4): a(f'v_pk_add_f32 {vr(vd+2*j,2)}, {vr(vd+2*j,2)}, {vr(vhf+2*j,2)}')
    cvt4(vd+12, vd)
    a('s_waitcnt lgkmcnt(0)')
    a('s_barrier')
    stamp('s3_bar2')
    a(f's_cmp_eq_u32 {S_W8}, 0'); a('s_cbranch_scc0 L_s3_nokey')
    a(f'v_lshlrev_b32 v{vt}, 5, v{vtk}')
    a(f'ds_read_b128 {vr(vd,4)}, v{vt} offset:{L_RP}')
    a(f'ds_read_b128 {vr(vd+4,4)}, v{vt} offset:{L_RP+16}')
    a('s_waitcnt lgkmcnt(0)')
    a(f'v_pk_add_f32 {vr(vd,2)}, {vr(vd,2)}, {vr(vd+2,2)}'); a(f'v_pk_add_f32 {vr(vd+4,2)}, {vr(vd+4,2)}, {vr(vd+6,2)}')
    a(f'v_pk_add_f32 {vr(vd,2)}, {vr(vd,2)}, {vr(vd+4,2)}'); a(f'v_add_f32 v{vd}, v{vd}, v{vd+1}')
    a(f'v_cvt_pk_bf16_f32 v{vd}, v{vd}, v{vd}')
    a(f'v_and_b32 v{vd}, 0xffff, v{vd}')
    a(f'v_cmp_lt_u32 vcc, 0x7fff, v{vd}')
    a(f'v_xor_b32 v{vd+1}, 0xffff, v{vd}'); a(f'v_or_b32 v{vd+2}, 0x8000, v{vd}')
    a(f'v_cndmask_b32 v{vd}, v{vd+2}, v{vd+1}, vcc')
    a(f'v_mov_b32_dpp v{vd+1}, v{vd} quad_perm:[1,0,3,2] row_mask:0xf bank_mask:0xf')
    a(f's_lshl_b32 s6, {S_P}, 4'); a(f's_add_u32 s6, s6, {WS_KEY}')
    a(f'v_lshlrev_b32 v{vd+2}, 12, v{vcg}'); a(f'v_lshl_add_u32 v{vd+2}, v{vtk}, 1, v{vd+2}'); a(f'v_add_u32 v{vd+2}, s6, v{vd+2}')
    a(f'v_lshl_or_b32 v{vd}, v{vd+1}, 16, v{vd}')
    a('s_mov_b32 exec_lo, 0x55555555'); a('s_mov_b32 exec_hi, 0x55555555')
    a(f'global_store_dword v{vd+2}, v{vd}, {P_WS} sc1')
    a('s_mov_b64 exec, -1')
    a.label('L_s3_nokey')
    stamp('key_stored')
    if cfg.hlate == 1:
        a(f'v_add_u32 v{vt0}, {WS_H}, v{vxo}')
        a(f'global_store_dwordx4 v{vt0}, {vr(vhp,4)}, {P_WS} sc1')
    if cfg.hlate == 2:
        vhk = al('hkeep', 4, 4); vha_ = al('hkaddr')
        for j in range(4): a(f'v_mov_b32 v{vhk+j}, v{vhp+j}')
        a(f'v_add_u32 v{vha_}, {WS_H}, v{vxo}')
    vout = al('outp', 4, 4)
    for j in range(4): a(f'v_mov_b32 v{vout+j}, v{vd+12+j}')
    a(f's_cmp_eq_u32 {S_W8}, 1'); a('s_cbranch_scc0 L_s3_nostat')
    a(f'v_lshrrev_b32 v{vd}, 16, v{vm2}'); a(f'v_and_or_b32 v{vd}, v{vs_}, {S_MASKHI}, v{vd}')
    a(f's_lshl_b32 s6, {S_P}, 5'); a(f's_add_u32 s6, s6, {WS_STAT}')
    a(f'v_lshl_add_u32 v{vd+1}, v{vtk}, 2, s6')
    a('s_mov_b64 exec, 0xff')
    a(f'global_store_dword v{vd+1}, v{vd}, {P_WS} sc1')
    a('s_mov_b64 exec, -1')
    a.label('L_s3_nostat')
    for n in ('y','yoff','wr','d','S','t','rs','s','m2','hf','hp','r','xf','ud','m1'): R.release(n)
    S_ROLE = 's43'
    a(f's_mov_b32 {S_ROLE}, 1')
    a('s_cmp_lt_u32 s2, 56'); a('s_cbranch_scc1 L_f_go')
    a(f's_mov_b32 {S_ROLE}, 2')
    a('s_sub_u32 s7, s2, 64'); a('s_cmp_lt_u32 s7, 32'); a('s_cbranch_scc1 L_f_go')
    a(f's_mov_b32 {S_ROLE}, 0')
    a('s_branch L_f_nokey')
    a.label('L_f_go')
    a.label('L_f_nokey')
    stamp('s3_done')
    def out_store_and_flag(tag):
        if cfg.hlate == 2: a(f'global_store_dwordx4 v{vha_}, {vr(vhk,4)}, {P_WS} sc1')
        a(f'global_store_dwordx4 v{vxo}, {vr(vout,4)}, {P_OUT} sc1')
    def publish_f3b(tag):
        a('s_waitcnt vmcnt(0)')
        a('s_barrier')
        l = lbl('f3b')
        a(f's_cmp_eq_u32 {S_W8}, 2'); a(f's_cbranch_scc0 {l}')
        a(f's_lshl_b32 s6, {S_P}, 4'); a(f's_add_u32 s6, s6, {WS_F3B}')
        a(f'v_lshl_add_u32 v{vt0}, v{vlane}, 12, s6'); a(f'v_mov_b32 v{vt1}, {S_TAG}')
        a('s_mov_b64 exec, 0xff')
        a(f'global_store_dword v{vt0}, v{vt1}, {P_WS} sc1')
        a('s_mov_b64 exec, -1')
        a.label(l)
    a(f's_cmp_eq_u32 {S_ROLE}, 0'); a('s_cbranch_scc0 L_f_roles')
    if cfg.hlate == 2:
        a('s_waitcnt vmcnt(0)'); a('s_barrier')
    out_store_and_flag('n'); publish_f3b('n')
    a('s_branch L_fin')
    a.label('L_f_roles')
    if cfg.stop == 4:
        out_store_and_flag('n'); publish_f3b('n'); a('s_branch L_fin'); return
    a(f's_cmp_ge_u32 {S_W8}, 4'); a('s_cbranch_scc1 L_t_roleB')
    vk = al('k', 8, 4); vko = al('koff'); vm = al('m', 2, 2); vkr = al('kraw', 4, 4); vkb = al('kbase')
    a('s_and_b32 s6, s2, 7'); a('s_lshl_b32 s6, s6, 12'); a(f's_add_u32 s6, s6, {WS_KEY}')
    a(f'v_lshl_add_u32 v{vko}, v0, 4, s6')
    a(f'v_lshlrev_b32 v{vkb}, 3, v0'); a(f'v_sub_u32 v{vkb}, 2047, v{vkb}')
    a(f's_cmp_eq_u32 {S_W8}, 0'); a('s_cbranch_scc0 L_t_nz')
    a(f'v_mov_b32 v{vt0}, 0'); a(f'v_lshlrev_b32 v{vt1}, 2, v{vlane}')
    a(f'ds_write_b32 v{vt1}, v{vt0} offset:{L_CL}')
    a(f'v_mov_b32 v{vt1}, {L_CNT}'); a(f'ds_write_b32 v{vt1}, v{vt0}')
    a.label('L_t_nz')
    if not cfg.nokwait: a('s_waitcnt vmcnt(0)')
    stamp('k_wait')
    poll_loop(lambda: a(f'global_load_dwordx4 {vr(vkr,4)}, v{vko}, {P_WS} sc1'), list(range(vkr, vkr+4)), vm, 'key')
    stamp('keys_got')
    if cfg.active('k_spin'):
        i = len(cfg.stamp_names); cfg.stamp_names.append('k_spin')
        a('s_waitcnt lgkmcnt(0)'); a(f's_mul_i32 s{70+2*i}, {S_SPIN}, 100'); a(f's_add_u32 s{70+2*i}, s{70+2*i}, s70')
    for j in range(4):
        a(f'v_subrev_u32 v{vt0}, {2*j}, v{vkb}'); a(f'v_subrev_u32 v{vt1}, {2*j+1}, v{vkb}')
        a(f'v_lshl_or_b32 v{vk+2*j}, v{vkr+j}, 16, v{vt0}')
        a(f'v_and_or_b32 v{vk+2*j+1}, v{vkr+j}, {S_MASKHI}, v{vt1}')
    a(f'v_max3_u32 v{vm}, v{vk}, v{vk+1}, v{vk+2}'); a(f'v_max3_u32 v{vm+1}, v{vk+3}, v{vk+4}, v{vk+5}')
    a(f'v_max3_u32 v{vm}, v{vm}, v{vk+6}, v{vk+7}'); a(f'v_max_u32 v{vm}, v{vm}, v{vm+1}')
    R.release('kraw'); R.release('kbase')
    out_store_and_flag('a')
    for ror in (1, 2, 4, 8): a(f'v_max_u32_dpp v{vm}, v{vm}, v{vm} row_ror:{ror} row_mask:0xf bank_mask:0xf')
    a(f's_lshl_b32 s6, {S_W8}, 4'); a(f's_add_u32 s6, s6, {L_WM}')
    a(f'v_lshrrev_b32 v{vt0}, 4, v{vlane}'); a(f'v_lshl_add_u32 v{vt0}, v{vt0}, 2, s6')
    a('s_mov_b32 exec_lo, 0x00010001'); a('s_mov_b32 exec_hi, 0x00010001')
    a(f'ds_write_b32 v{vt0}, v{vm}')
    a('s_mov_b64 exec, -1')
    stamp('t8_max')
    vw = al('w8m', 16, 4); vown = al('own'); vrk = al('rk')
    a(f'v_mov_b32 v{vt0}, {L_WM}'); a(f'v_mov_b32 v{vt2}, {L_CNT}')
    a(f'v_and_b32 v{vt1}, 15, v{vlane}'); a(f'v_lshlrev_b32 v{vt1}, 2, v{vt1}'); a(f'v_mov_b32 v{vrk}, 0')
    a('s_waitcnt lgkmcnt(0)')
    a('s_barrier')
    stamp('t8_bar1')
    a(f'ds_read_b32 v{vown}, v{vt1} offset:{L_WM}')
    for q in range(4): a(f'ds_read_b128 {vr(vw+4*q,4)}, v{vt0} offset:{16*q}')
    for q in range(4):
        a(f's_waitcnt lgkmcnt({3-q})' if not cfg.stamps else 's_waitcnt lgkmcnt(0)')
        for j in range(4): a(f'v_cmp_gt_u32 s[{44+2*j}:{45+2*j}], v{vw+4*q+j}, v{vown}')
        for j in range(4): a(f'v_addc_co_u32 v{vrk}, vcc, 0, v{vrk}, s[{44+2*j}:{45+2*j}]')
    a(f'v_cmp_eq_u32 vcc, {cfg.trank}, v{vrk}')
    a('s_ff1_i32_b64 s6, vcc')
    a(f'v_readlane_b32 s7, v{vown}, s6')
    a(f'v_mov_b32 v{vw}, s7')
    for j in range(8): a(f'v_cmp_ge_u32 s[{44+2*j}:{45+2*j}], v{vk+j}, v{vw}')
    a('s_bcnt1_i32_b64 s7, s[44:45]')
    for j in range(1, 8):
        a(f's_bcnt1_i32_b64 s6, s[{44+2*j}:{45+2*j}]'); a('s_add_u32 s7, s7, s6')
    a(f'v_mov_b32 v{vt1}, s7')
    a('s_mov_b64 exec, 1')
    a(f'ds_add_rtn_u32 v{vt3}, v{vt2}, v{vt1}')
    a('s_mov_b64 exec, -1')
    vpos = al('pos', 8)
    a('s_mov_b32 s7, 0')
    for j in range(8):
        a(f'v_mbcnt_lo_u32_b32 v{vpos+j}, s{44+2*j}, 0'); a(f'v_mbcnt_hi_u32_b32 v{vpos+j}, s{45+2*j}, v{vpos+j}')
        if j: a(f'v_add_u32 v{vpos+j}, s7, v{vpos+j}')
        if j < 7:
            a(f's_bcnt1_i32_b64 s6, s[{44+2*j}:{45+2*j}]'); a('s_add_u32 s7, s7, s6')
    a('s_waitcnt lgkmcnt(0)')
    a(f'v_readfirstlane_b32 s7, v{vt3}')
    stamp('t8_atom')
    for j in range(8):
        a(f'v_add_u32 v{vpos+j}, s7, v{vpos+j}')
        a(f'v_min_u32 v{vpos+j}, 64, v{vpos+j}')
        a(f'v_lshlrev_b32 v{vpos+j}, 2, v{vpos+j}')
    for j in range(8):
        a(f's_mov_b64 exec, s[{44+2*j}:{45+2*j}]')
        a(f'ds_write_b32 v{vpos+j}, v{vk+j} offset:{L_CL}')
    a('s_mov_b64 exec, -1')
    vc = al('cand'); vrank = al('rank'); vall = al('call', 64, 4)
    a(f'v_lshlrev_b32 v{vt2}, 2, v{vlane}'); a(f'v_mov_b32 v{vt0}, {L_CL}'); a(f'v_mov_b32 v{vrank}, 0'); a(f'v_mov_b32 v{vt3}, {L_CNT}')
    a('s_waitcnt lgkmcnt(0)')
    a('s_barrier')
    stamp('t8_bar2')
    a(f's_cmp_eq_u32 {S_W8}, 0'); a('s_cbranch_scc0 L_t_norank')
    a(f'v_and_b32 v{vt2}, 15, v{vlane}'); a(f'v_lshlrev_b32 v{vt2}, 2, v{vt2}')
    a(f'v_lshrrev_b32 v{vw}, 4, v{vlane}'); a(f'v_lshlrev_b32 v{vw}, 4, v{vw}')
    a(f'ds_read_b32 v{vt1}, v{vt3}')
    a(f'ds_read_b32 v{vc}, v{vt2} offset:{L_CL}')
    a(f'ds_read_b128 {vr(vall,4)}, v{vw} offset:{L_CL}')
    a('s_waitcnt lgkmcnt(0)')
    a(f'v_readfirstlane_b32 s44, v{vt1}')
    for j in range(4): a(f'v_cmp_gt_u32 s[{46+2*j}:{47+2*j}], v{vall+j}, v{vc}')
    for j in range(4): a(f'v_addc_co_u32 v{vrank}, vcc, 0, v{vrank}, s[{46+2*j}:{47+2*j}]')
    for sw in ('16', '32'):
        a(f'v_mov_b32 v{vt1}, v{vrank}'); a(f'v_permlane{sw}_swap_b32 v{vt1}, v{vrank}'); a(f'v_add_u32 v{vrank}, v{vrank}, v{vt1}')
    a('s_cmp_le_u32 s44, 16'); a('s_cbranch_scc0 L_t_n32')
    a('s_mov_b64 exec, 0xffff')
    a(f'v_lshlrev_b32 v{vt0}, 2, v{vrank}')
    a(f'v_cmp_gt_u32 vcc, 8, v{vrank}')
    a('s_and_b64 exec, exec, vcc')
    a(f'ds_write_b32 v{vt0}, v{vc} offset:{L_SEL}')
    a('s_mov_b64 exec, -1')
    a('s_branch L_t_norank')
    a.label('L_t_n32')
    a(f'v_mov_b32 v{vrank}, 0')
    a(f'v_and_b32 v{vt2}, 31, v{vlane}'); a(f'v_lshlrev_b32 v{vt2}, 2, v{vt2}')
    a(f'v_lshrrev_b32 v{vw}, 5, v{vlane}'); a(f'v_lshlrev_b32 v{vw}, 6, v{vw}')
    a(f'ds_read_b32 v{vt1}, v{vt3}')
    a(f'ds_read_b32 v{vc}, v{vt2} offset:{L_CL}')
    for q in range(4): a(f'ds_read_b128 {vr(vall+4*q,4)}, v{vw} offset:{L_CL + 16*q}')
    a('s_waitcnt lgkmcnt(0)')
    a(f'v_readfirstlane_b32 s44, v{vt1}')
    def rank_group(base):
        for j in range(4): a(f'v_cmp_gt_u32 s[{46+2*j}:{47+2*j}], v{base+j}, v{vc}')
        for j in range(4): a(f'v_addc_co_u32 v{vrank}, vcc, 0, v{vrank}, s[{46+2*j}:{47+2*j}]')
    for q in range(4): rank_group(vall + 4*q)
    a(f'v_mov_b32 v{vt1}, v{vrank}'); a(f'v_permlane32_swap_b32 v{vt1}, v{vrank}'); a(f'v_add_u32 v{vrank}, v{vrank}, v{vt1}')
    a('s_cmp_le_u32 s44, 32'); a('s_cbranch_scc0 L_t_slow')
    a('s_mov_b32 exec_hi, 0')
    a(f'v_lshlrev_b32 v{vt0}, 2, v{vrank}')
    a(f'v_cmp_gt_u32 vcc, 8, v{vrank}')
    a('s_and_b64 exec, exec, vcc')
    a(f'ds_write_b32 v{vt0}, v{vc} offset:{L_SEL}')
    a('s_mov_b64 exec, -1')
    a('s_branch L_t_norank')
    a.label('L_t_slow')
    a('s_cmp_gt_u32 s44, 64'); a('s_cbranch_scc1 L_f_fallback')
    a(f'v_lshlrev_b32 v{vt2}, 2, v{vlane}'); a(f'v_mov_b32 v{vrank}, 0')
    a(f'ds_read_b32 v{vc}, v{vt2} offset:{L_CL}')
    for q in range(16): a(f'ds_read_b128 {vr(vall+4*q,4)}, v{vt0} offset:{16*q}')
    for q in range(16):
        if q >= 8:
            a(f's_cmp_le_u32 s44, {4*q}'); a('s_cbranch_scc1 L_f_rankd')
        a(f's_waitcnt lgkmcnt({min(15, 15-q)})')
        rank_group(vall + 4*q)
    a.label('L_f_rankd')
    a('s_nop 0')
    stamp('t8_rank')
    a(f'v_lshlrev_b32 v{vt0}, 2, v{vrank}')
    a(f'v_cmp_gt_u32 vcc, 8, v{vrank}')
    a('s_and_saveexec_b64 s[38:39], vcc')
    a(f'ds_write_b32 v{vt0}, v{vc} offset:{L_SEL}')
    a('s_mov_b64 exec, -1')
    a('s_branch L_t_norank')
    a.label('L_f_fallback')
    a('s_waitcnt lgkmcnt(0)')
    a('s_and_b32 s6, s2, 7'); a('s_lshl_b32 s6, s6, 12'); a(f's_add_u32 s6, s6, {WS_KEY}')
    a(f'v_lshl_add_u32 v{vt0}, v{vlane}, 6, s6')
    for q in range(4): a(f'global_load_dwordx4 {vr(vall+32+4*q,4)}, v{vt0}, {P_WS} offset:{16*q} sc1')
    a(f'v_lshlrev_b32 v{vt2}, 5, v{vlane}'); a(f'v_sub_u32 v{vt2}, 2047, v{vt2}')
    a('s_waitcnt vmcnt(0)')
    for q in range(16):
        a(f'v_subrev_u32 v{vt0}, {2*q}, v{vt2}'); a(f'v_subrev_u32 v{vt1}, {2*q+1}, v{vt2}')
        a(f'v_lshl_or_b32 v{vall+2*q}, v{vall+32+q}, 16, v{vt0}')
        a(f'v_and_or_b32 v{vall+2*q+1}, v{vall+32+q}, {S_MASKHI}, v{vt1}')
    a('s_mov_b32 s44, 0')
    a.label('L_f_fb')
    a(f'v_max_u32 v{vm}, v{vall}, v{vall+1}')
    for q in range(2, 32, 2): a(f'v_max3_u32 v{vm}, v{vm}, v{vall+q}, v{vall+q+1}')
    xlane1(vm, vm+1, 'max_u32', full=True)
    for q in range(32):
        a(f'v_cmp_ne_u32 vcc, v{vall+q}, v{vm}'); a(f'v_cndmask_b32 v{vall+q}, 0, v{vall+q}, vcc')
    a('s_lshl_b32 s6, s44, 2'); a(f's_add_u32 s6, s6, {L_SEL}'); a(f'v_mov_b32 v{vt0}, s6')
    a('s_mov_b64 exec, 1'); a(f'ds_write_b32 v{vt0}, v{vm}'); a('s_mov_b64 exec, -1')
    a('s_add_u32 s44, s44, 1'); a('s_cmp_lt_u32 s44, 8'); a('s_cbranch_scc1 L_f_fb')
    a.label('L_t_norank')
    a('s_waitcnt lgkmcnt(0)')
    a('s_barrier')
    a('s_branch L_t_join')
    a.label('L_t_roleB')
    out_store_and_flag('b')
    if not cfg.dmac: gen_dma(a, R, cfg, env)
    a('s_barrier')
    a('s_barrier')
    a('s_barrier')
    a.label('L_t_join')
    for n in ('k','koff','m','w8m','own','rk','cand','rank','call','pos'): R.release(n)
    vsel = al('sel'); vidx = al('idx')
    a(f'v_lshlrev_b32 v{vt0}, 2, v{vtk}')
    a(f'ds_read_b32 v{vsel}, v{vt0} offset:{L_SEL}')
    vB = al('B', 32, 4); vba = al('ba')
    a(f'v_lshrrev_b32 v{vt0}, 4, v{vlane}'); a(f'v_lshlrev_b32 v{vt0}, 3, v{vt0}')
    a(f'v_bfe_u32 v{vt1}, v{vlane}, 2, 2'); a(f'v_add_u32 v{vt0}, v{vt0}, v{vt1}')
    a(f'v_and_b32 v{vt1}, 3, v{vlane}')
    a('s_waitcnt lgkmcnt(0)')
    a(f'v_and_b32 v{vidx}, 0xffff, v{vsel}'); a(f'v_sub_u32 v{vidx}, 2047, v{vidx}')
    stamp('top8')
    def bfrags(role):
        if role == 1:
            a(f'v_lshlrev_b32 v{vba}, 6, v{vbrow}'); a(f'v_lshl_add_u32 v{vba}, v{vbcol}, 3, v{vba}')
            a(f's_lshl_b32 s6, {S_W8}, 12'); a(f's_add_u32 s6, s6, {L_BIG}')
            a(f'v_add_u32 v{vba}, s6, v{vba}')
            for kk in range(2):
                for nt in range(4):
                    off = kk*2048 + (nt>>1)*32768 + (nt&1)*32
                    d = vB + 4*(kk*4+nt)
                    a(f'ds_read_b64_tr_b16 {vr(d,2)}, v{vba} offset:{off}')
                    a(f'ds_read_b64_tr_b16 {vr(d+2,2)}, v{vba} offset:{off + 4*64}')
        else:
            a(f'v_lshlrev_b32 v{vba}, 5, v{vbrow}'); a(f'v_lshl_add_u32 v{vba}, v{vbcol}, 3, v{vba}')
            a(f's_mul_i32 s6, {S_W8}, {7*32*32}'); a(f's_add_u32 s6, s6, {L_BIG}')
            a(f'v_add_u32 v{vba}, s6, v{vba}')
            for kk in range(7):
                d = vB + 4*kk
                a(f'ds_read_b64_tr_b16 {vr(d,2)}, v{vba} offset:{kk*1024}')
                a(f'ds_read_b64_tr_b16 {vr(d+2,2)}, v{vba} offset:{kk*1024 + 4*32}')
    vbrow = al('brow'); vbcol = al('bcol')
    a(f'v_mov_b32 v{vbrow}, v{vt0}'); a(f'v_mov_b32 v{vbcol}, v{vt1}')
    stamp('f3_ok')
    vst = al('stat'); vm2 = al('m2', 2, 2); vrs = al('rs', 2, 2)
    vsto = al('stato')
    a(f'v_lshlrev_b32 v{vsto}, 2, v{vidx}'); a(f'v_add_u32 v{vsto}, {WS_STAT}, v{vsto}')
    a(f's_cmp_eq_u32 {S_ROLE}, 1'); a('s_cbranch_scc0 L_f2')
    vh = al('h', 8, 4); vd = al('d', 8, 4); vhf = al('hf', 8, 2); vA = al('A', 8, 4); acc = al('acc', 16, 4)
    a(f'v_lshrrev_b32 v{vt0}, 4, v{vlane}'); a(f'v_lshlrev_b32 v{vt0}, 4, v{vt0}')
    a(f'v_lshl_add_u32 v{vt0}, v{vidx}, 10, v{vt0}')
    a(f's_lshl_b32 s6, {S_W8}, 7'); a(f's_add_u32 s6, s6, {WS_H}')
    vhoff = al('hoff')
    a(f'v_add_u32 v{vhoff}, s6, v{vt0}')
    def issue_h():
        a(f'global_load_dword v{vst}, v{vsto}, {P_WS} sc1')
        a(f'global_load_dwordx4 {vr(vh,4)}, v{vhoff}, {P_WS} sc1')
        a(f'global_load_dwordx4 {vr(vh+4,4)}, v{vhoff}, {P_WS} offset:64 sc1')
    issue_h()
    a('s_waitcnt vmcnt(3)')
    a('s_barrier')
    stamp('t4')
    bfrags(1)
    poll_loop(issue_h, [vst] + list(range(vh, vh+8)), vt1, 'h', first_issued=True)
    R.release('hoff')
    stamp('h_got')
    a(f'v_lshlrev_b32 v{vm2}, 16, v{vst}'); a(f'v_and_b32 v{vt1}, {S_MASKHI}, v{vst}'); a(f'v_rcp_f32 v{vrs}, v{vt1}')
    vd2 = al('d2', 8, 2); vhf2 = al('hf2', 8, 2)
    prs = ((vhf, vd), (vhf2, vd2))
    for kk, (hf, dd) in enumerate(prs): unpack8(hf, vh+4*kk)
    for kk, (hf, dd) in enumerate(prs):
        for j in range(4): a(f'v_pk_add_f32 {vr(dd+2*j,2)}, {vr(hf+2*j,2)}, {vr(vm2,2)} op_sel_hi:[1,0] neg_lo:[0,1] neg_hi:[0,1]')
    for kk, (hf, dd) in enumerate(prs): cvt4(vA+4*kk, dd)
    for kk, (hf, dd) in enumerate(prs): unpack8(dd, vA+4*kk)
    for kk, (hf, dd) in enumerate(prs):
        for j in range(4): a(f'v_pk_mul_f32 {vr(dd+2*j,2)}, {vr(dd+2*j,2)}, {vr(vrs,2)} op_sel_hi:[1,0]')
    for kk, (hf, dd) in enumerate(prs): cvt4(vA+4*kk, dd)
    R.release('d2'); R.release('hf2')
    a(f's_lshl_b32 s6, {S_W8}, 11'); a(f's_add_u32 s6, s6, {L_PX}')
    a(f'v_lshl_add_u32 v{vt0}, v{vlane}, 4, s6')
    a('s_waitcnt lgkmcnt(0)')
    stamp('f1_norm')
    for kk in range(2):
        for nt in range(4):
            a(f'v_mfma_f32_16x16x32_bf16 {vr(acc+4*nt,4)}, {vr(vA+4*kk,4)}, {vr(vB+4*(kk*4+nt),4)}, {"0" if kk == 0 else vr(acc+4*nt,4)}')
    stamp('f1_mfma')
    a('s_mov_b32 exec_hi, 0')
    for nt in range(4): a(f'ds_write_b128 v{vt0}, {vr(acc+4*nt,4)} offset:{nt*512}')
    a('s_mov_b32 exec_hi, -1')
    gp = al('gp', 16, 4)
    a(f's_lshr_b32 s6, {S_W8}, 1'); a('s_lshl_b32 s6, s6, 9'); a(f's_and_b32 s7, {S_W8}, 1'); a('s_lshl_b32 s7, s7, 8')
    a('s_add_u32 s6, s6, s7'); a(f's_add_u32 s6, s6, {L_PX}')
    a(f'v_lshl_add_u32 v{vt2}, v{vlane}, 2, s6')
    a('s_waitcnt lgkmcnt(0)')
    a('s_barrier')
    stamp('f1_bar')
    a(f's_cmp_eq_u32 {S_W8}, 5'); a('s_cbranch_scc0 L_f1_nof3b')
    a(f's_lshl_b32 s6, {S_P}, 4'); a(f's_add_u32 s6, s6, {WS_F3B}')
    a(f'v_lshl_add_u32 v{vt0}, v{vlane}, 12, s6'); a(f'v_mov_b32 v{vt1}, {S_TAG}')
    a('s_mov_b64 exec, 0xff')
    a(f'global_store_dword v{vt0}, v{vt1}, {P_WS} sc1')
    a('s_mov_b64 exec, -1')
    a.label('L_f1_nof3b')
    a(f's_cmp_ge_u32 {S_W8}, 4'); a('s_cbranch_scc1 L_fin')
    for w in range(0, 8, 2): a(f'ds_read2st64_b32 {vr(gp+w,2)}, v{vt2} offset0:{w*8} offset1:{(w+1)*8}')
    for w in range(0, 8, 2): a(f'ds_read2st64_b32 {vr(gp+8+w,2)}, v{vt2} offset0:{w*8+4} offset1:{(w+1)*8+4}')
    vsa1 = al('hsa')
    a(f'v_and_b32 v{vsa1}, 3, v{vlane}'); a(f'v_lshlrev_b32 v{vsa1}, 5, v{vsa1}')
    a(f'v_lshrrev_b32 v{vt0}, 2, v{vlane}'); a(f'v_lshl_add_u32 v{vsa1}, v{vt0}, 1, v{vsa1}')
    a(f's_lshl_b32 s6, {S_W8}, 7'); a(f's_lshl_b32 s7, {g["S_FC"]}, 9'); a('s_add_u32 s6, s6, s7'); a(f's_add_u32 s6, s6, {WS_HID}')
    a(f'v_add_u32 v{vsa1}, s6, v{vsa1}')
    a('s_waitcnt lgkmcnt(4)' if not cfg.stamps else 's_waitcnt lgkmcnt(0)')
    for (x, y) in ((0,1),(2,3),(4,5),(6,7),(0,2),(4,6),(0,4)): a(f'v_add_f32 v{gp+x}, v{gp+x}, v{gp+y}')
    a('s_waitcnt lgkmcnt(0)')
    for (x, y) in ((0,1),(2,3),(4,5),(6,7),(0,2),(4,6),(0,4)): a(f'v_add_f32 v{gp+8+x}, v{gp+8+x}, v{gp+8+y}')
    stamp('f1_red')
    a(f'v_cvt_pk_bf16_f32 v{gp+1}, v{gp}, v{gp+8}')
    a(f'v_lshlrev_b32 v{gp}, 16, v{gp+1}')
    a(f'v_and_b32 v{gp+8}, {S_MASKHI}, v{gp+1}')
    a(f'v_mul_f32 v{gp+2}, {hx(f2u(-1.4426950408889634))}, v{gp}')
    a(f'v_exp_f32 v{gp+2}, v{gp+2}')
    a(f'v_add_f32 v{gp+2}, 1.0, v{gp+2}')
    a(f'v_rcp_f32 v{gp+2}, v{gp+2}')
    a(f'v_mul_f32 v{gp}, v{gp}, v{gp+2}')
    a(f'v_cvt_pk_bf16_f32 v{gp}, v{gp}, v{gp}')
    a(f'v_lshlrev_b32 v{gp}, 16, v{gp}')
    a(f'v_mul_f32 v{gp}, v{gp}, v{gp+8}')
    a(f'v_mov_b32_dpp v{gp+1}, v{gp} row_shl:4 row_mask:0xf bank_mask:0xf')
    a(f'v_cvt_pk_bf16_f32 v{gp}, v{gp}, v{gp+1}')
    stamp('f1_silu')
    a('s_mov_b32 exec_lo, 0x0f0f0f0f'); a('s_mov_b32 exec_hi, 0x0f0f0f0f')
    for rep in range(RH):
        a(f'global_store_dword v{vsa1}, v{gp}, {P_WS} sc1')
        if rep < RH - 1: a(f'v_add_u32 v{vsa1}, {HID_SZ}, v{vsa1}')
    a('s_mov_b64 exec, -1')
    stamp('hid_stored')
    R.release('hsa')
    a('s_branch L_fin')
    for n in ('h','d','hf','A','acc','gp'): R.release(n)
    a.label('L_f2')
    vA = al('A2', 28, 4); vho = al('ho'); acc = al('acc2', 4, 4); vhv = al('hv'); vst2 = al('st2'); vsel2 = al('sel2'); vix2 = al('ix2')
    a(f'v_lshrrev_b32 v{vt0}, 4, v0'); a(f'v_and_b32 v{vt0}, 7, v{vt0}'); a(f'v_lshlrev_b32 v{vt0}, 2, v{vt0}')
    a(f'ds_read_b32 v{vsel2}, v{vt0} offset:{L_SEL}')
    a('s_waitcnt lgkmcnt(0)')
    a(f'v_and_b32 v{vix2}, 0xffff, v{vsel2}'); a(f'v_sub_u32 v{vix2}, 2047, v{vix2}')
    a(f's_lshl_b32 s7, {g["S_FC"]}, 5')
    a(f'v_and_b32 v{vt0}, 15, v{vlane}'); a(f'v_lshlrev_b32 v{vt0}, 1, v{vt0}')
    a(f'v_lshl_add_u32 v{vho}, v{vix2}, 10, v{vt0}'); a(f'v_add_u32 v{vho}, s7, v{vho}')
    vha = al('ha'); vsa = al('sa')
    a(f'v_and_b32 v{vha}, 0xfffffffc, v{vho}'); a(f'v_add_u32 v{vha}, {WS_H}, v{vha}')
    a(f'v_lshlrev_b32 v{vsa}, 2, v{vix2}'); a(f'v_add_u32 v{vsa}, {WS_STAT}, v{vsa}')
    def issue_h2():
        a(f'global_load_dword v{vhv}, v{vha}, {P_WS} sc1')
        a(f'global_load_dword v{vst2}, v{vsa}, {P_WS} sc1')
    poll_loop(issue_h2, [vhv, vst2], vt0, 'h2')
    a(f'v_and_b32 v{vt0}, 1, v{vlane}'); a(f'v_cmp_eq_u32 vcc, 1, v{vt0}')
    a(f'v_lshrrev_b32 v{vt0}, 16, v{vhv}'); a(f'v_and_b32 v{vhv}, 0xffff, v{vhv}')
    a(f'v_cndmask_b32 v{vhv}, v{vhv}, v{vt0}, vcc')
    R.release('ha'); R.release('sa')
    publish_f3b('f2')
    bfrags(2)
    vf3b = al('f3b'); vf3bo = al('f3bo')
    a('s_and_b32 s6, s2, 7'); a('s_lshl_b32 s6, s6, 12'); a(f's_add_u32 s6, s6, {WS_F3B}')
    a(f'v_lshrrev_b32 v{vf3bo}, 3, v{vidx}'); a(f'v_lshl_add_u32 v{vf3bo}, v{vf3bo}, 4, s6')
    vrsig = al('rsig'); vxn = al('xn')
    a(f'v_lshrrev_b32 v{vt0}, 16, v{vsel2}')
    a(f'v_cmp_lt_u32 vcc, 0x7fff, v{vt0}')
    a(f'v_and_b32 v{vt2}, 0x7fff, v{vt0}'); a(f'v_xor_b32 v{vt3}, 0xffff, v{vt0}')
    a(f'v_cndmask_b32 v{vt0}, v{vt3}, v{vt2}, vcc'); a(f'v_lshlrev_b32 v{vt0}, 16, v{vt0}')
    a(f'v_mul_f32 v{vt0}, {hx(f2u(-1.4426950408889634))}, v{vt0}')
    a(f'v_exp_f32 v{vt0}, v{vt0}'); a(f'v_add_f32 v{vt0}, 1.0, v{vt0}'); a(f'v_rcp_f32 v{vt0}, v{vt0}')
    a(f'v_cvt_pk_bf16_f32 v{vt0}, v{vt0}, v{vt0}'); a(f'v_lshlrev_b32 v{vrsig}, 16, v{vt0}')
    a(f'v_lshlrev_b32 v{vhv}, 16, v{vhv}')
    a(f'v_lshlrev_b32 v{vt2}, 16, v{vst2}'); a(f'v_and_b32 v{vt3}, {S_MASKHI}, v{vst2}'); a(f'v_rcp_f32 v{vt3}, v{vt3}')
    a(f'v_sub_f32 v{vt2}, v{vhv}, v{vt2}'); a(f'v_cvt_pk_bf16_f32 v{vt2}, v{vt2}, v{vt2}'); a(f'v_lshlrev_b32 v{vt2}, 16, v{vt2}')
    a(f'v_mul_f32 v{vt2}, v{vt2}, v{vt3}'); a(f'v_cvt_pk_bf16_f32 v{vt2}, v{vt2}, v{vt2}'); a(f'v_lshlrev_b32 v{vxn}, 16, v{vt2}')
    vhi = al('hio'); vpw = al('pw'); vpr = al('pr')
    a('s_and_b32 s6, s2, 3'); a(f's_mul_i32 s6, s6, {HID_SZ}'); a(f's_mul_i32 s7, {S_W8}, {7*512}'); a('s_add_u32 s6, s6, s7'); a(f's_add_u32 s6, s6, {WS_HID}')
    a(f'v_lshrrev_b32 v{vt0}, 5, v{vlane}'); a(f'v_lshlrev_b32 v{vt0}, 8, v{vt0}')
    a(f'v_lshrrev_b32 v{vt1}, 2, v{vtk}'); a(f'v_lshl_add_u32 v{vt0}, v{vt1}, 7, v{vt0}')
    a(f'v_and_b32 v{vt1}, 3, v{vtk}'); a(f'v_lshl_add_u32 v{vt0}, v{vt1}, 5, v{vt0}')
    a(f'v_bfe_u32 v{vt1}, v{vlane}, 4, 1'); a(f'v_lshl_add_u32 v{vt0}, v{vt1}, 4, v{vt0}')
    a(f'v_add_u32 v{vhi}, s6, v{vt0}')
    a(f's_lshl_b32 s6, {S_W8}, 9'); a(f's_add_u32 s6, s6, {L_PX}')
    a(f'v_lshl_add_u32 v{vpw}, v{vlane}, 4, s6')
    a(f'v_lshrrev_b32 v{vt0}, 4, v0')
    a(f'v_lshrrev_b32 v{vt1}, 2, v{vt0}'); a(f'v_lshlrev_b32 v{vt1}, 8, v{vt1}')
    a(f'v_and_b32 v{vt0}, 3, v{vt0}'); a(f'v_lshl_add_u32 v{vt1}, v{vt0}, 2, v{vt1}')
    a(f'v_and_b32 v{vt0}, 15, v{vlane}'); a(f'v_lshl_add_u32 v{vt1}, v{vt0}, 4, v{vt1}')
    a(f'v_add_u32 v{vpr}, {L_PX}, v{vt1}')
    a(f's_cmp_ge_u32 {S_W8}, 2'); a('s_cbranch_scc1 L_f2_nof3b')
    poll_loop(lambda: a(f'global_load_dword v{vf3b}, v{vf3bo}, {P_WS} sc1'), [vf3b], vt0, 'f3b', cmp_tag=True)
    a.label('L_f2_nof3b')
    def issue_hid():
        for kk in range(7): a(f'global_load_dwordx4 {vr(vA+4*kk,4)}, v{vhi}, {P_WS} offset:{kk*512} sc1')
    if cfg.probe: poll_loop(lambda: a(f'global_load_dwordx4 {vr(vA+24,4)}, v{vhi}, {P_WS} offset:{6*512} sc1'), list(range(vA+24, vA+28)), vt0, 'hidp')
    poll_loop(issue_hid, list(range(vA, vA+28)), vt0, 'hid')
    stamp('hid_got')
    acc2 = al('acc2b', 4, 4)
    for kk in range(7):
        d = acc if kk % 2 == 0 else acc2
        a(f'v_mfma_f32_16x16x32_bf16 {vr(d,4)}, {vr(vA+4*kk,4)}, {vr(vB+4*kk,4)}, {"0" if kk < 2 else vr(d,4)}')
    a(f'v_pk_add_f32 {vr(acc,2)}, {vr(acc,2)}, {vr(acc2,2)}'); a(f'v_pk_add_f32 {vr(acc+2,2)}, {vr(acc+2,2)}, {vr(acc2+2,2)}')
    a('s_mov_b32 exec_hi, 0')
    a(f'ds_write_b128 v{vpw}, {vr(acc,4)}')
    a('s_mov_b32 exec_hi, -1')
    a('s_waitcnt lgkmcnt(0)')
    a('s_barrier')
    a(f's_cmp_ge_u32 {S_W8}, 2'); a('s_cbranch_scc1 L_fin')
    fp = al('fp', 8, 4)
    for w in range(0, 8, 2): a(f'ds_read2st64_b32 {vr(fp+w,2)}, v{vpr} offset0:{w*2} offset1:{(w+1)*2}')
    a('s_waitcnt lgkmcnt(0)')
    for (x, y) in ((0,1),(2,3),(4,5),(6,7),(0,2),(4,6),(0,4)): a(f'v_add_f32 v{fp+x}, v{fp+x}, v{fp+y}')
    def rb(r): a(f'v_cvt_pk_bf16_f32 v{r}, v{r}, v{r}'); a(f'v_lshlrev_b32 v{r}, 16, v{r}')
    rb(fp)
    a(f'v_mul_f32 v{fp}, v{fp}, v{vrsig}'); rb(fp)
    a(f'v_add_f32 v{fp}, v{fp}, v{vxn}'); rb(fp)
    a(f'v_add_f32 v{fp}, v{fp}, v{vhv}')
    a(f'v_cvt_pk_bf16_f32 v{fp}, v{fp}, v{fp}')
    a(f'global_store_short v{vho}, v{fp}, {P_OUT} sc1')
    stamp('final')

def finish(a, R, cfg):
    a.label('L_fin')
    if cfg.stamps and cfg.rt == 1:
        n = len(cfg.stamp_names)
        a('s_memrealtime s[68:69]')
        a('s_waitcnt lgkmcnt(0)')
        a('v_mov_b32 v2, 0')
        a('s_mov_b64 exec, 1')
        a('s_not_b32 s70, s70')
        for i in range(n):
            a(f'v_mov_b32 v3, s{70+2*i}')
            a(f'global_atomic_umax v2, v3, s[34:35] offset:{4*i}')
        a('v_mov_b32 v3, s68')
        a(f'global_atomic_umax v2, v3, s[34:35] offset:60')
        a('s_mov_b64 exec, -1')
    elif cfg.stamps:
        n = len(cfg.stamp_names)
        a(f'{cfg.tinstr} s[{70+2*n}:{71+2*n}]') if 71+2*n <= 101 else None
        if 71+2*n <= 101: n += 1; cfg.stamp_names.append('END')
        a('s_waitcnt lgkmcnt(0)')
        a('s_lshl_b32 s6, s2, 3'); a('s_add_u32 s6, s6, s4'); a('s_lshl_b32 s6, s6, 8'); a(f's_add_u32 s6, s6, {WS_DBG + 0x100000}')
        a('v_mov_b32 v2, s6')
        a('s_mov_b64 exec, 1')
        for i in range(n):
            a(f'v_mov_b32 v3, s{70+2*i}')
            a(f'global_store_dword v2, v3, s[36:37] offset:{4*i}')
        a('s_mov_b64 exec, -1')
    a('s_cmp_eq_u32 s2, 0'); a('s_cbranch_scc0 L_end')
    a('s_cmp_eq_u32 s4, 0'); a('s_cbranch_scc0 L_end')
    a(f'v_mov_b32 v2, {WS_EPOCH}'); a('v_mov_b32 v3, s5')
    a('s_mov_b64 exec, 1')
    a('global_store_dword v2, v3, s[36:37]')
    a.label('L_end')
    a('s_endpgm')
    body = a.text()
    nv = 256
    hdr = open('cdna_kernels/' + NAME + '.s.ref').read().split('; Override launch geometry')[0]
    s = hdr
    s += f'; @launch grid=(256,1,1) block=(512,1,1) lds={LDS_TOTAL}\n'
    s += '.amdgcn_target "amdgcn-amd-amdhsa--gfx950"\n.text\n'
    s += f'.globl {NAME}_kernel\n.p2align 8\n.type {NAME}_kernel,@function\n{NAME}_kernel:\n'
    s += body
    s += f'''.section .rodata,"a"
.p2align 6
.amdhsa_kernel {NAME}_kernel
  .amdhsa_next_free_vgpr {nv}
  .amdhsa_next_free_sgpr 102
  .amdhsa_accum_offset {nv}
  .amdhsa_group_segment_fixed_size 0
  .amdhsa_kernarg_size 120
  .amdhsa_user_sgpr_count 2
  .amdhsa_user_sgpr_kernarg_segment_ptr 1
  .amdhsa_system_sgpr_workgroup_id_x 1
.end_amdhsa_kernel
'''
    cfg.maxv = R.maxused
    return s

if __name__ == '__main__':
    cfg = Cfg()
    out = sys.argv[1]
    for arg in sys.argv[2:]:
        k, v = arg.split('=')
        setattr(cfg, k, int(v))
    open(out, 'w').write(gen(cfg))
    import os
    if cfg.stamps: open(out + '.stamps', 'w').write('\n'.join(cfg.stamp_names))
    elif os.path.exists(out + '.stamps'): os.remove(out + '.stamps')
    print('max vgpr', cfg.maxv, 'LDS', LDS_TOTAL)
```

```python
import sys, struct, math
from asmlib import *

NAME = "sequential_preLN__ssm_conv_s4d__moe_arch_mod__prompt"
def f2u(x): return struct.unpack('<I', struct.pack('<f', x))[0]
def f32(x): return struct.unpack('<f', struct.pack('<f', x))[0]
def hx(x): return '0x%08x' % (x & 0xffffffff)

WS_EPOCH = 0x0
WS_F1 = 0x50000; R1 = 8
WS_F3 = 0x8000; R3 = 8
WS_F2 = 0x60000
WS_F3B = 0x58000
WS_KEY = 0x10000; RK = 8
WS_HID = 0x20000; RH = 4; HID_SZ = 56 * 512
WS_MISC = 0x10000
WS_STAT = 0x40000
WS_U = 0x100000
WS_Y = 0x300000
WS_H = 0x500000
WS_DBG = 0x800000
KC_SZ = 4160
L_KC = 0
L_UL = 16640; UL_SZ = 4608
L_TT = 25856; TT_SZ = 1536
L_RED = 28928
L_ST1 = L_RED
L_ST2 = L_RED + 512
L_RP = L_RED + 1024
L_IS = L_RED + 1280
L_WM = L_RED + 1344
L_CNT = L_RED + 1408
L_CL = L_RED + 1536
L_SEL = L_RED + 2048
L_FB = L_RED + 2560
L_D = L_RED + 4096
L_WR = L_RED + 5120
L_STG = L_RED + 6144; STG_SZ = 1536
L_BIG = L_STG + 8 * STG_SZ
FROW = 544
F_SZ = 16 * FROW; G_SZ = 48 * FROW; FG_SZ = F_SZ + G_SZ
L_PX = L_BIG + 2 * FG_SZ
PX_T = 1152; PX_C = 8 * PX_T + 64; PX_H = 2 * PX_C
LDS_TOTAL = L_PX + 2 * PX_H
assert LDS_TOTAL <= 163840, LDS_TOTAL
assert L_BIG % 16 == 0 and L_PX % 16 == 0

SPIN_LIMIT = 1 << 15

class Cfg:
    stop = 99
    dbg = 0
    stamps = 0
    rt = 0
    codepf = 2
    wtouch = 2
    dmac = 0
    dsleep = 0
    hlate = 1
    xbar = 1
    probe = 0
    upipe = 0
    trank = 7
    plain1 = 0
    noclear = 0
    ylate = 2
    prio = 0
    nokwait = 0

def gen(cfg):
    a = Asm()
    R = Regs(2, 255)
    al = R.alloc
    S_P, S_W8, S_TAG = 's3', 's4', 's5'
    P_X, P_LA, P_AI, P_CR, P_CI, P_DT, P_DS = 's[8:9]', 's[10:11]', 's[12:13]', 's[14:15]', 's[16:17]', 's[18:19]', 's[20:21]'
    P_WR, P_WG, P_WU, P_WD, P_OUT, P_DBG, P_WS = 's[24:25]', 's[26:27]', 's[28:29]', 's[30:31]', 's[32:33]', 's[34:35]', 's[36:37]'
    S_SPIN = 's60'
    S_L2E, S_L2ELO, S_I2PI, S_I2PILO, S_EPS, S_MASKHI = 's62', 's63', 's64', 's65', 's66', 's67'
    S_ONE2 = 's68'
    cfg.stamp_names = []
    cfg.tinstr = 's_memrealtime' if cfg.rt else 's_memtime'
    G1 = ['start','kernarg','issued','x_arrived','ln1_prebar','ln1_fin','u_stored','kgen_valu','B_b','B_c','expand','B_d','conv_mfma','B_e','y_stored']
    G2 = ['start','u_stored','B_d','y_stored','y_acked','y_got','key_stored','s3_done','keys_got','top8','f3_ok','h_got','hid_stored','hid_got','final']
    G3 = ['start','keys_got','t8_max','t8_bar1','t8_atom','t8_bar2','t8_rank','top8','h_got','f1_norm','f1_mfma','f1_bar','f1_red','f1_silu','hid_stored']
    G5 = ['start','u_stored','kg_start','kg_anch','kg_ch','kgen_valu','B_b','k_mf','B_c','expand','B_d','c_r0','c_r3','B_e','y_stored']
    G6 = ['start','y_got','s3_h','key_stored','k_wait','keys_got','k_spin','t8_bar1','t8_bar2','top8','t4','h_got','hid_stored','hid_got','final']
    G4 = ['start','y_acked','y_got','s3_tr','s3_h','s3_part','s3_bar1','s3_fin','s3_rp','s3_bar2','key_stored','s3_done','keys_got','hid_got','final']
    sel = {1: G1, 2: G2, 3: G3, 4: G4, 5: G5, 6: G6}.get(cfg.stamps, G1)
    cfg.active = lambda name: cfg.stamps and name in sel
    def stamp(name):
        if not cfg.stamps or name not in sel: return
        i = len(cfg.stamp_names)
        assert 70 + 2 * i + 1 <= 101, 'too many stamps'
        a(f'{cfg.tinstr} s[{70+2*i}:{71+2*i}]')
        cfg.stamp_names.append(name)
    uid = [0]
    def lbl(p):
        uid[0] += 1
        return f'L_{p}_{uid[0]}'
    def if_role_a(else_lbl):
        a(f's_cmp_ge_u32 {S_W8}, 4'); a(f's_cbranch_scc1 {else_lbl}')
    def if_role_b(else_lbl):
        a(f's_cmp_lt_u32 {S_W8}, 4'); a(f's_cbranch_scc1 {else_lbl}')
    def stop_here(n):
        if cfg.stop == n:
            a('s_waitcnt vmcnt(0) lgkmcnt(0)'); a('s_branch L_fin')
            return True
        return False
    def poll_loop(issue, check_regs, tmp, name, first_issued=False, cmp_tag=False):
        l0 = lbl(name); l1 = lbl(name + 'ok')
        a(f's_mov_b32 {S_SPIN}, 0')
        if first_issued:
            lf = lbl(name + 'f'); a(f's_branch {lf}')
        a.label(l0)
        issue()
        if first_issued: a.label(lf)
        a('s_waitcnt vmcnt(0)')
        if cmp_tag:
            a(f'v_xor_b32 v{tmp}, {S_TAG}, v{check_regs[0]}')
            for r in check_regs[1:]:
                a(f'v_xor_b32 v{tmp+1}, {S_TAG}, v{r}'); a(f'v_or_b32 v{tmp}, v{tmp}, v{tmp+1}')
            a(f'v_cmp_ne_u32 vcc, 0, v{tmp}')
        else:
            rs = list(check_regs)
            a(f'v_max_u32 v{tmp}, v{rs[0]}, v{rs[1]}') if len(rs) > 1 else a(f'v_mov_b32 v{tmp}, v{rs[0]}')
            rs = rs[2:]
            while len(rs) >= 2:
                a(f'v_max3_u32 v{tmp}, v{tmp}, v{rs[0]}, v{rs[1]}'); rs = rs[2:]
            if rs: a(f'v_max_u32 v{tmp}, v{tmp}, v{rs[0]}')
            a(f'v_cmp_eq_u32 vcc, -1, v{tmp}')
        a(f's_cbranch_vccz {l1}')
        a('s_mov_b64 exec, vcc')
        a(f's_add_u32 {S_SPIN}, {S_SPIN}, 1')
        a(f's_cmp_lt_u32 {S_SPIN}, {SPIN_LIMIT}')
        a(f's_cbranch_scc1 {l0}')
        a.label(l1)
        a('s_mov_b64 exec, -1')

    a('s_cmp_ge_u32 s2, 256')
    a('s_cbranch_scc1 L_end')
    a('s_load_dwordx16 s[8:23], s[0:1], 0')
    a('s_load_dwordx8 s[24:31], s[0:1], 64')
    a('s_load_dwordx4 s[32:35], s[0:1], 96')
    a('s_load_dwordx2 s[36:37], s[0:1], 112')
    if cfg.stamps:
        for i in range(70, 102): a(f's_mov_b32 s{i}, 0')
    stamp('start')
    vlane = 1
    vt0 = al('t0', 2); vt1 = vt0 + 1
    vt2 = al('t2', 2); vt3 = vt2 + 1
    a(f'v_lshrrev_b32 v{vt0}, 6, v0')
    a(f'v_and_b32 v{vlane}, 63, v0')
    a('s_and_b32 s6, s2, 7'); a('s_lshl_b32 s6, s6, 5'); a('s_lshr_b32 s7, s2, 3'); a(f's_add_u32 {S_P}, s6, s7')
    a(f'v_readfirstlane_b32 {S_W8}, v{vt0}')
    S_FC = 's61'
    a('s_and_b32 s6, s2, 7'); a('s_mul_i32 s7, s6, 7'); a(f's_lshr_b32 {S_FC}, s2, 3'); a(f's_add_u32 s7, s7, {S_FC}')
    a('s_lshl_b32 s6, s6, 2'); a(f's_add_u32 s6, s6, {S_FC}'); a('s_sub_u32 s6, s6, 8')
    a('s_cmp_lt_u32 s2, 56'); a(f's_cselect_b32 {S_FC}, s7, s6')
    vjunk = al('junk'); vja = al('junkaddr')
    vtk = al('tk'); vcg = al('cg')
    a(f'v_and_b32 v{vtk}, 7, v{vlane}')
    a(f'v_lshrrev_b32 v{vcg}, 3, v{vlane}')
    vch = al('choff')
    a(f's_lshl_b32 s6, {S_W8}, 7')
    a(f'v_lshl_add_u32 v{vch}, v{vcg}, 4, s6')
    vrow = al('rowoff')
    a(f's_lshl_b32 s7, {S_P}, 13')
    a(f'v_lshl_add_u32 v{vrow}, v{vtk}, 10, s7')
    vxo = al('xoff')
    a(f'v_add_u32 v{vxo}, v{vrow}, v{vch}')
    vblk = al('blkoff')
    a(f'v_lshl_add_u32 v{vblk}, v0, 4, s7')
    vpo = al('paroff'); vpo2 = al('paroff2'); vdto = al('dtoff')
    a(f's_lshl_b32 s6, {S_P}, 9')
    a(f'v_and_b32 v{vpo}, 255, v0')
    a(f'v_lshl_add_u32 v{vpo}, v{vpo}, 1, s6')
    a(f'v_xor_b32 v{vpo2}, 128, v{vpo}')
    a(f's_lshl_b32 s6, {S_P}, 2')
    a(f'v_bfe_u32 v{vdto}, v0, 7, 1')
    a(f'v_lshl_add_u32 v{vdto}, v{vdto}, 1, s6')
    a(f'v_lshlrev_b32 v{vt0}, 4, v{vlane}')
    vx = al('x', 4, 2); vD = al('D', 4, 2)
    vla = al('la'); vai = al('ai'); vcr = al('cr'); vci = al('ci'); vcr2 = al('cr2'); vci2 = al('ci2'); vldt = al('ldt')
    a('s_waitcnt lgkmcnt(0)')
    stamp('kernarg')
    a(f'global_load_dwordx4 {vr(vx,4)}, v{vxo}, {P_X}')
    a(f's_load_dword {S_TAG}, {P_WS}, {WS_EPOCH}')
    a(f's_cmp_eq_u32 {S_W8}, 6'); a('s_cbranch_scc0 L_s0_n6')
    a(f'global_load_dwordx4 {vr(vD,4)}, v{vt0}, {P_DS}')
    a.label('L_s0_n6')
    a(f's_cmp_eq_u32 {S_W8}, 7'); a('s_cbranch_scc0 L_s0_n7')
    a(f'global_load_dwordx4 {vr(vD,4)}, v{vt0}, {P_WR}')
    a.label('L_s0_n7')
    if cfg.xbar: a('s_barrier')
    vones = al('ones', 4, 2)
    for i in range(4): a(f'v_mov_b32 v{vones+i}, -1')
    a('s_mul_i32 s6, s2, 768'); a(f's_mul_i32 s7, {S_W8}, 96'); a('s_add_u32 s6, s6, s7'); a(f's_add_u32 s6, s6, {WS_MISC}')
    a(f'v_lshl_add_u32 v{vt1}, v{vlane}, 4, s6')
    a(f'v_add_u32 v{vt2}, {WS_U}, v{vblk}')
    a(f'v_add_u32 v{vt3}, {WS_Y}, v{vblk}')
    if cfg.noclear: a('s_mov_b64 exec, 1')
    a(f'global_store_dwordx4 v{vt2}, {vr(vones,4)}, {P_WS} sc1')
    if not cfg.ylate: a(f'global_store_dwordx4 v{vt3}, {vr(vones,4)}, {P_WS} sc1')
    a('s_mov_b64 exec, 0x3f')
    a(f'global_store_dwordx4 v{vt1}, {vr(vones,4)}, {P_WS} sc1')
    a('s_mov_b64 exec, -1')
    if_role_a('L_s0_nopar')
    a(f'global_load_ushort v{vla}, v{vpo}, {P_LA}')
    a(f'global_load_ushort v{vai}, v{vpo}, {P_AI}')
    a(f'global_load_ushort v{vcr}, v{vpo}, {P_CR}')
    a(f'global_load_ushort v{vci}, v{vpo}, {P_CI}')
    a(f'global_load_ushort v{vcr2}, v{vpo2}, {P_CR}')
    a(f'global_load_ushort v{vci2}, v{vpo2}, {P_CI}')
    a(f'global_load_ushort v{vldt}, v{vdto}, {P_DT}')
    a('s_branch L_s0_par')
    a.label('L_s0_nopar')
    a(f's_cmp_ge_u32 {S_W8}, 6'); a('s_cbranch_scc1 L_s0_parB')
    a('s_getpc_b64 s[38:39]')
    a.label('L_pc_here')
    a(f's_sub_u32 s6, {S_W8}, 4'); a('s_lshl_b32 s6, s6, 13')
    a(f'v_lshl_add_u32 v{vja}, v{vlane}, 7, s6')
    a(f'v_min_u32 v{vja}, L_end-L_pc_here, v{vja}')
    a(f'global_load_dword v{vjunk}, v{vja}, s[38:39]')
    a.label('L_s0_parB')
    a(f'global_load_ushort v{vla}, v{vpo}, {P_LA}')
    a(f'global_load_ushort v{vai}, v{vpo}, {P_AI}')
    a(f'global_load_ushort v{vldt}, v{vdto}, {P_DT}')
    a.label('L_s0_par')
    R.release('paroff'); R.release('paroff2'); R.release('dtoff')
    stamp('issued')
    a(f's_mov_b32 {S_L2E}, {hx(f2u(1.4426950408889634))}')
    a(f's_mov_b32 {S_L2ELO}, {hx(f2u(1.4426950408889634 - f32(1.4426950408889634)))}')
    i2pi = 1.0 / (2 * math.pi)
    a(f's_mov_b32 {S_I2PI}, {hx(f2u(i2pi))}')
    a(f's_mov_b32 {S_I2PILO}, {hx(f2u(i2pi - f32(i2pi)))}')
    a(f's_mov_b32 {S_EPS}, {hx(f2u(1e-5))}')
    a(f's_mov_b32 {S_MASKHI}, 0xffff0000')
    a(f's_mov_b32 {S_ONE2}, 0x3f803f80')
    vz = al('z', 4, 2)
    for i in range(4): a(f'v_mov_b32 v{vz+i}, 0')
    a(f's_cmp_eq_u32 {S_W8}, 4'); a('s_cbranch_scc0 L_s0_z1')
    a(f'v_lshlrev_b32 v{vt0}, 4, v{vlane}')
    a(f'v_add_u32 v{vt1}, {UL_SZ - 512}, v{vt0}')
    a(f'v_cmp_gt_u32 vcc, 32, v{vlane}')
    a(f'v_cndmask_b32 v{vt0}, v{vt1}, v{vt0}, vcc')
    a(f'ds_write_b128 v{vt0}, {vr(vz,4)} offset:{L_UL}')
    a.label('L_s0_z1')
    a(f's_cmp_eq_u32 {S_W8}, 5'); a('s_cbranch_scc0 L_s0_z2')
    a(f'v_lshrrev_b32 v{vt0}, 1, v{vlane}')
    a(f'v_mul_u32_u24 v{vt0}, {KC_SZ}, v{vt0}')
    a(f'v_and_b32 v{vt1}, 1, v{vlane}')
    a(f'v_lshl_add_u32 v{vt0}, v{vt1}, 4, v{vt0}')
    a('s_mov_b64 exec, 0xff')
    a(f'ds_write_b128 v{vt0}, {vr(vz,4)} offset:{L_KC + 4096}')
    a('s_mov_b64 exec, -1')
    a.label('L_s0_z2')
    R.release('z')

    vTw = al('Tw'); vTs = al('Ts')
    a(f'v_and_b32 v{vt0}, 15, v{vlane}')
    a(f'v_lshrrev_b32 v{vt1}, 4, v{vlane}')
    a(f's_cmp_ge_u32 {S_W8}, 4'); a('s_cbranch_scc1 L_s0_t2')
    a(f's_bitcmp1_b32 {S_W8}, 0'); a('s_cbranch_scc1 L_s0_t1')
    a(f'v_lshrrev_b32 v{vt2}, 3, v{vt0}'); a(f'v_lshlrev_b32 v{vt2}, 7, v{vt2}')
    a(f'v_and_b32 v{vt3}, 7, v{vt0}'); a(f'v_add_u32 v{vTw}, v{vt2}, v{vt3}')
    a(f'v_mov_b32 v{vTs}, 8')
    a('s_branch L_s0_td')
    a.label('L_s0_t1')
    a(f'v_lshrrev_b32 v{vt2}, 2, v{vt0}'); a(f'v_lshlrev_b32 v{vt2}, 6, v{vt2}')
    a(f'v_and_b32 v{vt3}, 3, v{vt0}'); a(f'v_add_u32 v{vt2}, v{vt2}, v{vt3}'); a(f'v_add_u32 v{vTw}, 256, v{vt2}')
    a(f'v_lshrrev_b32 v{vt2}, 1, v{vt0}'); a(f'v_lshlrev_b32 v{vt2}, 5, v{vt2}')
    a(f'v_and_b32 v{vt3}, 1, v{vt0}'); a(f'v_add_u32 v{vt2}, v{vt2}, v{vt3}'); a(f'v_add_u32 v{vt2}, 256, v{vt2}')
    a(f'v_cmp_gt_u32 vcc, 8, v{vt0}')
    a(f'v_cndmask_b32 v{vTw}, v{vt2}, v{vTw}, vcc')
    a(f'v_mov_b32 v{vt2}, 2'); a(f'v_mov_b32 v{vt3}, 4'); a(f'v_cndmask_b32 v{vTs}, v{vt2}, v{vt3}, vcc')
    a('s_branch L_s0_td')
    a.label('L_s0_t2')
    a(f'v_lshlrev_b32 v{vTw}, 4, v{vt0}'); a(f'v_add_u32 v{vTw}, 512, v{vTw}')
    a(f'v_mov_b32 v{vTs}, 1')
    a.label('L_s0_td')
    a(f'v_lshlrev_b32 v{vt1}, 2, v{vt1}')
    a(f'v_mul_u32_u24 v{vt1}, v{vt1}, v{vTs}')
    a(f'v_add_u32 v{vTw}, v{vTw}, v{vt1}')
    a(f'v_lshlrev_b32 v{vTw}, 1, v{vTw}')
    a(f'v_lshlrev_b32 v{vTs}, 1, v{vTs}')
    S_KC, S_KT = 's40', 's41'
    a(f's_lshr_b32 {S_KC}, {S_W8}, 1'); a(f's_and_b32 {S_KT}, {S_W8}, 1')
    a(f's_sub_u32 s6, {S_W8}, 4')
    a(f's_cmp_ge_u32 {S_W8}, 4'); a(f's_cselect_b32 {S_KC}, s6, {S_KC}'); a(f's_cselect_b32 {S_KT}, 2, {S_KT}')
    a(f's_mul_i32 s6, {S_KC}, {TT_SZ}'); a(f's_add_u32 s6, s6, {L_TT}')
    a(f'v_add_u32 v{vTw}, s6, v{vTw}')
    vaa = al('kaa'); vba = al('kba')
    a(f's_mul_i32 s6, {S_KC}, {FG_SZ}'); a(f's_add_u32 s6, s6, {L_BIG}')
    a(f'v_and_b32 v{vt0}, 15, v{vlane}'); a(f'v_mul_u32_u24 v{vt0}, {FROW}, v{vt0}')
    a(f'v_lshrrev_b32 v{vt1}, 4, v{vlane}'); a(f'v_lshl_add_u32 v{vt0}, v{vt1}, 4, v{vt0}')
    a(f'v_add_u32 v{vaa}, s6, v{vt0}')
    a(f's_mul_i32 s7, {S_KT}, {16*FROW}'); a('s_add_u32 s6, s6, s7'); a(f's_add_u32 s6, s6, {F_SZ}')
    a(f'v_add_u32 v{vba}, s6, v{vt0}')

    vTa = al('Ta', 10, 2); vKw = al('Kw'); vz8 = al('z8')
    vf = al('f1', 12, 2); vfo = al('f1off'); vug = al('ugoff'); vul = al('ulds')
    a(f'v_and_b32 v{vz8}, 255, v0')
    a(f'v_lshlrev_b32 v{vug}, 13, v{vz8}')
    a(f's_lshl_b32 s6, {S_P}, 5'); a(f's_add_u32 s6, s6, {WS_U}')
    a(f'v_add_u32 v{vug}, s6, v{vug}')
    a('s_and_b32 s6, s2, 7'); a('s_lshl_b32 s6, s6, 12'); a(f's_add_u32 s6, s6, {WS_F1}')
    a(f'v_lshl_add_u32 v{vfo}, v{vlane}, 4, s6')
    a(f'v_lshlrev_b32 v{vul}, 4, v{vz8}')
    if_role_a('L_s0_noexp')
    a(f'v_sub_u32 v{vKw}, 255, v{vz8}')
    a(f'v_lshlrev_b32 v{vKw}, 4, v{vKw}')
    a(f'v_lshlrev_b32 v{vz8}, 3, v{vz8}')
    a(f'v_add_u32 v{vz8}, 9, v{vz8}')
    for k in range(10):
        d = vTa + k
        a(f'v_subrev_u32 v{d}, {k}, v{vz8}')
        a(f'v_cvt_f32_u32 v{vt0}, v{d}')
        a(f'v_cvt_pk_bf16_f32 v{vt0}, v{vt0}, v{vt0}')
        a(f'v_and_b32 v{vt0}, 0xffff, v{vt0}')
        a(f'v_subrev_u32 v{vt0}, 17024, v{vt0}')
        a(f'v_min_u32 v{d}, 128, v{d}')
        a(f'v_max_i32 v{d}, v{vt0}, v{d}')
        a(f'v_lshlrev_b32 v{d}, 1, v{d}')
    a.label('L_s0_noexp')
    R.release('z8')

    vEP = al('EP'); vISa = al('ISa'); vYa = al('Ya')
    a(f'v_lshrrev_b32 v{vt0}, 1, v0')
    a(f'v_and_b32 v{vt1}, 1, v0')
    a(f'v_mul_u32_u24 v{vEP}, {PX_C}, v{vt1}')
    a(f'v_lshrrev_b32 v{vt3}, 5, v{vt0}'); a(f'v_mul_u32_u24 v{vt3}, {PX_T}, v{vt3}'); a(f'v_add_u32 v{vEP}, v{vEP}, v{vt3}')
    a(f'v_bfe_u32 v{vt3}, v{vt0}, 1, 4'); a(f'v_lshl_add_u32 v{vEP}, v{vt3}, 4, v{vEP}')
    a(f'v_and_b32 v{vt3}, 1, v{vt0}'); a(f'v_mul_u32_u24 v{vt3}, 640, v{vt3}'); a(f'v_add_u32 v{vEP}, v{vEP}, v{vt3}')
    a(f'v_add_u32 v{vEP}, {L_PX}, v{vEP}')
    a(f'v_lshlrev_b32 v{vISa}, 2, v{vt1}')
    a(f'v_add_u32 v{vYa}, {WS_Y}, v{vblk}')
    vLA = al('LA', 4); vLB = al('LB'); vPW = al('PW')
    if_role_a('L_s0_nocv')
    a(f's_lshr_b32 s6, {S_W8}, 1'); a(f's_and_b32 s7, {S_W8}, 1')
    a(f'v_and_b32 v{vt0}, 15, v{vlane}'); a(f'v_lshrrev_b32 v{vt1}, 4, v{vlane}')
    a(f'v_and_b32 v{vt2}, 1, v{vt0}')
    a(f'v_mul_u32_u24 v{vt3}, {KC_SZ + 2}, v{vt2}')
    a(f'v_lshl_add_u32 v{vt3}, v{vt1}, 4, v{vt3}')
    a(f'v_lshlrev_b32 v{vt2}, 1, v{vt0}')
    a(f'v_sub_u32 v{vt3}, v{vt3}, v{vt2}')
    a(f's_mul_i32 s38, s6, {2*KC_SZ}'); a('s_lshl_b32 s39, s7, 8')
    a('s_sub_u32 s38, s38, s39'); a(f's_add_u32 s38, s38, {L_KC + 4064 - 64*15}')
    a(f'v_add_u32 v{vLA}, s38, v{vt3}')
    for J in range(1, 4): a(f'v_subrev_u32 v{vLA+J}, {1024*J}, v{vLA}')
    a(f'v_lshl_add_u32 v{vt2}, v{vt0}, 1, v{vt1}')
    a(f's_mul_i32 s38, s6, {UL_SZ}'); a('s_sub_u32 s38, s38, s39'); a(f's_add_u32 s38, s38, {L_UL + 480 - 192}')
    a(f'v_lshl_add_u32 v{vLB}, v{vt2}, 4, s38')
    a(f's_mul_i32 s38, s6, {PX_C}'); a(f's_mul_i32 s39, s7, {PX_H}'); a('s_add_u32 s38, s38, s39'); a(f's_add_u32 s38, s38, {L_PX}')
    a(f'v_lshrrev_b32 v{vt0}, 5, v{vlane}'); a(f'v_lshlrev_b32 v{vt0}, 7, v{vt0}')
    a(f'v_lshl_add_u32 v{vt0}, v{vlane}, 4, v{vt0}')
    a(f'v_add_u32 v{vPW}, s38, v{vt0}')
    a.label('L_s0_nocv')

    def unpack8(dst, src):
        for j in range(4):
            a(f'v_lshlrev_b32 v{dst+2*j}, 16, v{src+j}')
            a(f'v_and_b32 v{dst+2*j+1}, {S_MASKHI}, v{src+j}')
    def cvt4(dst, src, kind='bf16'):
        for j in range(4):
            a(f'v_cvt_pk_{kind}_f32 v{dst+j}, v{src+2*j}, v{src+2*j+1}')
    def xlane2(p, t, op='add_f32', pk=True):
        a(f'v_add_f32_dpp v{p}, v{p}, v{p} row_ror:8 row_mask:0xf bank_mask:0xf')
        a(f'v_add_f32_dpp v{p+1}, v{p+1}, v{p+1} row_ror:8 row_mask:0xf bank_mask:0xf')
        for sw in ('16', '32'):
            a(f'v_mov_b32 v{t}, v{p}'); a(f'v_mov_b32 v{t+1}, v{p+1}')
            a(f'v_permlane{sw}_swap_b32 v{t}, v{p}'); a(f'v_permlane{sw}_swap_b32 v{t+1}, v{p+1}')
            a(f'v_pk_add_f32 {vr(p,2)}, {vr(p,2)}, {vr(t,2)}')
    def xlane1(p, t, op, full=False):
        if full:
            for ror in (1, 2, 4):
                a(f'v_{op}_dpp v{p}, v{p}, v{p} row_ror:{ror} row_mask:0xf bank_mask:0xf')
        a(f'v_{op}_dpp v{p}, v{p}, v{p} row_ror:8 row_mask:0xf bank_mask:0xf')
        for sw in ('16', '32'):
            a(f'v_mov_b32 v{t}, v{p}')
            a(f'v_permlane{sw}_swap_b32 v{t}, v{p}')
            a(f'v_{op} v{p}, v{p}, v{t}')
    def ln_stats_partial(pk, S, t, lds_off):
        a(f'v_dot2_f32_bf16 v{S}, v{pk}, {S_ONE2}, 0')
        a(f'v_dot2_f32_bf16 v{S+1}, v{pk}, v{pk}, 0')
        for j in range(1, 4):
            a(f'v_dot2_f32_bf16 v{S}, v{pk+j}, {S_ONE2}, v{S}')
            a(f'v_dot2_f32_bf16 v{S+1}, v{pk+j}, v{pk+j}, v{S+1}')
        a(f's_lshl_b32 s6, {S_W8}, 3')
        xlane2(S, t)
        a(f'v_lshl_add_u32 v{t}, v{vtk}, 6, s6')
        a('s_mov_b64 exec, 0xff')
        a(f'ds_write_b64 v{t}, {vr(S,2)} offset:{lds_off}')
        a('s_mov_b64 exec, -1')
    def ln_finish(xf, d, S, t, lds_off, m, rs, sout):
        a(f'v_lshlrev_b32 v{t}, 6, v{vtk}')
        for j in range(4): a(f'ds_read_b128 {vr(d+4*j,4)}, v{t} offset:{lds_off + 16*j}')
        a('s_waitcnt lgkmcnt(0)')
        for j in (0, 4, 8, 12): a(f'v_pk_add_f32 {vr(d+j,2)}, {vr(d+j,2)}, {vr(d+j+2,2)}')
        a(f'v_pk_add_f32 {vr(d,2)}, {vr(d,2)}, {vr(d+4,2)}')
        a(f'v_pk_add_f32 {vr(d+8,2)}, {vr(d+8,2)}, {vr(d+12,2)}')
        a(f'v_pk_add_f32 {vr(S,2)}, {vr(d,2)}, {vr(d+8,2)}')
        inv = hx(f2u(1.0/512))
        a(f'v_mul_f32 v{S}, {inv}, v{S}')
        a(f'v_mul_f32 v{S+1}, {inv}, v{S+1}')
        a(f'v_fma_f32 v{S+1}, -v{S}, v{S}, v{S+1}')
        a(f'v_max_f32 v{S+1}, 0, v{S+1}')
        a(f'v_cvt_pk_bf16_f32 v{t}, v{S}, v{S+1}')
        a(f'v_lshlrev_b32 v{m}, 16, v{t}')
        a(f'v_and_b32 v{t}, {S_MASKHI}, v{t}')
        a(f'v_add_f32 v{t}, {S_EPS}, v{t}')
        a(f'v_cvt_pk_bf16_f32 v{t}, v{t}, v{t}')
        a(f'v_lshlrev_b32 v{t}, 16, v{t}')
        a(f'v_sqrt_f32 v{t}, v{t}')
        a(f'v_cvt_pk_bf16_f32 v{t}, v{t}, v{t}')
        a(f'v_lshlrev_b32 v{sout}, 16, v{t}')
        a(f'v_rcp_f32 v{rs}, v{sout}')
        normalize(xf, m, rs, d)
    def normalize(xf, m, rs, d):
        for j in range(4):
            a(f'v_pk_add_f32 {vr(d+2*j,2)}, {vr(xf+2*j,2)}, {vr(m,2)} op_sel_hi:[1,0] neg_lo:[0,1] neg_hi:[0,1]')
        cvt4(d+8, d)
        unpack8(d, d+8)
        for j in range(4):
            a(f'v_pk_mul_f32 {vr(d+2*j,2)}, {vr(d+2*j,2)}, {vr(rs,2)} op_sel_hi:[1,0]')
        cvt4(d+8, d)

    vxf = al('xf', 8, 2); vud = al('ud', 8, 2); vm1 = al('m1', 2, 2)
    vd = al('d', 16, 4); vS = al('S', 2, 2); vt = al('t', 2, 2); vrs = al('rs', 2, 2); vs_ = al('s', 2, 2)
    if cfg.wtouch:
        vtw = al('tw')
        a('s_and_b32 s6, s2, 7'); a('s_lshr_b32 s7, s2, 3')
        a('s_mul_i32 s38, s6, 448'); a('s_and_b32 s38, s38, 0xffffff80')
        a(f's_mul_i32 s39, s7, {16*3584}'); a('s_add_u32 s38, s38, s39')
        a(f'v_lshrrev_b32 v{vtw}, 2, v{vlane}'); a(f'v_mul_u32_u24 v{vtw}, 3584, v{vtw}')
        a(f'v_and_b32 v{vt0}, 3, v{vlane}'); a(f'v_lshl_add_u32 v{vtw}, v{vt0}, 7, v{vtw}')
        a(f'v_add_u32 v{vtw}, s38, v{vtw}')
        a(f'v_min_u32 v{vtw}, {512*3584 - 4}, v{vtw}')
        a('s_lshl_b32 s38, s6, 7'); a(f's_mul_i32 s39, s7, {56*1024}'); a('s_add_u32 s38, s38, s39')
        a(f's_and_b32 s39, {S_W8}, 1'); a(f's_mul_i32 s39, s39, {28*1024}'); a('s_add_u32 s38, s38, s39')
        a(f'v_min_u32 v{vt0}, 27, v{vlane}'); a(f'v_lshl_add_u32 v{vt0}, v{vt0}, 10, s38')
        a(f's_cmp_ge_u32 {S_W8}, 2'); a('s_cselect_b64 vcc, -1, 0')
        a(f'v_cndmask_b32 v{vtw}, v{vtw}, v{vt0}, vcc')
        a(f's_cmp_eq_u32 {S_W8}, 1'); a('s_cselect_b32 s44, s28, s26'); a('s_cselect_b32 s45, s29, s27')
        a(f's_cmp_ge_u32 {S_W8}, 2'); a('s_cselect_b32 s44, s30, s44'); a('s_cselect_b32 s45, s31, s45')
    stamp('precomp')
    a(f's_cmp_lt_u32 {S_W8}, 4'); a('s_cbranch_scc1 L_s1_wa')
    a(f's_cmp_lt_u32 {S_W8}, 6'); a('s_cbranch_scc1 L_s1_wb')
    ncl = 2 if cfg.ylate else 3
    a(f's_waitcnt vmcnt({ncl+3})'); a('s_branch L_s1_wd')
    a.label('L_s1_wb'); a(f's_waitcnt vmcnt({ncl+4})'); a('s_branch L_s1_wd')
    a.label('L_s1_wa'); a(f's_waitcnt vmcnt({ncl+7})')
    a.label('L_s1_wd')
    if cfg.prio: a('s_setprio 1')
    stamp('x_arrived')
    if cfg.ylate == 2:
        a(f'global_store_dwordx4 v{vYa}, {vr(vones,4)}, {P_WS} sc1')
    R.release('ones')
    if cfg.wtouch == 1:
        if_role_a('L_tw_done')
        a(f'global_load_dword v{vjunk}, v{vtw}, s[44:45]')
        a.label('L_tw_done')
        R.release('tw')
    ln_stats_partial(vx, vS, vt, L_ST1)
    unpack8(vxf, vx)
    a(f's_cmp_lt_u32 {S_W8}, 6'); a('s_cbranch_scc1 L_s1_nodw')
    a(f's_sub_u32 s6, {S_W8}, 6'); a('s_lshl_b32 s6, s6, 10'); a(f's_add_u32 s6, s6, {L_D}')
    a(f'v_lshl_add_u32 v{vt0}, v{vlane}, 4, s6')
    a(f'ds_write_b128 v{vt0}, {vr(vD,4)}')
    a.label('L_s1_nodw')
    a(f's_cmp_lt_u32 {S_W8}, 4'); a('s_cbranch_scc1 L_s1_ca')
    a(f's_cmp_lt_u32 {S_W8}, 6'); a('s_cbranch_scc1 L_s1_cb')
    y2 = 1 if cfg.ylate == 2 else 0
    a(f's_waitcnt vmcnt({3+y2}) lgkmcnt(0)'); a('s_branch L_s1_cd')
    a.label('L_s1_cb'); a(f's_waitcnt vmcnt({4+y2}) lgkmcnt(0)'); a('s_branch L_s1_cd')
    a.label('L_s1_ca'); a(f's_waitcnt vmcnt({7 + y2 + (1 if cfg.wtouch == 1 else 0)}) lgkmcnt(0)')
    a.label('L_s1_cd')
    stamp('ln1_prebar')
    a('s_barrier')
    a(f's_add_u32 {S_TAG}, {S_TAG}, 1')
    a(f's_cmp_eq_u32 {S_W8}, 4'); a('s_cbranch_scc0 L_s1_nof1')
    a('s_lshl_b32 s7, s2, 4'); a(f's_add_u32 s6, s7, {WS_F1}')
    a(f'v_lshl_add_u32 v{vt0}, v{vlane}, 12, s6')
    a(f'v_mov_b32 v{vt1}, {S_TAG}')
    a('s_mov_b64 exec, 0xff')
    a(f'global_store_dword v{vt0}, v{vt1}, {P_WS} sc1')
    a('s_mov_b64 exec, -1')
    a.label('L_s1_nof1')
    a(f'ds_read_b128 {vr(vD,4)}, v{vch} offset:{L_D}')
    ln_finish(vxf, vd, vS, vt, L_ST1, vm1, vrs, vs_)
    stamp('ln1_fin')
    unpack8(vd, vd+8)
    cvt4(vd+12, vd, 'f16')
    S_STG = 's42'
    a(f's_mul_i32 {S_STG}, {S_W8}, {STG_SZ}'); a(f's_add_u32 {S_STG}, {S_STG}, {L_STG}')
    a(f'v_mul_u32_u24 v{vt0}, 192, v{vtk}')
    a(f'v_lshl_add_u32 v{vt0}, v{vcg}, 4, v{vt0}')
    a(f'v_add_u32 v{vt0}, {S_STG}, v{vt0}')
    a(f'ds_write_b128 v{vt0}, {vr(vd+12,4)}')
    a(f'v_bfe_u32 v{vt1}, v{vlane}, 2, 2')
    a(f'v_mul_u32_u24 v{vt1}, 192, v{vt1}')
    a(f'v_lshrrev_b32 v{vt2}, 4, v{vlane}')
    a(f'v_lshl_add_u32 v{vt1}, v{vt2}, 5, v{vt1}')
    a(f'v_and_b32 v{vt2}, 3, v{vlane}')
    a(f'v_lshl_add_u32 v{vt1}, v{vt2}, 3, v{vt1}')
    a(f'v_add_u32 v{vt1}, {S_STG}, v{vt1}')
    a(f'v_add_u32 v{vt2}, {WS_U}, v{vblk}')
    a('s_waitcnt lgkmcnt(0)')
    a(f'ds_read_b64_tr_b16 {vr(vd+8,2)}, v{vt1}')
    a(f'ds_read_b64_tr_b16 {vr(vd+10,2)}, v{vt1} offset:{4*192}')
    unpack8(vud, vD)
    for j in range(4): a(f'v_pk_mul_f32 {vr(vud+2*j,2)}, {vr(vud+2*j,2)}, {vr(vd+2*j,2)}')
    if cfg.ylate == 2:
        a(f's_cmp_eq_u32 {S_W8}, 4'); a('s_cbranch_scc1 L_s1_ya')
        a('s_waitcnt vmcnt(0) lgkmcnt(0)'); a('s_branch L_s1_yd')
        a.label('L_s1_ya'); a('s_waitcnt vmcnt(1) lgkmcnt(0)')
        a.label('L_s1_yd')
    else:
        a('s_waitcnt lgkmcnt(0)')
    a(f'global_store_dwordx4 v{vt2}, {vr(vd+8,4)}, {P_WS} sc1')
    if cfg.ylate == 1:
        vo3 = al('ones3', 4, 2)
        for i in range(4): a(f'v_mov_b32 v{vo3+i}, -1')
        a(f'global_store_dwordx4 v{vYa}, {vr(vo3,4)}, {P_WS} sc1')
        R.release('ones3')
    if cfg.prio: a('s_setprio 0')
    stamp('u_stored')
    cvt4(vd+12, vud)
    unpack8(vud, vd+12)
    R.release('x'); R.release('D')
    for n in ('d', 'S', 't', 'rs', 's'): R.release(n)
    if stop_here(1): return finish(a, R, cfg)

    a(f's_waitcnt vmcnt({1 + (1 if cfg.wtouch == 1 else 0) + (1 if cfg.ylate == 1 else 0)})')
    stamp('kg_start')
    kt = al('kt', 12, 2)
    def exp_acc(x, t1, t2):
        a(f'v_mul_f32 v{t1}, {S_L2E}, v{x}')
        a(f'v_fma_f32 v{t2}, v{x}, {S_L2E}, -v{t1}')
        a(f'v_fma_f32 v{t2}, v{x}, {S_L2ELO}, v{t2}')
        a(f'v_exp_f32 v{x}, v{t1}')
        a(f'v_mul_f32 v{t2}, {hx(f2u(math.log(2)))}, v{t2}')
        a(f'v_fma_f32 v{x}, v{x}, v{t2}, v{x}')
    for r in (vla, vai, vldt): a(f'v_lshlrev_b32 v{r}, 16, v{r}')
    exp_acc(vldt, kt, kt+1); exp_acc(vla, kt+2, kt+3)
    a(f'v_cvt_pk_bf16_f32 v{kt}, v{vldt}, v{vla}')
    vdt = vldt; vAr = vla
    a(f'v_lshlrev_b32 v{vdt}, 16, v{kt}')
    a(f'v_and_b32 v{vAr}, {S_MASKHI}, v{kt}')
    val_ = al('al'); vfh = al('fh'); vfl = al('fl'); v2dt = al('2dt')
    a(f'v_mul_f32 v{val_}, v{vAr}, v{vdt}')
    a(f'v_mul_f32 v{kt}, v{vai}, v{vdt}')
    a(f'v_mul_f32 v{val_}, {S_L2E}, v{val_}')
    a(f'v_mul_f32 v{vfh}, {S_I2PI}, v{kt}')
    a(f'v_fma_f32 v{vfl}, v{kt}, {S_I2PI}, -v{vfh}')
    a(f'v_fma_f32 v{vfl}, v{kt}, {S_I2PILO}, v{vfl}')
    def anchor(E, p):
        a(f'v_mul_f32 v{kt}, {hx(f2u(-float(p)))}, v{val_}')
        a(f'v_mul_f32 v{kt+1}, {hx(f2u(float(p)))}, v{vfh}')
        a(f'v_exp_f32 v{kt}, v{kt}')
        a(f'v_fract_f32 v{kt+1}, v{kt+1}')
        a(f'v_mov_b32 v{kt+2}, {hx(f2u(float(p)))}')
        a(f'v_fma_f32 v{kt+1}, v{vfl}, v{kt+2}, v{kt+1}')
        a(f'v_cos_f32 v{E}, v{kt+1}')
        a(f'v_sin_f32 v{E+1}, v{kt+1}')
        a(f'v_pk_mul_f32 {vr(E,2)}, {vr(E,2)}, {vr(kt,2)} op_sel_hi:[1,0]')
    def cmul(d, x, y):
        a(f'v_pk_mul_f32 {vr(d,2)}, {vr(x,2)}, {vr(y,2)} op_sel:[0,0] op_sel_hi:[0,1]')
        a(f'v_pk_fma_f32 {vr(d,2)}, {vr(x,2)}, {vr(y,2)}, {vr(d,2)} op_sel:[1,1,0] op_sel_hi:[1,0,1] neg_lo:[1,0,0]')
    XOF = 20000
    a(f's_bfe_u32 s6, {S_W8}, 0x10001'); a(f's_mul_i32 s6, s6, {FG_SZ}'); a(f's_add_u32 s6, s6, {L_BIG - XOF}')
    a(f's_and_b32 s7, {S_W8}, 1'); a('s_lshl_b32 s7, s7, 8'); a('s_add_u32 s6, s6, s7')
    a('s_mov_b32 m0, s6')
    cv = [kt+8, kt+9, kt+10, kt+11]; cvi = [0]
    def put(row, val, isG):
        t = cv[cvi[0] % 4]; cvi[0] += 1
        if isG:
            a(f'v_cvt_pk_f16_f32 v{t}, v{val}, -v{val+1}')
            a(f'ds_write_addtid_b32 v{t} offset:{XOF + F_SZ + row*FROW}')
        else:
            a(f'v_cvt_pk_f16_f32 v{t}, v{val}, v{val+1}')
            a(f'ds_write_addtid_b32 v{t} offset:{XOF + row*FROW}')
    E1 = al('E1', 2, 2); E8 = al('E8', 2, 2); E128 = al('E128', 2, 2)
    Fa = al('Fa', 2, 2); Fb = al('Fb', 2, 2); Ha = al('Ha', 2, 2); Hb = al('Hb', 2, 2)
    O = [None] + [al(f'O{i}', 2, 2) for i in range(1, 8)]
    Gt = [al('Gt0', 2, 2), al('Gt1', 2, 2)]
    if_role_a('L_k_roleB')
    for r in (vcr, vci, vcr2, vci2): a(f'v_lshlrev_b32 v{r}, 16, v{r}')
    vsum = kt + 4
    a(f'v_add_f32 v{vsum}, |v{vcr}|, |v{vci}|')
    a(f'v_add_f32 v{kt+5}, |v{vcr2}|, |v{vci2}|')
    a(f'v_add_f32 v{vsum}, v{vsum}, v{kt+5}')
    xlane1(vsum, kt+5, 'add_f32', full=True)
    anchor(E128, 128); anchor(E1, 1)
    a(f'v_add_f32 v{v2dt}, v{vdt}, v{vdt}')
    a(f'v_mul_f32 v{vsum}, v{vsum}, v{v2dt}')
    a(f'v_frexp_exp_i32_f32 v{kt+5}, v{vsum}')
    a(f'v_sub_u32 v{kt+6}, 15, v{kt+5}')
    a(f'v_ldexp_f32 v{v2dt}, v{v2dt}, v{kt+6}')
    a(f'v_subrev_u32 v{kt+5}, 15, v{kt+5}')
    a(f'v_mov_b32 v{kt+6}, 1.0')
    a(f'v_ldexp_f32 v{kt+6}, v{kt+6}, v{kt+5}')
    a(f's_lshr_b32 s6, {S_W8}, 1'); a('s_lshl_b32 s6, s6, 2'); a(f's_add_u32 s6, s6, {L_IS}')
    a(f'v_mov_b32 v{kt+7}, s6')
    a('s_mov_b64 exec, 1')
    a(f'ds_write_b32 v{kt+7}, v{kt+6}')
    a('s_mov_b64 exec, -1')
    stamp('kg_anch')
    a(f'v_mul_f32 v{Ha}, v{vcr}, v{v2dt}'); a(f'v_mul_f32 v{Ha+1}, v{vci}, v{v2dt}')
    O[1] = E1
    cmul(O[2], O[1], O[1]); cmul(Hb, Ha, E128); put(0, Ha, True)
    cmul(O[3], O[2], O[1]); cmul(O[4], O[2], O[2])
    cmul(O[5], O[4], O[1]); cmul(O[6], O[4], O[2]); cmul(O[7], O[4], O[3])
    def gcol(i, o):
        if i < 2: return 8*i + o
        if i < 4: return 16 + 4*(i-2) + o//2
        if i < 8: return 24 + 2*(i-4) + o//4
        return 32 + (i-8)
    Hcur, Hnx = Ha, Hb
    gi = 0
    for i in range(0, 17):
        offs = list(range(8)) if i < 2 else ([0,2,4,6] if i < 4 else ([0,4] if i < 8 else [0]))
        if i > 0:
            put(gcol(i, 0), Hcur, True)
            if i < 16: cmul(Hnx, Hcur, E128)
        for o in offs[1:]:
            gg = Gt[gi % 2]; gi += 1
            cmul(gg, Hcur, O[o]); put(gcol(i, o), gg, True)
        Hcur, Hnx = Hnx, Hcur
    stamp('kg_ch')
    a('s_waitcnt vmcnt(0) lgkmcnt(0)' if cfg.ylate == 1 else 's_waitcnt lgkmcnt(0)')
    stamp('kgen_valu')
    a('s_branch L_k_bb')
    a.label('L_k_roleB')
    anchor(E8, 8)
    a(f'v_mov_b32 v{cv[0]}, 0x00003c00'); a(f'ds_write_addtid_b32 v{cv[0]} offset:{XOF}'); cvi[0] = 1
    put(1, E8, False)
    cmul(Fa, E8, E8); put(2, Fa, False)
    Fcur, Fnx = Fa, Fb
    for fj in range(3, 16):
        cmul(Fnx, Fcur, E8); put(fj, Fnx, False); Fcur, Fnx = Fnx, Fcur
    vu = al('u', 8, 2)
    a(f's_cmp_eq_u32 {S_W8}, 4'); a('s_cbranch_scc0 L_k_nof1p')
    def f1issue():
        for j in range(4): a(f'global_load_dword v{vf+j}, v{vfo}, {P_WS} offset:{1024*j} sc1')
    poll_loop(f1issue, [vf, vf+1, vf+2, vf+3], vt0, 'f1', cmp_tag=True)
    a.label('L_k_nof1p')
    a('s_waitcnt vmcnt(0) lgkmcnt(0)' if cfg.ylate == 1 else 's_waitcnt lgkmcnt(0)')
    if cfg.active('kgen_valu'): a(f'{cfg.tinstr} s[{70+2*(len(cfg.stamp_names)-1)}:{71+2*(len(cfg.stamp_names)-1)}]')
    for n in ['kt','al','fh','fl','2dt','E1','E8','E128','Fa','Fb','Ha','Hb','Gt0','Gt1'] + [f'O{i}' for i in range(1,8)]: R.release(n)
    for n in ('la','ai','cr','ci','cr2','ci2','ldt'): R.release(n)
    a.label('L_k_bb')
    a('s_barrier')
    stamp('B_b')
    if cfg.wtouch == 3:
        if_role_a('L_tw3'); a(f'global_load_dword v{vjunk}, v{vtw}, s[44:45]'); a.label('L_tw3')
    if cfg.ylate == 1:
        a(f's_cmp_eq_u32 {S_W8}, 5'); a('s_cbranch_scc0 L_k_nof2')
        a('s_lshl_b32 s7, s2, 4'); a(f's_add_u32 s6, s7, {WS_F2}')
        a(f'v_lshl_add_u32 v{vt0}, v{vlane}, 12, s6'); a(f'v_mov_b32 v{vt1}, {S_TAG}')
        a('s_mov_b64 exec, 0xff')
        a(f'global_store_dword v{vt0}, v{vt1}, {P_WS} sc1')
        a('s_mov_b64 exec, -1')
        a.label('L_k_nof2')
    if_role_b('L_k_nog')
    fl = '' if cfg.plain1 & 1 else ' sc1'
    a(f'global_load_dwordx4 {vr(vu,4)}, v{vug}, {P_WS}{fl}')
    a(f'global_load_dwordx4 {vr(vu+4,4)}, v{vug}, {P_WS} offset:16{fl}')
    a.label('L_k_nog')
    a(f's_cmp_ge_u32 {S_W8}, 6'); a('s_cbranch_scc1 L_k_nomf')
    vA = al('kA', 32, 4); vB = al('kB', 32, 4); vacc = al('kacc', 4, 4)
    for k in range(8):
        a(f'ds_read_b128 {vr(vA+4*k,4)}, v{vaa} offset:{64*k}')
        a(f'ds_read_b128 {vr(vB+4*k,4)}, v{vba} offset:{64*k}')
        if k == 6: a('s_waitcnt lgkmcnt(10)') if False else None
    a(f'v_add_u32 v{vt0}, v{vTw}, v{vTs}')
    a(f'v_add_u32 v{vt1}, v{vt0}, v{vTs}')
    a(f'v_add_u32 v{vt2}, v{vt1}, v{vTs}')
    for k in range(8):
        a(f's_waitcnt lgkmcnt({min(15, 2*(7-k))})')
        a(f'v_mfma_f32_16x16x32_f16 {vr(vacc,4)}, {vr(vA+4*k,4)}, {vr(vB+4*k,4)}, {"0" if k == 0 else vr(vacc,4)}')
    a(f'v_cvt_pk_f16_f32 v{vA}, v{vacc}, v{vacc+1}')
    a(f'v_cvt_pk_f16_f32 v{vA+1}, v{vacc+2}, v{vacc+3}')
    a(f'ds_write_b16 v{vTw}, v{vA}')
    a(f'ds_write_b16_d16_hi v{vt0}, v{vA}')
    a(f'ds_write_b16 v{vt1}, v{vA+1}')
    a(f'ds_write_b16_d16_hi v{vt2}, v{vA+1}')
    for n in ('kA','kB','kacc','kaa','kba'): R.release(n)
    a.label('L_k_nomf')
    a('s_waitcnt lgkmcnt(0)')
    stamp('k_mf')
    a('s_barrier')
    stamp('B_c')
    if cfg.wtouch == 4:
        if_role_a('L_tw4'); a(f'global_load_dword v{vjunk}, v{vtw}, s[44:45]'); a.label('L_tw4')
    R.release('Tw'); R.release('Ts')
    if_role_a('L_k_noexp')
    ve = al('e', 20, 2); vp = al('ep', 8, 4)
    for c in range(2):
        for k in range(10):
            a(f'ds_read_u16 v{ve+10*c+k}, v{vTa+k} offset:{L_TT + c*TT_SZ}')
    for c in range(2):
        e = ve + 10*c
        a(f's_waitcnt lgkmcnt({10 if c == 0 else 2})')
        for j in range(4): a(f'v_lshl_or_b32 v{vp+j}, v{e+2*j+2}, 16, v{e+2*j+1}')
        for j in range(4): a(f'v_lshl_or_b32 v{vp+4+j}, v{e+2*j+1}, 16, v{e+2*j}')
        a(f'ds_write_b128 v{vKw}, {vr(vp,4)} offset:{L_KC + (2*c)*KC_SZ}')
        a(f'ds_write_b128 v{vKw}, {vr(vp+4,4)} offset:{L_KC + (2*c+1)*KC_SZ}')
        a(f's_cmp_eq_u32 {S_W8}, 0'); l = lbl('tail'); a(f's_cbranch_scc0 {l}')
        a(f'v_lshl_or_b32 v{vt1}, v{e+9}, 16, v{e+8}')
        a(f'v_mov_b32 v{vt0}, 4096')
        a('s_mov_b64 exec, 1')
        a(f'ds_write_b32 v{vt0}, v{e+9} offset:{L_KC + (2*c)*KC_SZ}')
        a(f'ds_write_b32 v{vt0}, v{vt1} offset:{L_KC + (2*c+1)*KC_SZ}')
        a('s_mov_b64 exec, -1')
        a.label(l)
    R.release('e'); R.release('ep')
    stamp('expand')
    a('s_branch L_k_bd')
    a.label('L_k_noexp')
    def issue_u():
        a(f'global_load_dwordx4 {vr(vu,4)}, v{vug}, {P_WS} sc1')
        a(f'global_load_dwordx4 {vr(vu+4,4)}, v{vug}, {P_WS} offset:16 sc1')
    if cfg.upipe:
        vu2 = al('u2', 8, 2)
        a(f'global_load_dwordx4 {vr(vu2,4)}, v{vug}, {P_WS} sc1')
        a(f'global_load_dwordx4 {vr(vu2+4,4)}, v{vug}, {P_WS} offset:16 sc1')
        a('s_waitcnt vmcnt(2)')
        a(f'v_max_u32 v{vt0}, v{vu}, v{vu+1}')
        for j in (2, 4, 6): a(f'v_max3_u32 v{vt0}, v{vt0}, v{vu+j}, v{vu+j+1}')
        a(f'v_cmp_eq_u32 vcc, -1, v{vt0}')
        a('s_cbranch_vccz L_u_ok1')
        a('s_mov_b64 exec, vcc')
        a('s_waitcnt vmcnt(0)')
        for j in range(8): a(f'v_mov_b32 v{vu+j}, v{vu2+j}')
        a('s_mov_b64 exec, -1')
        poll_loop(issue_u, list(range(vu, vu+8)), vt0, 'u', first_issued=True)
        a.label('L_u_ok1')
        R.release('u2')
    else:
        poll_loop(issue_u, list(range(vu, vu+8)), vt0, 'u', first_issued=True)
    a(f'ds_write_b128 v{vul}, {vr(vu,4)} offset:{L_UL + 512}')
    a(f'ds_write_b128 v{vul}, {vr(vu+4,4)} offset:{L_UL + UL_SZ + 512}')
    if cfg.active('expand'): a(f'{cfg.tinstr} s[{70+2*(len(cfg.stamp_names)-1)}:{71+2*(len(cfg.stamp_names)-1)}]')
    a.label('L_k_bd')
    for n in ('Ta','Kw','f1','f1off','ugoff','ulds','u'): R.release(n)
    a('s_waitcnt lgkmcnt(0)')
    a('s_barrier')
    stamp('B_d')
    if cfg.dbg:
        dv = al('dv', 4, 4); da = al('da');
        a(f's_lshl_b32 s6, {S_P}, 15'); a(f's_add_u32 s6, s6, 0x1000000')
        for it in range(3):
            a(f'v_lshlrev_b32 v{da}, 4, v0'); a(f'v_add_u32 v{da}, {it*8192}, v{da}')
            a(f'v_min_u32 v{da}, {L_UL + 2*UL_SZ - 16}, v{da}')
            a(f'ds_read_b128 {vr(dv,4)}, v{da}')
            a(f'v_add_u32 v{da}, s6, v{da}')
            a('s_waitcnt lgkmcnt(0)')
            a(f'global_store_dwordx4 v{da}, {vr(dv,4)}, {P_WS}')
            a('s_waitcnt vmcnt(0)')
        R.release('dv'); R.release('da')
    if stop_here(2): return finish(a, R, cfg)

    if_role_a('L_c_roleB')
    if cfg.wtouch == 2:
        a(f'global_load_dword v{vjunk}, v{vtw}, s[44:45]')
    if cfg.wtouch >= 2: R.release('tw')
    acc = al('acc', 32, 4)
    FA = [al('FA0', 32, 4), al('FA1', 32, 4)]; FB = [al('FB0', 32, 4), al('FB1', 32, 4)]
    def frag_group(rho, buf, j):
        J = j >> 1; o = 16 * (15 - (rho + 8 * (j & 1)))
        return [f'ds_read_b128 {vr(FB[buf]+4*j,4)}, v{vLB} offset:{512*j + 64*(3-rho)}',
                f'ds_read2_b32 {vr(FA[buf]+4*j,2)}, v{vLA+J} offset0:{o} offset1:{o+1}',
                f'ds_read2_b32 {vr(FA[buf]+4*j+2,2)}, v{vLA+J} offset0:{o+2} offset1:{o+3}']
    def frag_loads(rho, buf):
        L = []
        for j in range(8): L += frag_group(rho, buf, j)
        return L
    first = set()
    def mf(buf, j, tp):
        t = j + tp
        src = vr(acc+4*t,4) if t in first else '0'
        first.add(t)
        a(f'v_mfma_f32_16x16x32_f16 {vr(acc+4*t,4)}, {vr(FA[buf]+4*j,4)}, {vr(FB[buf]+4*tp,4)}, {src}')
    for j in range(5):
        for l in frag_group(0, 0, j): a(l)
    shells = [[(j, tp) for j in range(8) for tp in range(8 - j) if max(j, tp) == sh] for sh in range(8)]
    nxt = frag_loads(1, 1); k = 0
    nostamp = True
    for sh in range(8):
        if sh <= 3: a('s_waitcnt lgkmcnt(12)')
        elif sh == 4: a('s_waitcnt lgkmcnt(9)')
        elif sh == 5: a('s_waitcnt lgkmcnt(0)')
        for idx, (j, tp) in enumerate(shells[sh]):
            mf(0, j, tp)
            if sh <= 2 and idx == 0:
                for l in frag_group(0, 0, sh + 5): a(l)
            if sh >= 5:
                for _ in range(2):
                    if k < len(nxt): a(nxt[k]); k += 1
    for rho in range(1, 4):
        buf = rho & 1
        nxt = frag_loads(rho + 1, buf ^ 1) if rho < 3 else []
        a('s_waitcnt lgkmcnt(0)')
        if rho == 1: stamp('c_r0')
        if rho == 2: stamp('c_r1')
        if rho < 3:
            k = 0
            for j in range(8):
                for tp in range(8 - j):
                    mf(buf, j, tp)
                    if k < len(nxt): a(nxt[k])
                    k += 1
        else:
            done = []; cnt = 0; wr = 0
            for t in range(8):
                for j in range(t + 1):
                    mf(buf, j, t - j); cnt += 1
                    if wr < len(done) and cnt - done[wr][1] >= 9:
                        a(f'ds_write_b128 v{vPW}, {vr(acc+4*done[wr][0],4)} offset:{done[wr][0]*PX_T}'); wr += 1
                done.append((t, cnt))
            stamp('conv_mfma'); stamp('c_r3')
            while wr < 8:
                a(f'ds_write_b128 v{vPW}, {vr(acc+4*done[wr][0],4)} offset:{done[wr][0]*PX_T}'); wr += 1
    stamp('c_wr')
    for n in ('acc','FA0','FA1','FB0','FB1','LA','LB','PW'): R.release(n)
    a('s_branch L_c_be')
    a.label('L_c_roleB')
    if cfg.active('conv_mfma'): a(f'{cfg.tinstr} s[{70+2*(len(cfg.stamp_names)-1)}:{71+2*(len(cfg.stamp_names)-1)}]')
    gen_roleB_conv(a, R, cfg, locals())
    a.label('L_c_be')
    a('s_waitcnt lgkmcnt(0)')
    a('s_barrier')
    stamp('B_e')
    ep = al('ep', 16, 4); vis = al('is', 2, 2)
    a(f'ds_read_b128 {vr(ep,4)}, v{vEP}')
    a(f'ds_read_b128 {vr(ep+8,4)}, v{vEP} offset:{PX_H}')
    a(f'ds_read_b128 {vr(ep+4,4)}, v{vEP} offset:256')
    a(f'ds_read_b128 {vr(ep+12,4)}, v{vEP} offset:{PX_H + 256}')
    a(f'ds_read_b32 v{vis}, v{vISa} offset:{L_IS}')
    a('s_waitcnt lgkmcnt(0)')
    for j in range(4): a(f'v_pk_add_f32 {vr(ep+2*j,2)}, {vr(ep+2*j,2)}, {vr(ep+8+2*j,2)}')
    for j in range(4): a(f'v_pk_mul_f32 {vr(ep+2*j,2)}, {vr(ep+2*j,2)}, {vr(vis,2)} op_sel_hi:[1,0]')
    cvt4(ep+8, ep)
    a(f'global_store_dwordx4 v{vYa}, {vr(ep+8,4)}, {P_WS} sc1')
    R.release('EP'); R.release('ISa'); R.release('Ya')
    stamp('y_stored')
    R.release('ep'); R.release('is')
    if stop_here(3): return finish(a, R, cfg)

    gen_tail(a, R, cfg, locals())
    return finish(a, R, cfg)

def gen_roleB_conv(a, R, cfg, env):
    S_W8 = env['S_W8']; vlane = env['vlane']; vt0 = env['vt0']; vt1 = env['vt1']; lbl = env['lbl']
    P_WG, P_WU, P_WD = env['P_WG'], env['P_WU'], env['P_WD']
    vblk = env['vblk']; S_P = env['S_P']; P_WS = env['P_WS']
    a('s_waitcnt vmcnt(0)')
    vo = R.alloc('ones2', 4, 2); vca = R.alloc('clra')
    for i in range(4): a(f'v_mov_b32 v{vo+i}, -1')
    a(f'v_add_u32 v{vca}, {WS_H - 4096}, v{vblk}')
    a(f'global_store_dwordx4 v{vca}, v[{vo}:{vo+3}], {P_WS} sc1')
    a(f'v_add_u32 v{vca}, 4096, v{vca}')
    a(f'global_store_dwordx4 v{vca}, v[{vo}:{vo+3}], {P_WS} sc1')
    a(f's_lshl_b32 s6, {S_P}, 5'); a(f's_add_u32 s6, s6, {WS_STAT}')
    a(f'v_lshl_add_u32 v{vca}, v{vlane}, 2, s6')
    a('s_mov_b64 exec, 0xff')
    a(f'global_store_dword v{vca}, v{vo}, {P_WS} sc1')
    a('s_mov_b64 exec, -1')
    R.release('ones2'); R.release('clra')
    if cfg.ylate == 1:
        vf2 = R.alloc('f2', 4, 2); vf2o = R.alloc('f2o')
        a(f's_cmp_eq_u32 {S_W8}, 5'); a('s_cbranch_scc0 L_c_nof2')
        a('s_and_b32 s6, s2, 7'); a('s_lshl_b32 s6, s6, 12'); a(f's_add_u32 s6, s6, {WS_F2}')
        a(f'v_lshl_add_u32 v{vf2o}, v{vlane}, 4, s6')
        def f2issue():
            for j in range(4): a(f'global_load_dword v{vf2+j}, v{vf2o}, {P_WS} offset:{1024*j} sc1')
        env['poll_loop'](f2issue, [vf2, vf2+1, vf2+2, vf2+3], vt0, 'f2', cmp_tag=True)
        a.label('L_c_nof2')
        R.release('f2'); R.release('f2o')
    if cfg.dmac:
        a('s_cmp_lt_u32 s2, 56'); a('s_cbranch_scc1 L_dc_go')
        a('s_sub_u32 s7, s2, 64'); a('s_cmp_lt_u32 s7, 32'); a('s_cbranch_scc0 L_dc_done')
        a.label('L_dc_go')
        n = cfg.dsleep
        while n > 0:
            a(f's_sleep {min(n,100)}'); n -= min(n, 100)
        gen_dma(a, R, cfg, env)
        a.label('L_dc_done')

def gen_dma(a, R, cfg, env):
    S_W8 = env['S_W8']; vlane = env['vlane']; vt0 = env['vt0']; vt1 = env['vt1']
    P_WG, P_WU, P_WD = env['P_WG'], env['P_WU'], env['P_WD']; S_FC = env['S_FC']
    a('s_cmp_lt_u32 s2, 56'); a('s_cbranch_scc0 L_w_not1')
    a(f's_sub_u32 s6, {S_W8}, 4')
    a(f'v_lshrrev_b32 v{vt0}, 2, v{vlane}')
    a(f'v_mul_u32_u24 v{vt0}, 3584, v{vt0}')
    a(f'v_and_b32 v{vt1}, 3, v{vlane}')
    a(f'v_lshl_add_u32 v{vt0}, v{vt1}, 4, v{vt0}')
    a(f's_lshl_b32 s7, {S_FC}, 6')
    a('s_and_b32 s38, s6, 1'); a(f's_mul_i32 s39, s38, {256*3584}'); a('s_add_u32 s7, s7, s39')
    a(f'v_add_u32 v{vt0}, s7, v{vt0}')
    a('s_lshl_b32 s39, s6, 14'); a(f's_add_u32 s39, s39, {L_BIG}')
    a('s_cmp_ge_u32 s6, 2'); a('s_cselect_b32 s44, s28, s26'); a('s_cselect_b32 s45, s29, s27')
    a('s_mov_b32 s38, 16'); a(f's_mov_b32 s7, {16*3584}')
    a('s_branch L_w_loop')
    a.label('L_w_not1')
    a(f's_sub_u32 s6, {S_W8}, 4')
    a(f'v_lshrrev_b32 v{vt0}, 1, v{vlane}')
    a(f'v_lshlrev_b32 v{vt0}, 10, v{vt0}')
    a(f'v_and_b32 v{vt1}, 1, v{vlane}')
    a(f'v_lshl_add_u32 v{vt0}, v{vt1}, 4, v{vt0}')
    a(f's_lshl_b32 s7, {S_FC}, 5')
    a(f's_mul_i32 s39, s6, {448*1024}'); a('s_add_u32 s7, s7, s39')
    a(f'v_add_u32 v{vt0}, s7, v{vt0}')
    a(f's_mul_i32 s39, s6, {448*32}'); a(f's_add_u32 s39, s39, {L_BIG}')
    a('s_mov_b32 s44, s30'); a('s_mov_b32 s45, s31')
    a('s_mov_b32 s38, 14'); a(f's_mov_b32 s7, {32*1024}')
    a.label('L_w_loop')
    a('s_mov_b32 m0, s39'); a('s_add_u32 s39, s39, 1024')
    a(f'global_load_lds_dwordx4 v{vt0}, s[44:45]')
    a(f'v_add_u32 v{vt0}, s7, v{vt0}')
    a('s_sub_u32 s38, s38, 1'); a('s_cmp_lg_u32 s38, 0'); a('s_cbranch_scc1 L_w_loop')

def gen_tail(a, R, cfg, env):
    g = env
    al = R.alloc
    S_W8, S_P, S_TAG, S_MASKHI, S_STG, S_SPIN = g['S_W8'], g['S_P'], g['S_TAG'], g['S_MASKHI'], g['S_STG'], g['S_SPIN']
    S_L2E = g['S_L2E']
    P_WS, P_OUT = g['P_WS'], g['P_OUT']
    vlane, vt0, vt1, vt2, vt3, vtk, vcg, vch, vxo = (g[k] for k in ('vlane','vt0','vt1','vt2','vt3','vtk','vcg','vch','vxo'))
    vxf, vud, vm1 = g['vxf'], g['vud'], g['vm1']
    stamp, lbl, poll_loop, unpack8, cvt4, xlane1 = g['stamp'], g['lbl'], g['poll_loop'], g['unpack8'], g['cvt4'], g['xlane1']
    ln_stats_partial, ln_finish, normalize, stop_here = g['ln_stats_partial'], g['ln_finish'], g['normalize'], g['stop_here']
    vy = al('y', 4, 4); vyo = al('yoff'); vwr = al('wr', 4, 4)
    vd = al('d', 16, 4); vS = al('S', 2, 2); vt = al('t', 2, 2); vrs = al('rs', 2, 2); vs_ = al('s', 2, 2); vm2 = al('m2', 2, 2)
    vhf = al('hf', 8, 2); vhp = al('hp', 4, 4)
    a(f'v_lshrrev_b32 v{vyo}, 1, v0'); a(f'v_lshlrev_b32 v{vyo}, 13, v{vyo}')
    a(f'v_and_b32 v{vt0}, 1, v0'); a(f'v_lshl_add_u32 v{vyo}, v{vt0}, 4, v{vyo}')
    a(f's_lshl_b32 s6, {S_P}, 5'); a(f's_add_u32 s6, s6, {WS_Y}')
    a(f'v_add_u32 v{vyo}, s6, v{vyo}')
    a(f'ds_read_b128 {vr(vwr,4)}, v{vch} offset:{L_WR}')
    a(f'v_lshl_add_u32 v{vt2}, v{vlane}, 4, {S_STG}')
    a(f'v_lshrrev_b32 v{vt0}, 4, v{vlane}'); a(f'v_lshlrev_b32 v{vt3}, 8, v{vt0}')
    a(f'v_bfe_u32 v{vt0}, v{vlane}, 1, 1'); a(f'v_lshl_add_u32 v{vt3}, v{vt0}, 7, v{vt3}')
    a(f'v_bfe_u32 v{vt0}, v{vlane}, 2, 2'); a(f'v_lshl_add_u32 v{vt3}, v{vt0}, 4, v{vt3}')
    a(f'v_and_b32 v{vt0}, 1, v{vlane}'); a(f'v_lshl_add_u32 v{vt3}, v{vt0}, 3, v{vt3}')
    a(f'v_add_u32 v{vt3}, {S_STG}, v{vt3}')
    a('s_waitcnt vmcnt(0)')
    stamp('y_acked')
    if cfg.plain1 & 2:
        a(f'global_load_dwordx4 {vr(vy,4)}, v{vyo}, {P_WS}')
        poll_loop(lambda: a(f'global_load_dwordx4 {vr(vy,4)}, v{vyo}, {P_WS} sc1'), [vy, vy+1, vy+2, vy+3], vt0, 'y', first_issued=True)
    else:
        poll_loop(lambda: a(f'global_load_dwordx4 {vr(vy,4)}, v{vyo}, {P_WS} sc1'), [vy, vy+1, vy+2, vy+3], vt0, 'y')
    stamp('y_got')
    a(f'ds_write_b128 v{vt2}, {vr(vy,4)}')
    a('s_waitcnt lgkmcnt(0)')
    a(f'ds_read_b64_tr_b16 {vr(vy,2)}, v{vt3}')
    a(f'ds_read_b64_tr_b16 {vr(vy+2,2)}, v{vt3} offset:64')
    a('s_waitcnt lgkmcnt(0)')
    stamp('s3_tr')
    unpack8(vd, vy)
    for j in range(4): a(f'v_pk_add_f32 {vr(vd+2*j,2)}, {vr(vd+2*j,2)}, {vr(vud+2*j,2)}')
    cvt4(vd+8, vd)
    unpack8(vd, vd+8)
    for j in range(4): a(f'v_pk_add_f32 {vr(vd+2*j,2)}, {vr(vd+2*j,2)}, {vr(vxf+2*j,2)}')
    cvt4(vhp, vd)
    if not cfg.hlate:
        a(f'v_add_u32 v{vt0}, {WS_H}, v{vxo}')
        a(f'global_store_dwordx4 v{vt0}, {vr(vhp,4)}, {P_WS} sc1')
    stamp('s3_h')
    ln_stats_partial(vhp, vS, vt, L_ST2)
    unpack8(vhf, vhp)
    a('s_waitcnt lgkmcnt(0)')
    stamp('s3_part')
    a('s_barrier')
    stamp('s3_bar1')
    ln_finish(vhf, vd, vS, vt, L_ST2, vm2, vrs, vs_)
    stamp('s3_fin')
    vr_ = al('r', 2, 2)
    a(f'v_dot2_f32_bf16 v{vr_}, v{vd+8}, v{vwr}, 0')
    a(f'v_dot2_f32_bf16 v{vr_+1}, v{vd+9}, v{vwr+1}, 0')
    a(f'v_dot2_f32_bf16 v{vr_}, v{vd+10}, v{vwr+2}, v{vr_}')
    a(f'v_dot2_f32_bf16 v{vr_+1}, v{vd+11}, v{vwr+3}, v{vr_+1}')
    a(f'v_add_f32 v{vr_}, v{vr_}, v{vr_+1}')
    xlane1(vr_, vt, 'add_f32')
    a(f's_lshl_b32 s6, {S_W8}, 2')
    a(f'v_lshl_add_u32 v{vt}, v{vtk}, 5, s6')
    a('s_mov_b64 exec, 0xff')
    a(f'ds_write_b32 v{vt}, v{vr_} offset:{L_RP}')
    a('s_mov_b64 exec, -1')
    stamp('s3_rp')
    unpack8(vd, vd+8)
    for j in range(4): a(f'v_pk_add_f32 {vr(vd+2*j,2)}, {vr(vd+2*j,2)}, {vr(vhf+2*j,2)}')
    cvt4(vd+12, vd)
    a('s_waitcnt lgkmcnt(0)')
    a('s_barrier')
    stamp('s3_bar2')
    a(f's_cmp_eq_u32 {S_W8}, 0'); a('s_cbranch_scc0 L_s3_nokey')
    a(f'v_lshlrev_b32 v{vt}, 5, v{vtk}')
    a(f'ds_read_b128 {vr(vd,4)}, v{vt} offset:{L_RP}')
    a(f'ds_read_b128 {vr(vd+4,4)}, v{vt} offset:{L_RP+16}')
    a('s_waitcnt lgkmcnt(0)')
    a(f'v_pk_add_f32 {vr(vd,2)}, {vr(vd,2)}, {vr(vd+2,2)}'); a(f'v_pk_add_f32 {vr(vd+4,2)}, {vr(vd+4,2)}, {vr(vd+6,2)}')
    a(f'v_pk_add_f32 {vr(vd,2)}, {vr(vd,2)}, {vr(vd+4,2)}'); a(f'v_add_f32 v{vd}, v{vd}, v{vd+1}')
    a(f'v_cvt_pk_bf16_f32 v{vd}, v{vd}, v{vd}')
    a(f'v_and_b32 v{vd}, 0xffff, v{vd}')
    a(f'v_cmp_lt_u32 vcc, 0x7fff, v{vd}')
    a(f'v_xor_b32 v{vd+1}, 0xffff, v{vd}'); a(f'v_or_b32 v{vd+2}, 0x8000, v{vd}')
    a(f'v_cndmask_b32 v{vd}, v{vd+2}, v{vd+1}, vcc')
    a(f'v_mov_b32_dpp v{vd+1}, v{vd} quad_perm:[1,0,3,2] row_mask:0xf bank_mask:0xf')
    a(f's_lshl_b32 s6, {S_P}, 4'); a(f's_add_u32 s6, s6, {WS_KEY}')
    a(f'v_lshlrev_b32 v{vd+2}, 12, v{vcg}'); a(f'v_lshl_add_u32 v{vd+2}, v{vtk}, 1, v{vd+2}'); a(f'v_add_u32 v{vd+2}, s6, v{vd+2}')
    a(f'v_lshl_or_b32 v{vd}, v{vd+1}, 16, v{vd}')
    a('s_mov_b32 exec_lo, 0x55555555'); a('s_mov_b32 exec_hi, 0x55555555')
    a(f'global_store_dword v{vd+2}, v{vd}, {P_WS} sc1')
    a('s_mov_b64 exec, -1')
    a.label('L_s3_nokey')
    stamp('key_stored')
    if cfg.hlate == 1:
        a(f'v_add_u32 v{vt0}, {WS_H}, v{vxo}')
        a(f'global_store_dwordx4 v{vt0}, {vr(vhp,4)}, {P_WS} sc1')
    if cfg.hlate == 2:
        vhk = al('hkeep', 4, 4); vha_ = al('hkaddr')
        for j in range(4): a(f'v_mov_b32 v{vhk+j}, v{vhp+j}')
        a(f'v_add_u32 v{vha_}, {WS_H}, v{vxo}')
    vout = al('outp', 4, 4)
    for j in range(4): a(f'v_mov_b32 v{vout+j}, v{vd+12+j}')
    a(f's_cmp_eq_u32 {S_W8}, 1'); a('s_cbranch_scc0 L_s3_nostat')
    a(f'v_lshrrev_b32 v{vd}, 16, v{vm2}'); a(f'v_and_or_b32 v{vd}, v{vs_}, {S_MASKHI}, v{vd}')
    a(f's_lshl_b32 s6, {S_P}, 5'); a(f's_add_u32 s6, s6, {WS_STAT}')
    a(f'v_lshl_add_u32 v{vd+1}, v{vtk}, 2, s6')
    a('s_mov_b64 exec, 0xff')
    a(f'global_store_dword v{vd+1}, v{vd}, {P_WS} sc1')
    a('s_mov_b64 exec, -1')
    a.label('L_s3_nostat')
    for n in ('y','yoff','wr','d','S','t','rs','s','m2','hf','hp','r','xf','ud','m1'): R.release(n)
    S_ROLE = 's43'
    a(f's_mov_b32 {S_ROLE}, 1')
    a('s_cmp_lt_u32 s2, 56'); a('s_cbranch_scc1 L_f_go')
    a(f's_mov_b32 {S_ROLE}, 2')
    a('s_sub_u32 s7, s2, 64'); a('s_cmp_lt_u32 s7, 32'); a('s_cbranch_scc1 L_f_go')
    a(f's_mov_b32 {S_ROLE}, 0')
    a('s_branch L_f_nokey')
    a.label('L_f_go')
    a.label('L_f_nokey')
    stamp('s3_done')
    def out_store_and_flag(tag):
        if cfg.hlate == 2: a(f'global_store_dwordx4 v{vha_}, {vr(vhk,4)}, {P_WS} sc1')
        a(f'global_store_dwordx4 v{vxo}, {vr(vout,4)}, {P_OUT} sc1')
    def publish_f3b(tag):
        a('s_waitcnt vmcnt(0)')
        a('s_barrier')
        l = lbl('f3b')
        a(f's_cmp_eq_u32 {S_W8}, 2'); a(f's_cbranch_scc0 {l}')
        a(f's_lshl_b32 s6, {S_P}, 4'); a(f's_add_u32 s6, s6, {WS_F3B}')
        a(f'v_lshl_add_u32 v{vt0}, v{vlane}, 12, s6'); a(f'v_mov_b32 v{vt1}, {S_TAG}')
        a('s_mov_b64 exec, 0xff')
        a(f'global_store_dword v{vt0}, v{vt1}, {P_WS} sc1')
        a('s_mov_b64 exec, -1')
        a.label(l)
    a(f's_cmp_eq_u32 {S_ROLE}, 0'); a('s_cbranch_scc0 L_f_roles')
    if cfg.hlate == 2:
        a('s_waitcnt vmcnt(0)'); a('s_barrier')
    out_store_and_flag('n'); publish_f3b('n')
    a('s_branch L_fin')
    a.label('L_f_roles')
    if cfg.stop == 4:
        out_store_and_flag('n'); publish_f3b('n'); a('s_branch L_fin'); return
    a(f's_cmp_ge_u32 {S_W8}, 4'); a('s_cbranch_scc1 L_t_roleB')
    vk = al('k', 8, 4); vko = al('koff'); vm = al('m', 2, 2); vkr = al('kraw', 4, 4); vkb = al('kbase')
    a('s_and_b32 s6, s2, 7'); a('s_lshl_b32 s6, s6, 12'); a(f's_add_u32 s6, s6, {WS_KEY}')
    a(f'v_lshl_add_u32 v{vko}, v0, 4, s6')
    a(f'v_lshlrev_b32 v{vkb}, 3, v0'); a(f'v_sub_u32 v{vkb}, 2047, v{vkb}')
    a(f's_cmp_eq_u32 {S_W8}, 0'); a('s_cbranch_scc0 L_t_nz')
    a(f'v_mov_b32 v{vt0}, 0'); a(f'v_lshlrev_b32 v{vt1}, 2, v{vlane}')
    a(f'ds_write_b32 v{vt1}, v{vt0} offset:{L_CL}')
    a(f'v_mov_b32 v{vt1}, {L_CNT}'); a(f'ds_write_b32 v{vt1}, v{vt0}')
    a.label('L_t_nz')
    if not cfg.nokwait: a('s_waitcnt vmcnt(0)')
    stamp('k_wait')
    poll_loop(lambda: a(f'global_load_dwordx4 {vr(vkr,4)}, v{vko}, {P_WS} sc1'), list(range(vkr, vkr+4)), vm, 'key')
    stamp('keys_got')
    if cfg.active('k_spin'):
        i = len(cfg.stamp_names); cfg.stamp_names.append('k_spin')
        a('s_waitcnt lgkmcnt(0)'); a(f's_mul_i32 s{70+2*i}, {S_SPIN}, 100'); a(f's_add_u32 s{70+2*i}, s{70+2*i}, s70')
    for j in range(4):
        a(f'v_subrev_u32 v{vt0}, {2*j}, v{vkb}'); a(f'v_subrev_u32 v{vt1}, {2*j+1}, v{vkb}')
        a(f'v_lshl_or_b32 v{vk+2*j}, v{vkr+j}, 16, v{vt0}')
        a(f'v_and_or_b32 v{vk+2*j+1}, v{vkr+j}, {S_MASKHI}, v{vt1}')
    a(f'v_max3_u32 v{vm}, v{vk}, v{vk+1}, v{vk+2}'); a(f'v_max3_u32 v{vm+1}, v{vk+3}, v{vk+4}, v{vk+5}')
    a(f'v_max3_u32 v{vm}, v{vm}, v{vk+6}, v{vk+7}'); a(f'v_max_u32 v{vm}, v{vm}, v{vm+1}')
    R.release('kraw'); R.release('kbase')
    out_store_and_flag('a')
    for ror in (1, 2, 4, 8): a(f'v_max_u32_dpp v{vm}, v{vm}, v{vm} row_ror:{ror} row_mask:0xf bank_mask:0xf')
    a(f's_lshl_b32 s6, {S_W8}, 4'); a(f's_add_u32 s6, s6, {L_WM}')
    a(f'v_lshrrev_b32 v{vt0}, 4, v{vlane}'); a(f'v_lshl_add_u32 v{vt0}, v{vt0}, 2, s6')
    a('s_mov_b32 exec_lo, 0x00010001'); a('s_mov_b32 exec_hi, 0x00010001')
    a(f'ds_write_b32 v{vt0}, v{vm}')
    a('s_mov_b64 exec, -1')
    stamp('t8_max')
    vw = al('w8m', 16, 4); vown = al('own'); vrk = al('rk')
    a(f'v_mov_b32 v{vt0}, {L_WM}'); a(f'v_mov_b32 v{vt2}, {L_CNT}')
    a(f'v_and_b32 v{vt1}, 15, v{vlane}'); a(f'v_lshlrev_b32 v{vt1}, 2, v{vt1}'); a(f'v_mov_b32 v{vrk}, 0')
    a('s_waitcnt lgkmcnt(0)')
    a('s_barrier')
    stamp('t8_bar1')
    a(f'ds_read_b32 v{vown}, v{vt1} offset:{L_WM}')
    for q in range(4): a(f'ds_read_b128 {vr(vw+4*q,4)}, v{vt0} offset:{16*q}')
    for q in range(4):
        a(f's_waitcnt lgkmcnt({3-q})' if not cfg.stamps else 's_waitcnt lgkmcnt(0)')
        for j in range(4): a(f'v_cmp_gt_u32 s[{44+2*j}:{45+2*j}], v{vw+4*q+j}, v{vown}')
        for j in range(4): a(f'v_addc_co_u32 v{vrk}, vcc, 0, v{vrk}, s[{44+2*j}:{45+2*j}]')
    a(f'v_cmp_eq_u32 vcc, {cfg.trank}, v{vrk}')
    a('s_ff1_i32_b64 s6, vcc')
    a(f'v_readlane_b32 s7, v{vown}, s6')
    a(f'v_mov_b32 v{vw}, s7')
    for j in range(8): a(f'v_cmp_ge_u32 s[{44+2*j}:{45+2*j}], v{vk+j}, v{vw}')
    a('s_bcnt1_i32_b64 s7, s[44:45]')
    for j in range(1, 8):
        a(f's_bcnt1_i32_b64 s6, s[{44+2*j}:{45+2*j}]'); a('s_add_u32 s7, s7, s6')
    a(f'v_mov_b32 v{vt1}, s7')
    a('s_mov_b64 exec, 1')
    a(f'ds_add_rtn_u32 v{vt3}, v{vt2}, v{vt1}')
    a('s_mov_b64 exec, -1')
    vpos = al('pos', 8)
    a('s_mov_b32 s7, 0')
    for j in range(8):
        a(f'v_mbcnt_lo_u32_b32 v{vpos+j}, s{44+2*j}, 0'); a(f'v_mbcnt_hi_u32_b32 v{vpos+j}, s{45+2*j}, v{vpos+j}')
        if j: a(f'v_add_u32 v{vpos+j}, s7, v{vpos+j}')
        if j < 7:
            a(f's_bcnt1_i32_b64 s6, s[{44+2*j}:{45+2*j}]'); a('s_add_u32 s7, s7, s6')
    a('s_waitcnt lgkmcnt(0)')
    a(f'v_readfirstlane_b32 s7, v{vt3}')
    stamp('t8_atom')
    for j in range(8):
        a(f'v_add_u32 v{vpos+j}, s7, v{vpos+j}')
        a(f'v_min_u32 v{vpos+j}, 64, v{vpos+j}')
        a(f'v_lshlrev_b32 v{vpos+j}, 2, v{vpos+j}')
    for j in range(8):
        a(f's_mov_b64 exec, s[{44+2*j}:{45+2*j}]')
        a(f'ds_write_b32 v{vpos+j}, v{vk+j} offset:{L_CL}')
    a('s_mov_b64 exec, -1')
    vc = al('cand'); vrank = al('rank'); vall = al('call', 64, 4)
    a(f'v_lshlrev_b32 v{vt2}, 2, v{vlane}'); a(f'v_mov_b32 v{vt0}, {L_CL}'); a(f'v_mov_b32 v{vrank}, 0'); a(f'v_mov_b32 v{vt3}, {L_CNT}')
    a('s_waitcnt lgkmcnt(0)')
    a('s_barrier')
    stamp('t8_bar2')
    a(f's_cmp_eq_u32 {S_W8}, 0'); a('s_cbranch_scc0 L_t_norank')
    a(f'v_and_b32 v{vt2}, 15, v{vlane}'); a(f'v_lshlrev_b32 v{vt2}, 2, v{vt2}')
    a(f'v_lshrrev_b32 v{vw}, 4, v{vlane}'); a(f'v_lshlrev_b32 v{vw}, 4, v{vw}')
    a(f'ds_read_b32 v{vt1}, v{vt3}')
    a(f'ds_read_b32 v{vc}, v{vt2} offset:{L_CL}')
    a(f'ds_read_b128 {vr(vall,4)}, v{vw} offset:{L_CL}')
    a('s_waitcnt lgkmcnt(0)')
    a(f'v_readfirstlane_b32 s44, v{vt1}')
    for j in range(4): a(f'v_cmp_gt_u32 s[{46+2*j}:{47+2*j}], v{vall+j}, v{vc}')
    for j in range(4): a(f'v_addc_co_u32 v{vrank}, vcc, 0, v{vrank}, s[{46+2*j}:{47+2*j}]')
    for sw in ('16', '32'):
        a(f'v_mov_b32 v{vt1}, v{vrank}'); a(f'v_permlane{sw}_swap_b32 v{vt1}, v{vrank}'); a(f'v_add_u32 v{vrank}, v{vrank}, v{vt1}')
    a('s_cmp_le_u32 s44, 16'); a('s_cbranch_scc0 L_t_n32')
    a('s_mov_b64 exec, 0xffff')
    a(f'v_lshlrev_b32 v{vt0}, 2, v{vrank}')
    a(f'v_cmp_gt_u32 vcc, 8, v{vrank}')
    a('s_and_b64 exec, exec, vcc')
    a(f'ds_write_b32 v{vt0}, v{vc} offset:{L_SEL}')
    a('s_mov_b64 exec, -1')
    a('s_branch L_t_norank')
    a.label('L_t_n32')
    a(f'v_mov_b32 v{vrank}, 0')
    a(f'v_and_b32 v{vt2}, 31, v{vlane}'); a(f'v_lshlrev_b32 v{vt2}, 2, v{vt2}')
    a(f'v_lshrrev_b32 v{vw}, 5, v{vlane}'); a(f'v_lshlrev_b32 v{vw}, 6, v{vw}')
    a(f'ds_read_b32 v{vt1}, v{vt3}')
    a(f'ds_read_b32 v{vc}, v{vt2} offset:{L_CL}')
    for q in range(4): a(f'ds_read_b128 {vr(vall+4*q,4)}, v{vw} offset:{L_CL + 16*q}')
    a('s_waitcnt lgkmcnt(0)')
    a(f'v_readfirstlane_b32 s44, v{vt1}')
    def rank_group(base):
        for j in range(4): a(f'v_cmp_gt_u32 s[{46+2*j}:{47+2*j}], v{base+j}, v{vc}')
        for j in range(4): a(f'v_addc_co_u32 v{vrank}, vcc, 0, v{vrank}, s[{46+2*j}:{47+2*j}]')
    for q in range(4): rank_group(vall + 4*q)
    a(f'v_mov_b32 v{vt1}, v{vrank}'); a(f'v_permlane32_swap_b32 v{vt1}, v{vrank}'); a(f'v_add_u32 v{vrank}, v{vrank}, v{vt1}')
    a('s_cmp_le_u32 s44, 32'); a('s_cbranch_scc0 L_t_slow')
    a('s_mov_b32 exec_hi, 0')
    a(f'v_lshlrev_b32 v{vt0}, 2, v{vrank}')
    a(f'v_cmp_gt_u32 vcc, 8, v{vrank}')
    a('s_and_b64 exec, exec, vcc')
    a(f'ds_write_b32 v{vt0}, v{vc} offset:{L_SEL}')
    a('s_mov_b64 exec, -1')
    a('s_branch L_t_norank')
    a.label('L_t_slow')
    a('s_cmp_gt_u32 s44, 64'); a('s_cbranch_scc1 L_f_fallback')
    a(f'v_lshlrev_b32 v{vt2}, 2, v{vlane}'); a(f'v_mov_b32 v{vrank}, 0')
    a(f'ds_read_b32 v{vc}, v{vt2} offset:{L_CL}')
    for q in range(16): a(f'ds_read_b128 {vr(vall+4*q,4)}, v{vt0} offset:{16*q}')
    for q in range(16):
        if q >= 8:
            a(f's_cmp_le_u32 s44, {4*q}'); a('s_cbranch_scc1 L_f_rankd')
        a(f's_waitcnt lgkmcnt({min(15, 15-q)})')
        rank_group(vall + 4*q)
    a.label('L_f_rankd')
    a('s_nop 0')
    stamp('t8_rank')
    a(f'v_lshlrev_b32 v{vt0}, 2, v{vrank}')
    a(f'v_cmp_gt_u32 vcc, 8, v{vrank}')
    a('s_and_saveexec_b64 s[38:39], vcc')
    a(f'ds_write_b32 v{vt0}, v{vc} offset:{L_SEL}')
    a('s_mov_b64 exec, -1')
    a('s_branch L_t_norank')
    a.label('L_f_fallback')
    a('s_waitcnt lgkmcnt(0)')
    a('s_and_b32 s6, s2, 7'); a('s_lshl_b32 s6, s6, 12'); a(f's_add_u32 s6, s6, {WS_KEY}')
    a(f'v_lshl_add_u32 v{vt0}, v{vlane}, 6, s6')
    for q in range(4): a(f'global_load_dwordx4 {vr(vall+32+4*q,4)}, v{vt0}, {P_WS} offset:{16*q} sc1')
    a(f'v_lshlrev_b32 v{vt2}, 5, v{vlane}'); a(f'v_sub_u32 v{vt2}, 2047, v{vt2}')
    a('s_waitcnt vmcnt(0)')
    for q in range(16):
        a(f'v_subrev_u32 v{vt0}, {2*q}, v{vt2}'); a(f'v_subrev_u32 v{vt1}, {2*q+1}, v{vt2}')
        a(f'v_lshl_or_b32 v{vall+2*q}, v{vall+32+q}, 16, v{vt0}')
        a(f'v_and_or_b32 v{vall+2*q+1}, v{vall+32+q}, {S_MASKHI}, v{vt1}')
    a('s_mov_b32 s44, 0')
    a.label('L_f_fb')
    a(f'v_max_u32 v{vm}, v{vall}, v{vall+1}')
    for q in range(2, 32, 2): a(f'v_max3_u32 v{vm}, v{vm}, v{vall+q}, v{vall+q+1}')
    xlane1(vm, vm+1, 'max_u32', full=True)
    for q in range(32):
        a(f'v_cmp_ne_u32 vcc, v{vall+q}, v{vm}'); a(f'v_cndmask_b32 v{vall+q}, 0, v{vall+q}, vcc')
    a('s_lshl_b32 s6, s44, 2'); a(f's_add_u32 s6, s6, {L_SEL}'); a(f'v_mov_b32 v{vt0}, s6')
    a('s_mov_b64 exec, 1'); a(f'ds_write_b32 v{vt0}, v{vm}'); a('s_mov_b64 exec, -1')
    a('s_add_u32 s44, s44, 1'); a('s_cmp_lt_u32 s44, 8'); a('s_cbranch_scc1 L_f_fb')
    a.label('L_t_norank')
    a('s_waitcnt lgkmcnt(0)')
    a('s_barrier')
    a('s_branch L_t_join')
    a.label('L_t_roleB')
    out_store_and_flag('b')
    if not cfg.dmac: gen_dma(a, R, cfg, env)
    a('s_barrier')
    a('s_barrier')
    a('s_barrier')
    a.label('L_t_join')
    for n in ('k','koff','m','w8m','own','rk','cand','rank','call','pos'): R.release(n)
    vsel = al('sel'); vidx = al('idx')
    a(f'v_lshlrev_b32 v{vt0}, 2, v{vtk}')
    a(f'ds_read_b32 v{vsel}, v{vt0} offset:{L_SEL}')
    vB = al('B', 32, 4); vba = al('ba')
    a(f'v_lshrrev_b32 v{vt0}, 4, v{vlane}'); a(f'v_lshlrev_b32 v{vt0}, 3, v{vt0}')
    a(f'v_bfe_u32 v{vt1}, v{vlane}, 2, 2'); a(f'v_add_u32 v{vt0}, v{vt0}, v{vt1}')
    a(f'v_and_b32 v{vt1}, 3, v{vlane}')
    a('s_waitcnt lgkmcnt(0)')
    a(f'v_and_b32 v{vidx}, 0xffff, v{vsel}'); a(f'v_sub_u32 v{vidx}, 2047, v{vidx}')
    stamp('top8')
    def bfrags(role):
        if role == 1:
            a(f'v_lshlrev_b32 v{vba}, 6, v{vbrow}'); a(f'v_lshl_add_u32 v{vba}, v{vbcol}, 3, v{vba}')
            a(f's_lshl_b32 s6, {S_W8}, 12'); a(f's_add_u32 s6, s6, {L_BIG}')
            a(f'v_add_u32 v{vba}, s6, v{vba}')
            for kk in range(2):
                for nt in range(4):
                    off = kk*2048 + (nt>>1)*32768 + (nt&1)*32
                    d = vB + 4*(kk*4+nt)
                    a(f'ds_read_b64_tr_b16 {vr(d,2)}, v{vba} offset:{off}')
                    a(f'ds_read_b64_tr_b16 {vr(d+2,2)}, v{vba} offset:{off + 4*64}')
        else:
            a(f'v_lshlrev_b32 v{vba}, 5, v{vbrow}'); a(f'v_lshl_add_u32 v{vba}, v{vbcol}, 3, v{vba}')
            a(f's_mul_i32 s6, {S_W8}, {7*32*32}'); a(f's_add_u32 s6, s6, {L_BIG}')
            a(f'v_add_u32 v{vba}, s6, v{vba}')
            for kk in range(7):
                d = vB + 4*kk
                a(f'ds_read_b64_tr_b16 {vr(d,2)}, v{vba} offset:{kk*1024}')
                a(f'ds_read_b64_tr_b16 {vr(d+2,2)}, v{vba} offset:{kk*1024 + 4*32}')
    vbrow = al('brow'); vbcol = al('bcol')
    a(f'v_mov_b32 v{vbrow}, v{vt0}'); a(f'v_mov_b32 v{vbcol}, v{vt1}')
    stamp('f3_ok')
    vst = al('stat'); vm2 = al('m2', 2, 2); vrs = al('rs', 2, 2)
    vsto = al('stato')
    a(f'v_lshlrev_b32 v{vsto}, 2, v{vidx}'); a(f'v_add_u32 v{vsto}, {WS_STAT}, v{vsto}')
    a(f's_cmp_eq_u32 {S_ROLE}, 1'); a('s_cbranch_scc0 L_f2')
    vh = al('h', 8, 4); vd = al('d', 8, 4); vhf = al('hf', 8, 2); vA = al('A', 8, 4); acc = al('acc', 16, 4)
    a(f'v_lshrrev_b32 v{vt0}, 4, v{vlane}'); a(f'v_lshlrev_b32 v{vt0}, 4, v{vt0}')
    a(f'v_lshl_add_u32 v{vt0}, v{vidx}, 10, v{vt0}')
    a(f's_lshl_b32 s6, {S_W8}, 7'); a(f's_add_u32 s6, s6, {WS_H}')
    vhoff = al('hoff')
    a(f'v_add_u32 v{vhoff}, s6, v{vt0}')
    def issue_h():
        a(f'global_load_dword v{vst}, v{vsto}, {P_WS} sc1')
        a(f'global_load_dwordx4 {vr(vh,4)}, v{vhoff}, {P_WS} sc1')
        a(f'global_load_dwordx4 {vr(vh+4,4)}, v{vhoff}, {P_WS} offset:64 sc1')
    issue_h()
    a('s_waitcnt vmcnt(3)')
    a('s_barrier')
    stamp('t4')
    bfrags(1)
    poll_loop(issue_h, [vst] + list(range(vh, vh+8)), vt1, 'h', first_issued=True)
    R.release('hoff')
    stamp('h_got')
    a(f'v_lshlrev_b32 v{vm2}, 16, v{vst}'); a(f'v_and_b32 v{vt1}, {S_MASKHI}, v{vst}'); a(f'v_rcp_f32 v{vrs}, v{vt1}')
    vd2 = al('d2', 8, 2); vhf2 = al('hf2', 8, 2)
    prs = ((vhf, vd), (vhf2, vd2))
    for kk, (hf, dd) in enumerate(prs): unpack8(hf, vh+4*kk)
    for kk, (hf, dd) in enumerate(prs):
        for j in range(4): a(f'v_pk_add_f32 {vr(dd+2*j,2)}, {vr(hf+2*j,2)}, {vr(vm2,2)} op_sel_hi:[1,0] neg_lo:[0,1] neg_hi:[0,1]')
    for kk, (hf, dd) in enumerate(prs): cvt4(vA+4*kk, dd)
    for kk, (hf, dd) in enumerate(prs): unpack8(dd, vA+4*kk)
    for kk, (hf, dd) in enumerate(prs):
        for j in range(4): a(f'v_pk_mul_f32 {vr(dd+2*j,2)}, {vr(dd+2*j,2)}, {vr(vrs,2)} op_sel_hi:[1,0]')
    for kk, (hf, dd) in enumerate(prs): cvt4(vA+4*kk, dd)
    R.release('d2'); R.release('hf2')
    a(f's_lshl_b32 s6, {S_W8}, 11'); a(f's_add_u32 s6, s6, {L_PX}')
    a(f'v_lshl_add_u32 v{vt0}, v{vlane}, 4, s6')
    a('s_waitcnt lgkmcnt(0)')
    stamp('f1_norm')
    for kk in range(2):
        for nt in range(4):
            a(f'v_mfma_f32_16x16x32_bf16 {vr(acc+4*nt,4)}, {vr(vA+4*kk,4)}, {vr(vB+4*(kk*4+nt),4)}, {"0" if kk == 0 else vr(acc+4*nt,4)}')
    stamp('f1_mfma')
    a('s_mov_b32 exec_hi, 0')
    for nt in range(4): a(f'ds_write_b128 v{vt0}, {vr(acc+4*nt,4)} offset:{nt*512}')
    a('s_mov_b32 exec_hi, -1')
    gp = al('gp', 16, 4)
    a(f's_lshr_b32 s6, {S_W8}, 1'); a('s_lshl_b32 s6, s6, 9'); a(f's_and_b32 s7, {S_W8}, 1'); a('s_lshl_b32 s7, s7, 8')
    a('s_add_u32 s6, s6, s7'); a(f's_add_u32 s6, s6, {L_PX}')
    a(f'v_lshl_add_u32 v{vt2}, v{vlane}, 2, s6')
    a('s_waitcnt lgkmcnt(0)')
    a('s_barrier')
    stamp('f1_bar')
    a(f's_cmp_eq_u32 {S_W8}, 5'); a('s_cbranch_scc0 L_f1_nof3b')
    a(f's_lshl_b32 s6, {S_P}, 4'); a(f's_add_u32 s6, s6, {WS_F3B}')
    a(f'v_lshl_add_u32 v{vt0}, v{vlane}, 12, s6'); a(f'v_mov_b32 v{vt1}, {S_TAG}')
    a('s_mov_b64 exec, 0xff')
    a(f'global_store_dword v{vt0}, v{vt1}, {P_WS} sc1')
    a('s_mov_b64 exec, -1')
    a.label('L_f1_nof3b')
    a(f's_cmp_ge_u32 {S_W8}, 4'); a('s_cbranch_scc1 L_fin')
    for w in range(0, 8, 2): a(f'ds_read2st64_b32 {vr(gp+w,2)}, v{vt2} offset0:{w*8} offset1:{(w+1)*8}')
    for w in range(0, 8, 2): a(f'ds_read2st64_b32 {vr(gp+8+w,2)}, v{vt2} offset0:{w*8+4} offset1:{(w+1)*8+4}')
    vsa1 = al('hsa')
    a(f'v_and_b32 v{vsa1}, 3, v{vlane}'); a(f'v_lshlrev_b32 v{vsa1}, 5, v{vsa1}')
    a(f'v_lshrrev_b32 v{vt0}, 2, v{vlane}'); a(f'v_lshl_add_u32 v{vsa1}, v{vt0}, 1, v{vsa1}')
    a(f's_lshl_b32 s6, {S_W8}, 7'); a(f's_lshl_b32 s7, {g["S_FC"]}, 9'); a('s_add_u32 s6, s6, s7'); a(f's_add_u32 s6, s6, {WS_HID}')
    a(f'v_add_u32 v{vsa1}, s6, v{vsa1}')
    a('s_waitcnt lgkmcnt(4)' if not cfg.stamps else 's_waitcnt lgkmcnt(0)')
    for (x, y) in ((0,1),(2,3),(4,5),(6,7),(0,2),(4,6),(0,4)): a(f'v_add_f32 v{gp+x}, v{gp+x}, v{gp+y}')
    a('s_waitcnt lgkmcnt(0)')
    for (x, y) in ((0,1),(2,3),(4,5),(6,7),(0,2),(4,6),(0,4)): a(f'v_add_f32 v{gp+8+x}, v{gp+8+x}, v{gp+8+y}')
    stamp('f1_red')
    a(f'v_cvt_pk_bf16_f32 v{gp+1}, v{gp}, v{gp+8}')
    a(f'v_lshlrev_b32 v{gp}, 16, v{gp+1}')
    a(f'v_and_b32 v{gp+8}, {S_MASKHI}, v{gp+1}')
    a(f'v_mul_f32 v{gp+2}, {hx(f2u(-1.4426950408889634))}, v{gp}')
    a(f'v_exp_f32 v{gp+2}, v{gp+2}')
    a(f'v_add_f32 v{gp+2}, 1.0, v{gp+2}')
    a(f'v_rcp_f32 v{gp+2}, v{gp+2}')
    a(f'v_mul_f32 v{gp}, v{gp}, v{gp+2}')
    a(f'v_cvt_pk_bf16_f32 v{gp}, v{gp}, v{gp}')
    a(f'v_lshlrev_b32 v{gp}, 16, v{gp}')
    a(f'v_mul_f32 v{gp}, v{gp}, v{gp+8}')
    a(f'v_mov_b32_dpp v{gp+1}, v{gp} row_shl:4 row_mask:0xf bank_mask:0xf')
    a(f'v_cvt_pk_bf16_f32 v{gp}, v{gp}, v{gp+1}')
    stamp('f1_silu')
    a('s_mov_b32 exec_lo, 0x0f0f0f0f'); a('s_mov_b32 exec_hi, 0x0f0f0f0f')
    for rep in range(RH):
        a(f'global_store_dword v{vsa1}, v{gp}, {P_WS} sc1')
        if rep < RH - 1: a(f'v_add_u32 v{vsa1}, {HID_SZ}, v{vsa1}')
    a('s_mov_b64 exec, -1')
    stamp('hid_stored')
    R.release('hsa')
    a('s_branch L_fin')
    for n in ('h','d','hf','A','acc','gp'): R.release(n)
    a.label('L_f2')
    vA = al('A2', 28, 4); vho = al('ho'); acc = al('acc2', 4, 4); vhv = al('hv'); vst2 = al('st2'); vsel2 = al('sel2'); vix2 = al('ix2')
    a(f'v_lshrrev_b32 v{vt0}, 4, v0'); a(f'v_and_b32 v{vt0}, 7, v{vt0}'); a(f'v_lshlrev_b32 v{vt0}, 2, v{vt0}')
    a(f'ds_read_b32 v{vsel2}, v{vt0} offset:{L_SEL}')
    a('s_waitcnt lgkmcnt(0)')
    a(f'v_and_b32 v{vix2}, 0xffff, v{vsel2}'); a(f'v_sub_u32 v{vix2}, 2047, v{vix2}')
    a(f's_lshl_b32 s7, {g["S_FC"]}, 5')
    a(f'v_and_b32 v{vt0}, 15, v{vlane}'); a(f'v_lshlrev_b32 v{vt0}, 1, v{vt0}')
    a(f'v_lshl_add_u32 v{vho}, v{vix2}, 10, v{vt0}'); a(f'v_add_u32 v{vho}, s7, v{vho}')
    vha = al('ha'); vsa = al('sa')
    a(f'v_and_b32 v{vha}, 0xfffffffc, v{vho}'); a(f'v_add_u32 v{vha}, {WS_H}, v{vha}')
    a(f'v_lshlrev_b32 v{vsa}, 2, v{vix2}'); a(f'v_add_u32 v{vsa}, {WS_STAT}, v{vsa}')
    def issue_h2():
        a(f'global_load_dword v{vhv}, v{vha}, {P_WS} sc1')
        a(f'global_load_dword v{vst2}, v{vsa}, {P_WS} sc1')
    poll_loop(issue_h2, [vhv, vst2], vt0, 'h2')
    a(f'v_and_b32 v{vt0}, 1, v{vlane}'); a(f'v_cmp_eq_u32 vcc, 1, v{vt0}')
    a(f'v_lshrrev_b32 v{vt0}, 16, v{vhv}'); a(f'v_and_b32 v{vhv}, 0xffff, v{vhv}')
    a(f'v_cndmask_b32 v{vhv}, v{vhv}, v{vt0}, vcc')
    R.release('ha'); R.release('sa')
    publish_f3b('f2')
    bfrags(2)
    vf3b = al('f3b'); vf3bo = al('f3bo')
    a('s_and_b32 s6, s2, 7'); a('s_lshl_b32 s6, s6, 12'); a(f's_add_u32 s6, s6, {WS_F3B}')
    a(f'v_lshrrev_b32 v{vf3bo}, 3, v{vidx}'); a(f'v_lshl_add_u32 v{vf3bo}, v{vf3bo}, 4, s6')
    vrsig = al('rsig'); vxn = al('xn')
    a(f'v_lshrrev_b32 v{vt0}, 16, v{vsel2}')
    a(f'v_cmp_lt_u32 vcc, 0x7fff, v{vt0}')
    a(f'v_and_b32 v{vt2}, 0x7fff, v{vt0}'); a(f'v_xor_b32 v{vt3}, 0xffff, v{vt0}')
    a(f'v_cndmask_b32 v{vt0}, v{vt3}, v{vt2}, vcc'); a(f'v_lshlrev_b32 v{vt0}, 16, v{vt0}')
    a(f'v_mul_f32 v{vt0}, {hx(f2u(-1.4426950408889634))}, v{vt0}')
    a(f'v_exp_f32 v{vt0}, v{vt0}'); a(f'v_add_f32 v{vt0}, 1.0, v{vt0}'); a(f'v_rcp_f32 v{vt0}, v{vt0}')
    a(f'v_cvt_pk_bf16_f32 v{vt0}, v{vt0}, v{vt0}'); a(f'v_lshlrev_b32 v{vrsig}, 16, v{vt0}')
    a(f'v_lshlrev_b32 v{vhv}, 16, v{vhv}')
    a(f'v_lshlrev_b32 v{vt2}, 16, v{vst2}'); a(f'v_and_b32 v{vt3}, {S_MASKHI}, v{vst2}'); a(f'v_rcp_f32 v{vt3}, v{vt3}')
    a(f'v_sub_f32 v{vt2}, v{vhv}, v{vt2}'); a(f'v_cvt_pk_bf16_f32 v{vt2}, v{vt2}, v{vt2}'); a(f'v_lshlrev_b32 v{vt2}, 16, v{vt2}')
    a(f'v_mul_f32 v{vt2}, v{vt2}, v{vt3}'); a(f'v_cvt_pk_bf16_f32 v{vt2}, v{vt2}, v{vt2}'); a(f'v_lshlrev_b32 v{vxn}, 16, v{vt2}')
    vhi = al('hio'); vpw = al('pw'); vpr = al('pr')
    a('s_and_b32 s6, s2, 3'); a(f's_mul_i32 s6, s6, {HID_SZ}'); a(f's_mul_i32 s7, {S_W8}, {7*512}'); a('s_add_u32 s6, s6, s7'); a(f's_add_u32 s6, s6, {WS_HID}')
    a(f'v_lshrrev_b32 v{vt0}, 5, v{vlane}'); a(f'v_lshlrev_b32 v{vt0}, 8, v{vt0}')
    a(f'v_lshrrev_b32 v{vt1}, 2, v{vtk}'); a(f'v_lshl_add_u32 v{vt0}, v{vt1}, 7, v{vt0}')
    a(f'v_and_b32 v{vt1}, 3, v{vtk}'); a(f'v_lshl_add_u32 v{vt0}, v{vt1}, 5, v{vt0}')
    a(f'v_bfe_u32 v{vt1}, v{vlane}, 4, 1'); a(f'v_lshl_add_u32 v{vt0}, v{vt1}, 4, v{vt0}')
    a(f'v_add_u32 v{vhi}, s6, v{vt0}')
    a(f's_lshl_b32 s6, {S_W8}, 9'); a(f's_add_u32 s6, s6, {L_PX}')
    a(f'v_lshl_add_u32 v{vpw}, v{vlane}, 4, s6')
    a(f'v_lshrrev_b32 v{vt0}, 4, v0')
    a(f'v_lshrrev_b32 v{vt1}, 2, v{vt0}'); a(f'v_lshlrev_b32 v{vt1}, 8, v{vt1}')
    a(f'v_and_b32 v{vt0}, 3, v{vt0}'); a(f'v_lshl_add_u32 v{vt1}, v{vt0}, 2, v{vt1}')
    a(f'v_and_b32 v{vt0}, 15, v{vlane}'); a(f'v_lshl_add_u32 v{vt1}, v{vt0}, 4, v{vt1}')
    a(f'v_add_u32 v{vpr}, {L_PX}, v{vt1}')
    a(f's_cmp_ge_u32 {S_W8}, 2'); a('s_cbranch_scc1 L_f2_nof3b')
    poll_loop(lambda: a(f'global_load_dword v{vf3b}, v{vf3bo}, {P_WS} sc1'), [vf3b], vt0, 'f3b', cmp_tag=True)
    a.label('L_f2_nof3b')
    def issue_hid():
        for kk in range(7): a(f'global_load_dwordx4 {vr(vA+4*kk,4)}, v{vhi}, {P_WS} offset:{kk*512} sc1')
    if cfg.probe: poll_loop(lambda: a(f'global_load_dwordx4 {vr(vA+24,4)}, v{vhi}, {P_WS} offset:{6*512} sc1'), list(range(vA+24, vA+28)), vt0, 'hidp')
    poll_loop(issue_hid, list(range(vA, vA+28)), vt0, 'hid')
    stamp('hid_got')
    acc2 = al('acc2b', 4, 4)
    for kk in range(7):
        d = acc if kk % 2 == 0 else acc2
        a(f'v_mfma_f32_16x16x32_bf16 {vr(d,4)}, {vr(vA+4*kk,4)}, {vr(vB+4*kk,4)}, {"0" if kk < 2 else vr(d,4)}')
    a(f'v_pk_add_f32 {vr(acc,2)}, {vr(acc,2)}, {vr(acc2,2)}'); a(f'v_pk_add_f32 {vr(acc+2,2)}, {vr(acc+2,2)}, {vr(acc2+2,2)}')
    a('s_mov_b32 exec_hi, 0')
    a(f'ds_write_b128 v{vpw}, {vr(acc,4)}')
    a('s_mov_b32 exec_hi, -1')
    a('s_waitcnt lgkmcnt(0)')
    a('s_barrier')
    a(f's_cmp_ge_u32 {S_W8}, 2'); a('s_cbranch_scc1 L_fin')
    fp = al('fp', 8, 4)
    for w in range(0, 8, 2): a(f'ds_read2st64_b32 {vr(fp+w,2)}, v{vpr} offset0:{w*2} offset1:{(w+1)*2}')
    a('s_waitcnt lgkmcnt(0)')
    for (x, y) in ((0,1),(2,3),(4,5),(6,7),(0,2),(4,6),(0,4)): a(f'v_add_f32 v{fp+x}, v{fp+x}, v{fp+y}')
    def rb(r): a(f'v_cvt_pk_bf16_f32 v{r}, v{r}, v{r}'); a(f'v_lshlrev_b32 v{r}, 16, v{r}')
    rb(fp)
    a(f'v_mul_f32 v{fp}, v{fp}, v{vrsig}'); rb(fp)
    a(f'v_add_f32 v{fp}, v{fp}, v{vxn}'); rb(fp)
    a(f'v_add_f32 v{fp}, v{fp}, v{vhv}')
    a(f'v_cvt_pk_bf16_f32 v{fp}, v{fp}, v{fp}')
    a(f'global_store_short v{vho}, v{fp}, {P_OUT} sc1')
    stamp('final')

def finish(a, R, cfg):
    a.label('L_fin')
    if cfg.stamps and cfg.rt == 1:
        n = len(cfg.stamp_names)
        a('s_memrealtime s[68:69]')
        a('s_waitcnt lgkmcnt(0)')
        a('v_mov_b32 v2, 0')
        a('s_mov_b64 exec, 1')
        a('s_not_b32 s70, s70')
        for i in range(n):
            a(f'v_mov_b32 v3, s{70+2*i}')
            a(f'global_atomic_umax v2, v3, s[34:35] offset:{4*i}')
        a('v_mov_b32 v3, s68')
        a(f'global_atomic_umax v2, v3, s[34:35] offset:60')
        a('s_mov_b64 exec, -1')
    elif cfg.stamps:
        n = len(cfg.stamp_names)
        a(f'{cfg.tinstr} s[{70+2*n}:{71+2*n}]') if 71+2*n <= 101 else None
        if 71+2*n <= 101: n += 1; cfg.stamp_names.append('END')
        a('s_waitcnt lgkmcnt(0)')
        a('s_lshl_b32 s6, s2, 3'); a('s_add_u32 s6, s6, s4'); a('s_lshl_b32 s6, s6, 8'); a(f's_add_u32 s6, s6, {WS_DBG + 0x100000}')
        a('v_mov_b32 v2, s6')
        a('s_mov_b64 exec, 1')
        for i in range(n):
            a(f'v_mov_b32 v3, s{70+2*i}')
            a(f'global_store_dword v2, v3, s[36:37] offset:{4*i}')
        a('s_mov_b64 exec, -1')
    a('s_cmp_eq_u32 s2, 0'); a('s_cbranch_scc0 L_end')
    a('s_cmp_eq_u32 s4, 0'); a('s_cbranch_scc0 L_end')
    a(f'v_mov_b32 v2, {WS_EPOCH}'); a('v_mov_b32 v3, s5')
    a('s_mov_b64 exec, 1')
    a('global_store_dword v2, v3, s[36:37]')
    a.label('L_end')
    a('s_endpgm')
    body = a.text()
    nv = 256
    hdr = open('cdna_kernels/' + NAME + '.s.ref').read().split('; Override launch geometry')[0]
    s = hdr
    s += f'; @launch grid=(256,1,1) block=(512,1,1) lds={LDS_TOTAL}\n'
    s += '.amdgcn_target "amdgcn-amd-amdhsa--gfx950"\n.text\n'
    s += f'.globl {NAME}_kernel\n.p2align 8\n.type {NAME}_kernel,@function\n{NAME}_kernel:\n'
    s += body
    s += f'''.section .rodata,"a"
.p2align 6
.amdhsa_kernel {NAME}_kernel
  .amdhsa_next_free_vgpr {nv}
  .amdhsa_next_free_sgpr 102
  .amdhsa_accum_offset {nv}
  .amdhsa_group_segment_fixed_size 0
  .amdhsa_kernarg_size 120
  .amdhsa_user_sgpr_count 2
  .amdhsa_user_sgpr_kernarg_segment_ptr 1
  .amdhsa_system_sgpr_workgroup_id_x 1
.end_amdhsa_kernel
'''
    cfg.maxv = R.maxused
    return s

if __name__ == '__main__':
    cfg = Cfg()
    out = sys.argv[1]
    for arg in sys.argv[2:]:
        k, v = arg.split('=')
        setattr(cfg, k, int(v))
    open(out, 'w').write(gen(cfg))
    import os
    if cfg.stamps: open(out + '.stamps', 'w').write('\n'.join(cfg.stamp_names))
    elif os.path.exists(out + '.stamps'): os.remove(out + '.stamps')
    print('max vgpr', cfg.maxv, 'LDS', LDS_TOTAL)
```

```python
import sys, struct, math
from asmlib import *

NAME = "sequential_preLN__ssm_conv_s4d__moe_arch_mod__prompt"
def f2u(x): return struct.unpack('<I', struct.pack('<f', x))[0]
def f32(x): return struct.unpack('<f', struct.pack('<f', x))[0]
def hx(x): return '0x%08x' % (x & 0xffffffff)

WS_EPOCH = 0x0
WS_F1 = 0x50000; R1 = 8
WS_F3 = 0x8000; R3 = 8
WS_F2 = 0x60000
WS_F3B = 0x58000
WS_KEY = 0x10000; RK = 8
WS_HID = 0x20000; RH = 4; HID_SZ = 56 * 512
WS_MISC = 0x10000
WS_STAT = 0x40000
WS_U = 0x100000
WS_Y = 0x300000
WS_H = 0x500000
WS_DBG = 0x800000
KC_SZ = 4160
L_KC = 0
L_UL = 16640; UL_SZ = 4608
L_TT = 25856; TT_SZ = 1536
L_RED = 28928
L_ST1 = L_RED
L_ST2 = L_RED + 512
L_RP = L_RED + 1024
L_IS = L_RED + 1280
L_WM = L_RED + 1344
L_CNT = L_RED + 1408
L_CL = L_RED + 1536
L_SEL = L_RED + 2048
L_FB = L_RED + 2560
L_D = L_RED + 4096
L_WR = L_RED + 5120
L_STG = L_RED + 6144; STG_SZ = 1536
L_BIG = L_STG + 8 * STG_SZ
FROW = 544
F_SZ = 16 * FROW; G_SZ = 48 * FROW; FG_SZ = F_SZ + G_SZ
L_PX = L_BIG + 2 * FG_SZ
PX_T = 1152; PX_C = 8 * PX_T + 64; PX_H = 2 * PX_C
L_W = L_BIG
L_RA = L_BIG + 12288
LDS_TOTAL = L_PX + 2 * PX_H
assert LDS_TOTAL <= 163840, LDS_TOTAL
assert L_BIG % 16 == 0 and L_PX % 16 == 0

SPIN_LIMIT = 1 << 15

class Cfg:
    stop = 99
    dbg = 0
    stamps = 0
    rt = 0
    codepf = 2
    wtouch = 2
    dmac = 0
    dsleep = 0
    hlate = 1
    xbar = 1
    probe = 0
    upipe = 0
    trank = 7
    plain1 = 0
    noclear = 0
    olate = 1
    convsched = 1
    r3 = 1
    ahead3 = 8
    wprio = 1
    bwsh = 4
    noywait = 0
    pp = 0
    ppsleep = 2
    ppset = 'u,y,key,h,hid'
    ylate = 2
    prio = 0
    nokwait = 0

def gen(cfg):
    a = Asm()
    R = Regs(2, 255)
    al = R.alloc
    S_P, S_W8, S_TAG = 's3', 's4', 's5'
    P_X, P_LA, P_AI, P_CR, P_CI, P_DT, P_DS = 's[8:9]', 's[10:11]', 's[12:13]', 's[14:15]', 's[16:17]', 's[18:19]', 's[20:21]'
    P_WR, P_WG, P_WU, P_WD, P_OUT, P_DBG, P_WS = 's[24:25]', 's[26:27]', 's[28:29]', 's[30:31]', 's[32:33]', 's[34:35]', 's[36:37]'
    S_SPIN = 's60'
    S_L2E, S_L2ELO, S_I2PI, S_I2PILO, S_EPS, S_MASKHI = 's62', 's63', 's64', 's65', 's66', 's67'
    S_ONE2 = 's68'
    cfg.stamp_names = []
    cfg.tinstr = 's_memrealtime' if cfg.rt else 's_memtime'
    G1 = ['start','kernarg','issued','x_arrived','ln1_prebar','ln1_fin','u_stored','kgen_valu','B_b','B_c','expand','B_d','conv_mfma','B_e','y_stored']
    G2 = ['start','u_stored','B_d','y_stored','y_acked','y_got','key_stored','s3_done','keys_got','top8','f3_ok','h_got','hid_stored','hid_got','final']
    G3 = ['start','keys_got','t8_max','t8_bar1','t8_atom','t8_bar2','t8_rank','top8','h_got','f1_norm','f1_mfma','f1_bar','f1_red','f1_silu','hid_stored']
    G5 = ['start','B_c','expand','B_d','c_r0','c_prew','c_postw','c_prex','c_postx','c_r3','B_e','y_stored','w_done']
    G6 = ['start','y_got','s3_h','key_stored','k_wait','keys_got','k_spin','t8_bar1','t8_bar2','top8','t4','h_got','hid_stored','hid_got','final']
    G4 = ['start','y_acked','y_got','s3_tr','s3_h','s3_part','s3_bar1','s3_fin','s3_rp','s3_bar2','key_stored','s3_done','keys_got','hid_got','final']
    sel = {1: G1, 2: G2, 3: G3, 4: G4, 5: G5, 6: G6}.get(cfg.stamps, G1)
    cfg.active = lambda name: cfg.stamps and name in sel
    def stamp(name):
        if not cfg.stamps or name not in sel: return
        i = len(cfg.stamp_names)
        assert 70 + 2 * i + 1 <= 101, 'too many stamps'
        a(f'{cfg.tinstr} s[{70+2*i}:{71+2*i}]')
        cfg.stamp_names.append(name)
    uid = [0]
    def lbl(p):
        uid[0] += 1
        return f'L_{p}_{uid[0]}'
    def if_role_a(else_lbl):
        a(f's_cmp_ge_u32 {S_W8}, 4'); a(f's_cbranch_scc1 {else_lbl}')
    def if_role_b(else_lbl):
        a(f's_cmp_lt_u32 {S_W8}, 4'); a(f's_cbranch_scc1 {else_lbl}')
    def stop_here(n):
        if cfg.stop == n:
            a('s_waitcnt vmcnt(0) lgkmcnt(0)'); a('s_branch L_fin')
            return True
        return False
    def poll_loop(issue, check_regs, tmp, name, first_issued=False, cmp_tag=False, nl=1):
        l0 = lbl(name); l1 = lbl(name + 'ok')
        pipe = cfg.pp and name in cfg.ppset.split(',')
        def check():
            if cmp_tag:
                a(f'v_xor_b32 v{tmp}, {S_TAG}, v{check_regs[0]}')
                for r in check_regs[1:]:
                    a(f'v_xor_b32 v{tmp+1}, {S_TAG}, v{r}'); a(f'v_or_b32 v{tmp}, v{tmp}, v{tmp+1}')
                a(f'v_cmp_ne_u32 vcc, 0, v{tmp}')
            else:
                rs = list(check_regs)
                a(f'v_max_u32 v{tmp}, v{rs[0]}, v{rs[1]}') if len(rs) > 1 else a(f'v_mov_b32 v{tmp}, v{rs[0]}')
                rs = rs[2:]
                while len(rs) >= 2:
                    a(f'v_max3_u32 v{tmp}, v{tmp}, v{rs[0]}, v{rs[1]}'); rs = rs[2:]
                if rs: a(f'v_max_u32 v{tmp}, v{tmp}, v{rs[0]}')
                a(f'v_cmp_eq_u32 vcc, -1, v{tmp}')
        a(f's_mov_b32 {S_SPIN}, 0')
        if not pipe:
            if first_issued:
                lf = lbl(name + 'f'); a(f's_branch {lf}')
            a.label(l0)
            issue()
            if first_issued: a.label(lf)
            a('s_waitcnt vmcnt(0)')
            check()
            a(f's_cbranch_vccz {l1}')
            a('s_mov_b64 exec, vcc')
            a(f's_add_u32 {S_SPIN}, {S_SPIN}, 1')
            a(f's_cmp_lt_u32 {S_SPIN}, {SPIN_LIMIT}')
            a(f's_cbranch_scc1 {l0}')
            a.label(l1)
            a('s_mov_b64 exec, -1')
        else:
            if not first_issued: issue()
            a('s_waitcnt vmcnt(0)')
            check()
            a(f's_cbranch_vccz {l1}')
            a('s_mov_b64 exec, vcc')
            a.label(l0)
            issue()
            a(f's_sleep {cfg.ppsleep}')
            a(f's_waitcnt vmcnt({nl * (cfg.pp - 1)})')
            check()
            l2 = lbl(name + 'd')
            a(f's_cbranch_vccz {l2}')
            a('s_mov_b64 exec, vcc')
            a(f's_add_u32 {S_SPIN}, {S_SPIN}, 1')
            a(f's_cmp_lt_u32 {S_SPIN}, {SPIN_LIMIT}')
            a(f's_cbranch_scc1 {l0}')
            a.label(l2)
            a('s_waitcnt vmcnt(0)')
            a('s_mov_b64 exec, -1')
            check()
            a(f's_cbranch_vccz {l1}')
            a('s_mov_b64 exec, vcc')
            a(f's_add_u32 {S_SPIN}, {S_SPIN}, 1')
            a(f's_cmp_lt_u32 {S_SPIN}, {SPIN_LIMIT}')
            a(f's_cbranch_scc1 {l0}')
            a.label(l1)
            a('s_mov_b64 exec, -1')

    a('s_cmp_ge_u32 s2, 256')
    a('s_cbranch_scc1 L_end')
    a('s_load_dwordx16 s[8:23], s[0:1], 0')
    a('s_load_dwordx8 s[24:31], s[0:1], 64')
    a('s_load_dwordx4 s[32:35], s[0:1], 96')
    a('s_load_dwordx2 s[36:37], s[0:1], 112')
    if cfg.stamps:
        for i in range(70, 102): a(f's_mov_b32 s{i}, 0')
    stamp('start')
    vlane = 1
    vt0 = al('t0', 2); vt1 = vt0 + 1
    vt2 = al('t2', 2); vt3 = vt2 + 1
    a(f'v_lshrrev_b32 v{vt0}, 6, v0')
    a(f'v_and_b32 v{vlane}, 63, v0')
    a('s_and_b32 s6, s2, 7'); a('s_lshl_b32 s6, s6, 5'); a('s_lshr_b32 s7, s2, 3'); a(f's_add_u32 {S_P}, s6, s7')
    a(f'v_readfirstlane_b32 {S_W8}, v{vt0}')
    S_FC = 's61'
    a('s_and_b32 s6, s2, 7'); a('s_mul_i32 s7, s6, 7'); a(f's_lshr_b32 {S_FC}, s2, 3'); a(f's_add_u32 s7, s7, {S_FC}')
    a('s_lshl_b32 s6, s6, 2'); a(f's_add_u32 s6, s6, {S_FC}'); a('s_sub_u32 s6, s6, 8')
    a('s_cmp_lt_u32 s2, 56'); a(f's_cselect_b32 {S_FC}, s7, s6')
    vjunk = al('junk'); vja = al('junkaddr')
    vtk = al('tk'); vcg = al('cg')
    a(f'v_and_b32 v{vtk}, 7, v{vlane}')
    a(f'v_lshrrev_b32 v{vcg}, 3, v{vlane}')
    vch = al('choff')
    a(f's_lshl_b32 s6, {S_W8}, 7')
    a(f'v_lshl_add_u32 v{vch}, v{vcg}, 4, s6')
    vrow = al('rowoff')
    a(f's_lshl_b32 s7, {S_P}, 13')
    a(f'v_lshl_add_u32 v{vrow}, v{vtk}, 10, s7')
    vxo = al('xoff')
    a(f'v_add_u32 v{vxo}, v{vrow}, v{vch}')
    vblk = al('blkoff')
    a(f'v_lshl_add_u32 v{vblk}, v0, 4, s7')
    vpo = al('paroff'); vpo2 = al('paroff2'); vdto = al('dtoff')
    a(f's_lshl_b32 s6, {S_P}, 9')
    a(f'v_and_b32 v{vpo}, 255, v0')
    a(f'v_lshl_add_u32 v{vpo}, v{vpo}, 1, s6')
    a(f'v_xor_b32 v{vpo2}, 128, v{vpo}')
    a(f's_lshl_b32 s6, {S_P}, 2')
    a(f'v_bfe_u32 v{vdto}, v0, 7, 1')
    a(f'v_lshl_add_u32 v{vdto}, v{vdto}, 1, s6')
    a(f'v_lshlrev_b32 v{vt0}, 4, v{vlane}')
    vx = al('x', 4, 2); vD = al('D', 4, 2)
    vla = al('la'); vai = al('ai'); vcr = al('cr'); vci = al('ci'); vcr2 = al('cr2'); vci2 = al('ci2'); vldt = al('ldt')
    a('s_waitcnt lgkmcnt(0)')
    stamp('kernarg')
    a(f'global_load_dwordx4 {vr(vx,4)}, v{vxo}, {P_X}')
    a(f's_load_dword {S_TAG}, {P_WS}, {WS_EPOCH}')
    a(f's_cmp_eq_u32 {S_W8}, 6'); a('s_cbranch_scc0 L_s0_n6')
    a(f'global_load_dwordx4 {vr(vD,4)}, v{vt0}, {P_DS}')
    a.label('L_s0_n6')
    a(f's_cmp_eq_u32 {S_W8}, 7'); a('s_cbranch_scc0 L_s0_n7')
    a(f'global_load_dwordx4 {vr(vD,4)}, v{vt0}, {P_WR}')
    a.label('L_s0_n7')
    if cfg.xbar: a('s_barrier')
    vones = al('ones', 4, 2)
    for i in range(4): a(f'v_mov_b32 v{vones+i}, -1')
    a('s_mul_i32 s6, s2, 768'); a(f's_mul_i32 s7, {S_W8}, 96'); a('s_add_u32 s6, s6, s7'); a(f's_add_u32 s6, s6, {WS_MISC}')
    a(f'v_lshl_add_u32 v{vt1}, v{vlane}, 4, s6')
    a(f'v_add_u32 v{vt2}, {WS_U}, v{vblk}')
    a(f'v_add_u32 v{vt3}, {WS_Y}, v{vblk}')
    if cfg.noclear: a('s_mov_b64 exec, 1')
    a(f'global_store_dwordx4 v{vt2}, {vr(vones,4)}, {P_WS} sc1')
    if not cfg.ylate: a(f'global_store_dwordx4 v{vt3}, {vr(vones,4)}, {P_WS} sc1')
    a('s_mov_b64 exec, 0x3f')
    a(f'global_store_dwordx4 v{vt1}, {vr(vones,4)}, {P_WS} sc1')
    a('s_mov_b64 exec, -1')
    if_role_a('L_s0_nopar')
    a(f'global_load_ushort v{vla}, v{vpo}, {P_LA}')
    a(f'global_load_ushort v{vai}, v{vpo}, {P_AI}')
    a(f'global_load_ushort v{vcr}, v{vpo}, {P_CR}')
    a(f'global_load_ushort v{vci}, v{vpo}, {P_CI}')
    a(f'global_load_ushort v{vcr2}, v{vpo2}, {P_CR}')
    a(f'global_load_ushort v{vci2}, v{vpo2}, {P_CI}')
    a(f'global_load_ushort v{vldt}, v{vdto}, {P_DT}')
    a('s_branch L_s0_par')
    a.label('L_s0_nopar')
    a(f's_cmp_ge_u32 {S_W8}, 6'); a('s_cbranch_scc1 L_s0_parB')
    a('s_getpc_b64 s[38:39]')
    a.label('L_pc_here')
    a(f's_sub_u32 s6, {S_W8}, 4'); a('s_lshl_b32 s6, s6, 13')
    a(f'v_lshl_add_u32 v{vja}, v{vlane}, 7, s6')
    a(f'v_min_u32 v{vja}, L_end-L_pc_here, v{vja}')
    a(f'global_load_dword v{vjunk}, v{vja}, s[38:39]')
    a.label('L_s0_parB')
    a(f'global_load_ushort v{vla}, v{vpo}, {P_LA}')
    a(f'global_load_ushort v{vai}, v{vpo}, {P_AI}')
    a(f'global_load_ushort v{vldt}, v{vdto}, {P_DT}')
    a.label('L_s0_par')
    R.release('paroff'); R.release('paroff2'); R.release('dtoff')
    stamp('issued')
    a(f's_mov_b32 {S_L2E}, {hx(f2u(1.4426950408889634))}')
    a(f's_mov_b32 {S_L2ELO}, {hx(f2u(1.4426950408889634 - f32(1.4426950408889634)))}')
    i2pi = 1.0 / (2 * math.pi)
    a(f's_mov_b32 {S_I2PI}, {hx(f2u(i2pi))}')
    a(f's_mov_b32 {S_I2PILO}, {hx(f2u(i2pi - f32(i2pi)))}')
    a(f's_mov_b32 {S_EPS}, {hx(f2u(1e-5))}')
    a(f's_mov_b32 {S_MASKHI}, 0xffff0000')
    a(f's_mov_b32 {S_ONE2}, 0x3f803f80')
    vz = al('z', 4, 2)
    for i in range(4): a(f'v_mov_b32 v{vz+i}, 0')
    a(f's_cmp_eq_u32 {S_W8}, 4'); a('s_cbranch_scc0 L_s0_z1')
    a(f'v_lshlrev_b32 v{vt0}, 4, v{vlane}')
    a(f'v_add_u32 v{vt1}, {UL_SZ - 512}, v{vt0}')
    a(f'v_cmp_gt_u32 vcc, 32, v{vlane}')
    a(f'v_cndmask_b32 v{vt0}, v{vt1}, v{vt0}, vcc')
    a(f'ds_write_b128 v{vt0}, {vr(vz,4)} offset:{L_UL}')
    a.label('L_s0_z1')
    a(f's_cmp_eq_u32 {S_W8}, 5'); a('s_cbranch_scc0 L_s0_z2')
    a(f'v_lshrrev_b32 v{vt0}, 1, v{vlane}')
    a(f'v_mul_u32_u24 v{vt0}, {KC_SZ}, v{vt0}')
    a(f'v_and_b32 v{vt1}, 1, v{vlane}')
    a(f'v_lshl_add_u32 v{vt0}, v{vt1}, 4, v{vt0}')
    a('s_mov_b64 exec, 0xff')
    a(f'ds_write_b128 v{vt0}, {vr(vz,4)} offset:{L_KC + 4096}')
    a('s_mov_b64 exec, -1')
    a.label('L_s0_z2')
    if cfg.r3:
        a(f'v_lshrrev_b32 v{vt0}, 7, v0'); a(f'v_mul_u32_u24 v{vt0}, {KC_SZ}, v{vt0}')
        a(f'v_and_b32 v{vt1}, 127, v0'); a(f'v_lshl_add_u32 v{vt0}, v{vt1}, 4, v{vt0}')
        a(f'ds_write_b128 v{vt0}, {vr(vz,4)} offset:{L_KC}')
    R.release('z')

    vTw = al('Tw'); vTs = al('Ts')
    a(f'v_and_b32 v{vt0}, 15, v{vlane}')
    a(f'v_lshrrev_b32 v{vt1}, 4, v{vlane}')
    a(f's_cmp_ge_u32 {S_W8}, 4'); a('s_cbranch_scc1 L_s0_t2')
    a(f's_bitcmp1_b32 {S_W8}, 0'); a('s_cbranch_scc1 L_s0_t1')
    a(f'v_lshrrev_b32 v{vt2}, 3, v{vt0}'); a(f'v_lshlrev_b32 v{vt2}, 7, v{vt2}')
    a(f'v_and_b32 v{vt3}, 7, v{vt0}'); a(f'v_add_u32 v{vTw}, v{vt2}, v{vt3}')
    a(f'v_mov_b32 v{vTs}, 8')
    a('s_branch L_s0_td')
    a.label('L_s0_t1')
    a(f'v_lshrrev_b32 v{vt2}, 2, v{vt0}'); a(f'v_lshlrev_b32 v{vt2}, 6, v{vt2}')
    a(f'v_and_b32 v{vt3}, 3, v{vt0}'); a(f'v_add_u32 v{vt2}, v{vt2}, v{vt3}'); a(f'v_add_u32 v{vTw}, 256, v{vt2}')
    a(f'v_lshrrev_b32 v{vt2}, 1, v{vt0}'); a(f'v_lshlrev_b32 v{vt2}, 5, v{vt2}')
    a(f'v_and_b32 v{vt3}, 1, v{vt0}'); a(f'v_add_u32 v{vt2}, v{vt2}, v{vt3}'); a(f'v_add_u32 v{vt2}, 256, v{vt2}')
    a(f'v_cmp_gt_u32 vcc, 8, v{vt0}')
    a(f'v_cndmask_b32 v{vTw}, v{vt2}, v{vTw}, vcc')
    a(f'v_mov_b32 v{vt2}, 2'); a(f'v_mov_b32 v{vt3}, 4'); a(f'v_cndmask_b32 v{vTs}, v{vt2}, v{vt3}, vcc')
    a('s_branch L_s0_td')
    a.label('L_s0_t2')
    a(f'v_lshlrev_b32 v{vTw}, 4, v{vt0}'); a(f'v_add_u32 v{vTw}, 512, v{vTw}')
    a(f'v_mov_b32 v{vTs}, 1')
    a.label('L_s0_td')
    a(f'v_lshlrev_b32 v{vt1}, 2, v{vt1}')
    a(f'v_mul_u32_u24 v{vt1}, v{vt1}, v{vTs}')
    a(f'v_add_u32 v{vTw}, v{vTw}, v{vt1}')
    a(f'v_lshlrev_b32 v{vTw}, 1, v{vTw}')
    a(f'v_lshlrev_b32 v{vTs}, 1, v{vTs}')
    S_KC, S_KT = 's40', 's41'
    a(f's_lshr_b32 {S_KC}, {S_W8}, 1'); a(f's_and_b32 {S_KT}, {S_W8}, 1')
    a(f's_sub_u32 s6, {S_W8}, 4')
    a(f's_cmp_ge_u32 {S_W8}, 4'); a(f's_cselect_b32 {S_KC}, s6, {S_KC}'); a(f's_cselect_b32 {S_KT}, 2, {S_KT}')
    a(f's_mul_i32 s6, {S_KC}, {TT_SZ}'); a(f's_add_u32 s6, s6, {L_TT}')
    a(f'v_add_u32 v{vTw}, s6, v{vTw}')
    vaa = al('kaa'); vba = al('kba')
    a(f's_mul_i32 s6, {S_KC}, {FG_SZ}'); a(f's_add_u32 s6, s6, {L_BIG}')
    a(f'v_and_b32 v{vt0}, 15, v{vlane}'); a(f'v_mul_u32_u24 v{vt0}, {FROW}, v{vt0}')
    a(f'v_lshrrev_b32 v{vt1}, 4, v{vlane}'); a(f'v_lshl_add_u32 v{vt0}, v{vt1}, 4, v{vt0}')
    a(f'v_add_u32 v{vaa}, s6, v{vt0}')
    a(f's_mul_i32 s7, {S_KT}, {16*FROW}'); a('s_add_u32 s6, s6, s7'); a(f's_add_u32 s6, s6, {F_SZ}')
    a(f'v_add_u32 v{vba}, s6, v{vt0}')

    vTa = al('Ta', 10, 2); vKw = al('Kw'); vz8 = al('z8')
    vf = al('f1', 12, 2); vfo = al('f1off'); vug = al('ugoff'); vul = al('ulds')
    a(f'v_and_b32 v{vz8}, 255, v0')
    a(f'v_lshlrev_b32 v{vug}, 13, v{vz8}')
    a(f's_lshl_b32 s6, {S_P}, 5'); a(f's_add_u32 s6, s6, {WS_U}')
    a(f'v_add_u32 v{vug}, s6, v{vug}')
    a('s_and_b32 s6, s2, 7'); a('s_lshl_b32 s6, s6, 12'); a(f's_add_u32 s6, s6, {WS_F1}')
    a(f'v_lshl_add_u32 v{vfo}, v{vlane}, 4, s6')
    a(f'v_lshlrev_b32 v{vul}, 4, v{vz8}')
    if cfg.r3:
        vRa = al('Ra', 8, 2); vRw = al('Rw'); vXa = al('Xa'); vRb = al('Rb')
        vWu = al('Wu'); vWw = al('Ww')
    if_role_a('L_s0_noexp')
    if not cfg.r3:
        a(f'v_sub_u32 v{vKw}, 255, v{vz8}')
        a(f'v_lshlrev_b32 v{vKw}, 4, v{vKw}')
        a(f'v_lshlrev_b32 v{vz8}, 3, v{vz8}')
        a(f'v_add_u32 v{vz8}, 9, v{vz8}')
        tb = None
    else:
        a(f'v_and_b32 v{vz8}, 127, v0')
        a(f'v_sub_u32 v{vKw}, 255, v{vz8}')
        a(f'v_lshlrev_b32 v{vKw}, 4, v{vKw}')
        a(f'v_lshrrev_b32 v{vt1}, 7, v0')
        a(f'v_mul_u32_u24 v{vt2}, {2*KC_SZ}, v{vt1}'); a(f'v_add_u32 v{vKw}, v{vKw}, v{vt2}')
        a(f'v_mul_u32_u24 v{vt3}, {TT_SZ}, v{vt1}'); a(f'v_add_u32 v{vt3}, {L_TT}, v{vt3}')
        a(f'v_lshlrev_b32 v{vz8}, 3, v{vz8}')
        a(f'v_add_u32 v{vz8}, 9, v{vz8}')
        tb = vt3
    for k in range(10):
        d = vTa + k
        a(f'v_subrev_u32 v{d}, {k}, v{vz8}')
        a(f'v_cvt_f32_u32 v{vt0}, v{d}')
        a(f'v_cvt_pk_bf16_f32 v{vt0}, v{vt0}, v{vt0}')
        a(f'v_and_b32 v{vt0}, 0xffff, v{vt0}')
        a(f'v_subrev_u32 v{vt0}, 17024, v{vt0}')
        a(f'v_min_u32 v{d}, 128, v{d}')
        a(f'v_max_i32 v{d}, v{vt0}, v{d}')
        if tb is None: a(f'v_lshlrev_b32 v{d}, 1, v{d}')
        else: a(f'v_lshl_add_u32 v{d}, v{d}, 1, v{tb}')
    if cfg.r3:
        a(f'v_and_b32 v{vt0}, 31, v0'); a(f'v_lshlrev_b32 v{vt0}, 3, v{vt0}')
        a(f'v_bfe_u32 v{vt1}, v0, 5, 1')
        a(f'v_bfe_u32 v{vt2}, v0, 6, 1')
        a(f'v_sub_u32 v{vRw}, v{vt1}, v{vt0}'); a(f'v_add_u32 v{vRw}, 65, v{vRw}'); a(f'v_sub_u32 v{vRw}, v{vRw}, v{vt2}')
        a(f'v_sub_u32 v{vz8}, 64, v{vt2}')
        a(f'v_add_u32 v{vt2}, 512, v{vt2}')
        for e in range(8):
            d = vRa + e
            a(f'v_subrev_u32 v{vt0}, {e}, v{vRw}')
            a(f'v_lshl_add_u32 v{d}, v{vt0}, 1, v{vt2}')
            a(f'v_lshl_add_u32 v{d}, v{d}, 1, v{vt3}')
            a(f'v_cmp_le_u32 vcc, v{vt0}, v{vz8}')
            a(f'v_mov_b32 v{vt1}, {L_UL}')
            a(f'v_cndmask_b32 v{d}, v{vt1}, v{d}, vcc')
        a(f'v_lshrrev_b32 v{vRw}, 5, v0'); a(f'v_mul_u32_u24 v{vRw}, 320, v{vRw}')
        a(f'v_and_b32 v{vt0}, 31, v0'); a(f'v_lshl_add_u32 v{vRw}, v{vt0}, 4, v{vRw}'); a(f'v_add_u32 v{vRw}, {L_RA}, v{vRw}')
        a(f'v_lshrrev_b32 v{vt0}, 4, v{vlane}'); a(f'v_lshlrev_b32 v{vt0}, 3, v{vt0}')
        a(f'v_bfe_u32 v{vt1}, v{vlane}, 2, 2'); a(f'v_add_u32 v{vt0}, v{vt0}, v{vt1}'); a(f'v_lshlrev_b32 v{vXa}, 5, v{vt0}')
        a(f'v_and_b32 v{vt1}, 3, v{vlane}'); a(f'v_lshl_add_u32 v{vXa}, v{vt1}, 3, v{vXa}')
        a(f's_mul_i32 s6, {S_W8}, 3072'); a(f's_add_u32 s6, s6, {L_W}'); a(f'v_add_u32 v{vXa}, s6, v{vXa}')
        a(f'v_and_b32 v{vt0}, 15, v{vlane}'); a(f'v_and_b32 v{vt1}, 1, v{vt0}')
        a(f'v_mul_u32_u24 v{vRb}, 322, v{vt1}')
        a(f'v_lshlrev_b32 v{vt0}, 1, v{vt0}'); a(f'v_sub_u32 v{vRb}, v{vRb}, v{vt0}')
        a(f'v_lshrrev_b32 v{vt0}, 4, v{vlane}'); a(f'v_lshl_add_u32 v{vRb}, v{vt0}, 4, v{vRb}')
        a(f's_mul_i32 s6, {S_W8}, 640'); a(f's_add_u32 s6, s6, {L_RA + 128 - 96}'); a(f'v_add_u32 v{vRb}, s6, v{vRb}')
        a('s_branch L_s0_r3d')
    a.label('L_s0_noexp')
    if cfg.r3:
        a(f'v_and_b32 v{vt0}, 127, v0'); a(f'v_bfe_u32 v{vt1}, v0, 7, 1')
        a(f'v_mul_u32_u24 v{vWu}, {UL_SZ}, v{vt1}'); a(f'v_lshl_add_u32 v{vWu}, v{vt0}, 4, v{vWu}'); a(f'v_add_u32 v{vWu}, {L_UL + 16*31}, v{vWu}')
        a(f'v_mul_u32_u24 v{vWw}, 6144, v{vt1}'); a(f'v_lshl_add_u32 v{vWw}, v{vt0}, 4, v{vWw}'); a(f'v_add_u32 v{vWw}, {L_W}, v{vWw}')
        a.label('L_s0_r3d')
    R.release('z8')

    vEP = al('EP'); vISa = al('ISa'); vYa = al('Ya')
    a(f'v_lshrrev_b32 v{vt0}, 1, v0')
    a(f'v_and_b32 v{vt1}, 1, v0')
    a(f'v_mul_u32_u24 v{vEP}, {PX_C}, v{vt1}')
    a(f'v_lshrrev_b32 v{vt3}, 5, v{vt0}'); a(f'v_mul_u32_u24 v{vt3}, {PX_T}, v{vt3}'); a(f'v_add_u32 v{vEP}, v{vEP}, v{vt3}')
    a(f'v_bfe_u32 v{vt3}, v{vt0}, 1, 4'); a(f'v_lshl_add_u32 v{vEP}, v{vt3}, 4, v{vEP}')
    a(f'v_and_b32 v{vt3}, 1, v{vt0}'); a(f'v_mul_u32_u24 v{vt3}, 640, v{vt3}'); a(f'v_add_u32 v{vEP}, v{vEP}, v{vt3}')
    a(f'v_add_u32 v{vEP}, {L_PX}, v{vEP}')
    a(f'v_lshlrev_b32 v{vISa}, 2, v{vt1}')
    a(f'v_add_u32 v{vYa}, {WS_Y}, v{vblk}')
    vLA = al('LA', 4); vLB = al('LB'); vPW = al('PW')
    if_role_a('L_s0_nocv')
    a(f's_lshr_b32 s6, {S_W8}, 1'); a(f's_and_b32 s7, {S_W8}, 1')
    a(f'v_and_b32 v{vt0}, 15, v{vlane}'); a(f'v_lshrrev_b32 v{vt1}, 4, v{vlane}')
    a(f'v_and_b32 v{vt2}, 1, v{vt0}')
    a(f'v_mul_u32_u24 v{vt3}, {KC_SZ + 2}, v{vt2}')
    a(f'v_lshl_add_u32 v{vt3}, v{vt1}, 4, v{vt3}')
    a(f'v_lshlrev_b32 v{vt2}, 1, v{vt0}')
    a(f'v_sub_u32 v{vt3}, v{vt3}, v{vt2}')
    a(f's_mul_i32 s38, s6, {2*KC_SZ}'); a('s_lshl_b32 s39, s7, 8')
    a('s_sub_u32 s38, s38, s39'); a(f's_add_u32 s38, s38, {L_KC + 4064 - 64*15}')
    a(f'v_add_u32 v{vLA}, s38, v{vt3}')
    for J in range(1, 4): a(f'v_subrev_u32 v{vLA+J}, {1024*J}, v{vLA}')
    a(f'v_lshl_add_u32 v{vt2}, v{vt0}, 1, v{vt1}')
    a(f's_mul_i32 s38, s6, {UL_SZ}'); a('s_sub_u32 s38, s38, s39'); a(f's_add_u32 s38, s38, {L_UL + 480 - 192}')
    a(f'v_lshl_add_u32 v{vLB}, v{vt2}, 4, s38')
    a(f's_mul_i32 s38, s6, {PX_C}'); a(f's_mul_i32 s39, s7, {PX_H}'); a('s_add_u32 s38, s38, s39'); a(f's_add_u32 s38, s38, {L_PX}')
    a(f'v_lshrrev_b32 v{vt0}, 5, v{vlane}'); a(f'v_lshlrev_b32 v{vt0}, 7, v{vt0}')
    a(f'v_lshl_add_u32 v{vt0}, v{vlane}, 4, v{vt0}')
    a(f'v_add_u32 v{vPW}, s38, v{vt0}')
    a.label('L_s0_nocv')

    def unpack8(dst, src):
        for j in range(4):
            a(f'v_lshlrev_b32 v{dst+2*j}, 16, v{src+j}')
            a(f'v_and_b32 v{dst+2*j+1}, {S_MASKHI}, v{src+j}')
    def cvt4(dst, src, kind='bf16'):
        for j in range(4):
            a(f'v_cvt_pk_{kind}_f32 v{dst+j}, v{src+2*j}, v{src+2*j+1}')
    def xlane2(p, t, op='add_f32', pk=True):
        a(f'v_add_f32_dpp v{p}, v{p}, v{p} row_ror:8 row_mask:0xf bank_mask:0xf')
        a(f'v_add_f32_dpp v{p+1}, v{p+1}, v{p+1} row_ror:8 row_mask:0xf bank_mask:0xf')
        for sw in ('16', '32'):
            a(f'v_mov_b32 v{t}, v{p}'); a(f'v_mov_b32 v{t+1}, v{p+1}')
            a(f'v_permlane{sw}_swap_b32 v{t}, v{p}'); a(f'v_permlane{sw}_swap_b32 v{t+1}, v{p+1}')
            a(f'v_pk_add_f32 {vr(p,2)}, {vr(p,2)}, {vr(t,2)}')
    def xlane1(p, t, op, full=False):
        if full:
            for ror in (1, 2, 4):
                a(f'v_{op}_dpp v{p}, v{p}, v{p} row_ror:{ror} row_mask:0xf bank_mask:0xf')
        a(f'v_{op}_dpp v{p}, v{p}, v{p} row_ror:8 row_mask:0xf bank_mask:0xf')
        for sw in ('16', '32'):
            a(f'v_mov_b32 v{t}, v{p}')
            a(f'v_permlane{sw}_swap_b32 v{t}, v{p}')
            a(f'v_{op} v{p}, v{p}, v{t}')
    def ln_stats_partial(pk, S, t, lds_off):
        a(f'v_dot2_f32_bf16 v{S}, v{pk}, {S_ONE2}, 0')
        a(f'v_dot2_f32_bf16 v{S+1}, v{pk}, v{pk}, 0')
        for j in range(1, 4):
            a(f'v_dot2_f32_bf16 v{S}, v{pk+j}, {S_ONE2}, v{S}')
            a(f'v_dot2_f32_bf16 v{S+1}, v{pk+j}, v{pk+j}, v{S+1}')
        a(f's_lshl_b32 s6, {S_W8}, 3')
        xlane2(S, t)
        a(f'v_lshl_add_u32 v{t}, v{vtk}, 6, s6')
        a('s_mov_b64 exec, 0xff')
        a(f'ds_write_b64 v{t}, {vr(S,2)} offset:{lds_off}')
        a('s_mov_b64 exec, -1')
    def ln_finish(xf, d, S, t, lds_off, m, rs, sout):
        a(f'v_lshlrev_b32 v{t}, 6, v{vtk}')
        for j in range(4): a(f'ds_read_b128 {vr(d+4*j,4)}, v{t} offset:{lds_off + 16*j}')
        a('s_waitcnt lgkmcnt(0)')
        for j in (0, 4, 8, 12): a(f'v_pk_add_f32 {vr(d+j,2)}, {vr(d+j,2)}, {vr(d+j+2,2)}')
        a(f'v_pk_add_f32 {vr(d,2)}, {vr(d,2)}, {vr(d+4,2)}')
        a(f'v_pk_add_f32 {vr(d+8,2)}, {vr(d+8,2)}, {vr(d+12,2)}')
        a(f'v_pk_add_f32 {vr(S,2)}, {vr(d,2)}, {vr(d+8,2)}')
        inv = hx(f2u(1.0/512))
        a(f'v_mul_f32 v{S}, {inv}, v{S}')
        a(f'v_mul_f32 v{S+1}, {inv}, v{S+1}')
        a(f'v_fma_f32 v{S+1}, -v{S}, v{S}, v{S+1}')
        a(f'v_max_f32 v{S+1}, 0, v{S+1}')
        a(f'v_cvt_pk_bf16_f32 v{t}, v{S}, v{S+1}')
        a(f'v_lshlrev_b32 v{m}, 16, v{t}')
        a(f'v_and_b32 v{t}, {S_MASKHI}, v{t}')
        a(f'v_add_f32 v{t}, {S_EPS}, v{t}')
        a(f'v_cvt_pk_bf16_f32 v{t}, v{t}, v{t}')
        a(f'v_lshlrev_b32 v{t}, 16, v{t}')
        a(f'v_sqrt_f32 v{t}, v{t}')
        a(f'v_cvt_pk_bf16_f32 v{t}, v{t}, v{t}')
        a(f'v_lshlrev_b32 v{sout}, 16, v{t}')
        a(f'v_rcp_f32 v{rs}, v{sout}')
        normalize(xf, m, rs, d)
    def normalize(xf, m, rs, d):
        for j in range(4):
            a(f'v_pk_add_f32 {vr(d+2*j,2)}, {vr(xf+2*j,2)}, {vr(m,2)} op_sel_hi:[1,0] neg_lo:[0,1] neg_hi:[0,1]')
        cvt4(d+8, d)
        unpack8(d, d+8)
        for j in range(4):
            a(f'v_pk_mul_f32 {vr(d+2*j,2)}, {vr(d+2*j,2)}, {vr(rs,2)} op_sel_hi:[1,0]')
        cvt4(d+8, d)

    vxf = al('xf', 8, 2); vud = al('ud', 8, 2); vm1 = al('m1', 2, 2)
    vd = al('d', 16, 4); vS = al('S', 2, 2); vt = al('t', 2, 2); vrs = al('rs', 2, 2); vs_ = al('s', 2, 2)
    if cfg.wtouch:
        vtw = al('tw')
        a('s_and_b32 s6, s2, 7'); a('s_lshr_b32 s7, s2, 3')
        a('s_mul_i32 s38, s6, 448'); a('s_and_b32 s38, s38, 0xffffff80')
        a(f's_mul_i32 s39, s7, {16*3584}'); a('s_add_u32 s38, s38, s39')
        a(f'v_lshrrev_b32 v{vtw}, 2, v{vlane}'); a(f'v_mul_u32_u24 v{vtw}, 3584, v{vtw}')
        a(f'v_and_b32 v{vt0}, 3, v{vlane}'); a(f'v_lshl_add_u32 v{vtw}, v{vt0}, 7, v{vtw}')
        a(f'v_add_u32 v{vtw}, s38, v{vtw}')
        a(f'v_min_u32 v{vtw}, {512*3584 - 4}, v{vtw}')
        a('s_lshl_b32 s38, s6, 7'); a(f's_mul_i32 s39, s7, {56*1024}'); a('s_add_u32 s38, s38, s39')
        a(f's_and_b32 s39, {S_W8}, 1'); a(f's_mul_i32 s39, s39, {28*1024}'); a('s_add_u32 s38, s38, s39')
        a(f'v_min_u32 v{vt0}, 27, v{vlane}'); a(f'v_lshl_add_u32 v{vt0}, v{vt0}, 10, s38')
        a(f's_cmp_ge_u32 {S_W8}, 2'); a('s_cselect_b64 vcc, -1, 0')
        a(f'v_cndmask_b32 v{vtw}, v{vtw}, v{vt0}, vcc')
        a(f's_cmp_eq_u32 {S_W8}, 1'); a('s_cselect_b32 s44, s28, s26'); a('s_cselect_b32 s45, s29, s27')
        a(f's_cmp_ge_u32 {S_W8}, 2'); a('s_cselect_b32 s44, s30, s44'); a('s_cselect_b32 s45, s31, s45')
    stamp('precomp')
    a(f's_cmp_lt_u32 {S_W8}, 4'); a('s_cbranch_scc1 L_s1_wa')
    a(f's_cmp_lt_u32 {S_W8}, 6'); a('s_cbranch_scc1 L_s1_wb')
    ncl = 2 if cfg.ylate else 3
    a(f's_waitcnt vmcnt({ncl+3})'); a('s_branch L_s1_wd')
    a.label('L_s1_wb'); a(f's_waitcnt vmcnt({ncl+4})'); a('s_branch L_s1_wd')
    a.label('L_s1_wa'); a(f's_waitcnt vmcnt({ncl+7})')
    a.label('L_s1_wd')
    if cfg.prio: a('s_setprio 1')
    stamp('x_arrived')
    if cfg.ylate == 2:
        a(f'global_store_dwordx4 v{vYa}, {vr(vones,4)}, {P_WS} sc1')
    R.release('ones')
    if cfg.wtouch == 1:
        if_role_a('L_tw_done')
        a(f'global_load_dword v{vjunk}, v{vtw}, s[44:45]')
        a.label('L_tw_done')
        R.release('tw')
    ln_stats_partial(vx, vS, vt, L_ST1)
    unpack8(vxf, vx)
    a(f's_cmp_lt_u32 {S_W8}, 6'); a('s_cbranch_scc1 L_s1_nodw')
    a(f's_sub_u32 s6, {S_W8}, 6'); a('s_lshl_b32 s6, s6, 10'); a(f's_add_u32 s6, s6, {L_D}')
    a(f'v_lshl_add_u32 v{vt0}, v{vlane}, 4, s6')
    a(f'ds_write_b128 v{vt0}, {vr(vD,4)}')
    a.label('L_s1_nodw')
    a(f's_cmp_lt_u32 {S_W8}, 4'); a('s_cbranch_scc1 L_s1_ca')
    a(f's_cmp_lt_u32 {S_W8}, 6'); a('s_cbranch_scc1 L_s1_cb')
    y2 = 1 if cfg.ylate == 2 else 0
    a(f's_waitcnt vmcnt({3+y2}) lgkmcnt(0)'); a('s_branch L_s1_cd')
    a.label('L_s1_cb'); a(f's_waitcnt vmcnt({4+y2}) lgkmcnt(0)'); a('s_branch L_s1_cd')
    a.label('L_s1_ca'); a(f's_waitcnt vmcnt({7 + y2 + (1 if cfg.wtouch == 1 else 0)}) lgkmcnt(0)')
    a.label('L_s1_cd')
    stamp('ln1_prebar')
    a('s_barrier')
    a(f's_add_u32 {S_TAG}, {S_TAG}, 1')
    a(f's_cmp_eq_u32 {S_W8}, 4'); a('s_cbranch_scc0 L_s1_nof1')
    a('s_lshl_b32 s7, s2, 4'); a(f's_add_u32 s6, s7, {WS_F1}')
    a(f'v_lshl_add_u32 v{vt0}, v{vlane}, 12, s6')
    a(f'v_mov_b32 v{vt1}, {S_TAG}')
    a('s_mov_b64 exec, 0xff')
    a(f'global_store_dword v{vt0}, v{vt1}, {P_WS} sc1')
    a('s_mov_b64 exec, -1')
    a.label('L_s1_nof1')
    a(f'ds_read_b128 {vr(vD,4)}, v{vch} offset:{L_D}')
    ln_finish(vxf, vd, vS, vt, L_ST1, vm1, vrs, vs_)
    stamp('ln1_fin')
    unpack8(vd, vd+8)
    cvt4(vd+12, vd, 'f16')
    S_STG = 's42'
    a(f's_mul_i32 {S_STG}, {S_W8}, {STG_SZ}'); a(f's_add_u32 {S_STG}, {S_STG}, {L_STG}')
    a(f'v_mul_u32_u24 v{vt0}, 192, v{vtk}')
    a(f'v_lshl_add_u32 v{vt0}, v{vcg}, 4, v{vt0}')
    a(f'v_add_u32 v{vt0}, {S_STG}, v{vt0}')
    a(f'ds_write_b128 v{vt0}, {vr(vd+12,4)}')
    a(f'v_bfe_u32 v{vt1}, v{vlane}, 2, 2')
    a(f'v_mul_u32_u24 v{vt1}, 192, v{vt1}')
    a(f'v_lshrrev_b32 v{vt2}, 4, v{vlane}')
    a(f'v_lshl_add_u32 v{vt1}, v{vt2}, 5, v{vt1}')
    a(f'v_and_b32 v{vt2}, 3, v{vlane}')
    a(f'v_lshl_add_u32 v{vt1}, v{vt2}, 3, v{vt1}')
    a(f'v_add_u32 v{vt1}, {S_STG}, v{vt1}')
    a(f'v_add_u32 v{vt2}, {WS_U}, v{vblk}')
    a('s_waitcnt lgkmcnt(0)')
    a(f'ds_read_b64_tr_b16 {vr(vd+8,2)}, v{vt1}')
    a(f'ds_read_b64_tr_b16 {vr(vd+10,2)}, v{vt1} offset:{4*192}')
    unpack8(vud, vD)
    for j in range(4): a(f'v_pk_mul_f32 {vr(vud+2*j,2)}, {vr(vud+2*j,2)}, {vr(vd+2*j,2)}')
    if cfg.ylate == 2:
        a(f's_cmp_eq_u32 {S_W8}, 4'); a('s_cbranch_scc1 L_s1_ya')
        a('s_waitcnt vmcnt(0) lgkmcnt(0)'); a('s_branch L_s1_yd')
        a.label('L_s1_ya'); a('s_waitcnt vmcnt(1) lgkmcnt(0)')
        a.label('L_s1_yd')
    else:
        a('s_waitcnt lgkmcnt(0)')
    a(f'global_store_dwordx4 v{vt2}, {vr(vd+8,4)}, {P_WS} sc1')
    if cfg.ylate == 1:
        vo3 = al('ones3', 4, 2)
        for i in range(4): a(f'v_mov_b32 v{vo3+i}, -1')
        a(f'global_store_dwordx4 v{vYa}, {vr(vo3,4)}, {P_WS} sc1')
        R.release('ones3')
    if cfg.prio: a('s_setprio 0')
    stamp('u_stored')
    cvt4(vd+12, vud)
    unpack8(vud, vd+12)
    R.release('x'); R.release('D')
    for n in ('d', 'S', 't', 'rs', 's'): R.release(n)
    if stop_here(1): return finish(a, R, cfg)

    a(f's_waitcnt vmcnt({1 + (1 if cfg.wtouch == 1 else 0) + (1 if cfg.ylate == 1 else 0)})')
    stamp('kg_start')
    kt = al('kt', 12, 2)
    def exp_acc(x, t1, t2):
        a(f'v_mul_f32 v{t1}, {S_L2E}, v{x}')
        a(f'v_fma_f32 v{t2}, v{x}, {S_L2E}, -v{t1}')
        a(f'v_fma_f32 v{t2}, v{x}, {S_L2ELO}, v{t2}')
        a(f'v_exp_f32 v{x}, v{t1}')
        a(f'v_mul_f32 v{t2}, {hx(f2u(math.log(2)))}, v{t2}')
        a(f'v_fma_f32 v{x}, v{x}, v{t2}, v{x}')
    for r in (vla, vai, vldt): a(f'v_lshlrev_b32 v{r}, 16, v{r}')
    exp_acc(vldt, kt, kt+1); exp_acc(vla, kt+2, kt+3)
    a(f'v_cvt_pk_bf16_f32 v{kt}, v{vldt}, v{vla}')
    vdt = vldt; vAr = vla
    a(f'v_lshlrev_b32 v{vdt}, 16, v{kt}')
    a(f'v_and_b32 v{vAr}, {S_MASKHI}, v{kt}')
    val_ = al('al'); vfh = al('fh'); vfl = al('fl'); v2dt = al('2dt')
    a(f'v_mul_f32 v{val_}, v{vAr}, v{vdt}')
    a(f'v_mul_f32 v{kt}, v{vai}, v{vdt}')
    a(f'v_mul_f32 v{val_}, {S_L2E}, v{val_}')
    a(f'v_mul_f32 v{vfh}, {S_I2PI}, v{kt}')
    a(f'v_fma_f32 v{vfl}, v{kt}, {S_I2PI}, -v{vfh}')
    a(f'v_fma_f32 v{vfl}, v{kt}, {S_I2PILO}, v{vfl}')
    def anchor(E, p):
        a(f'v_mul_f32 v{kt}, {hx(f2u(-float(p)))}, v{val_}')
        a(f'v_mul_f32 v{kt+1}, {hx(f2u(float(p)))}, v{vfh}')
        a(f'v_exp_f32 v{kt}, v{kt}')
        a(f'v_fract_f32 v{kt+1}, v{kt+1}')
        a(f'v_mov_b32 v{kt+2}, {hx(f2u(float(p)))}')
        a(f'v_fma_f32 v{kt+1}, v{vfl}, v{kt+2}, v{kt+1}')
        a(f'v_cos_f32 v{E}, v{kt+1}')
        a(f'v_sin_f32 v{E+1}, v{kt+1}')
        a(f'v_pk_mul_f32 {vr(E,2)}, {vr(E,2)}, {vr(kt,2)} op_sel_hi:[1,0]')
    def cmul(d, x, y):
        a(f'v_pk_mul_f32 {vr(d,2)}, {vr(x,2)}, {vr(y,2)} op_sel:[0,0] op_sel_hi:[0,1]')
        a(f'v_pk_fma_f32 {vr(d,2)}, {vr(x,2)}, {vr(y,2)}, {vr(d,2)} op_sel:[1,1,0] op_sel_hi:[1,0,1] neg_lo:[1,0,0]')
    XOF = 20000
    a(f's_bfe_u32 s6, {S_W8}, 0x10001'); a(f's_mul_i32 s6, s6, {FG_SZ}'); a(f's_add_u32 s6, s6, {L_BIG - XOF}')
    a(f's_and_b32 s7, {S_W8}, 1'); a('s_lshl_b32 s7, s7, 8'); a('s_add_u32 s6, s6, s7')
    a('s_mov_b32 m0, s6')
    cv = [kt+8, kt+9, kt+10, kt+11]; cvi = [0]
    def put(row, val, isG):
        t = cv[cvi[0] % 4]; cvi[0] += 1
        if isG:
            a(f'v_cvt_pk_f16_f32 v{t}, v{val}, -v{val+1}')
            a(f'ds_write_addtid_b32 v{t} offset:{XOF + F_SZ + row*FROW}')
        else:
            a(f'v_cvt_pk_f16_f32 v{t}, v{val}, v{val+1}')
            a(f'ds_write_addtid_b32 v{t} offset:{XOF + row*FROW}')
    E1 = al('E1', 2, 2); E8 = al('E8', 2, 2); E128 = al('E128', 2, 2)
    Fa = al('Fa', 2, 2); Fb = al('Fb', 2, 2); Ha = al('Ha', 2, 2); Hb = al('Hb', 2, 2)
    O = [None] + [al(f'O{i}', 2, 2) for i in range(1, 8)]
    Gt = [al('Gt0', 2, 2), al('Gt1', 2, 2)]
    if_role_a('L_k_roleB')
    for r in (vcr, vci, vcr2, vci2): a(f'v_lshlrev_b32 v{r}, 16, v{r}')
    vsum = kt + 4
    a(f'v_add_f32 v{vsum}, |v{vcr}|, |v{vci}|')
    a(f'v_add_f32 v{kt+5}, |v{vcr2}|, |v{vci2}|')
    a(f'v_add_f32 v{vsum}, v{vsum}, v{kt+5}')
    xlane1(vsum, kt+5, 'add_f32', full=True)
    anchor(E128, 128); anchor(E1, 1)
    a(f'v_add_f32 v{v2dt}, v{vdt}, v{vdt}')
    a(f'v_mul_f32 v{vsum}, v{vsum}, v{v2dt}')
    a(f'v_frexp_exp_i32_f32 v{kt+5}, v{vsum}')
    a(f'v_sub_u32 v{kt+6}, 15, v{kt+5}')
    a(f'v_ldexp_f32 v{v2dt}, v{v2dt}, v{kt+6}')
    a(f'v_subrev_u32 v{kt+5}, 15, v{kt+5}')
    a(f'v_mov_b32 v{kt+6}, 1.0')
    a(f'v_ldexp_f32 v{kt+6}, v{kt+6}, v{kt+5}')
    a(f's_lshr_b32 s6, {S_W8}, 1'); a('s_lshl_b32 s6, s6, 2'); a(f's_add_u32 s6, s6, {L_IS}')
    a(f'v_mov_b32 v{kt+7}, s6')
    a('s_mov_b64 exec, 1')
    a(f'ds_write_b32 v{kt+7}, v{kt+6}')
    a('s_mov_b64 exec, -1')
    stamp('kg_anch')
    a(f'v_mul_f32 v{Ha}, v{vcr}, v{v2dt}'); a(f'v_mul_f32 v{Ha+1}, v{vci}, v{v2dt}')
    O[1] = E1
    cmul(O[2], O[1], O[1]); cmul(Hb, Ha, E128); put(0, Ha, True)
    cmul(O[3], O[2], O[1]); cmul(O[4], O[2], O[2])
    cmul(O[5], O[4], O[1]); cmul(O[6], O[4], O[2]); cmul(O[7], O[4], O[3])
    def gcol(i, o):
        if i < 2: return 8*i + o
        if i < 4: return 16 + 4*(i-2) + o//2
        if i < 8: return 24 + 2*(i-4) + o//4
        return 32 + (i-8)
    Hcur, Hnx = Ha, Hb
    gi = 0
    for i in range(0, 17):
        offs = list(range(8)) if i < 2 else ([0,2,4,6] if i < 4 else ([0,4] if i < 8 else [0]))
        if i > 0:
            put(gcol(i, 0), Hcur, True)
            if i < 16: cmul(Hnx, Hcur, E128)
        for o in offs[1:]:
            gg = Gt[gi % 2]; gi += 1
            cmul(gg, Hcur, O[o]); put(gcol(i, o), gg, True)
        Hcur, Hnx = Hnx, Hcur
    stamp('kg_ch')
    a('s_waitcnt vmcnt(0) lgkmcnt(0)' if cfg.ylate == 1 else 's_waitcnt lgkmcnt(0)')
    stamp('kgen_valu')
    a('s_branch L_k_bb')
    a.label('L_k_roleB')
    anchor(E8, 8)
    a(f'v_mov_b32 v{cv[0]}, 0x00003c00'); a(f'ds_write_addtid_b32 v{cv[0]} offset:{XOF}'); cvi[0] = 1
    put(1, E8, False)
    cmul(Fa, E8, E8); put(2, Fa, False)
    Fcur, Fnx = Fa, Fb
    for fj in range(3, 16):
        cmul(Fnx, Fcur, E8); put(fj, Fnx, False); Fcur, Fnx = Fnx, Fcur
    vu = al('u', 8, 2)
    a(f's_cmp_eq_u32 {S_W8}, 4'); a('s_cbranch_scc0 L_k_nof1p')
    def f1issue():
        for j in range(4): a(f'global_load_dword v{vf+j}, v{vfo}, {P_WS} offset:{1024*j} sc1')
    poll_loop(f1issue, [vf, vf+1, vf+2, vf+3], vt0, 'f1', cmp_tag=True)
    a.label('L_k_nof1p')
    a('s_waitcnt vmcnt(0) lgkmcnt(0)' if cfg.ylate == 1 else 's_waitcnt lgkmcnt(0)')
    if cfg.active('kgen_valu'): a(f'{cfg.tinstr} s[{70+2*(len(cfg.stamp_names)-1)}:{71+2*(len(cfg.stamp_names)-1)}]')
    for n in ['kt','al','fh','fl','2dt','E1','E8','E128','Fa','Fb','Ha','Hb','Gt0','Gt1'] + [f'O{i}' for i in range(1,8)]: R.release(n)
    for n in ('la','ai','cr','ci','cr2','ci2','ldt'): R.release(n)
    a.label('L_k_bb')
    a('s_barrier')
    stamp('B_b')
    if cfg.wtouch == 3:
        if_role_a('L_tw3'); a(f'global_load_dword v{vjunk}, v{vtw}, s[44:45]'); a.label('L_tw3')
    if cfg.ylate == 1:
        a(f's_cmp_eq_u32 {S_W8}, 5'); a('s_cbranch_scc0 L_k_nof2')
        a('s_lshl_b32 s7, s2, 4'); a(f's_add_u32 s6, s7, {WS_F2}')
        a(f'v_lshl_add_u32 v{vt0}, v{vlane}, 12, s6'); a(f'v_mov_b32 v{vt1}, {S_TAG}')
        a('s_mov_b64 exec, 0xff')
        a(f'global_store_dword v{vt0}, v{vt1}, {P_WS} sc1')
        a('s_mov_b64 exec, -1')
        a.label('L_k_nof2')
    if_role_b('L_k_nog')
    fl = '' if cfg.plain1 & 1 else ' sc1'
    a(f'global_load_dwordx4 {vr(vu,4)}, v{vug}, {P_WS}{fl}')
    a(f'global_load_dwordx4 {vr(vu+4,4)}, v{vug}, {P_WS} offset:16{fl}')
    a.label('L_k_nog')
    a(f's_cmp_ge_u32 {S_W8}, 6'); a('s_cbranch_scc1 L_k_nomf')
    vA = al('kA', 32, 4); vB = al('kB', 32, 4); vacc = al('kacc', 4, 4)
    for k in range(8):
        a(f'ds_read_b128 {vr(vA+4*k,4)}, v{vaa} offset:{64*k}')
        a(f'ds_read_b128 {vr(vB+4*k,4)}, v{vba} offset:{64*k}')
        if k == 6: a('s_waitcnt lgkmcnt(10)') if False else None
    a(f'v_add_u32 v{vt0}, v{vTw}, v{vTs}')
    a(f'v_add_u32 v{vt1}, v{vt0}, v{vTs}')
    a(f'v_add_u32 v{vt2}, v{vt1}, v{vTs}')
    for k in range(8):
        a(f's_waitcnt lgkmcnt({min(15, 2*(7-k))})')
        a(f'v_mfma_f32_16x16x32_f16 {vr(vacc,4)}, {vr(vA+4*k,4)}, {vr(vB+4*k,4)}, {"0" if k == 0 else vr(vacc,4)}')
    a(f'v_cvt_pk_f16_f32 v{vA}, v{vacc}, v{vacc+1}')
    a(f'v_cvt_pk_f16_f32 v{vA+1}, v{vacc+2}, v{vacc+3}')
    a(f'ds_write_b16 v{vTw}, v{vA}')
    a(f'ds_write_b16_d16_hi v{vt0}, v{vA}')
    a(f'ds_write_b16 v{vt1}, v{vA+1}')
    a(f'ds_write_b16_d16_hi v{vt2}, v{vA+1}')
    for n in ('kA','kB','kacc','kaa','kba'): R.release(n)
    a.label('L_k_nomf')
    a('s_waitcnt lgkmcnt(0)')
    stamp('k_mf')
    a('s_barrier')
    stamp('B_c')
    if cfg.wtouch == 4:
        if_role_a('L_tw4'); a(f'global_load_dword v{vjunk}, v{vtw}, s[44:45]'); a.label('L_tw4')
    R.release('Tw'); R.release('Ts')
    if_role_a('L_k_noexp')
    if not cfg.r3:
        ve = al('e', 20, 2); vp = al('ep', 8, 4)
        for c in range(2):
            for k in range(10):
                a(f'ds_read_u16 v{ve+10*c+k}, v{vTa+k} offset:{L_TT + c*TT_SZ}')
        for c in range(2):
            e = ve + 10*c
            a(f's_waitcnt lgkmcnt({10 if c == 0 else 2})')
            for j in range(4): a(f'v_lshl_or_b32 v{vp+j}, v{e+2*j+2}, 16, v{e+2*j+1}')
            for j in range(4): a(f'v_lshl_or_b32 v{vp+4+j}, v{e+2*j+1}, 16, v{e+2*j}')
            a(f'ds_write_b128 v{vKw}, {vr(vp,4)} offset:{L_KC + (2*c)*KC_SZ}')
            a(f'ds_write_b128 v{vKw}, {vr(vp+4,4)} offset:{L_KC + (2*c+1)*KC_SZ}')
            a(f's_cmp_eq_u32 {S_W8}, 0'); l = lbl('tail'); a(f's_cbranch_scc0 {l}')
            a(f'v_lshl_or_b32 v{vt1}, v{e+9}, 16, v{e+8}')
            a(f'v_mov_b32 v{vt0}, 4096')
            a('s_mov_b64 exec, 1')
            a(f'ds_write_b32 v{vt0}, v{e+9} offset:{L_KC + (2*c)*KC_SZ}')
            a(f'ds_write_b32 v{vt0}, v{vt1} offset:{L_KC + (2*c+1)*KC_SZ}')
            a('s_mov_b64 exec, -1')
            a.label(l)
        R.release('e'); R.release('ep')
    else:
        ve = al('e', 10, 2); vp = al('ep', 8, 4); vr8 = al('r8', 8, 2); vrp = al('rp', 4, 4)
        for k in range(10): a(f'ds_read_u16 v{ve+k}, v{vTa+k}')
        for e in range(8): a(f'ds_read_u16 v{vr8+e}, v{vRa+e}')
        a('s_waitcnt lgkmcnt(8)')
        a(f's_bitcmp1_b32 {S_W8}, 0'); a('s_cbranch_scc0 L_e_noadj')
        a('s_mov_b32 exec_lo, 0'); a('s_mov_b32 exec_hi, 0x80000000')
        a(f'v_cvt_f32_f16 v{vt0}, v{ve+1}'); a(f'v_cvt_f32_f16 v{vt1}, v{ve+4}'); a(f'v_cvt_f32_f16 v{vt2}, v{ve+5}')
        a(f'v_sub_f32 v{vt1}, v{vt1}, v{vt0}'); a(f'v_sub_f32 v{vt2}, v{vt2}, v{vt0}')
        a(f'v_cvt_f16_f32 v{ve+4}, v{vt1}'); a(f'v_cvt_f16_f32 v{ve+5}, v{vt2}')
        a(f'v_and_b32 v{ve+4}, 0xffff, v{ve+4}'); a(f'v_and_b32 v{ve+5}, 0xffff, v{ve+5}')
        for k_ in (0, 1, 2, 3): a(f'v_mov_b32 v{ve+k_}, 0')
        a('s_mov_b64 exec, -1')
        a.label('L_e_noadj')
        for j in range(4): a(f'v_lshl_or_b32 v{vp+j}, v{ve+2*j+2}, 16, v{ve+2*j+1}')
        for j in range(4): a(f'v_lshl_or_b32 v{vp+4+j}, v{ve+2*j+1}, 16, v{ve+2*j}')
        a(f'ds_write_b128 v{vKw}, {vr(vp,4)} offset:{L_KC}')
        a(f'ds_write_b128 v{vKw}, {vr(vp+4,4)} offset:{L_KC + KC_SZ}')
        a(f's_bitcmp1_b32 {S_W8}, 0'); a('s_cbranch_scc1 L_e_notail')
        a(f'v_lshl_or_b32 v{vt1}, v{ve+9}, 16, v{ve+8}')
        a(f's_lshr_b32 s6, {S_W8}, 1'); a(f's_mul_i32 s6, s6, {2*KC_SZ}'); a('s_add_u32 s6, s6, 4096'); a(f'v_mov_b32 v{vt0}, s6')
        a('s_mov_b64 exec, 1')
        a(f'ds_write_b32 v{vt0}, v{ve+9} offset:{L_KC}')
        a(f'ds_write_b32 v{vt0}, v{vt1} offset:{L_KC + KC_SZ}')
        a('s_mov_b64 exec, -1')
        a.label('L_e_notail')
        a('s_waitcnt lgkmcnt(0)')
        for j in range(4): a(f'v_lshl_or_b32 v{vrp+j}, v{vr8+2*j+1}, 16, v{vr8+2*j}')
        a('s_mov_b32 exec_lo, 0x7fff'); a('s_mov_b32 exec_hi, 0x7fff')
        a(f'ds_write_b128 v{vRw}, {vr(vrp,4)}')
        a('s_mov_b64 exec, -1')
        for n in ('e', 'ep', 'r8', 'rp', 'Ra', 'Rw'): R.release(n)
    stamp('expand')
    a('s_branch L_k_bd')
    a.label('L_k_noexp')
    def issue_u():
        a(f'global_load_dwordx4 {vr(vu,4)}, v{vug}, {P_WS} sc1')
        a(f'global_load_dwordx4 {vr(vu+4,4)}, v{vug}, {P_WS} offset:16 sc1')
    if cfg.upipe:
        vu2 = al('u2', 8, 2)
        a(f'global_load_dwordx4 {vr(vu2,4)}, v{vug}, {P_WS} sc1')
        a(f'global_load_dwordx4 {vr(vu2+4,4)}, v{vug}, {P_WS} offset:16 sc1')
        a('s_waitcnt vmcnt(2)')
        a(f'v_max_u32 v{vt0}, v{vu}, v{vu+1}')
        for j in (2, 4, 6): a(f'v_max3_u32 v{vt0}, v{vt0}, v{vu+j}, v{vu+j+1}')
        a(f'v_cmp_eq_u32 vcc, -1, v{vt0}')
        a('s_cbranch_vccz L_u_ok1')
        a('s_mov_b64 exec, vcc')
        a('s_waitcnt vmcnt(0)')
        for j in range(8): a(f'v_mov_b32 v{vu+j}, v{vu2+j}')
        a('s_mov_b64 exec, -1')
        poll_loop(issue_u, list(range(vu, vu+8)), vt0, 'u', first_issued=True, nl=2)
        a.label('L_u_ok1')
        R.release('u2')
    else:
        poll_loop(issue_u, list(range(vu, vu+8)), vt0, 'u', first_issued=True, nl=2)
    a(f'ds_write_b128 v{vul}, {vr(vu,4)} offset:{L_UL + 512}')
    a(f'ds_write_b128 v{vul}, {vr(vu+4,4)} offset:{L_UL + UL_SZ + 512}')
    if cfg.active('expand'): a(f'{cfg.tinstr} s[{70+2*(len(cfg.stamp_names)-1)}:{71+2*(len(cfg.stamp_names)-1)}]')
    a.label('L_k_bd')
    for n in ('Ta','Kw','f1','f1off','ugoff','ulds','u'): R.release(n)
    a('s_waitcnt lgkmcnt(0)')
    a('s_barrier')
    stamp('B_d')
    if cfg.dbg:
        dv = al('dv', 4, 4); da = al('da');
        a(f's_lshl_b32 s6, {S_P}, 15'); a(f's_add_u32 s6, s6, 0x1000000')
        for it in range(3):
            a(f'v_lshlrev_b32 v{da}, 4, v0'); a(f'v_add_u32 v{da}, {it*8192}, v{da}')
            a(f'v_min_u32 v{da}, {L_UL + 2*UL_SZ - 16}, v{da}')
            a(f'ds_read_b128 {vr(dv,4)}, v{da}')
            a(f'v_add_u32 v{da}, s6, v{da}')
            a('s_waitcnt lgkmcnt(0)')
            a(f'global_store_dwordx4 v{da}, {vr(dv,4)}, {P_WS}')
            a('s_waitcnt vmcnt(0)')
        R.release('dv'); R.release('da')
    if stop_here(2): return finish(a, R, cfg)

    if_role_a('L_c_roleB')
    if cfg.wtouch == 2:
        a(f'global_load_dword v{vjunk}, v{vtw}, s[44:45]')
    if cfg.wtouch >= 2: R.release('tw')
    acc = al('acc', 32, 4)
    nfa = 20 if cfg.r3 else 32
    FA = [al('FA0', nfa, 4), al('FA1', nfa, 4)]; FB = [al('FB0', 32, 4), al('FB1', 32, 4)]
    def frag_group(rho, buf, j):
        J = j >> 1; o = 16 * (15 - (rho + 8 * (j & 1)))
        return [f'ds_read_b128 {vr(FB[buf]+4*j,4)}, v{vLB} offset:{512*j + 64*(3-rho)}',
                f'ds_read2_b32 {vr(FA[buf]+4*j,2)}, v{vLA+J} offset0:{o} offset1:{o+1}',
                f'ds_read2_b32 {vr(FA[buf]+4*j+2,2)}, v{vLA+J} offset0:{o+2} offset1:{o+3}']
    def frag_loads(rho, buf):
        L = []
        for j in range(8): L += frag_group(rho, buf, j)
        return L
    first = set()
    def mf(buf, j, tp):
        t = j + tp
        src = vr(acc+4*t,4) if t in first else '0'
        first.add(t)
        a(f'v_mfma_f32_16x16x32_f16 {vr(acc+4*t,4)}, {vr(FA[buf]+4*j,4)}, {vr(FB[buf]+4*tp,4)}, {src}')
    if cfg.r3:
        def group3(rho, buf, sh):
            g_ = frag_group(rho, buf, sh)
            return g_ if (sh <= 3 or (rho == 0 and sh == 4)) else g_[:1]
        shells0 = [[(j, tp) for j in range(4) for tp in range(8 - j) if max(j, tp) == sh] for sh in range(8)]
        shellsA = [list(x) for x in shells0]; shellsA[4] = shellsA[4] + [(4, tp) for tp in range(4)]
        groups = [(rho, sh) for rho in range(4) for sh in range(8)]
        X3 = al('X3', 12, 4); B3 = al('B3', 36, 4)
        r3list = [(3,0),(4,0),(5,0),(5,1),(6,0),(6,1),(7,0),(7,1),(7,2)]
        extraX = []; extraB = []
        for kap in range(3):
            extraX.append(f'ds_read_b64_tr_b16 {vr(X3+4*kap,2)}, v{vXa} offset:{1024*kap}')
            extraX.append(f'ds_read_b64_tr_b16 {vr(X3+4*kap+2,2)}, v{vXa} offset:{1024*kap + 128}')
        for n_, (t, kap) in enumerate(r3list):
            o = 24 - 8*(t-4) + 16*kap
            extraB.append(f'ds_read2_b32 {vr(B3+4*n_,2)}, v{vRb} offset0:{o} offset1:{o+1}')
            extraB.append(f'ds_read2_b32 {vr(B3+4*n_+2,2)}, v{vRb} offset0:{o+2} offset1:{o+3}')
        q = []
        def issue(l, tag): a(l); q.append(tag)
        def wait_tag(tag):
            last = max((i for i, t in enumerate(q) if t == tag), default=-1)
            if last < 0: return
            allowed = len(q) - 1 - last
            a(f's_waitcnt lgkmcnt({min(allowed, 15)})')
            del q[:last + 1]
        AHEAD = cfg.ahead3
        for n in range(AHEAD):
            rho, sh = groups[n]
            for l in group3(rho, rho & 1, sh): issue(l, ('g', n))
        nxt_g = AHEAD
        done = []; cnt = 0; wr = 0
        for n, (rho, sh) in enumerate(groups):
            if rho == 2 and sh == cfg.bwsh:
                stamp('c_prew')
                a('s_barrier')
                stamp('c_postw')
            if rho == 3 and sh == 0:
                stamp('c_prex')
                wait_tag(('x', 0))
                stamp('c_postx')
                for n_, (t, kap) in enumerate(r3list):
                    a(f'v_mfma_f32_16x16x32_f16 {vr(acc+4*t,4)}, {vr(X3+4*kap,4)}, {vr(B3+4*n_,4)}, {vr(acc+4*t,4)}')
            wait_tag(('g', n))
            if rho == 1 and sh == 0: stamp('c_r0')
            if rho == 2 and sh == 0: stamp('c_r1')
            ld = []
            if nxt_g < len(groups):
                r2, s2_ = groups[nxt_g]; ld = [(l, ('g', nxt_g)) for l in group3(r2, r2 & 1, s2_)]; nxt_g += 1
            if (rho == 1 and sh in (2, 3, 4, 5)) or (rho == 2 and sh in (1, 2, 3)):
                for _ in range(3):
                    if extraB: ld.append((extraB.pop(0), ('x', 0)))
            if rho == 2 and sh >= cfg.bwsh:
                for _ in range(2):
                    if extraX: ld.append((extraX.pop(0), ('x', 0)))
            shl = shellsA[sh] if rho == 0 else shells0[sh]
            for idx, (j, tp) in enumerate(shl):
                mf(rho & 1, j, tp); cnt += 1
                rem = len(shl) - idx
                take = len(ld) if rem == 1 else min(len(ld), -(-len(ld) // rem))
                for _ in range(take):
                    l, tag = ld.pop(0); issue(l, tag)
                if rho == 3 and wr < len(done) and cnt - done[wr][1] >= 9:
                    issue(f'ds_write_b128 v{vPW}, {vr(acc+4*done[wr][0],4)} offset:{done[wr][0]*PX_T}', ('w', wr)); wr += 1
            if rho == 3: done.append((sh, cnt))
        assert not extraX and not extraB
        stamp('conv_mfma'); stamp('c_r3')
        while wr < 8:
            a(f'ds_write_b128 v{vPW}, {vr(acc+4*done[wr][0],4)} offset:{done[wr][0]*PX_T}'); wr += 1
        for n_ in ('X3', 'B3', 'Xa', 'Rb'): R.release(n_)
    elif cfg.convsched:
        shells = [[(j, tp) for j in range(8) for tp in range(8 - j) if max(j, tp) == sh] for sh in range(8)]
        groups = [(rho, sh) for rho in range(4) for sh in range(8)]
        q = []
        def issue(l, tag): a(l); q.append(tag)
        def wait_group(n):
            last = max((i for i, t in enumerate(q) if t == ('g', n)), default=-1)
            if last < 0: return
            allowed = len(q) - 1 - last
            a(f's_waitcnt lgkmcnt({min(allowed, 15)})')
            del q[:last + 1]
        AHEAD = 5
        pend = []
        for n in range(AHEAD):
            rho, sh = groups[n]
            for l in frag_group(rho, rho & 1, sh): issue(l, ('g', n))
        nxt_g = AHEAD
        done = []; cnt = 0; wr = 0
        for n, (rho, sh) in enumerate(groups):
            wait_group(n)
            if rho == 1 and sh == 0: stamp('c_r0')
            if rho == 2 and sh == 0: stamp('c_r1')
            ld = []
            if nxt_g < len(groups):
                r2, s2_ = groups[nxt_g]; ld = [(l, ('g', nxt_g)) for l in frag_group(r2, r2 & 1, s2_)]; nxt_g += 1
            for idx, (j, tp) in enumerate(shells[sh]):
                mf(rho & 1, j, tp); cnt += 1
                take = len(ld) if idx == len(shells[sh]) - 1 else min(len(ld), 1 if len(shells[sh]) >= 3 else 2)
                for _ in range(take):
                    l, tag = ld.pop(0); issue(l, tag)
                if rho == 3 and wr < len(done) and cnt - done[wr][1] >= 9:
                    issue(f'ds_write_b128 v{vPW}, {vr(acc+4*done[wr][0],4)} offset:{done[wr][0]*PX_T}', ('w', wr)); wr += 1
            if rho == 3: done.append((sh, cnt))
        stamp('conv_mfma'); stamp('c_r3')
        while wr < 8:
            a(f'ds_write_b128 v{vPW}, {vr(acc+4*done[wr][0],4)} offset:{done[wr][0]*PX_T}'); wr += 1
    else:
        for j in range(5):
            for l in frag_group(0, 0, j): a(l)
        shells = [[(j, tp) for j in range(8) for tp in range(8 - j) if max(j, tp) == sh] for sh in range(8)]
        nxt = frag_loads(1, 1); k = 0
        nostamp = True
        for sh in range(8):
            if sh <= 3: a('s_waitcnt lgkmcnt(12)')
            elif sh == 4: a('s_waitcnt lgkmcnt(9)')
            elif sh == 5: a('s_waitcnt lgkmcnt(0)')
            for idx, (j, tp) in enumerate(shells[sh]):
                mf(0, j, tp)
                if sh <= 2 and idx == 0:
                    for l in frag_group(0, 0, sh + 5): a(l)
                if sh >= 5:
                    for _ in range(2):
                        if k < len(nxt): a(nxt[k]); k += 1
        for rho in range(1, 4):
            buf = rho & 1
            nxt = frag_loads(rho + 1, buf ^ 1) if rho < 3 else []
            a('s_waitcnt lgkmcnt(0)')
            if rho == 1: stamp('c_r0')
            if rho == 2: stamp('c_r1')
            if rho < 3:
                k = 0
                for j in range(8):
                    for tp in range(8 - j):
                        mf(buf, j, tp)
                        if k < len(nxt): a(nxt[k])
                        k += 1
            else:
                done = []; cnt = 0; wr = 0
                for t in range(8):
                    for j in range(t + 1):
                        mf(buf, j, t - j); cnt += 1
                        if wr < len(done) and cnt - done[wr][1] >= 9:
                            a(f'ds_write_b128 v{vPW}, {vr(acc+4*done[wr][0],4)} offset:{done[wr][0]*PX_T}'); wr += 1
                    done.append((t, cnt))
                stamp('conv_mfma'); stamp('c_r3')
                while wr < 8:
                    a(f'ds_write_b128 v{vPW}, {vr(acc+4*done[wr][0],4)} offset:{done[wr][0]*PX_T}'); wr += 1
    stamp('c_wr')
    for n in ('acc','FA0','FA1','FB0','FB1','LA','LB','PW'): R.release(n)
    a('s_branch L_c_be')
    a.label('L_c_roleB')
    if cfg.active('conv_mfma'): a(f'{cfg.tinstr} s[{70+2*(len(cfg.stamp_names)-1)}:{71+2*(len(cfg.stamp_names)-1)}]')
    gen_roleB_conv(a, R, cfg, locals())
    a.label('L_c_be')
    a('s_waitcnt lgkmcnt(0)')
    a('s_barrier')
    stamp('B_e')
    ep = al('ep', 16, 4); vis = al('is', 2, 2)
    a(f'ds_read_b128 {vr(ep,4)}, v{vEP}')
    a(f'ds_read_b128 {vr(ep+8,4)}, v{vEP} offset:{PX_H}')
    a(f'ds_read_b128 {vr(ep+4,4)}, v{vEP} offset:256')
    a(f'ds_read_b128 {vr(ep+12,4)}, v{vEP} offset:{PX_H + 256}')
    a(f'ds_read_b32 v{vis}, v{vISa} offset:{L_IS}')
    a('s_waitcnt lgkmcnt(0)')
    for j in range(4): a(f'v_pk_add_f32 {vr(ep+2*j,2)}, {vr(ep+2*j,2)}, {vr(ep+8+2*j,2)}')
    for j in range(4): a(f'v_pk_mul_f32 {vr(ep+2*j,2)}, {vr(ep+2*j,2)}, {vr(vis,2)} op_sel_hi:[1,0]')
    cvt4(ep+8, ep)
    a(f'global_store_dwordx4 v{vYa}, {vr(ep+8,4)}, {P_WS} sc1')
    R.release('EP'); R.release('ISa'); R.release('Ya')
    stamp('y_stored')
    R.release('ep'); R.release('is')
    if stop_here(3): return finish(a, R, cfg)

    gen_tail(a, R, cfg, locals())
    return finish(a, R, cfg)

def gen_roleB_conv(a, R, cfg, env):
    S_W8 = env['S_W8']; vlane = env['vlane']; vt0 = env['vt0']; vt1 = env['vt1']; lbl = env['lbl']
    P_WG, P_WU, P_WD = env['P_WG'], env['P_WU'], env['P_WD']
    vblk = env['vblk']; S_P = env['S_P']; P_WS = env['P_WS']
    a('s_waitcnt vmcnt(0)')
    if cfg.r3:
        if cfg.wprio: a(f's_setprio {cfg.wprio}')
        vWu, vWw = env['vWu'], env['vWw']
        from asmlib import vr
        raw = R.alloc('wraw', 8, 4); x = R.alloc('wx', 16, 2); w7 = R.alloc('w7', 8, 2); w9 = R.alloc('w9', 8, 2); pk = R.alloc('wpk', 8, 4); zz = R.alloc('wz', 4, 4)
        a(f'ds_read_b64 {vr(raw,2)}, v{vWu} offset:8')
        a(f'ds_read_b128 {vr(raw+2+2,4) if False else vr(raw+4,4)}, v{vWu} offset:16')
        a(f'ds_read_b64 {vr(raw+2,2)}, v{vWu} offset:32')
        for i in range(4): a(f'v_mov_b32 v{zz+i}, 0')
        a(f'v_and_b32 v{vt0}, 127, v0')
        a(f'v_lshlrev_b32 v{vt1}, 4, v{vt0}')
        a(f'v_sub_u32 v{vca2 if False else vt1}, v{vWw}, v{vt1}') if False else None
        vb = R.alloc('wzb'); vb2 = R.alloc('wzb2')
        a(f'v_sub_u32 v{vb}, v{vWw}, v{vt1}')
        a(f'v_add_u32 v{vb2}, {130*16}, v{vWw}')
        a(f'v_add_u32 v{vt1}, {3072 + (129-64)*16}, v{vWw}')
        a(f'v_cmp_gt_u32 vcc, 64, v{vt0}')
        a(f'v_cndmask_b32 v{vb2}, v{vt1}, v{vb2}, vcc')
        a(f'v_cmp_eq_u32 vcc, 127, v{vt0}')
        a(f'v_cndmask_b32 v{vb2}, v{vb2}, v{vb}, vcc')
        a(f'v_and_b32 v{vt1}, 126, v{vt0}'); a(f'v_cmp_eq_u32 vcc, 62, v{vt1}')
        a(f'v_cndmask_b32 v{vb2}, v{vb2}, v{vb}, vcc')
        a(f'ds_write_b128 v{vb2}, {vr(zz,4)}')
        a('s_waitcnt lgkmcnt(1)')
        src = [raw, raw+1, raw+4, raw+5, raw+6, raw+7, raw+2, raw+3]
        for j, r in enumerate(src):
            a(f'v_cvt_f32_f16 v{x+2*j}, v{r}')
            a(f'v_cvt_f32_f16_sdwa v{x+2*j+1}, v{r} dst_sel:DWORD dst_unused:UNUSED_PAD src0_sel:WORD_1')
        a(f'v_add_f32 v{w7}, v{x+1}, v{x+2}'); a(f'v_add_f32 v{vt0}, v{x+3}, v{x+4}'); a(f'v_add_f32 v{vt1}, v{x+5}, v{x+6}')
        a(f'v_add_f32 v{w7}, v{w7}, v{x+7}'); a(f'v_add_f32 v{vt0}, v{vt0}, v{vt1}'); a(f'v_add_f32 v{w7}, v{w7}, v{vt0}')
        for e in range(7):
            a(f'v_sub_f32 v{vt0}, v{x+e+8}, v{x+e+1}'); a(f'v_add_f32 v{w7+e+1}, v{w7+e}, v{vt0}')
        for e in range(8):
            a(f'v_add_f32 v{w9+e}, v{x+e}, v{x+e+8}'); a(f'v_add_f32 v{w9+e}, v{w9+e}, v{w7+e}')
        for j in range(4):
            a(f'v_cvt_pk_f16_f32 v{pk+j}, v{w9+2*j}, v{w9+2*j+1}'); a(f'v_cvt_pk_f16_f32 v{pk+4+j}, v{w7+2*j}, v{w7+2*j+1}')
        a(f'ds_write_b128 v{vWw}, {vr(pk,4)} offset:32')
        a(f'ds_write_b128 v{vWw}, {vr(pk+4,4)} offset:{3072 + 16}')
        a(f's_bitcmp1_b32 {S_W8}, 0'); a('s_cbranch_scc1 L_w_noedge')
        a(f'v_add_f32 v{w7}, v{x+4}, v{x+5}'); a(f'v_add_f32 v{w7+1}, v{w7}, v{x+6}'); a(f'v_add_f32 v{w7+2}, v{w7+1}, v{x+7}')
        a(f'v_mov_b32 v{pk}, 0'); a(f'v_mov_b32 v{pk+1}, 0')
        a(f'v_cvt_pk_f16_f32 v{pk+2}, v{x+4}, v{w7}'); a(f'v_cvt_pk_f16_f32 v{pk+3}, v{w7+1}, v{w7+2}')
        a(f'v_mov_b32 v{pk+4}, 0'); a(f'v_mov_b32 v{pk+5}, 0')
        a(f'v_mov_b32 v{vt0}, 0'); a(f'v_cvt_pk_f16_f32 v{pk+6}, v{vt0}, v{x+4}'); a(f'v_cvt_pk_f16_f32 v{pk+7}, v{w7}, v{w7+1}')
        a('s_mov_b64 exec, 1')
        a(f'ds_write_b128 v{vWw}, {vr(pk,4)} offset:16')
        a(f'ds_write_b128 v{vWw}, {vr(pk+4,4)} offset:3072')
        a('s_mov_b64 exec, -1')
        a.label('L_w_noedge')
        for n in ('wraw','wx','w7','w9','wpk','wz','wzb','wzb2','Wu','Ww'): R.release(n)
        if cfg.wprio: a('s_setprio 0')
        vo = R.alloc('ones2', 4, 2); vca = R.alloc('clra')
        for i in range(4): a(f'v_mov_b32 v{vo+i}, -1')
        a(f'v_add_u32 v{vca}, {WS_H - 4096}, v{vblk}')
        a(f'global_store_dwordx4 v{vca}, v[{vo}:{vo+3}], {P_WS} sc1')
        a(f'v_add_u32 v{vca}, 4096, v{vca}')
        a(f'global_store_dwordx4 v{vca}, v[{vo}:{vo+3}], {P_WS} sc1')
        a(f's_lshl_b32 s6, {S_P}, 5'); a(f's_add_u32 s6, s6, {WS_STAT}')
        a(f'v_lshl_add_u32 v{vca}, v{vlane}, 2, s6')
        a('s_mov_b64 exec, 0xff')
        a(f'global_store_dword v{vca}, v{vo}, {P_WS} sc1')
        a('s_mov_b64 exec, -1')
        R.release('ones2'); R.release('clra')
        a('s_waitcnt lgkmcnt(0)')
        env['stamp']('w_done')
        a('s_barrier')
    else:
        vo = R.alloc('ones2', 4, 2); vca = R.alloc('clra')
        for i in range(4): a(f'v_mov_b32 v{vo+i}, -1')
        a(f'v_add_u32 v{vca}, {WS_H - 4096}, v{vblk}')
        a(f'global_store_dwordx4 v{vca}, v[{vo}:{vo+3}], {P_WS} sc1')
        a(f'v_add_u32 v{vca}, 4096, v{vca}')
        a(f'global_store_dwordx4 v{vca}, v[{vo}:{vo+3}], {P_WS} sc1')
        a(f's_lshl_b32 s6, {S_P}, 5'); a(f's_add_u32 s6, s6, {WS_STAT}')
        a(f'v_lshl_add_u32 v{vca}, v{vlane}, 2, s6')
        a('s_mov_b64 exec, 0xff')
        a(f'global_store_dword v{vca}, v{vo}, {P_WS} sc1')
        a('s_mov_b64 exec, -1')
        R.release('ones2'); R.release('clra')

    if cfg.ylate == 1:
        vf2 = R.alloc('f2', 4, 2); vf2o = R.alloc('f2o')
        a(f's_cmp_eq_u32 {S_W8}, 5'); a('s_cbranch_scc0 L_c_nof2')
        a('s_and_b32 s6, s2, 7'); a('s_lshl_b32 s6, s6, 12'); a(f's_add_u32 s6, s6, {WS_F2}')
        a(f'v_lshl_add_u32 v{vf2o}, v{vlane}, 4, s6')
        def f2issue():
            for j in range(4): a(f'global_load_dword v{vf2+j}, v{vf2o}, {P_WS} offset:{1024*j} sc1')
        env['poll_loop'](f2issue, [vf2, vf2+1, vf2+2, vf2+3], vt0, 'f2', cmp_tag=True)
        a.label('L_c_nof2')
        R.release('f2'); R.release('f2o')
    if cfg.dmac:
        a('s_cmp_lt_u32 s2, 56'); a('s_cbranch_scc1 L_dc_go')
        a('s_sub_u32 s7, s2, 64'); a('s_cmp_lt_u32 s7, 32'); a('s_cbranch_scc0 L_dc_done')
        a.label('L_dc_go')
        n = cfg.dsleep
        while n > 0:
            a(f's_sleep {min(n,100)}'); n -= min(n, 100)
        gen_dma(a, R, cfg, env)
        a.label('L_dc_done')

def gen_dma(a, R, cfg, env):
    S_W8 = env['S_W8']; vlane = env['vlane']; vt0 = env['vt0']; vt1 = env['vt1']
    P_WG, P_WU, P_WD = env['P_WG'], env['P_WU'], env['P_WD']; S_FC = env['S_FC']
    a('s_cmp_lt_u32 s2, 56'); a('s_cbranch_scc0 L_w_not1')
    a(f's_sub_u32 s6, {S_W8}, 4')
    a(f'v_lshrrev_b32 v{vt0}, 2, v{vlane}')
    a(f'v_mul_u32_u24 v{vt0}, 3584, v{vt0}')
    a(f'v_and_b32 v{vt1}, 3, v{vlane}')
    a(f'v_lshl_add_u32 v{vt0}, v{vt1}, 4, v{vt0}')
    a(f's_lshl_b32 s7, {S_FC}, 6')
    a('s_and_b32 s38, s6, 1'); a(f's_mul_i32 s39, s38, {256*3584}'); a('s_add_u32 s7, s7, s39')
    a(f'v_add_u32 v{vt0}, s7, v{vt0}')
    a('s_lshl_b32 s39, s6, 14'); a(f's_add_u32 s39, s39, {L_BIG}')
    a('s_cmp_ge_u32 s6, 2'); a('s_cselect_b32 s44, s28, s26'); a('s_cselect_b32 s45, s29, s27')
    a('s_mov_b32 s38, 16'); a(f's_mov_b32 s7, {16*3584}')
    a('s_branch L_w_loop')
    a.label('L_w_not1')
    a(f's_sub_u32 s6, {S_W8}, 4')
    a(f'v_lshrrev_b32 v{vt0}, 1, v{vlane}')
    a(f'v_lshlrev_b32 v{vt0}, 10, v{vt0}')
    a(f'v_and_b32 v{vt1}, 1, v{vlane}')
    a(f'v_lshl_add_u32 v{vt0}, v{vt1}, 4, v{vt0}')
    a(f's_lshl_b32 s7, {S_FC}, 5')
    a(f's_mul_i32 s39, s6, {448*1024}'); a('s_add_u32 s7, s7, s39')
    a(f'v_add_u32 v{vt0}, s7, v{vt0}')
    a(f's_mul_i32 s39, s6, {448*32}'); a(f's_add_u32 s39, s39, {L_BIG}')
    a('s_mov_b32 s44, s30'); a('s_mov_b32 s45, s31')
    a('s_mov_b32 s38, 14'); a(f's_mov_b32 s7, {32*1024}')
    a.label('L_w_loop')
    a('s_mov_b32 m0, s39'); a('s_add_u32 s39, s39, 1024')
    a(f'global_load_lds_dwordx4 v{vt0}, s[44:45]')
    a(f'v_add_u32 v{vt0}, s7, v{vt0}')
    a('s_sub_u32 s38, s38, 1'); a('s_cmp_lg_u32 s38, 0'); a('s_cbranch_scc1 L_w_loop')

def gen_tail(a, R, cfg, env):
    g = env
    al = R.alloc
    S_W8, S_P, S_TAG, S_MASKHI, S_STG, S_SPIN = g['S_W8'], g['S_P'], g['S_TAG'], g['S_MASKHI'], g['S_STG'], g['S_SPIN']
    S_L2E = g['S_L2E']
    P_WS, P_OUT = g['P_WS'], g['P_OUT']
    vlane, vt0, vt1, vt2, vt3, vtk, vcg, vch, vxo = (g[k] for k in ('vlane','vt0','vt1','vt2','vt3','vtk','vcg','vch','vxo'))
    vxf, vud, vm1 = g['vxf'], g['vud'], g['vm1']
    stamp, lbl, poll_loop, unpack8, cvt4, xlane1 = g['stamp'], g['lbl'], g['poll_loop'], g['unpack8'], g['cvt4'], g['xlane1']
    ln_stats_partial, ln_finish, normalize, stop_here = g['ln_stats_partial'], g['ln_finish'], g['normalize'], g['stop_here']
    vy = al('y', 4, 4); vyo = al('yoff'); vwr = al('wr', 4, 4)
    vd = al('d', 16, 4); vS = al('S', 2, 2); vt = al('t', 2, 2); vrs = al('rs', 2, 2); vs_ = al('s', 2, 2); vm2 = al('m2', 2, 2)
    vhf = al('hf', 8, 2); vhp = al('hp', 4, 4)
    a(f'v_lshrrev_b32 v{vyo}, 1, v0'); a(f'v_lshlrev_b32 v{vyo}, 13, v{vyo}')
    a(f'v_and_b32 v{vt0}, 1, v0'); a(f'v_lshl_add_u32 v{vyo}, v{vt0}, 4, v{vyo}')
    a(f's_lshl_b32 s6, {S_P}, 5'); a(f's_add_u32 s6, s6, {WS_Y}')
    a(f'v_add_u32 v{vyo}, s6, v{vyo}')
    a(f'ds_read_b128 {vr(vwr,4)}, v{vch} offset:{L_WR}')
    a(f'v_lshl_add_u32 v{vt2}, v{vlane}, 4, {S_STG}')
    a(f'v_lshrrev_b32 v{vt0}, 4, v{vlane}'); a(f'v_lshlrev_b32 v{vt3}, 8, v{vt0}')
    a(f'v_bfe_u32 v{vt0}, v{vlane}, 1, 1'); a(f'v_lshl_add_u32 v{vt3}, v{vt0}, 7, v{vt3}')
    a(f'v_bfe_u32 v{vt0}, v{vlane}, 2, 2'); a(f'v_lshl_add_u32 v{vt3}, v{vt0}, 4, v{vt3}')
    a(f'v_and_b32 v{vt0}, 1, v{vlane}'); a(f'v_lshl_add_u32 v{vt3}, v{vt0}, 3, v{vt3}')
    a(f'v_add_u32 v{vt3}, {S_STG}, v{vt3}')
    if not cfg.noywait: a('s_waitcnt vmcnt(0)')
    stamp('y_acked')
    if cfg.plain1 & 2:
        a(f'global_load_dwordx4 {vr(vy,4)}, v{vyo}, {P_WS}')
        poll_loop(lambda: a(f'global_load_dwordx4 {vr(vy,4)}, v{vyo}, {P_WS} sc1'), [vy, vy+1, vy+2, vy+3], vt0, 'y', first_issued=True)
    else:
        poll_loop(lambda: a(f'global_load_dwordx4 {vr(vy,4)}, v{vyo}, {P_WS} sc1'), [vy, vy+1, vy+2, vy+3], vt0, 'y')
    stamp('y_got')
    a(f'ds_write_b128 v{vt2}, {vr(vy,4)}')
    a('s_waitcnt lgkmcnt(0)')
    a(f'ds_read_b64_tr_b16 {vr(vy,2)}, v{vt3}')
    a(f'ds_read_b64_tr_b16 {vr(vy+2,2)}, v{vt3} offset:64')
    a('s_waitcnt lgkmcnt(0)')
    stamp('s3_tr')
    unpack8(vd, vy)
    for j in range(4): a(f'v_pk_add_f32 {vr(vd+2*j,2)}, {vr(vd+2*j,2)}, {vr(vud+2*j,2)}')
    cvt4(vd+8, vd)
    unpack8(vd, vd+8)
    for j in range(4): a(f'v_pk_add_f32 {vr(vd+2*j,2)}, {vr(vd+2*j,2)}, {vr(vxf+2*j,2)}')
    cvt4(vhp, vd)
    if not cfg.hlate:
        a(f'v_add_u32 v{vt0}, {WS_H}, v{vxo}')
        a(f'global_store_dwordx4 v{vt0}, {vr(vhp,4)}, {P_WS} sc1')
    stamp('s3_h')
    ln_stats_partial(vhp, vS, vt, L_ST2)
    unpack8(vhf, vhp)
    a('s_waitcnt lgkmcnt(0)')
    stamp('s3_part')
    a('s_barrier')
    stamp('s3_bar1')
    ln_finish(vhf, vd, vS, vt, L_ST2, vm2, vrs, vs_)
    stamp('s3_fin')
    vr_ = al('r', 2, 2)
    a(f'v_dot2_f32_bf16 v{vr_}, v{vd+8}, v{vwr}, 0')
    a(f'v_dot2_f32_bf16 v{vr_+1}, v{vd+9}, v{vwr+1}, 0')
    a(f'v_dot2_f32_bf16 v{vr_}, v{vd+10}, v{vwr+2}, v{vr_}')
    a(f'v_dot2_f32_bf16 v{vr_+1}, v{vd+11}, v{vwr+3}, v{vr_+1}')
    a(f'v_add_f32 v{vr_}, v{vr_}, v{vr_+1}')
    xlane1(vr_, vt, 'add_f32')
    a(f's_lshl_b32 s6, {S_W8}, 2')
    a(f'v_lshl_add_u32 v{vt}, v{vtk}, 5, s6')
    a('s_mov_b64 exec, 0xff')
    a(f'ds_write_b32 v{vt}, v{vr_} offset:{L_RP}')
    a('s_mov_b64 exec, -1')
    stamp('s3_rp')
    unpack8(vd, vd+8)
    for j in range(4): a(f'v_pk_add_f32 {vr(vd+2*j,2)}, {vr(vd+2*j,2)}, {vr(vhf+2*j,2)}')
    cvt4(vd+12, vd)
    a('s_waitcnt lgkmcnt(0)')
    a('s_barrier')
    stamp('s3_bar2')
    a(f's_cmp_eq_u32 {S_W8}, 0'); a('s_cbranch_scc0 L_s3_nokey')
    a(f'v_lshlrev_b32 v{vt}, 5, v{vtk}')
    a(f'ds_read_b128 {vr(vd,4)}, v{vt} offset:{L_RP}')
    a(f'ds_read_b128 {vr(vd+4,4)}, v{vt} offset:{L_RP+16}')
    a('s_waitcnt lgkmcnt(0)')
    a(f'v_pk_add_f32 {vr(vd,2)}, {vr(vd,2)}, {vr(vd+2,2)}'); a(f'v_pk_add_f32 {vr(vd+4,2)}, {vr(vd+4,2)}, {vr(vd+6,2)}')
    a(f'v_pk_add_f32 {vr(vd,2)}, {vr(vd,2)}, {vr(vd+4,2)}'); a(f'v_add_f32 v{vd}, v{vd}, v{vd+1}')
    a(f'v_cvt_pk_bf16_f32 v{vd}, v{vd}, v{vd}')
    a(f'v_and_b32 v{vd}, 0xffff, v{vd}')
    a(f'v_cmp_lt_u32 vcc, 0x7fff, v{vd}')
    a(f'v_xor_b32 v{vd+1}, 0xffff, v{vd}'); a(f'v_or_b32 v{vd+2}, 0x8000, v{vd}')
    a(f'v_cndmask_b32 v{vd}, v{vd+2}, v{vd+1}, vcc')
    a(f'v_mov_b32_dpp v{vd+1}, v{vd} quad_perm:[1,0,3,2] row_mask:0xf bank_mask:0xf')
    a(f's_lshl_b32 s6, {S_P}, 4'); a(f's_add_u32 s6, s6, {WS_KEY}')
    a(f'v_lshlrev_b32 v{vd+2}, 12, v{vcg}'); a(f'v_lshl_add_u32 v{vd+2}, v{vtk}, 1, v{vd+2}'); a(f'v_add_u32 v{vd+2}, s6, v{vd+2}')
    a(f'v_lshl_or_b32 v{vd}, v{vd+1}, 16, v{vd}')
    a('s_mov_b32 exec_lo, 0x55555555'); a('s_mov_b32 exec_hi, 0x55555555')
    a(f'global_store_dword v{vd+2}, v{vd}, {P_WS} sc1')
    a('s_mov_b64 exec, -1')
    a.label('L_s3_nokey')
    stamp('key_stored')
    if cfg.hlate == 1:
        a(f'v_add_u32 v{vt0}, {WS_H}, v{vxo}')
        a(f'global_store_dwordx4 v{vt0}, {vr(vhp,4)}, {P_WS} sc1')
    if cfg.hlate == 2:
        vhk = al('hkeep', 4, 4); vha_ = al('hkaddr')
        for j in range(4): a(f'v_mov_b32 v{vhk+j}, v{vhp+j}')
        a(f'v_add_u32 v{vha_}, {WS_H}, v{vxo}')
    vout = al('outp', 4, 4)
    for j in range(4): a(f'v_mov_b32 v{vout+j}, v{vd+12+j}')
    a(f's_cmp_eq_u32 {S_W8}, 1'); a('s_cbranch_scc0 L_s3_nostat')
    a(f'v_lshrrev_b32 v{vd}, 16, v{vm2}'); a(f'v_and_or_b32 v{vd}, v{vs_}, {S_MASKHI}, v{vd}')
    a(f's_lshl_b32 s6, {S_P}, 5'); a(f's_add_u32 s6, s6, {WS_STAT}')
    a(f'v_lshl_add_u32 v{vd+1}, v{vtk}, 2, s6')
    a('s_mov_b64 exec, 0xff')
    a(f'global_store_dword v{vd+1}, v{vd}, {P_WS} sc1')
    a('s_mov_b64 exec, -1')
    a.label('L_s3_nostat')
    for n in ('y','yoff','wr','d','S','t','rs','s','m2','hf','hp','r','xf','ud','m1'): R.release(n)
    S_ROLE = 's43'
    a(f's_mov_b32 {S_ROLE}, 1')
    a('s_cmp_lt_u32 s2, 56'); a('s_cbranch_scc1 L_f_go')
    a(f's_mov_b32 {S_ROLE}, 2')
    a('s_sub_u32 s7, s2, 64'); a('s_cmp_lt_u32 s7, 32'); a('s_cbranch_scc1 L_f_go')
    a(f's_mov_b32 {S_ROLE}, 0')
    a('s_branch L_f_nokey')
    a.label('L_f_go')
    a.label('L_f_nokey')
    stamp('s3_done')
    def out_store_and_flag(tag):
        if cfg.hlate == 2: a(f'global_store_dwordx4 v{vha_}, {vr(vhk,4)}, {P_WS} sc1')
        a(f'global_store_dwordx4 v{vxo}, {vr(vout,4)}, {P_OUT} sc1')
    def publish_f3b(tag):
        a('s_waitcnt vmcnt(0)')
        a('s_barrier')
        l = lbl('f3b')
        a(f's_cmp_eq_u32 {S_W8}, 2'); a(f's_cbranch_scc0 {l}')
        a(f's_lshl_b32 s6, {S_P}, 4'); a(f's_add_u32 s6, s6, {WS_F3B}')
        a(f'v_lshl_add_u32 v{vt0}, v{vlane}, 12, s6'); a(f'v_mov_b32 v{vt1}, {S_TAG}')
        a('s_mov_b64 exec, 0xff')
        a(f'global_store_dword v{vt0}, v{vt1}, {P_WS} sc1')
        a('s_mov_b64 exec, -1')
        a.label(l)
    a(f's_cmp_eq_u32 {S_ROLE}, 0'); a('s_cbranch_scc0 L_f_roles')
    if cfg.hlate == 2:
        a('s_waitcnt vmcnt(0)'); a('s_barrier')
    if cfg.olate: a('s_waitcnt vmcnt(0)')
    out_store_and_flag('n'); publish_f3b('n')
    a('s_branch L_fin')
    a.label('L_f_roles')
    if cfg.stop == 4:
        out_store_and_flag('n'); publish_f3b('n'); a('s_branch L_fin'); return
    a(f's_cmp_ge_u32 {S_W8}, 4'); a('s_cbranch_scc1 L_t_roleB')
    vk = al('k', 8, 4); vko = al('koff'); vm = al('m', 2, 2); vkr = al('kraw', 4, 4); vkb = al('kbase')
    a('s_and_b32 s6, s2, 7'); a('s_lshl_b32 s6, s6, 12'); a(f's_add_u32 s6, s6, {WS_KEY}')
    a(f'v_lshl_add_u32 v{vko}, v0, 4, s6')
    a(f'v_lshlrev_b32 v{vkb}, 3, v0'); a(f'v_sub_u32 v{vkb}, 2047, v{vkb}')
    a(f's_cmp_eq_u32 {S_W8}, 0'); a('s_cbranch_scc0 L_t_nz')
    a(f'v_mov_b32 v{vt0}, 0'); a(f'v_lshlrev_b32 v{vt1}, 2, v{vlane}')
    a(f'ds_write_b32 v{vt1}, v{vt0} offset:{L_CL}')
    a(f'v_mov_b32 v{vt1}, {L_CNT}'); a(f'ds_write_b32 v{vt1}, v{vt0}')
    a.label('L_t_nz')
    if not cfg.nokwait: a('s_waitcnt vmcnt(0)')
    stamp('k_wait')
    poll_loop(lambda: a(f'global_load_dwordx4 {vr(vkr,4)}, v{vko}, {P_WS} sc1'), list(range(vkr, vkr+4)), vm, 'key')
    stamp('keys_got')
    if cfg.active('k_spin'):
        i = len(cfg.stamp_names); cfg.stamp_names.append('k_spin')
        a('s_waitcnt lgkmcnt(0)'); a(f's_mul_i32 s{70+2*i}, {S_SPIN}, 100'); a(f's_add_u32 s{70+2*i}, s{70+2*i}, s70')
    for j in range(4):
        a(f'v_subrev_u32 v{vt0}, {2*j}, v{vkb}'); a(f'v_subrev_u32 v{vt1}, {2*j+1}, v{vkb}')
        a(f'v_lshl_or_b32 v{vk+2*j}, v{vkr+j}, 16, v{vt0}')
        a(f'v_and_or_b32 v{vk+2*j+1}, v{vkr+j}, {S_MASKHI}, v{vt1}')
    a(f'v_max3_u32 v{vm}, v{vk}, v{vk+1}, v{vk+2}'); a(f'v_max3_u32 v{vm+1}, v{vk+3}, v{vk+4}, v{vk+5}')
    a(f'v_max3_u32 v{vm}, v{vm}, v{vk+6}, v{vk+7}'); a(f'v_max_u32 v{vm}, v{vm}, v{vm+1}')
    R.release('kraw'); R.release('kbase')
    out_store_and_flag('a')
    for ror in (1, 2, 4, 8): a(f'v_max_u32_dpp v{vm}, v{vm}, v{vm} row_ror:{ror} row_mask:0xf bank_mask:0xf')
    a(f's_lshl_b32 s6, {S_W8}, 4'); a(f's_add_u32 s6, s6, {L_WM}')
    a(f'v_lshrrev_b32 v{vt0}, 4, v{vlane}'); a(f'v_lshl_add_u32 v{vt0}, v{vt0}, 2, s6')
    a('s_mov_b32 exec_lo, 0x00010001'); a('s_mov_b32 exec_hi, 0x00010001')
    a(f'ds_write_b32 v{vt0}, v{vm}')
    a('s_mov_b64 exec, -1')
    stamp('t8_max')
    vw = al('w8m', 16, 4); vown = al('own'); vrk = al('rk')
    a(f'v_mov_b32 v{vt0}, {L_WM}'); a(f'v_mov_b32 v{vt2}, {L_CNT}')
    a(f'v_and_b32 v{vt1}, 15, v{vlane}'); a(f'v_lshlrev_b32 v{vt1}, 2, v{vt1}'); a(f'v_mov_b32 v{vrk}, 0')
    a('s_waitcnt lgkmcnt(0)')
    a('s_barrier')
    stamp('t8_bar1')
    a(f'ds_read_b32 v{vown}, v{vt1} offset:{L_WM}')
    for q in range(4): a(f'ds_read_b128 {vr(vw+4*q,4)}, v{vt0} offset:{16*q}')
    for q in range(4):
        a(f's_waitcnt lgkmcnt({3-q})' if not cfg.stamps else 's_waitcnt lgkmcnt(0)')
        for j in range(4): a(f'v_cmp_gt_u32 s[{44+2*j}:{45+2*j}], v{vw+4*q+j}, v{vown}')
        for j in range(4): a(f'v_addc_co_u32 v{vrk}, vcc, 0, v{vrk}, s[{44+2*j}:{45+2*j}]')
    a(f'v_cmp_eq_u32 vcc, {cfg.trank}, v{vrk}')
    a('s_ff1_i32_b64 s6, vcc')
    a(f'v_readlane_b32 s7, v{vown}, s6')
    a(f'v_mov_b32 v{vw}, s7')
    for j in range(8): a(f'v_cmp_ge_u32 s[{44+2*j}:{45+2*j}], v{vk+j}, v{vw}')
    a('s_bcnt1_i32_b64 s7, s[44:45]')
    for j in range(1, 8):
        a(f's_bcnt1_i32_b64 s6, s[{44+2*j}:{45+2*j}]'); a('s_add_u32 s7, s7, s6')
    a(f'v_mov_b32 v{vt1}, s7')
    a('s_mov_b64 exec, 1')
    a(f'ds_add_rtn_u32 v{vt3}, v{vt2}, v{vt1}')
    a('s_mov_b64 exec, -1')
    vpos = al('pos', 8)
    a('s_mov_b32 s7, 0')
    for j in range(8):
        a(f'v_mbcnt_lo_u32_b32 v{vpos+j}, s{44+2*j}, 0'); a(f'v_mbcnt_hi_u32_b32 v{vpos+j}, s{45+2*j}, v{vpos+j}')
        if j: a(f'v_add_u32 v{vpos+j}, s7, v{vpos+j}')
        if j < 7:
            a(f's_bcnt1_i32_b64 s6, s[{44+2*j}:{45+2*j}]'); a('s_add_u32 s7, s7, s6')
    a('s_waitcnt lgkmcnt(0)')
    a(f'v_readfirstlane_b32 s7, v{vt3}')
    stamp('t8_atom')
    for j in range(8):
        a(f'v_add_u32 v{vpos+j}, s7, v{vpos+j}')
        a(f'v_min_u32 v{vpos+j}, 64, v{vpos+j}')
        a(f'v_lshlrev_b32 v{vpos+j}, 2, v{vpos+j}')
    for j in range(8):
        a(f's_mov_b64 exec, s[{44+2*j}:{45+2*j}]')
        a(f'ds_write_b32 v{vpos+j}, v{vk+j} offset:{L_CL}')
    a('s_mov_b64 exec, -1')
    vc = al('cand'); vrank = al('rank'); vall = al('call', 64, 4)
    a(f'v_lshlrev_b32 v{vt2}, 2, v{vlane}'); a(f'v_mov_b32 v{vt0}, {L_CL}'); a(f'v_mov_b32 v{vrank}, 0'); a(f'v_mov_b32 v{vt3}, {L_CNT}')
    a('s_waitcnt lgkmcnt(0)')
    a('s_barrier')
    stamp('t8_bar2')
    a(f's_cmp_eq_u32 {S_W8}, 0'); a('s_cbranch_scc0 L_t_norank')
    a(f'v_and_b32 v{vt2}, 15, v{vlane}'); a(f'v_lshlrev_b32 v{vt2}, 2, v{vt2}')
    a(f'v_lshrrev_b32 v{vw}, 4, v{vlane}'); a(f'v_lshlrev_b32 v{vw}, 4, v{vw}')
    a(f'ds_read_b32 v{vt1}, v{vt3}')
    a(f'ds_read_b32 v{vc}, v{vt2} offset:{L_CL}')
    a(f'ds_read_b128 {vr(vall,4)}, v{vw} offset:{L_CL}')
    a('s_waitcnt lgkmcnt(0)')
    a(f'v_readfirstlane_b32 s44, v{vt1}')
    for j in range(4): a(f'v_cmp_gt_u32 s[{46+2*j}:{47+2*j}], v{vall+j}, v{vc}')
    for j in range(4): a(f'v_addc_co_u32 v{vrank}, vcc, 0, v{vrank}, s[{46+2*j}:{47+2*j}]')
    for sw in ('16', '32'):
        a(f'v_mov_b32 v{vt1}, v{vrank}'); a(f'v_permlane{sw}_swap_b32 v{vt1}, v{vrank}'); a(f'v_add_u32 v{vrank}, v{vrank}, v{vt1}')
    a('s_cmp_le_u32 s44, 16'); a('s_cbranch_scc0 L_t_n32')
    a('s_mov_b64 exec, 0xffff')
    a(f'v_lshlrev_b32 v{vt0}, 2, v{vrank}')
    a(f'v_cmp_gt_u32 vcc, 8, v{vrank}')
    a('s_and_b64 exec, exec, vcc')
    a(f'ds_write_b32 v{vt0}, v{vc} offset:{L_SEL}')
    a('s_mov_b64 exec, -1')
    a('s_branch L_t_norank')
    a.label('L_t_n32')
    a(f'v_mov_b32 v{vrank}, 0')
    a(f'v_and_b32 v{vt2}, 31, v{vlane}'); a(f'v_lshlrev_b32 v{vt2}, 2, v{vt2}')
    a(f'v_lshrrev_b32 v{vw}, 5, v{vlane}'); a(f'v_lshlrev_b32 v{vw}, 6, v{vw}')
    a(f'ds_read_b32 v{vt1}, v{vt3}')
    a(f'ds_read_b32 v{vc}, v{vt2} offset:{L_CL}')
    for q in range(4): a(f'ds_read_b128 {vr(vall+4*q,4)}, v{vw} offset:{L_CL + 16*q}')
    a('s_waitcnt lgkmcnt(0)')
    a(f'v_readfirstlane_b32 s44, v{vt1}')
    def rank_group(base):
        for j in range(4): a(f'v_cmp_gt_u32 s[{46+2*j}:{47+2*j}], v{base+j}, v{vc}')
        for j in range(4): a(f'v_addc_co_u32 v{vrank}, vcc, 0, v{vrank}, s[{46+2*j}:{47+2*j}]')
    for q in range(4): rank_group(vall + 4*q)
    a(f'v_mov_b32 v{vt1}, v{vrank}'); a(f'v_permlane32_swap_b32 v{vt1}, v{vrank}'); a(f'v_add_u32 v{vrank}, v{vrank}, v{vt1}')
    a('s_cmp_le_u32 s44, 32'); a('s_cbranch_scc0 L_t_slow')
    a('s_mov_b32 exec_hi, 0')
    a(f'v_lshlrev_b32 v{vt0}, 2, v{vrank}')
    a(f'v_cmp_gt_u32 vcc, 8, v{vrank}')
    a('s_and_b64 exec, exec, vcc')
    a(f'ds_write_b32 v{vt0}, v{vc} offset:{L_SEL}')
    a('s_mov_b64 exec, -1')
    a('s_branch L_t_norank')
    a.label('L_t_slow')
    a('s_cmp_gt_u32 s44, 64'); a('s_cbranch_scc1 L_f_fallback')
    a(f'v_lshlrev_b32 v{vt2}, 2, v{vlane}'); a(f'v_mov_b32 v{vrank}, 0')
    a(f'ds_read_b32 v{vc}, v{vt2} offset:{L_CL}')
    for q in range(16): a(f'ds_read_b128 {vr(vall+4*q,4)}, v{vt0} offset:{16*q}')
    for q in range(16):
        if q >= 8:
            a(f's_cmp_le_u32 s44, {4*q}'); a('s_cbranch_scc1 L_f_rankd')
        a(f's_waitcnt lgkmcnt({min(15, 15-q)})')
        rank_group(vall + 4*q)
    a.label('L_f_rankd')
    a('s_nop 0')
    stamp('t8_rank')
    a(f'v_lshlrev_b32 v{vt0}, 2, v{vrank}')
    a(f'v_cmp_gt_u32 vcc, 8, v{vrank}')
    a('s_and_saveexec_b64 s[38:39], vcc')
    a(f'ds_write_b32 v{vt0}, v{vc} offset:{L_SEL}')
    a('s_mov_b64 exec, -1')
    a('s_branch L_t_norank')
    a.label('L_f_fallback')
    a('s_waitcnt lgkmcnt(0)')
    a('s_and_b32 s6, s2, 7'); a('s_lshl_b32 s6, s6, 12'); a(f's_add_u32 s6, s6, {WS_KEY}')
    a(f'v_lshl_add_u32 v{vt0}, v{vlane}, 6, s6')
    for q in range(4): a(f'global_load_dwordx4 {vr(vall+32+4*q,4)}, v{vt0}, {P_WS} offset:{16*q} sc1')
    a(f'v_lshlrev_b32 v{vt2}, 5, v{vlane}'); a(f'v_sub_u32 v{vt2}, 2047, v{vt2}')
    a('s_waitcnt vmcnt(0)')
    for q in range(16):
        a(f'v_subrev_u32 v{vt0}, {2*q}, v{vt2}'); a(f'v_subrev_u32 v{vt1}, {2*q+1}, v{vt2}')
        a(f'v_lshl_or_b32 v{vall+2*q}, v{vall+32+q}, 16, v{vt0}')
        a(f'v_and_or_b32 v{vall+2*q+1}, v{vall+32+q}, {S_MASKHI}, v{vt1}')
    a('s_mov_b32 s44, 0')
    a.label('L_f_fb')
    a(f'v_max_u32 v{vm}, v{vall}, v{vall+1}')
    for q in range(2, 32, 2): a(f'v_max3_u32 v{vm}, v{vm}, v{vall+q}, v{vall+q+1}')
    xlane1(vm, vm+1, 'max_u32', full=True)
    for q in range(32):
        a(f'v_cmp_ne_u32 vcc, v{vall+q}, v{vm}'); a(f'v_cndmask_b32 v{vall+q}, 0, v{vall+q}, vcc')
    a('s_lshl_b32 s6, s44, 2'); a(f's_add_u32 s6, s6, {L_SEL}'); a(f'v_mov_b32 v{vt0}, s6')
    a('s_mov_b64 exec, 1'); a(f'ds_write_b32 v{vt0}, v{vm}'); a('s_mov_b64 exec, -1')
    a('s_add_u32 s44, s44, 1'); a('s_cmp_lt_u32 s44, 8'); a('s_cbranch_scc1 L_f_fb')
    a.label('L_t_norank')
    a('s_waitcnt lgkmcnt(0)')
    a('s_barrier')
    a('s_branch L_t_join')
    a.label('L_t_roleB')
    out_store_and_flag('b')
    if not cfg.dmac: gen_dma(a, R, cfg, env)
    a('s_barrier')
    a('s_barrier')
    a('s_barrier')
    a.label('L_t_join')
    for n in ('k','koff','m','w8m','own','rk','cand','rank','call','pos'): R.release(n)
    vsel = al('sel'); vidx = al('idx')
    a(f'v_lshlrev_b32 v{vt0}, 2, v{vtk}')
    a(f'ds_read_b32 v{vsel}, v{vt0} offset:{L_SEL}')
    vB = al('B', 32, 4); vba = al('ba')
    a(f'v_lshrrev_b32 v{vt0}, 4, v{vlane}'); a(f'v_lshlrev_b32 v{vt0}, 3, v{vt0}')
    a(f'v_bfe_u32 v{vt1}, v{vlane}, 2, 2'); a(f'v_add_u32 v{vt0}, v{vt0}, v{vt1}')
    a(f'v_and_b32 v{vt1}, 3, v{vlane}')
    a('s_waitcnt lgkmcnt(0)')
    a(f'v_and_b32 v{vidx}, 0xffff, v{vsel}'); a(f'v_sub_u32 v{vidx}, 2047, v{vidx}')
    stamp('top8')
    def bfrags(role):
        if role == 1:
            a(f'v_lshlrev_b32 v{vba}, 6, v{vbrow}'); a(f'v_lshl_add_u32 v{vba}, v{vbcol}, 3, v{vba}')
            a(f's_lshl_b32 s6, {S_W8}, 12'); a(f's_add_u32 s6, s6, {L_BIG}')
            a(f'v_add_u32 v{vba}, s6, v{vba}')
            for kk in range(2):
                for nt in range(4):
                    off = kk*2048 + (nt>>1)*32768 + (nt&1)*32
                    d = vB + 4*(kk*4+nt)
                    a(f'ds_read_b64_tr_b16 {vr(d,2)}, v{vba} offset:{off}')
                    a(f'ds_read_b64_tr_b16 {vr(d+2,2)}, v{vba} offset:{off + 4*64}')
        else:
            a(f'v_lshlrev_b32 v{vba}, 5, v{vbrow}'); a(f'v_lshl_add_u32 v{vba}, v{vbcol}, 3, v{vba}')
            a(f's_mul_i32 s6, {S_W8}, {7*32*32}'); a(f's_add_u32 s6, s6, {L_BIG}')
            a(f'v_add_u32 v{vba}, s6, v{vba}')
            for kk in range(7):
                d = vB + 4*kk
                a(f'ds_read_b64_tr_b16 {vr(d,2)}, v{vba} offset:{kk*1024}')
                a(f'ds_read_b64_tr_b16 {vr(d+2,2)}, v{vba} offset:{kk*1024 + 4*32}')
    vbrow = al('brow'); vbcol = al('bcol')
    a(f'v_mov_b32 v{vbrow}, v{vt0}'); a(f'v_mov_b32 v{vbcol}, v{vt1}')
    stamp('f3_ok')
    vst = al('stat'); vm2 = al('m2', 2, 2); vrs = al('rs', 2, 2)
    vsto = al('stato')
    a(f'v_lshlrev_b32 v{vsto}, 2, v{vidx}'); a(f'v_add_u32 v{vsto}, {WS_STAT}, v{vsto}')
    a(f's_cmp_eq_u32 {S_ROLE}, 1'); a('s_cbranch_scc0 L_f2')
    vh = al('h', 8, 4); vd = al('d', 8, 4); vhf = al('hf', 8, 2); vA = al('A', 8, 4); acc = al('acc', 16, 4)
    a(f'v_lshrrev_b32 v{vt0}, 4, v{vlane}'); a(f'v_lshlrev_b32 v{vt0}, 4, v{vt0}')
    a(f'v_lshl_add_u32 v{vt0}, v{vidx}, 10, v{vt0}')
    a(f's_lshl_b32 s6, {S_W8}, 7'); a(f's_add_u32 s6, s6, {WS_H}')
    vhoff = al('hoff')
    a(f'v_add_u32 v{vhoff}, s6, v{vt0}')
    def issue_h():
        a(f'global_load_dword v{vst}, v{vsto}, {P_WS} sc1')
        a(f'global_load_dwordx4 {vr(vh,4)}, v{vhoff}, {P_WS} sc1')
        a(f'global_load_dwordx4 {vr(vh+4,4)}, v{vhoff}, {P_WS} offset:64 sc1')
    issue_h()
    a('s_waitcnt vmcnt(3)')
    a('s_barrier')
    stamp('t4')
    bfrags(1)
    poll_loop(issue_h, [vst] + list(range(vh, vh+8)), vt1, 'h', first_issued=True, nl=3)
    R.release('hoff')
    stamp('h_got')
    a(f'v_lshlrev_b32 v{vm2}, 16, v{vst}'); a(f'v_and_b32 v{vt1}, {S_MASKHI}, v{vst}'); a(f'v_rcp_f32 v{vrs}, v{vt1}')
    vd2 = al('d2', 8, 2); vhf2 = al('hf2', 8, 2)
    prs = ((vhf, vd), (vhf2, vd2))
    for kk, (hf, dd) in enumerate(prs): unpack8(hf, vh+4*kk)
    for kk, (hf, dd) in enumerate(prs):
        for j in range(4): a(f'v_pk_add_f32 {vr(dd+2*j,2)}, {vr(hf+2*j,2)}, {vr(vm2,2)} op_sel_hi:[1,0] neg_lo:[0,1] neg_hi:[0,1]')
    for kk, (hf, dd) in enumerate(prs): cvt4(vA+4*kk, dd)
    for kk, (hf, dd) in enumerate(prs): unpack8(dd, vA+4*kk)
    for kk, (hf, dd) in enumerate(prs):
        for j in range(4): a(f'v_pk_mul_f32 {vr(dd+2*j,2)}, {vr(dd+2*j,2)}, {vr(vrs,2)} op_sel_hi:[1,0]')
    for kk, (hf, dd) in enumerate(prs): cvt4(vA+4*kk, dd)
    R.release('d2'); R.release('hf2')
    a(f's_lshl_b32 s6, {S_W8}, 11'); a(f's_add_u32 s6, s6, {L_PX}')
    a(f'v_lshl_add_u32 v{vt0}, v{vlane}, 4, s6')
    a('s_waitcnt lgkmcnt(0)')
    stamp('f1_norm')
    for kk in range(2):
        for nt in range(4):
            a(f'v_mfma_f32_16x16x32_bf16 {vr(acc+4*nt,4)}, {vr(vA+4*kk,4)}, {vr(vB+4*(kk*4+nt),4)}, {"0" if kk == 0 else vr(acc+4*nt,4)}')
    stamp('f1_mfma')
    a('s_mov_b32 exec_hi, 0')
    for nt in range(4): a(f'ds_write_b128 v{vt0}, {vr(acc+4*nt,4)} offset:{nt*512}')
    a('s_mov_b32 exec_hi, -1')
    gp = al('gp', 16, 4)
    a(f's_lshr_b32 s6, {S_W8}, 1'); a('s_lshl_b32 s6, s6, 9'); a(f's_and_b32 s7, {S_W8}, 1'); a('s_lshl_b32 s7, s7, 8')
    a('s_add_u32 s6, s6, s7'); a(f's_add_u32 s6, s6, {L_PX}')
    a(f'v_lshl_add_u32 v{vt2}, v{vlane}, 2, s6')
    a('s_waitcnt lgkmcnt(0)')
    a('s_barrier')
    stamp('f1_bar')
    a(f's_cmp_eq_u32 {S_W8}, 5'); a('s_cbranch_scc0 L_f1_nof3b')
    a(f's_lshl_b32 s6, {S_P}, 4'); a(f's_add_u32 s6, s6, {WS_F3B}')
    a(f'v_lshl_add_u32 v{vt0}, v{vlane}, 12, s6'); a(f'v_mov_b32 v{vt1}, {S_TAG}')
    a('s_mov_b64 exec, 0xff')
    a(f'global_store_dword v{vt0}, v{vt1}, {P_WS} sc1')
    a('s_mov_b64 exec, -1')
    a.label('L_f1_nof3b')
    a(f's_cmp_ge_u32 {S_W8}, 4'); a('s_cbranch_scc1 L_fin')
    for w in range(0, 8, 2): a(f'ds_read2st64_b32 {vr(gp+w,2)}, v{vt2} offset0:{w*8} offset1:{(w+1)*8}')
    for w in range(0, 8, 2): a(f'ds_read2st64_b32 {vr(gp+8+w,2)}, v{vt2} offset0:{w*8+4} offset1:{(w+1)*8+4}')
    vsa1 = al('hsa')
    a(f'v_and_b32 v{vsa1}, 3, v{vlane}'); a(f'v_lshlrev_b32 v{vsa1}, 5, v{vsa1}')
    a(f'v_lshrrev_b32 v{vt0}, 2, v{vlane}'); a(f'v_lshl_add_u32 v{vsa1}, v{vt0}, 1, v{vsa1}')
    a(f's_lshl_b32 s6, {S_W8}, 7'); a(f's_lshl_b32 s7, {g["S_FC"]}, 9'); a('s_add_u32 s6, s6, s7'); a(f's_add_u32 s6, s6, {WS_HID}')
    a(f'v_add_u32 v{vsa1}, s6, v{vsa1}')
    a('s_waitcnt lgkmcnt(4)' if not cfg.stamps else 's_waitcnt lgkmcnt(0)')
    for (x, y) in ((0,1),(2,3),(4,5),(6,7),(0,2),(4,6),(0,4)): a(f'v_add_f32 v{gp+x}, v{gp+x}, v{gp+y}')
    a('s_waitcnt lgkmcnt(0)')
    for (x, y) in ((0,1),(2,3),(4,5),(6,7),(0,2),(4,6),(0,4)): a(f'v_add_f32 v{gp+8+x}, v{gp+8+x}, v{gp+8+y}')
    stamp('f1_red')
    a(f'v_cvt_pk_bf16_f32 v{gp+1}, v{gp}, v{gp+8}')
    a(f'v_lshlrev_b32 v{gp}, 16, v{gp+1}')
    a(f'v_and_b32 v{gp+8}, {S_MASKHI}, v{gp+1}')
    a(f'v_mul_f32 v{gp+2}, {hx(f2u(-1.4426950408889634))}, v{gp}')
    a(f'v_exp_f32 v{gp+2}, v{gp+2}')
    a(f'v_add_f32 v{gp+2}, 1.0, v{gp+2}')
    a(f'v_rcp_f32 v{gp+2}, v{gp+2}')
    a(f'v_mul_f32 v{gp}, v{gp}, v{gp+2}')
    a(f'v_cvt_pk_bf16_f32 v{gp}, v{gp}, v{gp}')
    a(f'v_lshlrev_b32 v{gp}, 16, v{gp}')
    a(f'v_mul_f32 v{gp}, v{gp}, v{gp+8}')
    a(f'v_mov_b32_dpp v{gp+1}, v{gp} row_shl:4 row_mask:0xf bank_mask:0xf')
    a(f'v_cvt_pk_bf16_f32 v{gp}, v{gp}, v{gp+1}')
    stamp('f1_silu')
    a('s_mov_b32 exec_lo, 0x0f0f0f0f'); a('s_mov_b32 exec_hi, 0x0f0f0f0f')
    for rep in range(RH):
        a(f'global_store_dword v{vsa1}, v{gp}, {P_WS} sc1')
        if rep < RH - 1: a(f'v_add_u32 v{vsa1}, {HID_SZ}, v{vsa1}')
    a('s_mov_b64 exec, -1')
    stamp('hid_stored')
    R.release('hsa')
    a('s_branch L_fin')
    for n in ('h','d','hf','A','acc','gp'): R.release(n)
    a.label('L_f2')
    vA = al('A2', 28, 4); vho = al('ho'); acc = al('acc2', 4, 4); vhv = al('hv'); vst2 = al('st2'); vsel2 = al('sel2'); vix2 = al('ix2')
    a(f'v_lshrrev_b32 v{vt0}, 4, v0'); a(f'v_and_b32 v{vt0}, 7, v{vt0}'); a(f'v_lshlrev_b32 v{vt0}, 2, v{vt0}')
    a(f'ds_read_b32 v{vsel2}, v{vt0} offset:{L_SEL}')
    a('s_waitcnt lgkmcnt(0)')
    a(f'v_and_b32 v{vix2}, 0xffff, v{vsel2}'); a(f'v_sub_u32 v{vix2}, 2047, v{vix2}')
    a(f's_lshl_b32 s7, {g["S_FC"]}, 5')
    a(f'v_and_b32 v{vt0}, 15, v{vlane}'); a(f'v_lshlrev_b32 v{vt0}, 1, v{vt0}')
    a(f'v_lshl_add_u32 v{vho}, v{vix2}, 10, v{vt0}'); a(f'v_add_u32 v{vho}, s7, v{vho}')
    vha = al('ha'); vsa = al('sa')
    a(f'v_and_b32 v{vha}, 0xfffffffc, v{vho}'); a(f'v_add_u32 v{vha}, {WS_H}, v{vha}')
    a(f'v_lshlrev_b32 v{vsa}, 2, v{vix2}'); a(f'v_add_u32 v{vsa}, {WS_STAT}, v{vsa}')
    def issue_h2():
        a(f'global_load_dword v{vhv}, v{vha}, {P_WS} sc1')
        a(f'global_load_dword v{vst2}, v{vsa}, {P_WS} sc1')
    poll_loop(issue_h2, [vhv, vst2], vt0, 'h2')
    a(f'v_and_b32 v{vt0}, 1, v{vlane}'); a(f'v_cmp_eq_u32 vcc, 1, v{vt0}')
    a(f'v_lshrrev_b32 v{vt0}, 16, v{vhv}'); a(f'v_and_b32 v{vhv}, 0xffff, v{vhv}')
    a(f'v_cndmask_b32 v{vhv}, v{vhv}, v{vt0}, vcc')
    R.release('ha'); R.release('sa')
    publish_f3b('f2')
    bfrags(2)
    vf3b = al('f3b'); vf3bo = al('f3bo')
    a('s_and_b32 s6, s2, 7'); a('s_lshl_b32 s6, s6, 12'); a(f's_add_u32 s6, s6, {WS_F3B}')
    a(f'v_lshrrev_b32 v{vf3bo}, 3, v{vidx}'); a(f'v_lshl_add_u32 v{vf3bo}, v{vf3bo}, 4, s6')
    vrsig = al('rsig'); vxn = al('xn')
    a(f'v_lshrrev_b32 v{vt0}, 16, v{vsel2}')
    a(f'v_cmp_lt_u32 vcc, 0x7fff, v{vt0}')
    a(f'v_and_b32 v{vt2}, 0x7fff, v{vt0}'); a(f'v_xor_b32 v{vt3}, 0xffff, v{vt0}')
    a(f'v_cndmask_b32 v{vt0}, v{vt3}, v{vt2}, vcc'); a(f'v_lshlrev_b32 v{vt0}, 16, v{vt0}')
    a(f'v_mul_f32 v{vt0}, {hx(f2u(-1.4426950408889634))}, v{vt0}')
    a(f'v_exp_f32 v{vt0}, v{vt0}'); a(f'v_add_f32 v{vt0}, 1.0, v{vt0}'); a(f'v_rcp_f32 v{vt0}, v{vt0}')
    a(f'v_cvt_pk_bf16_f32 v{vt0}, v{vt0}, v{vt0}'); a(f'v_lshlrev_b32 v{vrsig}, 16, v{vt0}')
    a(f'v_lshlrev_b32 v{vhv}, 16, v{vhv}')
    a(f'v_lshlrev_b32 v{vt2}, 16, v{vst2}'); a(f'v_and_b32 v{vt3}, {S_MASKHI}, v{vst2}'); a(f'v_rcp_f32 v{vt3}, v{vt3}')
    a(f'v_sub_f32 v{vt2}, v{vhv}, v{vt2}'); a(f'v_cvt_pk_bf16_f32 v{vt2}, v{vt2}, v{vt2}'); a(f'v_lshlrev_b32 v{vt2}, 16, v{vt2}')
    a(f'v_mul_f32 v{vt2}, v{vt2}, v{vt3}'); a(f'v_cvt_pk_bf16_f32 v{vt2}, v{vt2}, v{vt2}'); a(f'v_lshlrev_b32 v{vxn}, 16, v{vt2}')
    vhi = al('hio'); vpw = al('pw'); vpr = al('pr')
    a('s_and_b32 s6, s2, 3'); a(f's_mul_i32 s6, s6, {HID_SZ}'); a(f's_mul_i32 s7, {S_W8}, {7*512}'); a('s_add_u32 s6, s6, s7'); a(f's_add_u32 s6, s6, {WS_HID}')
    a(f'v_lshrrev_b32 v{vt0}, 5, v{vlane}'); a(f'v_lshlrev_b32 v{vt0}, 8, v{vt0}')
    a(f'v_lshrrev_b32 v{vt1}, 2, v{vtk}'); a(f'v_lshl_add_u32 v{vt0}, v{vt1}, 7, v{vt0}')
    a(f'v_and_b32 v{vt1}, 3, v{vtk}'); a(f'v_lshl_add_u32 v{vt0}, v{vt1}, 5, v{vt0}')
    a(f'v_bfe_u32 v{vt1}, v{vlane}, 4, 1'); a(f'v_lshl_add_u32 v{vt0}, v{vt1}, 4, v{vt0}')
    a(f'v_add_u32 v{vhi}, s6, v{vt0}')
    a(f's_lshl_b32 s6, {S_W8}, 9'); a(f's_add_u32 s6, s6, {L_PX}')
    a(f'v_lshl_add_u32 v{vpw}, v{vlane}, 4, s6')
    a(f'v_lshrrev_b32 v{vt0}, 4, v0')
    a(f'v_lshrrev_b32 v{vt1}, 2, v{vt0}'); a(f'v_lshlrev_b32 v{vt1}, 8, v{vt1}')
    a(f'v_and_b32 v{vt0}, 3, v{vt0}'); a(f'v_lshl_add_u32 v{vt1}, v{vt0}, 2, v{vt1}')
    a(f'v_and_b32 v{vt0}, 15, v{vlane}'); a(f'v_lshl_add_u32 v{vt1}, v{vt0}, 4, v{vt1}')
    a(f'v_add_u32 v{vpr}, {L_PX}, v{vt1}')
    a(f's_cmp_ge_u32 {S_W8}, 2'); a('s_cbranch_scc1 L_f2_nof3b')
    poll_loop(lambda: a(f'global_load_dword v{vf3b}, v{vf3bo}, {P_WS} sc1'), [vf3b], vt0, 'f3b', cmp_tag=True)
    a.label('L_f2_nof3b')
    def issue_hid():
        for kk in range(7): a(f'global_load_dwordx4 {vr(vA+4*kk,4)}, v{vhi}, {P_WS} offset:{kk*512} sc1')
    if cfg.probe: poll_loop(lambda: a(f'global_load_dwordx4 {vr(vA+24,4)}, v{vhi}, {P_WS} offset:{6*512} sc1'), list(range(vA+24, vA+28)), vt0, 'hidp')
    poll_loop(issue_hid, list(range(vA, vA+28)), vt0, 'hid', nl=7)
    stamp('hid_got')
    acc2 = al('acc2b', 4, 4)
    for kk in range(7):
        d = acc if kk % 2 == 0 else acc2
        a(f'v_mfma_f32_16x16x32_bf16 {vr(d,4)}, {vr(vA+4*kk,4)}, {vr(vB+4*kk,4)}, {"0" if kk < 2 else vr(d,4)}')
    a(f'v_pk_add_f32 {vr(acc,2)}, {vr(acc,2)}, {vr(acc2,2)}'); a(f'v_pk_add_f32 {vr(acc+2,2)}, {vr(acc+2,2)}, {vr(acc2+2,2)}')
    a('s_mov_b32 exec_hi, 0')
    a(f'ds_write_b128 v{vpw}, {vr(acc,4)}')
    a('s_mov_b32 exec_hi, -1')
    a('s_waitcnt lgkmcnt(0)')
    a('s_barrier')
    a(f's_cmp_ge_u32 {S_W8}, 2'); a('s_cbranch_scc1 L_fin')
    fp = al('fp', 8, 4)
    for w in range(0, 8, 2): a(f'ds_read2st64_b32 {vr(fp+w,2)}, v{vpr} offset0:{w*2} offset1:{(w+1)*2}')
    a('s_waitcnt lgkmcnt(0)')
    for (x, y) in ((0,1),(2,3),(4,5),(6,7),(0,2),(4,6),(0,4)): a(f'v_add_f32 v{fp+x}, v{fp+x}, v{fp+y}')
    def rb(r): a(f'v_cvt_pk_bf16_f32 v{r}, v{r}, v{r}'); a(f'v_lshlrev_b32 v{r}, 16, v{r}')
    rb(fp)
    a(f'v_mul_f32 v{fp}, v{fp}, v{vrsig}'); rb(fp)
    a(f'v_add_f32 v{fp}, v{fp}, v{vxn}'); rb(fp)
    a(f'v_add_f32 v{fp}, v{fp}, v{vhv}')
    a(f'v_cvt_pk_bf16_f32 v{fp}, v{fp}, v{fp}')
    a(f'global_store_short v{vho}, v{fp}, {P_OUT} sc1')
    stamp('final')

def finish(a, R, cfg):
    a.label('L_fin')
    if cfg.stamps and cfg.rt == 1:
        n = len(cfg.stamp_names)
        a('s_memrealtime s[68:69]')
        a('s_waitcnt lgkmcnt(0)')
        a('v_mov_b32 v2, 0')
        a('s_mov_b64 exec, 1')
        a('s_not_b32 s70, s70')
        for i in range(n):
            a(f'v_mov_b32 v3, s{70+2*i}')
            a(f'global_atomic_umax v2, v3, s[34:35] offset:{4*i}')
        a('v_mov_b32 v3, s68')
        a(f'global_atomic_umax v2, v3, s[34:35] offset:60')
        a('s_mov_b64 exec, -1')
    elif cfg.stamps:
        n = len(cfg.stamp_names)
        a(f'{cfg.tinstr} s[{70+2*n}:{71+2*n}]') if 71+2*n <= 101 else None
        if 71+2*n <= 101: n += 1; cfg.stamp_names.append('END')
        a('s_waitcnt lgkmcnt(0)')
        a('s_lshl_b32 s6, s2, 3'); a('s_add_u32 s6, s6, s4'); a('s_lshl_b32 s6, s6, 8'); a(f's_add_u32 s6, s6, {WS_DBG + 0x100000}')
        a('v_mov_b32 v2, s6')
        a('s_mov_b64 exec, 1')
        for i in range(n):
            a(f'v_mov_b32 v3, s{70+2*i}')
            a(f'global_store_dword v2, v3, s[36:37] offset:{4*i}')
        a('s_mov_b64 exec, -1')
    a('s_cmp_eq_u32 s2, 0'); a('s_cbranch_scc0 L_end')
    a('s_cmp_eq_u32 s4, 0'); a('s_cbranch_scc0 L_end')
    a(f'v_mov_b32 v2, {WS_EPOCH}'); a('v_mov_b32 v3, s5')
    a('s_mov_b64 exec, 1')
    a('global_store_dword v2, v3, s[36:37]')
    a.label('L_end')
    a('s_endpgm')
    body = a.text()
    nv = 256
    hdr = open('cdna_kernels/' + NAME + '.s.ref').read().split('; Override launch geometry')[0]
    s = hdr
    s += f'; @launch grid=(256,1,1) block=(512,1,1) lds={LDS_TOTAL}\n'
    s += '.amdgcn_target "amdgcn-amd-amdhsa--gfx950"\n.text\n'
    s += f'.globl {NAME}_kernel\n.p2align 8\n.type {NAME}_kernel,@function\n{NAME}_kernel:\n'
    s += body
    s += f'''.section .rodata,"a"
.p2align 6
.amdhsa_kernel {NAME}_kernel
  .amdhsa_next_free_vgpr {nv}
  .amdhsa_next_free_sgpr 102
  .amdhsa_accum_offset {nv}
  .amdhsa_group_segment_fixed_size 0
  .amdhsa_kernarg_size 120
  .amdhsa_user_sgpr_count 2
  .amdhsa_user_sgpr_kernarg_segment_ptr 1
  .amdhsa_system_sgpr_workgroup_id_x 1
.end_amdhsa_kernel
'''
    cfg.maxv = R.maxused
    return s

if __name__ == '__main__':
    cfg = Cfg()
    out = sys.argv[1]
    for arg in sys.argv[2:]:
        k, v = arg.split('=')
        setattr(cfg, k, int(v) if v.lstrip('-').isdigit() else v)
    open(out, 'w').write(gen(cfg))
    import os
    if cfg.stamps: open(out + '.stamps', 'w').write('\n'.join(cfg.stamp_names))
    elif os.path.exists(out + '.stamps'): os.remove(out + '.stamps')
    print('max vgpr', cfg.maxv, 'LDS', LDS_TOTAL)
```

```python
import sys, struct, math
from asmlib import *

NAME = "sequential_preLN__ssm_conv_s4d__moe_arch_mod__prompt"
def f2u(x): return struct.unpack('<I', struct.pack('<f', x))[0]
def f32(x): return struct.unpack('<f', struct.pack('<f', x))[0]
def hx(x): return '0x%08x' % (x & 0xffffffff)

WS_EPOCH = 0x0
WS_F1 = 0x50000; R1 = 8
WS_F3 = 0x8000; R3 = 8
WS_F2 = 0x60000
WS_F3B = 0x58000
WS_KEY = 0x10000; RK = 8
WS_HID = 0x20000; RH = 4; HID_SZ = 56 * 512
WS_MISC = 0x10000
WS_STAT = 0x40000
WS_U = 0x100000
WS_Y = 0x300000
WS_H = 0x500000
WS_DBG = 0x800000
KC_SZ = 4160
L_KC = 0
L_UL = 16640; UL_SZ = 4608
L_TT = 25856; TT_SZ = 1536
L_RED = 28928
L_ST1 = L_RED
L_ST2 = L_RED + 512
L_RP = L_RED + 1024
L_IS = L_RED + 1280
L_WM = L_RED + 1344
L_CNT = L_RED + 1408
L_CL = L_RED + 1536
L_SEL = L_RED + 2048
L_FB = L_RED + 2560
L_D = L_RED + 4096
L_WR = L_RED + 5120
L_STG = L_RED + 6144; STG_SZ = 1536
L_BIG = L_STG + 8 * STG_SZ
FROW = 544
F_SZ = 16 * FROW; G_SZ = 48 * FROW; FG_SZ = F_SZ + G_SZ
L_PX = L_BIG + 2 * FG_SZ
PX_T = 1152; PX_C = 8 * PX_T + 64; PX_H = 2 * PX_C
L_W = L_BIG
L_RA = L_BIG + 12288
LDS_TOTAL = L_PX + 2 * PX_H
assert LDS_TOTAL <= 163840, LDS_TOTAL
assert L_BIG % 16 == 0 and L_PX % 16 == 0

SPIN_LIMIT = 1 << 15

class Cfg:
    stop = 99
    dbg = 0
    stamps = 0
    rt = 0
    codepf = 2
    wtouch = 2
    dmac = 0
    dsleep = 0
    hlate = 1
    xbar = 1
    probe = 0
    upipe = 0
    trank = 7
    plain1 = 0
    noclear = 0
    ddirect = 0
    olate = 1
    convsched = 1
    r3 = 0
    finplain = 0
    ahead3 = 8
    wprio = 1
    bwsh = 4
    noywait = 0
    pp = 0
    ppsleep = 2
    ppset = 'u,y,key,h,hid'
    ylate = 2
    prio = 0
    nokwait = 0

def gen(cfg):
    a = Asm()
    R = Regs(2, 255)
    al = R.alloc
    S_P, S_W8, S_TAG = 's3', 's4', 's5'
    P_X, P_LA, P_AI, P_CR, P_CI, P_DT, P_DS = 's[8:9]', 's[10:11]', 's[12:13]', 's[14:15]', 's[16:17]', 's[18:19]', 's[20:21]'
    P_WR, P_WG, P_WU, P_WD, P_OUT, P_DBG, P_WS = 's[24:25]', 's[26:27]', 's[28:29]', 's[30:31]', 's[32:33]', 's[34:35]', 's[36:37]'
    S_SPIN = 's60'
    S_L2E, S_L2ELO, S_I2PI, S_I2PILO, S_EPS, S_MASKHI = 's62', 's63', 's64', 's65', 's66', 's67'
    S_ONE2 = 's68'
    cfg.stamp_names = []
    cfg.tinstr = 's_memrealtime' if cfg.rt else 's_memtime'
    G1 = ['start','kernarg','issued','precomp','x_arrived','ln1_prebar','ln1_fin','u_stored','kgen_valu','B_b','B_c','B_d','conv_mfma','B_e','y_stored']
    G2 = ['start','u_stored','B_d','y_stored','y_acked','y_got','key_stored','s3_done','keys_got','top8','f3_ok','h_got','hid_stored','hid_got','final']
    G3 = ['start','keys_got','t8_max','t8_bar1','t8_atom','t8_bar2','t8_rank','top8','h_got','f1_norm','f1_mfma','f1_bar','f1_red','f1_silu','hid_stored']
    G5 = ['start','B_c','expand','B_d','c_r0','c_prew','c_postw','c_prex','c_postx','c_r3','B_e','y_stored','w_done']
    G6 = ['start','y_got','s3_h','key_stored','k_wait','keys_got','k_spin','t8_bar1','t8_bar2','top8','t4','h_got','hid_stored','hid_got','final']
    G4 = ['start','y_acked','y_got','s3_tr','s3_h','s3_part','s3_bar1','s3_fin','s3_rp','s3_bar2','key_stored','s3_done','keys_got','hid_got','final']
    sel = {1: G1, 2: G2, 3: G3, 4: G4, 5: G5, 6: G6}.get(cfg.stamps, G1)
    cfg.active = lambda name: cfg.stamps and cfg.stamps != 9 and name in sel
    def stamp(name):
        if cfg.stamps == 9:
            if name in ('start', 'x_arrived', 'u_stored', 'B_b', 'B_d', 'y_stored', 'key_stored'):
                i = len(cfg.stamp_names)
                a(f's_memrealtime s[{70+2*i}:{71+2*i}]'); cfg.stamp_names.append(name + '_rt')
                a(f's_memtime s[{72+2*i}:{73+2*i}]'); cfg.stamp_names.append(name + '_cy')
            return
        if not cfg.stamps or name not in sel: return
        i = len(cfg.stamp_names)
        assert 70 + 2 * i + 1 <= 101, 'too many stamps'
        a(f'{cfg.tinstr} s[{70+2*i}:{71+2*i}]')
        cfg.stamp_names.append(name)
    uid = [0]
    def lbl(p):
        uid[0] += 1
        return f'L_{p}_{uid[0]}'
    def if_role_a(else_lbl):
        a(f's_cmp_ge_u32 {S_W8}, 4'); a(f's_cbranch_scc1 {else_lbl}')
    def if_role_b(else_lbl):
        a(f's_cmp_lt_u32 {S_W8}, 4'); a(f's_cbranch_scc1 {else_lbl}')
    def stop_here(n):
        if cfg.stop == n:
            a('s_waitcnt vmcnt(0) lgkmcnt(0)'); a('s_branch L_fin')
            return True
        return False
    def poll_loop(issue, check_regs, tmp, name, first_issued=False, cmp_tag=False, nl=1):
        l0 = lbl(name); l1 = lbl(name + 'ok')
        pipe = cfg.pp and name in cfg.ppset.split(',')
        def check():
            if cmp_tag:
                a(f'v_xor_b32 v{tmp}, {S_TAG}, v{check_regs[0]}')
                for r in check_regs[1:]:
                    a(f'v_xor_b32 v{tmp+1}, {S_TAG}, v{r}'); a(f'v_or_b32 v{tmp}, v{tmp}, v{tmp+1}')
                a(f'v_cmp_ne_u32 vcc, 0, v{tmp}')
            else:
                rs = list(check_regs)
                a(f'v_max_u32 v{tmp}, v{rs[0]}, v{rs[1]}') if len(rs) > 1 else a(f'v_mov_b32 v{tmp}, v{rs[0]}')
                rs = rs[2:]
                while len(rs) >= 2:
                    a(f'v_max3_u32 v{tmp}, v{tmp}, v{rs[0]}, v{rs[1]}'); rs = rs[2:]
                if rs: a(f'v_max_u32 v{tmp}, v{tmp}, v{rs[0]}')
                a(f'v_cmp_eq_u32 vcc, -1, v{tmp}')
        a(f's_mov_b32 {S_SPIN}, 0')
        if not pipe:
            if first_issued:
                lf = lbl(name + 'f'); a(f's_branch {lf}')
            a.label(l0)
            issue()
            if first_issued: a.label(lf)
            a('s_waitcnt vmcnt(0)')
            check()
            a(f's_cbranch_vccz {l1}')
            a('s_mov_b64 exec, vcc')
            a(f's_add_u32 {S_SPIN}, {S_SPIN}, 1')
            a(f's_cmp_lt_u32 {S_SPIN}, {SPIN_LIMIT}')
            a(f's_cbranch_scc1 {l0}')
            a.label(l1)
            a('s_mov_b64 exec, -1')
        else:
            if not first_issued: issue()
            a('s_waitcnt vmcnt(0)')
            check()
            a(f's_cbranch_vccz {l1}')
            a('s_mov_b64 exec, vcc')
            a.label(l0)
            issue()
            a(f's_sleep {cfg.ppsleep}')
            a(f's_waitcnt vmcnt({nl * (cfg.pp - 1)})')
            check()
            l2 = lbl(name + 'd')
            a(f's_cbranch_vccz {l2}')
            a('s_mov_b64 exec, vcc')
            a(f's_add_u32 {S_SPIN}, {S_SPIN}, 1')
            a(f's_cmp_lt_u32 {S_SPIN}, {SPIN_LIMIT}')
            a(f's_cbranch_scc1 {l0}')
            a.label(l2)
            a('s_waitcnt vmcnt(0)')
            a('s_mov_b64 exec, -1')
            check()
            a(f's_cbranch_vccz {l1}')
            a('s_mov_b64 exec, vcc')
            a(f's_add_u32 {S_SPIN}, {S_SPIN}, 1')
            a(f's_cmp_lt_u32 {S_SPIN}, {SPIN_LIMIT}')
            a(f's_cbranch_scc1 {l0}')
            a.label(l1)
            a('s_mov_b64 exec, -1')

    a('s_cmp_ge_u32 s2, 256')
    a('s_cbranch_scc1 L_end')
    a('s_load_dwordx16 s[8:23], s[0:1], 0')
    a('s_load_dwordx8 s[24:31], s[0:1], 64')
    a('s_load_dwordx4 s[32:35], s[0:1], 96')
    a('s_load_dwordx2 s[36:37], s[0:1], 112')
    if cfg.stamps:
        for i in range(70, 102): a(f's_mov_b32 s{i}, 0')
    stamp('start')
    vlane = 1
    vt0 = al('t0', 2); vt1 = vt0 + 1
    vt2 = al('t2', 2); vt3 = vt2 + 1
    a(f'v_lshrrev_b32 v{vt0}, 6, v0')
    a(f'v_and_b32 v{vlane}, 63, v0')
    a('s_and_b32 s6, s2, 7'); a('s_lshl_b32 s6, s6, 5'); a('s_lshr_b32 s7, s2, 3'); a(f's_add_u32 {S_P}, s6, s7')
    a(f'v_readfirstlane_b32 {S_W8}, v{vt0}')
    S_FC = 's61'
    a('s_and_b32 s6, s2, 7'); a('s_mul_i32 s7, s6, 7'); a(f's_lshr_b32 {S_FC}, s2, 3'); a(f's_add_u32 s7, s7, {S_FC}')
    a('s_lshl_b32 s6, s6, 2'); a(f's_add_u32 s6, s6, {S_FC}'); a('s_sub_u32 s6, s6, 8')
    a('s_cmp_lt_u32 s2, 56'); a(f's_cselect_b32 {S_FC}, s7, s6')
    vjunk = al('junk'); vja = al('junkaddr')
    vtk = al('tk'); vcg = al('cg')
    a(f'v_and_b32 v{vtk}, 7, v{vlane}')
    a(f'v_lshrrev_b32 v{vcg}, 3, v{vlane}')
    vch = al('choff')
    a(f's_lshl_b32 s6, {S_W8}, 7')
    a(f'v_lshl_add_u32 v{vch}, v{vcg}, 4, s6')
    vrow = al('rowoff')
    a(f's_lshl_b32 s7, {S_P}, 13')
    a(f'v_lshl_add_u32 v{vrow}, v{vtk}, 10, s7')
    vxo = al('xoff')
    a(f'v_add_u32 v{vxo}, v{vrow}, v{vch}')
    vblk = al('blkoff')
    a(f'v_lshl_add_u32 v{vblk}, v0, 4, s7')
    vpo = al('paroff'); vpo2 = al('paroff2'); vdto = al('dtoff')
    a(f's_lshl_b32 s6, {S_P}, 9')
    a(f'v_and_b32 v{vpo}, 255, v0')
    a(f'v_lshl_add_u32 v{vpo}, v{vpo}, 1, s6')
    a(f'v_xor_b32 v{vpo2}, 128, v{vpo}')
    a(f's_lshl_b32 s6, {S_P}, 2')
    a(f'v_bfe_u32 v{vdto}, v0, 7, 1')
    a(f'v_lshl_add_u32 v{vdto}, v{vdto}, 1, s6')
    a(f'v_lshlrev_b32 v{vt0}, 4, v{vlane}')
    vx = al('x', 4, 2); vD = al('D', 4, 2)
    vla = al('la'); vai = al('ai'); vcr = al('cr'); vci = al('ci'); vcr2 = al('cr2'); vci2 = al('ci2'); vldt = al('ldt')
    a('s_waitcnt lgkmcnt(0)')
    stamp('kernarg')
    a(f'global_load_dwordx4 {vr(vx,4)}, v{vxo}, {P_X}')
    a(f's_load_dword {S_TAG}, {P_WS}, {WS_EPOCH}')
    if not cfg.ddirect:
        a(f's_cmp_eq_u32 {S_W8}, 6'); a('s_cbranch_scc0 L_s0_n6')
        a(f'global_load_dwordx4 {vr(vD,4)}, v{vt0}, {P_DS}')
        a.label('L_s0_n6')
        a(f's_cmp_eq_u32 {S_W8}, 7'); a('s_cbranch_scc0 L_s0_n7')
        a(f'global_load_dwordx4 {vr(vD,4)}, v{vt0}, {P_WR}')
        a.label('L_s0_n7')
    if cfg.xbar: a('s_barrier')
    vones = al('ones', 4, 2)
    for i in range(4): a(f'v_mov_b32 v{vones+i}, -1')
    a('s_mul_i32 s6, s2, 768'); a(f's_mul_i32 s7, {S_W8}, 96'); a('s_add_u32 s6, s6, s7'); a(f's_add_u32 s6, s6, {WS_MISC}')
    a(f'v_lshl_add_u32 v{vt1}, v{vlane}, 4, s6')
    a(f'v_add_u32 v{vt2}, {WS_U}, v{vblk}')
    a(f'v_add_u32 v{vt3}, {WS_Y}, v{vblk}')
    if cfg.noclear: a('s_mov_b64 exec, 1')
    a(f'global_store_dwordx4 v{vt2}, {vr(vones,4)}, {P_WS} sc1')
    if not cfg.ylate: a(f'global_store_dwordx4 v{vt3}, {vr(vones,4)}, {P_WS} sc1')
    a('s_mov_b64 exec, 0x3f')
    a(f'global_store_dwordx4 v{vt1}, {vr(vones,4)}, {P_WS} sc1')
    a('s_mov_b64 exec, -1')
    if_role_a('L_s0_nopar')
    a(f'global_load_ushort v{vla}, v{vpo}, {P_LA}')
    a(f'global_load_ushort v{vai}, v{vpo}, {P_AI}')
    a(f'global_load_ushort v{vcr}, v{vpo}, {P_CR}')
    a(f'global_load_ushort v{vci}, v{vpo}, {P_CI}')
    a(f'global_load_ushort v{vcr2}, v{vpo2}, {P_CR}')
    a(f'global_load_ushort v{vci2}, v{vpo2}, {P_CI}')
    a(f'global_load_ushort v{vldt}, v{vdto}, {P_DT}')
    a('s_branch L_s0_par')
    a.label('L_s0_nopar')
    a(f's_cmp_ge_u32 {S_W8}, 6'); a('s_cbranch_scc1 L_s0_parB')
    a('s_getpc_b64 s[38:39]')
    a.label('L_pc_here')
    a(f's_sub_u32 s6, {S_W8}, 4'); a('s_lshl_b32 s6, s6, 13')
    a(f'v_lshl_add_u32 v{vja}, v{vlane}, 7, s6')
    a(f'v_min_u32 v{vja}, L_end-L_pc_here, v{vja}')
    a(f'global_load_dword v{vjunk}, v{vja}, s[38:39]')
    a.label('L_s0_parB')
    a(f'global_load_ushort v{vla}, v{vpo}, {P_LA}')
    a(f'global_load_ushort v{vai}, v{vpo}, {P_AI}')
    a(f'global_load_ushort v{vldt}, v{vdto}, {P_DT}')
    a.label('L_s0_par')
    if cfg.ddirect:
        vWr = al('Wrow', 4, 2); vWa = al('Wra')
        a(f'global_load_dwordx4 {vr(vD,4)}, v{vch}, {P_DS}')
        a(f'v_lshlrev_b32 v{vWa}, 4, v{vlane}')
        a(f's_cmp_eq_u32 {S_W8}, 7'); a('s_cbranch_scc0 L_s0_n7')
        a(f'global_load_dwordx4 {vr(vWr,4)}, v{vWa}, {P_WR}')
        a.label('L_s0_n7')
    R.release('paroff'); R.release('paroff2'); R.release('dtoff')
    stamp('issued')
    a(f's_mov_b32 {S_L2E}, {hx(f2u(1.4426950408889634))}')
    a(f's_mov_b32 {S_L2ELO}, {hx(f2u(1.4426950408889634 - f32(1.4426950408889634)))}')
    i2pi = 1.0 / (2 * math.pi)
    a(f's_mov_b32 {S_I2PI}, {hx(f2u(i2pi))}')
    a(f's_mov_b32 {S_I2PILO}, {hx(f2u(i2pi - f32(i2pi)))}')
    a(f's_mov_b32 {S_EPS}, {hx(f2u(1e-5))}')
    a(f's_mov_b32 {S_MASKHI}, 0xffff0000')
    a(f's_mov_b32 {S_ONE2}, 0x3f803f80')
    vz = al('z', 4, 2)
    for i in range(4): a(f'v_mov_b32 v{vz+i}, 0')
    a(f's_cmp_eq_u32 {S_W8}, 4'); a('s_cbranch_scc0 L_s0_z1')
    a(f'v_lshlrev_b32 v{vt0}, 4, v{vlane}')
    a(f'v_add_u32 v{vt1}, {UL_SZ - 512}, v{vt0}')
    a(f'v_cmp_gt_u32 vcc, 32, v{vlane}')
    a(f'v_cndmask_b32 v{vt0}, v{vt1}, v{vt0}, vcc')
    a(f'ds_write_b128 v{vt0}, {vr(vz,4)} offset:{L_UL}')
    a.label('L_s0_z1')
    a(f's_cmp_eq_u32 {S_W8}, 5'); a('s_cbranch_scc0 L_s0_z2')
    a(f'v_lshrrev_b32 v{vt0}, 1, v{vlane}')
    a(f'v_mul_u32_u24 v{vt0}, {KC_SZ}, v{vt0}')
    a(f'v_and_b32 v{vt1}, 1, v{vlane}')
    a(f'v_lshl_add_u32 v{vt0}, v{vt1}, 4, v{vt0}')
    a('s_mov_b64 exec, 0xff')
    a(f'ds_write_b128 v{vt0}, {vr(vz,4)} offset:{L_KC + 4096}')
    a('s_mov_b64 exec, -1')
    a.label('L_s0_z2')
    if cfg.r3:
        a(f'v_lshrrev_b32 v{vt0}, 7, v0'); a(f'v_mul_u32_u24 v{vt0}, {KC_SZ}, v{vt0}')
        a(f'v_and_b32 v{vt1}, 127, v0'); a(f'v_lshl_add_u32 v{vt0}, v{vt1}, 4, v{vt0}')
        a(f'ds_write_b128 v{vt0}, {vr(vz,4)} offset:{L_KC}')
    R.release('z')

    vTw = al('Tw'); vTs = al('Ts')
    a(f'v_and_b32 v{vt0}, 15, v{vlane}')
    a(f'v_lshrrev_b32 v{vt1}, 4, v{vlane}')
    a(f's_cmp_ge_u32 {S_W8}, 4'); a('s_cbranch_scc1 L_s0_t2')
    a(f's_bitcmp1_b32 {S_W8}, 0'); a('s_cbranch_scc1 L_s0_t1')
    a(f'v_lshrrev_b32 v{vt2}, 3, v{vt0}'); a(f'v_lshlrev_b32 v{vt2}, 7, v{vt2}')
    a(f'v_and_b32 v{vt3}, 7, v{vt0}'); a(f'v_add_u32 v{vTw}, v{vt2}, v{vt3}')
    a(f'v_mov_b32 v{vTs}, 8')
    a('s_branch L_s0_td')
    a.label('L_s0_t1')
    a(f'v_lshrrev_b32 v{vt2}, 2, v{vt0}'); a(f'v_lshlrev_b32 v{vt2}, 6, v{vt2}')
    a(f'v_and_b32 v{vt3}, 3, v{vt0}'); a(f'v_add_u32 v{vt2}, v{vt2}, v{vt3}'); a(f'v_add_u32 v{vTw}, 256, v{vt2}')
    a(f'v_lshrrev_b32 v{vt2}, 1, v{vt0}'); a(f'v_lshlrev_b32 v{vt2}, 5, v{vt2}')
    a(f'v_and_b32 v{vt3}, 1, v{vt0}'); a(f'v_add_u32 v{vt2}, v{vt2}, v{vt3}'); a(f'v_add_u32 v{vt2}, 256, v{vt2}')
    a(f'v_cmp_gt_u32 vcc, 8, v{vt0}')
    a(f'v_cndmask_b32 v{vTw}, v{vt2}, v{vTw}, vcc')
    a(f'v_mov_b32 v{vt2}, 2'); a(f'v_mov_b32 v{vt3}, 4'); a(f'v_cndmask_b32 v{vTs}, v{vt2}, v{vt3}, vcc')
    a('s_branch L_s0_td')
    a.label('L_s0_t2')
    a(f'v_lshlrev_b32 v{vTw}, 4, v{vt0}'); a(f'v_add_u32 v{vTw}, 512, v{vTw}')
    a(f'v_mov_b32 v{vTs}, 1')
    a.label('L_s0_td')
    a(f'v_lshlrev_b32 v{vt1}, 2, v{vt1}')
    a(f'v_mul_u32_u24 v{vt1}, v{vt1}, v{vTs}')
    a(f'v_add_u32 v{vTw}, v{vTw}, v{vt1}')
    a(f'v_lshlrev_b32 v{vTw}, 1, v{vTw}')
    a(f'v_lshlrev_b32 v{vTs}, 1, v{vTs}')
    S_KC, S_KT = 's40', 's41'
    a(f's_lshr_b32 {S_KC}, {S_W8}, 1'); a(f's_and_b32 {S_KT}, {S_W8}, 1')
    a(f's_sub_u32 s6, {S_W8}, 4')
    a(f's_cmp_ge_u32 {S_W8}, 4'); a(f's_cselect_b32 {S_KC}, s6, {S_KC}'); a(f's_cselect_b32 {S_KT}, 2, {S_KT}')
    a(f's_mul_i32 s6, {S_KC}, {TT_SZ}'); a(f's_add_u32 s6, s6, {L_TT}')
    a(f'v_add_u32 v{vTw}, s6, v{vTw}')
    vaa = al('kaa'); vba = al('kba')
    a(f's_mul_i32 s6, {S_KC}, {FG_SZ}'); a(f's_add_u32 s6, s6, {L_BIG}')
    a(f'v_and_b32 v{vt0}, 15, v{vlane}'); a(f'v_mul_u32_u24 v{vt0}, {FROW}, v{vt0}')
    a(f'v_lshrrev_b32 v{vt1}, 4, v{vlane}'); a(f'v_lshl_add_u32 v{vt0}, v{vt1}, 4, v{vt0}')
    a(f'v_add_u32 v{vaa}, s6, v{vt0}')
    a(f's_mul_i32 s7, {S_KT}, {16*FROW}'); a('s_add_u32 s6, s6, s7'); a(f's_add_u32 s6, s6, {F_SZ}')
    a(f'v_add_u32 v{vba}, s6, v{vt0}')

    vTa = al('Ta', 10, 2); vKw = al('Kw'); vz8 = al('z8')
    vf = al('f1', 12, 2); vfo = al('f1off'); vug = al('ugoff'); vul = al('ulds')
    a(f'v_and_b32 v{vz8}, 255, v0')
    a(f'v_lshlrev_b32 v{vug}, 13, v{vz8}')
    a(f's_lshl_b32 s6, {S_P}, 5'); a(f's_add_u32 s6, s6, {WS_U}')
    a(f'v_add_u32 v{vug}, s6, v{vug}')
    a('s_and_b32 s6, s2, 7'); a('s_lshl_b32 s6, s6, 12'); a(f's_add_u32 s6, s6, {WS_F1}')
    a(f'v_lshl_add_u32 v{vfo}, v{vlane}, 4, s6')
    a(f'v_lshlrev_b32 v{vul}, 4, v{vz8}')
    if cfg.r3:
        vRa = al('Ra', 8, 2); vRw = al('Rw'); vXa = al('Xa'); vRb = al('Rb')
        vWu = al('Wu'); vWw = al('Ww')
    if_role_a('L_s0_noexp')
    if not cfg.r3:
        a(f'v_sub_u32 v{vKw}, 255, v{vz8}')
        a(f'v_lshlrev_b32 v{vKw}, 4, v{vKw}')
        a(f'v_lshlrev_b32 v{vz8}, 3, v{vz8}')
        a(f'v_add_u32 v{vz8}, 9, v{vz8}')
        tb = None
    else:
        a(f'v_and_b32 v{vz8}, 127, v0')
        a(f'v_sub_u32 v{vKw}, 255, v{vz8}')
        a(f'v_lshlrev_b32 v{vKw}, 4, v{vKw}')
        a(f'v_lshrrev_b32 v{vt1}, 7, v0')
        a(f'v_mul_u32_u24 v{vt2}, {2*KC_SZ}, v{vt1}'); a(f'v_add_u32 v{vKw}, v{vKw}, v{vt2}')
        a(f'v_mul_u32_u24 v{vt3}, {TT_SZ}, v{vt1}'); a(f'v_add_u32 v{vt3}, {L_TT}, v{vt3}')
        a(f'v_lshlrev_b32 v{vz8}, 3, v{vz8}')
        a(f'v_add_u32 v{vz8}, 9, v{vz8}')
        tb = vt3
    for k in range(10):
        d = vTa + k
        a(f'v_subrev_u32 v{d}, {k}, v{vz8}')
        a(f'v_cvt_f32_u32 v{vt0}, v{d}')
        a(f'v_cvt_pk_bf16_f32 v{vt0}, v{vt0}, v{vt0}')
        a(f'v_and_b32 v{vt0}, 0xffff, v{vt0}')
        a(f'v_subrev_u32 v{vt0}, 17024, v{vt0}')
        a(f'v_min_u32 v{d}, 128, v{d}')
        a(f'v_max_i32 v{d}, v{vt0}, v{d}')
        if tb is None: a(f'v_lshlrev_b32 v{d}, 1, v{d}')
        else: a(f'v_lshl_add_u32 v{d}, v{d}, 1, v{tb}')
    if cfg.r3:
        a(f'v_and_b32 v{vt0}, 31, v0'); a(f'v_lshlrev_b32 v{vt0}, 3, v{vt0}')
        a(f'v_bfe_u32 v{vt1}, v0, 5, 1')
        a(f'v_bfe_u32 v{vt2}, v0, 6, 1')
        a(f'v_sub_u32 v{vRw}, v{vt1}, v{vt0}'); a(f'v_add_u32 v{vRw}, 65, v{vRw}'); a(f'v_sub_u32 v{vRw}, v{vRw}, v{vt2}')
        a(f'v_sub_u32 v{vz8}, 64, v{vt2}')
        a(f'v_add_u32 v{vt2}, 512, v{vt2}')
        for e in range(8):
            d = vRa + e
            a(f'v_subrev_u32 v{vt0}, {e}, v{vRw}')
            a(f'v_lshl_add_u32 v{d}, v{vt0}, 1, v{vt2}')
            a(f'v_lshl_add_u32 v{d}, v{d}, 1, v{vt3}')
            a(f'v_cmp_le_u32 vcc, v{vt0}, v{vz8}')
            a(f'v_mov_b32 v{vt1}, {L_UL}')
            a(f'v_cndmask_b32 v{d}, v{vt1}, v{d}, vcc')
        a(f'v_lshrrev_b32 v{vRw}, 5, v0'); a(f'v_mul_u32_u24 v{vRw}, 320, v{vRw}')
        a(f'v_and_b32 v{vt0}, 31, v0'); a(f'v_lshl_add_u32 v{vRw}, v{vt0}, 4, v{vRw}'); a(f'v_add_u32 v{vRw}, {L_RA}, v{vRw}')
        a(f'v_lshrrev_b32 v{vt0}, 4, v{vlane}'); a(f'v_lshlrev_b32 v{vt0}, 3, v{vt0}')
        a(f'v_bfe_u32 v{vt1}, v{vlane}, 2, 2'); a(f'v_add_u32 v{vt0}, v{vt0}, v{vt1}'); a(f'v_lshlrev_b32 v{vXa}, 5, v{vt0}')
        a(f'v_and_b32 v{vt1}, 3, v{vlane}'); a(f'v_lshl_add_u32 v{vXa}, v{vt1}, 3, v{vXa}')
        a(f's_mul_i32 s6, {S_W8}, 3072'); a(f's_add_u32 s6, s6, {L_W}'); a(f'v_add_u32 v{vXa}, s6, v{vXa}')
        a(f'v_and_b32 v{vt0}, 15, v{vlane}'); a(f'v_and_b32 v{vt1}, 1, v{vt0}')
        a(f'v_mul_u32_u24 v{vRb}, 322, v{vt1}')
        a(f'v_lshlrev_b32 v{vt0}, 1, v{vt0}'); a(f'v_sub_u32 v{vRb}, v{vRb}, v{vt0}')
        a(f'v_lshrrev_b32 v{vt0}, 4, v{vlane}'); a(f'v_lshl_add_u32 v{vRb}, v{vt0}, 4, v{vRb}')
        a(f's_mul_i32 s6, {S_W8}, 640'); a(f's_add_u32 s6, s6, {L_RA + 128 - 96}'); a(f'v_add_u32 v{vRb}, s6, v{vRb}')
        a('s_branch L_s0_r3d')
    a.label('L_s0_noexp')
    if cfg.r3:
        a(f'v_and_b32 v{vt0}, 127, v0'); a(f'v_bfe_u32 v{vt1}, v0, 7, 1')
        a(f'v_mul_u32_u24 v{vWu}, {UL_SZ}, v{vt1}'); a(f'v_lshl_add_u32 v{vWu}, v{vt0}, 4, v{vWu}'); a(f'v_add_u32 v{vWu}, {L_UL + 16*31}, v{vWu}')
        a(f'v_mul_u32_u24 v{vWw}, 6144, v{vt1}'); a(f'v_lshl_add_u32 v{vWw}, v{vt0}, 4, v{vWw}'); a(f'v_add_u32 v{vWw}, {L_W}, v{vWw}')
        a.label('L_s0_r3d')
    R.release('z8')

    vEP = al('EP'); vISa = al('ISa'); vYa = al('Ya')
    a(f'v_lshrrev_b32 v{vt0}, 1, v0')
    a(f'v_and_b32 v{vt1}, 1, v0')
    a(f'v_mul_u32_u24 v{vEP}, {PX_C}, v{vt1}')
    a(f'v_lshrrev_b32 v{vt3}, 5, v{vt0}'); a(f'v_mul_u32_u24 v{vt3}, {PX_T}, v{vt3}'); a(f'v_add_u32 v{vEP}, v{vEP}, v{vt3}')
    a(f'v_bfe_u32 v{vt3}, v{vt0}, 1, 4'); a(f'v_lshl_add_u32 v{vEP}, v{vt3}, 4, v{vEP}')
    a(f'v_and_b32 v{vt3}, 1, v{vt0}'); a(f'v_mul_u32_u24 v{vt3}, 640, v{vt3}'); a(f'v_add_u32 v{vEP}, v{vEP}, v{vt3}')
    a(f'v_add_u32 v{vEP}, {L_PX}, v{vEP}')
    a(f'v_lshlrev_b32 v{vISa}, 2, v{vt1}')
    a(f'v_add_u32 v{vYa}, {WS_Y}, v{vblk}')
    vLA = al('LA', 4); vLB = al('LB'); vPW = al('PW')
    if_role_a('L_s0_nocv')
    a(f's_lshr_b32 s6, {S_W8}, 1'); a(f's_and_b32 s7, {S_W8}, 1')
    a(f'v_and_b32 v{vt0}, 15, v{vlane}'); a(f'v_lshrrev_b32 v{vt1}, 4, v{vlane}')
    a(f'v_and_b32 v{vt2}, 1, v{vt0}')
    a(f'v_mul_u32_u24 v{vt3}, {KC_SZ + 2}, v{vt2}')
    a(f'v_lshl_add_u32 v{vt3}, v{vt1}, 4, v{vt3}')
    a(f'v_lshlrev_b32 v{vt2}, 1, v{vt0}')
    a(f'v_sub_u32 v{vt3}, v{vt3}, v{vt2}')
    a(f's_mul_i32 s38, s6, {2*KC_SZ}'); a('s_lshl_b32 s39, s7, 8')
    a('s_sub_u32 s38, s38, s39'); a(f's_add_u32 s38, s38, {L_KC + 4064 - 64*15}')
    a(f'v_add_u32 v{vLA}, s38, v{vt3}')
    for J in range(1, 4): a(f'v_subrev_u32 v{vLA+J}, {1024*J}, v{vLA}')
    a(f'v_lshl_add_u32 v{vt2}, v{vt0}, 1, v{vt1}')
    a(f's_mul_i32 s38, s6, {UL_SZ}'); a('s_sub_u32 s38, s38, s39'); a(f's_add_u32 s38, s38, {L_UL + 480 - 192}')
    a(f'v_lshl_add_u32 v{vLB}, v{vt2}, 4, s38')
    a(f's_mul_i32 s38, s6, {PX_C}'); a(f's_mul_i32 s39, s7, {PX_H}'); a('s_add_u32 s38, s38, s39'); a(f's_add_u32 s38, s38, {L_PX}')
    a(f'v_lshrrev_b32 v{vt0}, 5, v{vlane}'); a(f'v_lshlrev_b32 v{vt0}, 7, v{vt0}')
    a(f'v_lshl_add_u32 v{vt0}, v{vlane}, 4, v{vt0}')
    a(f'v_add_u32 v{vPW}, s38, v{vt0}')
    a.label('L_s0_nocv')

    def unpack8(dst, src):
        for j in range(4):
            a(f'v_lshlrev_b32 v{dst+2*j}, 16, v{src+j}')
            a(f'v_and_b32 v{dst+2*j+1}, {S_MASKHI}, v{src+j}')
    def cvt4(dst, src, kind='bf16'):
        for j in range(4):
            a(f'v_cvt_pk_{kind}_f32 v{dst+j}, v{src+2*j}, v{src+2*j+1}')
    def xlane2(p, t, op='add_f32', pk=True):
        a(f'v_add_f32_dpp v{p}, v{p}, v{p} row_ror:8 row_mask:0xf bank_mask:0xf')
        a(f'v_add_f32_dpp v{p+1}, v{p+1}, v{p+1} row_ror:8 row_mask:0xf bank_mask:0xf')
        for sw in ('16', '32'):
            a(f'v_mov_b32 v{t}, v{p}'); a(f'v_mov_b32 v{t+1}, v{p+1}')
            a(f'v_permlane{sw}_swap_b32 v{t}, v{p}'); a(f'v_permlane{sw}_swap_b32 v{t+1}, v{p+1}')
            a(f'v_pk_add_f32 {vr(p,2)}, {vr(p,2)}, {vr(t,2)}')
    def xlane1(p, t, op, full=False):
        if full:
            for ror in (1, 2, 4):
                a(f'v_{op}_dpp v{p}, v{p}, v{p} row_ror:{ror} row_mask:0xf bank_mask:0xf')
        a(f'v_{op}_dpp v{p}, v{p}, v{p} row_ror:8 row_mask:0xf bank_mask:0xf')
        for sw in ('16', '32'):
            a(f'v_mov_b32 v{t}, v{p}')
            a(f'v_permlane{sw}_swap_b32 v{t}, v{p}')
            a(f'v_{op} v{p}, v{p}, v{t}')
    def ln_stats_partial(pk, S, t, lds_off):
        a(f'v_dot2_f32_bf16 v{S}, v{pk}, {S_ONE2}, 0')
        a(f'v_dot2_f32_bf16 v{S+1}, v{pk}, v{pk}, 0')
        for j in range(1, 4):
            a(f'v_dot2_f32_bf16 v{S}, v{pk+j}, {S_ONE2}, v{S}')
            a(f'v_dot2_f32_bf16 v{S+1}, v{pk+j}, v{pk+j}, v{S+1}')
        a(f's_lshl_b32 s6, {S_W8}, 3')
        xlane2(S, t)
        a(f'v_lshl_add_u32 v{t}, v{vtk}, 6, s6')
        a('s_mov_b64 exec, 0xff')
        a(f'ds_write_b64 v{t}, {vr(S,2)} offset:{lds_off}')
        a('s_mov_b64 exec, -1')
    def ln_finish(xf, d, S, t, lds_off, m, rs, sout):
        a(f'v_lshlrev_b32 v{t}, 6, v{vtk}')
        for j in range(4): a(f'ds_read_b128 {vr(d+4*j,4)}, v{t} offset:{lds_off + 16*j}')
        a('s_waitcnt lgkmcnt(0)')
        for j in (0, 4, 8, 12): a(f'v_pk_add_f32 {vr(d+j,2)}, {vr(d+j,2)}, {vr(d+j+2,2)}')
        a(f'v_pk_add_f32 {vr(d,2)}, {vr(d,2)}, {vr(d+4,2)}')
        a(f'v_pk_add_f32 {vr(d+8,2)}, {vr(d+8,2)}, {vr(d+12,2)}')
        a(f'v_pk_add_f32 {vr(S,2)}, {vr(d,2)}, {vr(d+8,2)}')
        inv = hx(f2u(1.0/512))
        a(f'v_mul_f32 v{S}, {inv}, v{S}')
        a(f'v_mul_f32 v{S+1}, {inv}, v{S+1}')
        a(f'v_fma_f32 v{S+1}, -v{S}, v{S}, v{S+1}')
        a(f'v_max_f32 v{S+1}, 0, v{S+1}')
        a(f'v_cvt_pk_bf16_f32 v{t}, v{S}, v{S+1}')
        a(f'v_lshlrev_b32 v{m}, 16, v{t}')
        a(f'v_and_b32 v{t}, {S_MASKHI}, v{t}')
        a(f'v_add_f32 v{t}, {S_EPS}, v{t}')
        a(f'v_cvt_pk_bf16_f32 v{t}, v{t}, v{t}')
        a(f'v_lshlrev_b32 v{t}, 16, v{t}')
        a(f'v_sqrt_f32 v{t}, v{t}')
        a(f'v_cvt_pk_bf16_f32 v{t}, v{t}, v{t}')
        a(f'v_lshlrev_b32 v{sout}, 16, v{t}')
        a(f'v_rcp_f32 v{rs}, v{sout}')
        normalize(xf, m, rs, d)
    def normalize(xf, m, rs, d):
        for j in range(4):
            a(f'v_pk_add_f32 {vr(d+2*j,2)}, {vr(xf+2*j,2)}, {vr(m,2)} op_sel_hi:[1,0] neg_lo:[0,1] neg_hi:[0,1]')
        cvt4(d+8, d)
        unpack8(d, d+8)
        for j in range(4):
            a(f'v_pk_mul_f32 {vr(d+2*j,2)}, {vr(d+2*j,2)}, {vr(rs,2)} op_sel_hi:[1,0]')
        cvt4(d+8, d)

    vxf = al('xf', 8, 2); vud = al('ud', 8, 2); vm1 = al('m1', 2, 2)
    vd = al('d', 16, 4); vS = al('S', 2, 2); vt = al('t', 2, 2); vrs = al('rs', 2, 2); vs_ = al('s', 2, 2)
    if cfg.wtouch:
        vtw = al('tw')
        a('s_and_b32 s6, s2, 7'); a('s_lshr_b32 s7, s2, 3')
        a('s_mul_i32 s38, s6, 448'); a('s_and_b32 s38, s38, 0xffffff80')
        a(f's_mul_i32 s39, s7, {16*3584}'); a('s_add_u32 s38, s38, s39')
        a(f'v_lshrrev_b32 v{vtw}, 2, v{vlane}'); a(f'v_mul_u32_u24 v{vtw}, 3584, v{vtw}')
        a(f'v_and_b32 v{vt0}, 3, v{vlane}'); a(f'v_lshl_add_u32 v{vtw}, v{vt0}, 7, v{vtw}')
        a(f'v_add_u32 v{vtw}, s38, v{vtw}')
        a(f'v_min_u32 v{vtw}, {512*3584 - 4}, v{vtw}')
        a('s_lshl_b32 s38, s6, 7'); a(f's_mul_i32 s39, s7, {56*1024}'); a('s_add_u32 s38, s38, s39')
        a(f's_and_b32 s39, {S_W8}, 1'); a(f's_mul_i32 s39, s39, {28*1024}'); a('s_add_u32 s38, s38, s39')
        a(f'v_min_u32 v{vt0}, 27, v{vlane}'); a(f'v_lshl_add_u32 v{vt0}, v{vt0}, 10, s38')
        a(f's_cmp_ge_u32 {S_W8}, 2'); a('s_cselect_b64 vcc, -1, 0')
        a(f'v_cndmask_b32 v{vtw}, v{vtw}, v{vt0}, vcc')
        a(f's_cmp_eq_u32 {S_W8}, 1'); a('s_cselect_b32 s44, s28, s26'); a('s_cselect_b32 s45, s29, s27')
        a(f's_cmp_ge_u32 {S_W8}, 2'); a('s_cselect_b32 s44, s30, s44'); a('s_cselect_b32 s45, s31, s45')
    stamp('precomp')
    a(f's_cmp_lt_u32 {S_W8}, 4'); a('s_cbranch_scc1 L_s1_wa')
    a(f's_cmp_lt_u32 {S_W8}, 6'); a('s_cbranch_scc1 L_s1_wb')
    ncl = 2 if cfg.ylate else 3
    dd = 1 if cfg.ddirect else 0
    if cfg.ddirect:
        a(f's_cmp_eq_u32 {S_W8}, 7'); a('s_cbranch_scc1 L_s1_wb')
        a(f's_waitcnt vmcnt({ncl+3+dd})'); a('s_branch L_s1_wd')
    else:
        a(f's_waitcnt vmcnt({ncl+3})'); a('s_branch L_s1_wd')
    a.label('L_s1_wb'); a(f's_waitcnt vmcnt({ncl+4+dd})'); a('s_branch L_s1_wd')
    a.label('L_s1_wa'); a(f's_waitcnt vmcnt({ncl+7+dd})')
    a.label('L_s1_wd')
    if cfg.prio: a('s_setprio 1')
    stamp('x_arrived')
    if cfg.ylate in (2, 3):
        a(f'global_store_dwordx4 v{vYa}, {vr(vones,4)}, {P_WS} sc1')
    R.release('ones')
    if cfg.wtouch == 1:
        if_role_a('L_tw_done')
        a(f'global_load_dword v{vjunk}, v{vtw}, s[44:45]')
        a.label('L_tw_done')
        R.release('tw')
    ln_stats_partial(vx, vS, vt, L_ST1)
    unpack8(vxf, vx)
    if not cfg.ddirect:
        a(f's_cmp_lt_u32 {S_W8}, 6'); a('s_cbranch_scc1 L_s1_nodw')
        a(f's_sub_u32 s6, {S_W8}, 6'); a('s_lshl_b32 s6, s6, 10'); a(f's_add_u32 s6, s6, {L_D}')
        a(f'v_lshl_add_u32 v{vt0}, v{vlane}, 4, s6')
        a(f'ds_write_b128 v{vt0}, {vr(vD,4)}')
        a.label('L_s1_nodw')
    a(f's_cmp_lt_u32 {S_W8}, 4'); a('s_cbranch_scc1 L_s1_ca')
    a(f's_cmp_lt_u32 {S_W8}, 6'); a('s_cbranch_scc1 L_s1_cb')
    y2 = 1 if cfg.ylate in (2, 3) else 0
    if cfg.ddirect:
        a(f's_cmp_eq_u32 {S_W8}, 7'); a('s_cbranch_scc1 L_s1_cb')
    a(f's_waitcnt vmcnt({3+y2+dd}) lgkmcnt(0)'); a('s_branch L_s1_cd')
    a.label('L_s1_cb'); a(f's_waitcnt vmcnt({4+y2+dd}) lgkmcnt(0)'); a('s_branch L_s1_cd')
    a.label('L_s1_ca'); a(f's_waitcnt vmcnt({7 + y2 + dd + (1 if cfg.wtouch == 1 else 0)}) lgkmcnt(0)')
    a.label('L_s1_cd')
    stamp('ln1_prebar')
    a('s_barrier')
    a(f's_add_u32 {S_TAG}, {S_TAG}, 1')
    a(f's_cmp_eq_u32 {S_W8}, 4'); a('s_cbranch_scc0 L_s1_nof1')
    a('s_lshl_b32 s7, s2, 4'); a(f's_add_u32 s6, s7, {WS_F1}')
    a(f'v_lshl_add_u32 v{vt0}, v{vlane}, 12, s6')
    a(f'v_mov_b32 v{vt1}, {S_TAG}')
    a('s_mov_b64 exec, 0xff')
    a(f'global_store_dword v{vt0}, v{vt1}, {P_WS} sc1')
    a('s_mov_b64 exec, -1')
    a.label('L_s1_nof1')
    if not cfg.ddirect: a(f'ds_read_b128 {vr(vD,4)}, v{vch} offset:{L_D}')
    ln_finish(vxf, vd, vS, vt, L_ST1, vm1, vrs, vs_)
    stamp('ln1_fin')
    unpack8(vd, vd+8)
    cvt4(vd+12, vd, 'f16')
    S_STG = 's42'
    a(f's_mul_i32 {S_STG}, {S_W8}, {STG_SZ}'); a(f's_add_u32 {S_STG}, {S_STG}, {L_STG}')
    a(f'v_mul_u32_u24 v{vt0}, 192, v{vtk}')
    a(f'v_lshl_add_u32 v{vt0}, v{vcg}, 4, v{vt0}')
    a(f'v_add_u32 v{vt0}, {S_STG}, v{vt0}')
    a(f'ds_write_b128 v{vt0}, {vr(vd+12,4)}')
    a(f'v_bfe_u32 v{vt1}, v{vlane}, 2, 2')
    a(f'v_mul_u32_u24 v{vt1}, 192, v{vt1}')
    a(f'v_lshrrev_b32 v{vt2}, 4, v{vlane}')
    a(f'v_lshl_add_u32 v{vt1}, v{vt2}, 5, v{vt1}')
    a(f'v_and_b32 v{vt2}, 3, v{vlane}')
    a(f'v_lshl_add_u32 v{vt1}, v{vt2}, 3, v{vt1}')
    a(f'v_add_u32 v{vt1}, {S_STG}, v{vt1}')
    a(f'v_add_u32 v{vt2}, {WS_U}, v{vblk}')
    a('s_waitcnt lgkmcnt(0)')
    a(f'ds_read_b64_tr_b16 {vr(vd+8,2)}, v{vt1}')
    a(f'ds_read_b64_tr_b16 {vr(vd+10,2)}, v{vt1} offset:{4*192}')
    if not cfg.ddirect:
        unpack8(vud, vD)
        for j in range(4): a(f'v_pk_mul_f32 {vr(vud+2*j,2)}, {vr(vud+2*j,2)}, {vr(vd+2*j,2)}')
    if cfg.ylate == 2:
        a(f's_cmp_eq_u32 {S_W8}, 4'); a('s_cbranch_scc1 L_s1_ya')
        a('s_waitcnt vmcnt(0) lgkmcnt(0)'); a('s_branch L_s1_yd')
        a.label('L_s1_ya'); a('s_waitcnt vmcnt(1) lgkmcnt(0)')
        a.label('L_s1_yd')
    else:
        a('s_waitcnt lgkmcnt(0)')
    a(f'global_store_dwordx4 v{vt2}, {vr(vd+8,4)}, {P_WS} sc1')
    if cfg.ylate == 1:
        vo3 = al('ones3', 4, 2)
        for i in range(4): a(f'v_mov_b32 v{vo3+i}, -1')
        a(f'global_store_dwordx4 v{vYa}, {vr(vo3,4)}, {P_WS} sc1')
        R.release('ones3')
    if cfg.prio: a('s_setprio 0')
    stamp('u_stored')
    if cfg.ddirect:
        assert cfg.ylate == 2
        unpack8(vud, vD)
        for j in range(4): a(f'v_pk_mul_f32 {vr(vud+2*j,2)}, {vr(vud+2*j,2)}, {vr(vd+2*j,2)}')
        a(f's_cmp_eq_u32 {S_W8}, 7'); a('s_cbranch_scc0 L_s1_nowr')
        a(f'ds_write_b128 v{vWa}, {vr(vWr,4)} offset:{L_WR}')
        a.label('L_s1_nowr')
        R.release('Wrow'); R.release('Wra')
    cvt4(vd+12, vud)
    unpack8(vud, vd+12)
    R.release('x'); R.release('D')
    for n in ('d', 'S', 't', 'rs', 's'): R.release(n)
    if stop_here(1): return finish(a, R, cfg)

    a(f's_waitcnt vmcnt({1 + (1 if cfg.wtouch == 1 else 0) + (1 if cfg.ylate in (1, 3) else 0)})')
    stamp('kg_start')
    kt = al('kt', 12, 2)
    def exp_acc(x, t1, t2):
        a(f'v_mul_f32 v{t1}, {S_L2E}, v{x}')
        a(f'v_fma_f32 v{t2}, v{x}, {S_L2E}, -v{t1}')
        a(f'v_fma_f32 v{t2}, v{x}, {S_L2ELO}, v{t2}')
        a(f'v_exp_f32 v{x}, v{t1}')
        a(f'v_mul_f32 v{t2}, {hx(f2u(math.log(2)))}, v{t2}')
        a(f'v_fma_f32 v{x}, v{x}, v{t2}, v{x}')
    for r in (vla, vai, vldt): a(f'v_lshlrev_b32 v{r}, 16, v{r}')
    exp_acc(vldt, kt, kt+1); exp_acc(vla, kt+2, kt+3)
    a(f'v_cvt_pk_bf16_f32 v{kt}, v{vldt}, v{vla}')
    vdt = vldt; vAr = vla
    a(f'v_lshlrev_b32 v{vdt}, 16, v{kt}')
    a(f'v_and_b32 v{vAr}, {S_MASKHI}, v{kt}')
    val_ = al('al'); vfh = al('fh'); vfl = al('fl'); v2dt = al('2dt')
    a(f'v_mul_f32 v{val_}, v{vAr}, v{vdt}')
    a(f'v_mul_f32 v{kt}, v{vai}, v{vdt}')
    a(f'v_mul_f32 v{val_}, {S_L2E}, v{val_}')
    a(f'v_mul_f32 v{vfh}, {S_I2PI}, v{kt}')
    a(f'v_fma_f32 v{vfl}, v{kt}, {S_I2PI}, -v{vfh}')
    a(f'v_fma_f32 v{vfl}, v{kt}, {S_I2PILO}, v{vfl}')
    def anchor(E, p):
        a(f'v_mul_f32 v{kt}, {hx(f2u(-float(p)))}, v{val_}')
        a(f'v_mul_f32 v{kt+1}, {hx(f2u(float(p)))}, v{vfh}')
        a(f'v_exp_f32 v{kt}, v{kt}')
        a(f'v_fract_f32 v{kt+1}, v{kt+1}')
        a(f'v_mov_b32 v{kt+2}, {hx(f2u(float(p)))}')
        a(f'v_fma_f32 v{kt+1}, v{vfl}, v{kt+2}, v{kt+1}')
        a(f'v_cos_f32 v{E}, v{kt+1}')
        a(f'v_sin_f32 v{E+1}, v{kt+1}')
        a(f'v_pk_mul_f32 {vr(E,2)}, {vr(E,2)}, {vr(kt,2)} op_sel_hi:[1,0]')
    def cmul(d, x, y):
        a(f'v_pk_mul_f32 {vr(d,2)}, {vr(x,2)}, {vr(y,2)} op_sel:[0,0] op_sel_hi:[0,1]')
        a(f'v_pk_fma_f32 {vr(d,2)}, {vr(x,2)}, {vr(y,2)}, {vr(d,2)} op_sel:[1,1,0] op_sel_hi:[1,0,1] neg_lo:[1,0,0]')
    XOF = 20000
    a(f's_bfe_u32 s6, {S_W8}, 0x10001'); a(f's_mul_i32 s6, s6, {FG_SZ}'); a(f's_add_u32 s6, s6, {L_BIG - XOF}')
    a(f's_and_b32 s7, {S_W8}, 1'); a('s_lshl_b32 s7, s7, 8'); a('s_add_u32 s6, s6, s7')
    a('s_mov_b32 m0, s6')
    cv = [kt+8, kt+9, kt+10, kt+11]; cvi = [0]
    def put(row, val, isG):
        t = cv[cvi[0] % 4]; cvi[0] += 1
        if isG:
            a(f'v_cvt_pk_f16_f32 v{t}, v{val}, -v{val+1}')
            a(f'ds_write_addtid_b32 v{t} offset:{XOF + F_SZ + row*FROW}')
        else:
            a(f'v_cvt_pk_f16_f32 v{t}, v{val}, v{val+1}')
            a(f'ds_write_addtid_b32 v{t} offset:{XOF + row*FROW}')
    E1 = al('E1', 2, 2); E8 = al('E8', 2, 2); E128 = al('E128', 2, 2)
    Fa = al('Fa', 2, 2); Fb = al('Fb', 2, 2); Ha = al('Ha', 2, 2); Hb = al('Hb', 2, 2)
    O = [None] + [al(f'O{i}', 2, 2) for i in range(1, 8)]
    Gt = [al('Gt0', 2, 2), al('Gt1', 2, 2)]
    if_role_a('L_k_roleB')
    for r in (vcr, vci, vcr2, vci2): a(f'v_lshlrev_b32 v{r}, 16, v{r}')
    vsum = kt + 4
    a(f'v_add_f32 v{vsum}, |v{vcr}|, |v{vci}|')
    a(f'v_add_f32 v{kt+5}, |v{vcr2}|, |v{vci2}|')
    a(f'v_add_f32 v{vsum}, v{vsum}, v{kt+5}')
    xlane1(vsum, kt+5, 'add_f32', full=True)
    anchor(E128, 128); anchor(E1, 1)
    a(f'v_add_f32 v{v2dt}, v{vdt}, v{vdt}')
    a(f'v_mul_f32 v{vsum}, v{vsum}, v{v2dt}')
    a(f'v_frexp_exp_i32_f32 v{kt+5}, v{vsum}')
    a(f'v_sub_u32 v{kt+6}, 15, v{kt+5}')
    a(f'v_ldexp_f32 v{v2dt}, v{v2dt}, v{kt+6}')
    a(f'v_subrev_u32 v{kt+5}, 15, v{kt+5}')
    a(f'v_mov_b32 v{kt+6}, 1.0')
    a(f'v_ldexp_f32 v{kt+6}, v{kt+6}, v{kt+5}')
    a(f's_lshr_b32 s6, {S_W8}, 1'); a('s_lshl_b32 s6, s6, 2'); a(f's_add_u32 s6, s6, {L_IS}')
    a(f'v_mov_b32 v{kt+7}, s6')
    a('s_mov_b64 exec, 1')
    a(f'ds_write_b32 v{kt+7}, v{kt+6}')
    a('s_mov_b64 exec, -1')
    stamp('kg_anch')
    a(f'v_mul_f32 v{Ha}, v{vcr}, v{v2dt}'); a(f'v_mul_f32 v{Ha+1}, v{vci}, v{v2dt}')
    O[1] = E1
    cmul(O[2], O[1], O[1]); cmul(Hb, Ha, E128); put(0, Ha, True)
    cmul(O[3], O[2], O[1]); cmul(O[4], O[2], O[2])
    cmul(O[5], O[4], O[1]); cmul(O[6], O[4], O[2]); cmul(O[7], O[4], O[3])
    def gcol(i, o):
        if i < 2: return 8*i + o
        if i < 4: return 16 + 4*(i-2) + o//2
        if i < 8: return 24 + 2*(i-4) + o//4
        return 32 + (i-8)
    Hcur, Hnx = Ha, Hb
    gi = 0
    for i in range(0, 17):
        offs = list(range(8)) if i < 2 else ([0,2,4,6] if i < 4 else ([0,4] if i < 8 else [0]))
        if i > 0:
            put(gcol(i, 0), Hcur, True)
            if i < 16: cmul(Hnx, Hcur, E128)
        for o in offs[1:]:
            gg = Gt[gi % 2]; gi += 1
            cmul(gg, Hcur, O[o]); put(gcol(i, o), gg, True)
        Hcur, Hnx = Hnx, Hcur
    stamp('kg_ch')
    a('s_waitcnt vmcnt(0) lgkmcnt(0)' if cfg.ylate in (1, 3) else 's_waitcnt lgkmcnt(0)')
    stamp('kgen_valu')
    a('s_branch L_k_bb')
    a.label('L_k_roleB')
    anchor(E8, 8)
    a(f'v_mov_b32 v{cv[0]}, 0x00003c00'); a(f'ds_write_addtid_b32 v{cv[0]} offset:{XOF}'); cvi[0] = 1
    put(1, E8, False)
    cmul(Fa, E8, E8); put(2, Fa, False)
    Fcur, Fnx = Fa, Fb
    for fj in range(3, 16):
        cmul(Fnx, Fcur, E8); put(fj, Fnx, False); Fcur, Fnx = Fnx, Fcur
    vu = al('u', 8, 2)
    a(f's_cmp_eq_u32 {S_W8}, 4'); a('s_cbranch_scc0 L_k_nof1p')
    def f1issue():
        for j in range(4): a(f'global_load_dword v{vf+j}, v{vfo}, {P_WS} offset:{1024*j} sc1')
    poll_loop(f1issue, [vf, vf+1, vf+2, vf+3], vt0, 'f1', cmp_tag=True)
    a.label('L_k_nof1p')
    a('s_waitcnt vmcnt(0) lgkmcnt(0)' if cfg.ylate in (1, 3) else 's_waitcnt lgkmcnt(0)')
    if cfg.active('kgen_valu'): a(f'{cfg.tinstr} s[{70+2*(len(cfg.stamp_names)-1)}:{71+2*(len(cfg.stamp_names)-1)}]')
    for n in ['kt','al','fh','fl','2dt','E1','E8','E128','Fa','Fb','Ha','Hb','Gt0','Gt1'] + [f'O{i}' for i in range(1,8)]: R.release(n)
    for n in ('la','ai','cr','ci','cr2','ci2','ldt'): R.release(n)
    a.label('L_k_bb')
    a('s_barrier')
    stamp('B_b')
    if cfg.wtouch == 3:
        if_role_a('L_tw3'); a(f'global_load_dword v{vjunk}, v{vtw}, s[44:45]'); a.label('L_tw3')
    if cfg.ylate in (1, 3):
        a(f's_cmp_eq_u32 {S_W8}, 5'); a('s_cbranch_scc0 L_k_nof2')
        a('s_lshl_b32 s7, s2, 4'); a(f's_add_u32 s6, s7, {WS_F2}')
        a(f'v_lshl_add_u32 v{vt0}, v{vlane}, 12, s6'); a(f'v_mov_b32 v{vt1}, {S_TAG}')
        a('s_mov_b64 exec, 0xff')
        a(f'global_store_dword v{vt0}, v{vt1}, {P_WS} sc1')
        a('s_mov_b64 exec, -1')
        a.label('L_k_nof2')
    if_role_b('L_k_nog')
    fl = '' if cfg.plain1 & 1 else ' sc1'
    a(f'global_load_dwordx4 {vr(vu,4)}, v{vug}, {P_WS}{fl}')
    a(f'global_load_dwordx4 {vr(vu+4,4)}, v{vug}, {P_WS} offset:16{fl}')
    a.label('L_k_nog')
    a(f's_cmp_ge_u32 {S_W8}, 6'); a('s_cbranch_scc1 L_k_nomf')
    vA = al('kA', 32, 4); vB = al('kB', 32, 4); vacc = al('kacc', 4, 4)
    for k in range(8):
        a(f'ds_read_b128 {vr(vA+4*k,4)}, v{vaa} offset:{64*k}')
        a(f'ds_read_b128 {vr(vB+4*k,4)}, v{vba} offset:{64*k}')
        if k == 6: a('s_waitcnt lgkmcnt(10)') if False else None
    a(f'v_add_u32 v{vt0}, v{vTw}, v{vTs}')
    a(f'v_add_u32 v{vt1}, v{vt0}, v{vTs}')
    a(f'v_add_u32 v{vt2}, v{vt1}, v{vTs}')
    for k in range(8):
        a(f's_waitcnt lgkmcnt({min(15, 2*(7-k))})')
        a(f'v_mfma_f32_16x16x32_f16 {vr(vacc,4)}, {vr(vA+4*k,4)}, {vr(vB+4*k,4)}, {"0" if k == 0 else vr(vacc,4)}')
    a(f'v_cvt_pk_f16_f32 v{vA}, v{vacc}, v{vacc+1}')
    a(f'v_cvt_pk_f16_f32 v{vA+1}, v{vacc+2}, v{vacc+3}')
    a(f'ds_write_b16 v{vTw}, v{vA}')
    a(f'ds_write_b16_d16_hi v{vt0}, v{vA}')
    a(f'ds_write_b16 v{vt1}, v{vA+1}')
    a(f'ds_write_b16_d16_hi v{vt2}, v{vA+1}')
    for n in ('kA','kB','kacc','kaa','kba'): R.release(n)
    a.label('L_k_nomf')
    a('s_waitcnt lgkmcnt(0)')
    stamp('k_mf')
    a('s_barrier')
    stamp('B_c')
    if cfg.wtouch == 4:
        if_role_a('L_tw4'); a(f'global_load_dword v{vjunk}, v{vtw}, s[44:45]'); a.label('L_tw4')
    R.release('Tw'); R.release('Ts')
    if_role_a('L_k_noexp')
    if not cfg.r3:
        ve = al('e', 20, 2); vp = al('ep', 8, 4)
        for c in range(2):
            for k in range(10):
                a(f'ds_read_u16 v{ve+10*c+k}, v{vTa+k} offset:{L_TT + c*TT_SZ}')
        for c in range(2):
            e = ve + 10*c
            a(f's_waitcnt lgkmcnt({10 if c == 0 else 2})')
            for j in range(4): a(f'v_lshl_or_b32 v{vp+j}, v{e+2*j+2}, 16, v{e+2*j+1}')
            for j in range(4): a(f'v_lshl_or_b32 v{vp+4+j}, v{e+2*j+1}, 16, v{e+2*j}')
            a(f'ds_write_b128 v{vKw}, {vr(vp,4)} offset:{L_KC + (2*c)*KC_SZ}')
            a(f'ds_write_b128 v{vKw}, {vr(vp+4,4)} offset:{L_KC + (2*c+1)*KC_SZ}')
            a(f's_cmp_eq_u32 {S_W8}, 0'); l = lbl('tail'); a(f's_cbranch_scc0 {l}')
            a(f'v_lshl_or_b32 v{vt1}, v{e+9}, 16, v{e+8}')
            a(f'v_mov_b32 v{vt0}, 4096')
            a('s_mov_b64 exec, 1')
            a(f'ds_write_b32 v{vt0}, v{e+9} offset:{L_KC + (2*c)*KC_SZ}')
            a(f'ds_write_b32 v{vt0}, v{vt1} offset:{L_KC + (2*c+1)*KC_SZ}')
            a('s_mov_b64 exec, -1')
            a.label(l)
        R.release('e'); R.release('ep')
    else:
        ve = al('e', 10, 2); vp = al('ep', 8, 4); vr8 = al('r8', 8, 2); vrp = al('rp', 4, 4)
        for k in range(10): a(f'ds_read_u16 v{ve+k}, v{vTa+k}')
        for e in range(8): a(f'ds_read_u16 v{vr8+e}, v{vRa+e}')
        a('s_waitcnt lgkmcnt(8)')
        a(f's_bitcmp1_b32 {S_W8}, 0'); a('s_cbranch_scc0 L_e_noadj')
        a('s_mov_b32 exec_lo, 0'); a('s_mov_b32 exec_hi, 0x80000000')
        a(f'v_cvt_f32_f16 v{vt0}, v{ve+1}'); a(f'v_cvt_f32_f16 v{vt1}, v{ve+4}'); a(f'v_cvt_f32_f16 v{vt2}, v{ve+5}')
        a(f'v_sub_f32 v{vt1}, v{vt1}, v{vt0}'); a(f'v_sub_f32 v{vt2}, v{vt2}, v{vt0}')
        a(f'v_cvt_f16_f32 v{ve+4}, v{vt1}'); a(f'v_cvt_f16_f32 v{ve+5}, v{vt2}')
        a(f'v_and_b32 v{ve+4}, 0xffff, v{ve+4}'); a(f'v_and_b32 v{ve+5}, 0xffff, v{ve+5}')
        for k_ in (0, 1, 2, 3): a(f'v_mov_b32 v{ve+k_}, 0')
        a('s_mov_b64 exec, -1')
        a.label('L_e_noadj')
        for j in range(4): a(f'v_lshl_or_b32 v{vp+j}, v{ve+2*j+2}, 16, v{ve+2*j+1}')
        for j in range(4): a(f'v_lshl_or_b32 v{vp+4+j}, v{ve+2*j+1}, 16, v{ve+2*j}')
        a(f'ds_write_b128 v{vKw}, {vr(vp,4)} offset:{L_KC}')
        a(f'ds_write_b128 v{vKw}, {vr(vp+4,4)} offset:{L_KC + KC_SZ}')
        a(f's_bitcmp1_b32 {S_W8}, 0'); a('s_cbranch_scc1 L_e_notail')
        a(f'v_lshl_or_b32 v{vt1}, v{ve+9}, 16, v{ve+8}')
        a(f's_lshr_b32 s6, {S_W8}, 1'); a(f's_mul_i32 s6, s6, {2*KC_SZ}'); a('s_add_u32 s6, s6, 4096'); a(f'v_mov_b32 v{vt0}, s6')
        a('s_mov_b64 exec, 1')
        a(f'ds_write_b32 v{vt0}, v{ve+9} offset:{L_KC}')
        a(f'ds_write_b32 v{vt0}, v{vt1} offset:{L_KC + KC_SZ}')
        a('s_mov_b64 exec, -1')
        a.label('L_e_notail')
        a('s_waitcnt lgkmcnt(0)')
        for j in range(4): a(f'v_lshl_or_b32 v{vrp+j}, v{vr8+2*j+1}, 16, v{vr8+2*j}')
        a('s_mov_b32 exec_lo, 0x7fff'); a('s_mov_b32 exec_hi, 0x7fff')
        a(f'ds_write_b128 v{vRw}, {vr(vrp,4)}')
        a('s_mov_b64 exec, -1')
        for n in ('e', 'ep', 'r8', 'rp', 'Ra', 'Rw'): R.release(n)
    stamp('expand')
    a('s_branch L_k_bd')
    a.label('L_k_noexp')
    def issue_u():
        a(f'global_load_dwordx4 {vr(vu,4)}, v{vug}, {P_WS} sc1')
        a(f'global_load_dwordx4 {vr(vu+4,4)}, v{vug}, {P_WS} offset:16 sc1')
    if cfg.upipe:
        vu2 = al('u2', 8, 2)
        a(f'global_load_dwordx4 {vr(vu2,4)}, v{vug}, {P_WS} sc1')
        a(f'global_load_dwordx4 {vr(vu2+4,4)}, v{vug}, {P_WS} offset:16 sc1')
        a('s_waitcnt vmcnt(2)')
        a(f'v_max_u32 v{vt0}, v{vu}, v{vu+1}')
        for j in (2, 4, 6): a(f'v_max3_u32 v{vt0}, v{vt0}, v{vu+j}, v{vu+j+1}')
        a(f'v_cmp_eq_u32 vcc, -1, v{vt0}')
        a('s_cbranch_vccz L_u_ok1')
        a('s_mov_b64 exec, vcc')
        a('s_waitcnt vmcnt(0)')
        for j in range(8): a(f'v_mov_b32 v{vu+j}, v{vu2+j}')
        a('s_mov_b64 exec, -1')
        poll_loop(issue_u, list(range(vu, vu+8)), vt0, 'u', first_issued=True, nl=2)
        a.label('L_u_ok1')
        R.release('u2')
    else:
        poll_loop(issue_u, list(range(vu, vu+8)), vt0, 'u', first_issued=True, nl=2)
    a(f'ds_write_b128 v{vul}, {vr(vu,4)} offset:{L_UL + 512}')
    a(f'ds_write_b128 v{vul}, {vr(vu+4,4)} offset:{L_UL + UL_SZ + 512}')
    if cfg.active('expand'): a(f'{cfg.tinstr} s[{70+2*(len(cfg.stamp_names)-1)}:{71+2*(len(cfg.stamp_names)-1)}]')
    a.label('L_k_bd')
    for n in ('Ta','Kw','f1','f1off','ugoff','ulds','u'): R.release(n)
    a('s_waitcnt lgkmcnt(0)')
    a('s_barrier')
    stamp('B_d')
    if cfg.dbg:
        dv = al('dv', 4, 4); da = al('da');
        a(f's_lshl_b32 s6, {S_P}, 15'); a(f's_add_u32 s6, s6, 0x1000000')
        for it in range(3):
            a(f'v_lshlrev_b32 v{da}, 4, v0'); a(f'v_add_u32 v{da}, {it*8192}, v{da}')
            a(f'v_min_u32 v{da}, {L_UL + 2*UL_SZ - 16}, v{da}')
            a(f'ds_read_b128 {vr(dv,4)}, v{da}')
            a(f'v_add_u32 v{da}, s6, v{da}')
            a('s_waitcnt lgkmcnt(0)')
            a(f'global_store_dwordx4 v{da}, {vr(dv,4)}, {P_WS}')
            a('s_waitcnt vmcnt(0)')
        R.release('dv'); R.release('da')
    if stop_here(2): return finish(a, R, cfg)

    if_role_a('L_c_roleB')
    if cfg.wtouch == 2:
        a(f'global_load_dword v{vjunk}, v{vtw}, s[44:45]')
    if cfg.wtouch >= 2: R.release('tw')
    acc = al('acc', 32, 4)
    nfa = 20 if cfg.r3 else 32
    FA = [al('FA0', nfa, 4), al('FA1', nfa, 4)]; FB = [al('FB0', 32, 4), al('FB1', 32, 4)]
    def frag_group(rho, buf, j):
        J = j >> 1; o = 16 * (15 - (rho + 8 * (j & 1)))
        return [f'ds_read_b128 {vr(FB[buf]+4*j,4)}, v{vLB} offset:{512*j + 64*(3-rho)}',
                f'ds_read2_b32 {vr(FA[buf]+4*j,2)}, v{vLA+J} offset0:{o} offset1:{o+1}',
                f'ds_read2_b32 {vr(FA[buf]+4*j+2,2)}, v{vLA+J} offset0:{o+2} offset1:{o+3}']
    def frag_loads(rho, buf):
        L = []
        for j in range(8): L += frag_group(rho, buf, j)
        return L
    first = set()
    def mf(buf, j, tp):
        t = j + tp
        src = vr(acc+4*t,4) if t in first else '0'
        first.add(t)
        a(f'v_mfma_f32_16x16x32_f16 {vr(acc+4*t,4)}, {vr(FA[buf]+4*j,4)}, {vr(FB[buf]+4*tp,4)}, {src}')
    if cfg.r3:
        def group3(rho, buf, sh):
            g_ = frag_group(rho, buf, sh)
            return g_ if (sh <= 3 or (rho == 0 and sh == 4)) else g_[:1]
        shells0 = [[(j, tp) for j in range(4) for tp in range(8 - j) if max(j, tp) == sh] for sh in range(8)]
        shellsA = [list(x) for x in shells0]; shellsA[4] = shellsA[4] + [(4, tp) for tp in range(4)]
        groups = [(rho, sh) for rho in range(4) for sh in range(8)]
        X3 = al('X3', 12, 4); B3 = al('B3', 36, 4)
        r3list = [(3,0),(4,0),(5,0),(5,1),(6,0),(6,1),(7,0),(7,1),(7,2)]
        extraX = []; extraB = []
        for kap in range(3):
            extraX.append(f'ds_read_b64_tr_b16 {vr(X3+4*kap,2)}, v{vXa} offset:{1024*kap}')
            extraX.append(f'ds_read_b64_tr_b16 {vr(X3+4*kap+2,2)}, v{vXa} offset:{1024*kap + 128}')
        for n_, (t, kap) in enumerate(r3list):
            o = 24 - 8*(t-4) + 16*kap
            extraB.append(f'ds_read2_b32 {vr(B3+4*n_,2)}, v{vRb} offset0:{o} offset1:{o+1}')
            extraB.append(f'ds_read2_b32 {vr(B3+4*n_+2,2)}, v{vRb} offset0:{o+2} offset1:{o+3}')
        q = []
        def issue(l, tag): a(l); q.append(tag)
        def wait_tag(tag):
            last = max((i for i, t in enumerate(q) if t == tag), default=-1)
            if last < 0: return
            allowed = len(q) - 1 - last
            a(f's_waitcnt lgkmcnt({min(allowed, 15)})')
            del q[:last + 1]
        AHEAD = cfg.ahead3
        for n in range(AHEAD):
            rho, sh = groups[n]
            for l in group3(rho, rho & 1, sh): issue(l, ('g', n))
        nxt_g = AHEAD
        done = []; cnt = 0; wr = 0
        for n, (rho, sh) in enumerate(groups):
            if rho == 2 and sh == cfg.bwsh:
                stamp('c_prew')
                a('s_barrier')
                stamp('c_postw')
            if rho == 3 and sh == 0:
                stamp('c_prex')
                wait_tag(('x', 0))
                stamp('c_postx')
                for n_, (t, kap) in enumerate(r3list):
                    a(f'v_mfma_f32_16x16x32_f16 {vr(acc+4*t,4)}, {vr(X3+4*kap,4)}, {vr(B3+4*n_,4)}, {vr(acc+4*t,4)}')
            wait_tag(('g', n))
            if rho == 1 and sh == 0: stamp('c_r0')
            if rho == 2 and sh == 0: stamp('c_r1')
            ld = []
            if nxt_g < len(groups):
                r2, s2_ = groups[nxt_g]; ld = [(l, ('g', nxt_g)) for l in group3(r2, r2 & 1, s2_)]; nxt_g += 1
            if (rho == 1 and sh in (2, 3, 4, 5)) or (rho == 2 and sh in (1, 2, 3)):
                for _ in range(3):
                    if extraB: ld.append((extraB.pop(0), ('x', 0)))
            if rho == 2 and sh >= cfg.bwsh:
                for _ in range(2):
                    if extraX: ld.append((extraX.pop(0), ('x', 0)))
            shl = shellsA[sh] if rho == 0 else shells0[sh]
            for idx, (j, tp) in enumerate(shl):
                mf(rho & 1, j, tp); cnt += 1
                rem = len(shl) - idx
                take = len(ld) if rem == 1 else min(len(ld), -(-len(ld) // rem))
                for _ in range(take):
                    l, tag = ld.pop(0); issue(l, tag)
                if rho == 3 and wr < len(done) and cnt - done[wr][1] >= 9:
                    issue(f'ds_write_b128 v{vPW}, {vr(acc+4*done[wr][0],4)} offset:{done[wr][0]*PX_T}', ('w', wr)); wr += 1
            if rho == 3: done.append((sh, cnt))
        assert not extraX and not extraB
        stamp('conv_mfma'); stamp('c_r3')
        while wr < 8:
            a(f'ds_write_b128 v{vPW}, {vr(acc+4*done[wr][0],4)} offset:{done[wr][0]*PX_T}'); wr += 1
        for n_ in ('X3', 'B3', 'Xa', 'Rb'): R.release(n_)
    elif cfg.convsched:
        shells = [[(j, tp) for j in range(8) for tp in range(8 - j) if max(j, tp) == sh] for sh in range(8)]
        groups = [(rho, sh) for rho in range(4) for sh in range(8)]
        q = []
        def issue(l, tag): a(l); q.append(tag)
        def wait_group(n):
            last = max((i for i, t in enumerate(q) if t == ('g', n)), default=-1)
            if last < 0: return
            allowed = len(q) - 1 - last
            a(f's_waitcnt lgkmcnt({min(allowed, 15)})')
            del q[:last + 1]
        AHEAD = 5
        pend = []
        for n in range(AHEAD):
            rho, sh = groups[n]
            for l in frag_group(rho, rho & 1, sh): issue(l, ('g', n))
        nxt_g = AHEAD
        done = []; cnt = 0; wr = 0
        for n, (rho, sh) in enumerate(groups):
            wait_group(n)
            if rho == 1 and sh == 0: stamp('c_r0')
            if rho == 2 and sh == 0: stamp('c_r1')
            ld = []
            if nxt_g < len(groups):
                r2, s2_ = groups[nxt_g]; ld = [(l, ('g', nxt_g)) for l in frag_group(r2, r2 & 1, s2_)]; nxt_g += 1
            for idx, (j, tp) in enumerate(shells[sh]):
                mf(rho & 1, j, tp); cnt += 1
                take = len(ld) if idx == len(shells[sh]) - 1 else min(len(ld), 1 if len(shells[sh]) >= 3 else 2)
                for _ in range(take):
                    l, tag = ld.pop(0); issue(l, tag)
                if rho == 3 and wr < len(done) and cnt - done[wr][1] >= 9:
                    issue(f'ds_write_b128 v{vPW}, {vr(acc+4*done[wr][0],4)} offset:{done[wr][0]*PX_T}', ('w', wr)); wr += 1
            if rho == 3: done.append((sh, cnt))
        stamp('conv_mfma'); stamp('c_r3')
        while wr < 8:
            a(f'ds_write_b128 v{vPW}, {vr(acc+4*done[wr][0],4)} offset:{done[wr][0]*PX_T}'); wr += 1
    else:
        for j in range(5):
            for l in frag_group(0, 0, j): a(l)
        shells = [[(j, tp) for j in range(8) for tp in range(8 - j) if max(j, tp) == sh] for sh in range(8)]
        nxt = frag_loads(1, 1); k = 0
        nostamp = True
        for sh in range(8):
            if sh <= 3: a('s_waitcnt lgkmcnt(12)')
            elif sh == 4: a('s_waitcnt lgkmcnt(9)')
            elif sh == 5: a('s_waitcnt lgkmcnt(0)')
            for idx, (j, tp) in enumerate(shells[sh]):
                mf(0, j, tp)
                if sh <= 2 and idx == 0:
                    for l in frag_group(0, 0, sh + 5): a(l)
                if sh >= 5:
                    for _ in range(2):
                        if k < len(nxt): a(nxt[k]); k += 1
        for rho in range(1, 4):
            buf = rho & 1
            nxt = frag_loads(rho + 1, buf ^ 1) if rho < 3 else []
            a('s_waitcnt lgkmcnt(0)')
            if rho == 1: stamp('c_r0')
            if rho == 2: stamp('c_r1')
            if rho < 3:
                k = 0
                for j in range(8):
                    for tp in range(8 - j):
                        mf(buf, j, tp)
                        if k < len(nxt): a(nxt[k])
                        k += 1
            else:
                done = []; cnt = 0; wr = 0
                for t in range(8):
                    for j in range(t + 1):
                        mf(buf, j, t - j); cnt += 1
                        if wr < len(done) and cnt - done[wr][1] >= 9:
                            a(f'ds_write_b128 v{vPW}, {vr(acc+4*done[wr][0],4)} offset:{done[wr][0]*PX_T}'); wr += 1
                    done.append((t, cnt))
                stamp('conv_mfma'); stamp('c_r3')
                while wr < 8:
                    a(f'ds_write_b128 v{vPW}, {vr(acc+4*done[wr][0],4)} offset:{done[wr][0]*PX_T}'); wr += 1
    stamp('c_wr')
    for n in ('acc','FA0','FA1','FB0','FB1','LA','LB','PW'): R.release(n)
    a('s_branch L_c_be')
    a.label('L_c_roleB')
    if cfg.active('conv_mfma'): a(f'{cfg.tinstr} s[{70+2*(len(cfg.stamp_names)-1)}:{71+2*(len(cfg.stamp_names)-1)}]')
    gen_roleB_conv(a, R, cfg, locals())
    a.label('L_c_be')
    a('s_waitcnt lgkmcnt(0)')
    a('s_barrier')
    stamp('B_e')
    ep = al('ep', 16, 4); vis = al('is', 2, 2)
    a(f'ds_read_b128 {vr(ep,4)}, v{vEP}')
    a(f'ds_read_b128 {vr(ep+8,4)}, v{vEP} offset:{PX_H}')
    a(f'ds_read_b128 {vr(ep+4,4)}, v{vEP} offset:256')
    a(f'ds_read_b128 {vr(ep+12,4)}, v{vEP} offset:{PX_H + 256}')
    a(f'ds_read_b32 v{vis}, v{vISa} offset:{L_IS}')
    a('s_waitcnt lgkmcnt(0)')
    for j in range(4): a(f'v_pk_add_f32 {vr(ep+2*j,2)}, {vr(ep+2*j,2)}, {vr(ep+8+2*j,2)}')
    for j in range(4): a(f'v_pk_mul_f32 {vr(ep+2*j,2)}, {vr(ep+2*j,2)}, {vr(vis,2)} op_sel_hi:[1,0]')
    cvt4(ep+8, ep)
    a(f'global_store_dwordx4 v{vYa}, {vr(ep+8,4)}, {P_WS} sc1')
    R.release('EP'); R.release('ISa'); R.release('Ya')
    stamp('y_stored')
    R.release('ep'); R.release('is')
    if stop_here(3): return finish(a, R, cfg)

    gen_tail(a, R, cfg, locals())
    return finish(a, R, cfg)

def gen_roleB_conv(a, R, cfg, env):
    S_W8 = env['S_W8']; vlane = env['vlane']; vt0 = env['vt0']; vt1 = env['vt1']; lbl = env['lbl']
    P_WG, P_WU, P_WD = env['P_WG'], env['P_WU'], env['P_WD']
    vblk = env['vblk']; S_P = env['S_P']; P_WS = env['P_WS']
    a('s_waitcnt vmcnt(0)')
    if cfg.ylate in (1, 3):
        vf2 = R.alloc('f2', 4, 2); vf2o = R.alloc('f2o')
        a(f's_cmp_eq_u32 {S_W8}, 5'); a('s_cbranch_scc0 L_c_nof2')
        a('s_and_b32 s6, s2, 7'); a('s_lshl_b32 s6, s6, 12'); a(f's_add_u32 s6, s6, {WS_F2}')
        a(f'v_lshl_add_u32 v{vf2o}, v{vlane}, 4, s6')
        def f2issue():
            for j in range(4): a(f'global_load_dword v{vf2+j}, v{vf2o}, {P_WS} offset:{1024*j} sc1')
        env['poll_loop'](f2issue, [vf2, vf2+1, vf2+2, vf2+3], vt0, 'f2', cmp_tag=True)
        a.label('L_c_nof2')
        R.release('f2'); R.release('f2o')
    if cfg.r3:
        if cfg.wprio: a(f's_setprio {cfg.wprio}')
        vWu, vWw = env['vWu'], env['vWw']
        from asmlib import vr
        raw = R.alloc('wraw', 8, 4); x = R.alloc('wx', 16, 2); w7 = R.alloc('w7', 8, 2); w9 = R.alloc('w9', 8, 2); pk = R.alloc('wpk', 8, 4); zz = R.alloc('wz', 4, 4)
        a(f'ds_read_b64 {vr(raw,2)}, v{vWu} offset:8')
        a(f'ds_read_b128 {vr(raw+2+2,4) if False else vr(raw+4,4)}, v{vWu} offset:16')
        a(f'ds_read_b64 {vr(raw+2,2)}, v{vWu} offset:32')
        for i in range(4): a(f'v_mov_b32 v{zz+i}, 0')
        a(f'v_and_b32 v{vt0}, 127, v0')
        a(f'v_lshlrev_b32 v{vt1}, 4, v{vt0}')
        a(f'v_sub_u32 v{vca2 if False else vt1}, v{vWw}, v{vt1}') if False else None
        vb = R.alloc('wzb'); vb2 = R.alloc('wzb2')
        a(f'v_sub_u32 v{vb}, v{vWw}, v{vt1}')
        a(f'v_add_u32 v{vb2}, {130*16}, v{vWw}')
        a(f'v_add_u32 v{vt1}, {3072 + (129-64)*16}, v{vWw}')
        a(f'v_cmp_gt_u32 vcc, 64, v{vt0}')
        a(f'v_cndmask_b32 v{vb2}, v{vt1}, v{vb2}, vcc')
        a(f'v_cmp_eq_u32 vcc, 127, v{vt0}')
        a(f'v_cndmask_b32 v{vb2}, v{vb2}, v{vb}, vcc')
        a(f'v_and_b32 v{vt1}, 126, v{vt0}'); a(f'v_cmp_eq_u32 vcc, 62, v{vt1}')
        a(f'v_cndmask_b32 v{vb2}, v{vb2}, v{vb}, vcc')
        a(f'ds_write_b128 v{vb2}, {vr(zz,4)}')
        a('s_waitcnt lgkmcnt(1)')
        src = [raw, raw+1, raw+4, raw+5, raw+6, raw+7, raw+2, raw+3]
        for j, r in enumerate(src):
            a(f'v_cvt_f32_f16 v{x+2*j}, v{r}')
            a(f'v_cvt_f32_f16_sdwa v{x+2*j+1}, v{r} dst_sel:DWORD dst_unused:UNUSED_PAD src0_sel:WORD_1')
        a(f'v_add_f32 v{w7}, v{x+1}, v{x+2}'); a(f'v_add_f32 v{vt0}, v{x+3}, v{x+4}'); a(f'v_add_f32 v{vt1}, v{x+5}, v{x+6}')
        a(f'v_add_f32 v{w7}, v{w7}, v{x+7}'); a(f'v_add_f32 v{vt0}, v{vt0}, v{vt1}'); a(f'v_add_f32 v{w7}, v{w7}, v{vt0}')
        for e in range(7):
            a(f'v_sub_f32 v{vt0}, v{x+e+8}, v{x+e+1}'); a(f'v_add_f32 v{w7+e+1}, v{w7+e}, v{vt0}')
        for e in range(8):
            a(f'v_add_f32 v{w9+e}, v{x+e}, v{x+e+8}'); a(f'v_add_f32 v{w9+e}, v{w9+e}, v{w7+e}')
        for j in range(4):
            a(f'v_cvt_pk_f16_f32 v{pk+j}, v{w9+2*j}, v{w9+2*j+1}'); a(f'v_cvt_pk_f16_f32 v{pk+4+j}, v{w7+2*j}, v{w7+2*j+1}')
        a(f'ds_write_b128 v{vWw}, {vr(pk,4)} offset:32')
        a(f'ds_write_b128 v{vWw}, {vr(pk+4,4)} offset:{3072 + 16}')
        a(f's_bitcmp1_b32 {S_W8}, 0'); a('s_cbranch_scc1 L_w_noedge')
        a(f'v_add_f32 v{w7}, v{x+4}, v{x+5}'); a(f'v_add_f32 v{w7+1}, v{w7}, v{x+6}'); a(f'v_add_f32 v{w7+2}, v{w7+1}, v{x+7}')
        a(f'v_mov_b32 v{pk}, 0'); a(f'v_mov_b32 v{pk+1}, 0')
        a(f'v_cvt_pk_f16_f32 v{pk+2}, v{x+4}, v{w7}'); a(f'v_cvt_pk_f16_f32 v{pk+3}, v{w7+1}, v{w7+2}')
        a(f'v_mov_b32 v{pk+4}, 0'); a(f'v_mov_b32 v{pk+5}, 0')
        a(f'v_mov_b32 v{vt0}, 0'); a(f'v_cvt_pk_f16_f32 v{pk+6}, v{vt0}, v{x+4}'); a(f'v_cvt_pk_f16_f32 v{pk+7}, v{w7}, v{w7+1}')
        a('s_mov_b64 exec, 1')
        a(f'ds_write_b128 v{vWw}, {vr(pk,4)} offset:16')
        a(f'ds_write_b128 v{vWw}, {vr(pk+4,4)} offset:3072')
        a('s_mov_b64 exec, -1')
        a.label('L_w_noedge')
        for n in ('wraw','wx','w7','w9','wpk','wz','wzb','wzb2','Wu','Ww'): R.release(n)
        if cfg.wprio: a('s_setprio 0')
        vo = R.alloc('ones2', 4, 2); vca = R.alloc('clra')
        for i in range(4): a(f'v_mov_b32 v{vo+i}, -1')
        a(f'v_add_u32 v{vca}, {WS_H - 4096}, v{vblk}')
        a(f'global_store_dwordx4 v{vca}, v[{vo}:{vo+3}], {P_WS} sc1')
        a(f'v_add_u32 v{vca}, 4096, v{vca}')
        a(f'global_store_dwordx4 v{vca}, v[{vo}:{vo+3}], {P_WS} sc1')
        a(f's_lshl_b32 s6, {S_P}, 5'); a(f's_add_u32 s6, s6, {WS_STAT}')
        a(f'v_lshl_add_u32 v{vca}, v{vlane}, 2, s6')
        a('s_mov_b64 exec, 0xff')
        a(f'global_store_dword v{vca}, v{vo}, {P_WS} sc1')
        a('s_mov_b64 exec, -1')
        R.release('ones2'); R.release('clra')
        a('s_waitcnt lgkmcnt(0)')
        env['stamp']('w_done')
        a('s_barrier')
    else:
        vo = R.alloc('ones2', 4, 2); vca = R.alloc('clra')
        for i in range(4): a(f'v_mov_b32 v{vo+i}, -1')
        a(f'v_add_u32 v{vca}, {WS_H - 4096}, v{vblk}')
        a(f'global_store_dwordx4 v{vca}, v[{vo}:{vo+3}], {P_WS} sc1')
        a(f'v_add_u32 v{vca}, 4096, v{vca}')
        a(f'global_store_dwordx4 v{vca}, v[{vo}:{vo+3}], {P_WS} sc1')
        a(f's_lshl_b32 s6, {S_P}, 5'); a(f's_add_u32 s6, s6, {WS_STAT}')
        a(f'v_lshl_add_u32 v{vca}, v{vlane}, 2, s6')
        a('s_mov_b64 exec, 0xff')
        a(f'global_store_dword v{vca}, v{vo}, {P_WS} sc1')
        a('s_mov_b64 exec, -1')
        R.release('ones2'); R.release('clra')

    if cfg.dmac:
        a('s_cmp_lt_u32 s2, 56'); a('s_cbranch_scc1 L_dc_go')
        a('s_sub_u32 s7, s2, 64'); a('s_cmp_lt_u32 s7, 32'); a('s_cbranch_scc0 L_dc_done')
        a.label('L_dc_go')
        n = cfg.dsleep
        while n > 0:
            a(f's_sleep {min(n,100)}'); n -= min(n, 100)
        gen_dma(a, R, cfg, env)
        a.label('L_dc_done')

def gen_dma(a, R, cfg, env):
    S_W8 = env['S_W8']; vlane = env['vlane']; vt0 = env['vt0']; vt1 = env['vt1']
    P_WG, P_WU, P_WD = env['P_WG'], env['P_WU'], env['P_WD']; S_FC = env['S_FC']
    a('s_cmp_lt_u32 s2, 56'); a('s_cbranch_scc0 L_w_not1')
    a(f's_sub_u32 s6, {S_W8}, 4')
    a(f'v_lshrrev_b32 v{vt0}, 2, v{vlane}')
    a(f'v_mul_u32_u24 v{vt0}, 3584, v{vt0}')
    a(f'v_and_b32 v{vt1}, 3, v{vlane}')
    a(f'v_lshl_add_u32 v{vt0}, v{vt1}, 4, v{vt0}')
    a(f's_lshl_b32 s7, {S_FC}, 6')
    a('s_and_b32 s38, s6, 1'); a(f's_mul_i32 s39, s38, {256*3584}'); a('s_add_u32 s7, s7, s39')
    a(f'v_add_u32 v{vt0}, s7, v{vt0}')
    a('s_lshl_b32 s39, s6, 14'); a(f's_add_u32 s39, s39, {L_BIG}')
    a('s_cmp_ge_u32 s6, 2'); a('s_cselect_b32 s44, s28, s26'); a('s_cselect_b32 s45, s29, s27')
    a('s_mov_b32 s38, 16'); a(f's_mov_b32 s7, {16*3584}')
    a('s_branch L_w_loop')
    a.label('L_w_not1')
    a(f's_sub_u32 s6, {S_W8}, 4')
    a(f'v_lshrrev_b32 v{vt0}, 1, v{vlane}')
    a(f'v_lshlrev_b32 v{vt0}, 10, v{vt0}')
    a(f'v_and_b32 v{vt1}, 1, v{vlane}')
    a(f'v_lshl_add_u32 v{vt0}, v{vt1}, 4, v{vt0}')
    a(f's_lshl_b32 s7, {S_FC}, 5')
    a(f's_mul_i32 s39, s6, {448*1024}'); a('s_add_u32 s7, s7, s39')
    a(f'v_add_u32 v{vt0}, s7, v{vt0}')
    a(f's_mul_i32 s39, s6, {448*32}'); a(f's_add_u32 s39, s39, {L_BIG}')
    a('s_mov_b32 s44, s30'); a('s_mov_b32 s45, s31')
    a('s_mov_b32 s38, 14'); a(f's_mov_b32 s7, {32*1024}')
    a.label('L_w_loop')
    a('s_mov_b32 m0, s39'); a('s_add_u32 s39, s39, 1024')
    a(f'global_load_lds_dwordx4 v{vt0}, s[44:45]')
    a(f'v_add_u32 v{vt0}, s7, v{vt0}')
    a('s_sub_u32 s38, s38, 1'); a('s_cmp_lg_u32 s38, 0'); a('s_cbranch_scc1 L_w_loop')

def gen_tail(a, R, cfg, env):
    g = env
    al = R.alloc
    S_W8, S_P, S_TAG, S_MASKHI, S_STG, S_SPIN = g['S_W8'], g['S_P'], g['S_TAG'], g['S_MASKHI'], g['S_STG'], g['S_SPIN']
    S_L2E = g['S_L2E']
    P_WS, P_OUT = g['P_WS'], g['P_OUT']
    vlane, vt0, vt1, vt2, vt3, vtk, vcg, vch, vxo = (g[k] for k in ('vlane','vt0','vt1','vt2','vt3','vtk','vcg','vch','vxo'))
    vxf, vud, vm1 = g['vxf'], g['vud'], g['vm1']
    stamp, lbl, poll_loop, unpack8, cvt4, xlane1 = g['stamp'], g['lbl'], g['poll_loop'], g['unpack8'], g['cvt4'], g['xlane1']
    ln_stats_partial, ln_finish, normalize, stop_here = g['ln_stats_partial'], g['ln_finish'], g['normalize'], g['stop_here']
    vy = al('y', 4, 4); vyo = al('yoff'); vwr = al('wr', 4, 4)
    vd = al('d', 16, 4); vS = al('S', 2, 2); vt = al('t', 2, 2); vrs = al('rs', 2, 2); vs_ = al('s', 2, 2); vm2 = al('m2', 2, 2)
    vhf = al('hf', 8, 2); vhp = al('hp', 4, 4)
    a(f'v_lshrrev_b32 v{vyo}, 1, v0'); a(f'v_lshlrev_b32 v{vyo}, 13, v{vyo}')
    a(f'v_and_b32 v{vt0}, 1, v0'); a(f'v_lshl_add_u32 v{vyo}, v{vt0}, 4, v{vyo}')
    a(f's_lshl_b32 s6, {S_P}, 5'); a(f's_add_u32 s6, s6, {WS_Y}')
    a(f'v_add_u32 v{vyo}, s6, v{vyo}')
    a(f'ds_read_b128 {vr(vwr,4)}, v{vch} offset:{L_WR}')
    a(f'v_lshl_add_u32 v{vt2}, v{vlane}, 4, {S_STG}')
    a(f'v_lshrrev_b32 v{vt0}, 4, v{vlane}'); a(f'v_lshlrev_b32 v{vt3}, 8, v{vt0}')
    a(f'v_bfe_u32 v{vt0}, v{vlane}, 1, 1'); a(f'v_lshl_add_u32 v{vt3}, v{vt0}, 7, v{vt3}')
    a(f'v_bfe_u32 v{vt0}, v{vlane}, 2, 2'); a(f'v_lshl_add_u32 v{vt3}, v{vt0}, 4, v{vt3}')
    a(f'v_and_b32 v{vt0}, 1, v{vlane}'); a(f'v_lshl_add_u32 v{vt3}, v{vt0}, 3, v{vt3}')
    a(f'v_add_u32 v{vt3}, {S_STG}, v{vt3}')
    if not cfg.noywait: a('s_waitcnt vmcnt(0)')
    stamp('y_acked')
    if cfg.plain1 & 2:
        a(f'global_load_dwordx4 {vr(vy,4)}, v{vyo}, {P_WS}')
        poll_loop(lambda: a(f'global_load_dwordx4 {vr(vy,4)}, v{vyo}, {P_WS} sc1'), [vy, vy+1, vy+2, vy+3], vt0, 'y', first_issued=True)
    else:
        poll_loop(lambda: a(f'global_load_dwordx4 {vr(vy,4)}, v{vyo}, {P_WS} sc1'), [vy, vy+1, vy+2, vy+3], vt0, 'y')
    stamp('y_got')
    a(f'ds_write_b128 v{vt2}, {vr(vy,4)}')
    a('s_waitcnt lgkmcnt(0)')
    a(f'ds_read_b64_tr_b16 {vr(vy,2)}, v{vt3}')
    a(f'ds_read_b64_tr_b16 {vr(vy+2,2)}, v{vt3} offset:64')
    a('s_waitcnt lgkmcnt(0)')
    stamp('s3_tr')
    unpack8(vd, vy)
    for j in range(4): a(f'v_pk_add_f32 {vr(vd+2*j,2)}, {vr(vd+2*j,2)}, {vr(vud+2*j,2)}')
    cvt4(vd+8, vd)
    unpack8(vd, vd+8)
    for j in range(4): a(f'v_pk_add_f32 {vr(vd+2*j,2)}, {vr(vd+2*j,2)}, {vr(vxf+2*j,2)}')
    cvt4(vhp, vd)
    if not cfg.hlate:
        a(f'v_add_u32 v{vt0}, {WS_H}, v{vxo}')
        a(f'global_store_dwordx4 v{vt0}, {vr(vhp,4)}, {P_WS} sc1')
    stamp('s3_h')
    ln_stats_partial(vhp, vS, vt, L_ST2)
    unpack8(vhf, vhp)
    a('s_waitcnt lgkmcnt(0)')
    stamp('s3_part')
    a('s_barrier')
    stamp('s3_bar1')
    ln_finish(vhf, vd, vS, vt, L_ST2, vm2, vrs, vs_)
    stamp('s3_fin')
    vr_ = al('r', 2, 2)
    a(f'v_dot2_f32_bf16 v{vr_}, v{vd+8}, v{vwr}, 0')
    a(f'v_dot2_f32_bf16 v{vr_+1}, v{vd+9}, v{vwr+1}, 0')
    a(f'v_dot2_f32_bf16 v{vr_}, v{vd+10}, v{vwr+2}, v{vr_}')
    a(f'v_dot2_f32_bf16 v{vr_+1}, v{vd+11}, v{vwr+3}, v{vr_+1}')
    a(f'v_add_f32 v{vr_}, v{vr_}, v{vr_+1}')
    xlane1(vr_, vt, 'add_f32')
    a(f's_lshl_b32 s6, {S_W8}, 2')
    a(f'v_lshl_add_u32 v{vt}, v{vtk}, 5, s6')
    a('s_mov_b64 exec, 0xff')
    a(f'ds_write_b32 v{vt}, v{vr_} offset:{L_RP}')
    a('s_mov_b64 exec, -1')
    stamp('s3_rp')
    unpack8(vd, vd+8)
    for j in range(4): a(f'v_pk_add_f32 {vr(vd+2*j,2)}, {vr(vd+2*j,2)}, {vr(vhf+2*j,2)}')
    cvt4(vd+12, vd)
    a('s_waitcnt lgkmcnt(0)')
    a('s_barrier')
    stamp('s3_bar2')
    a(f's_cmp_eq_u32 {S_W8}, 0'); a('s_cbranch_scc0 L_s3_nokey')
    a(f'v_lshlrev_b32 v{vt}, 5, v{vtk}')
    a(f'ds_read_b128 {vr(vd,4)}, v{vt} offset:{L_RP}')
    a(f'ds_read_b128 {vr(vd+4,4)}, v{vt} offset:{L_RP+16}')
    a('s_waitcnt lgkmcnt(0)')
    a(f'v_pk_add_f32 {vr(vd,2)}, {vr(vd,2)}, {vr(vd+2,2)}'); a(f'v_pk_add_f32 {vr(vd+4,2)}, {vr(vd+4,2)}, {vr(vd+6,2)}')
    a(f'v_pk_add_f32 {vr(vd,2)}, {vr(vd,2)}, {vr(vd+4,2)}'); a(f'v_add_f32 v{vd}, v{vd}, v{vd+1}')
    a(f'v_cvt_pk_bf16_f32 v{vd}, v{vd}, v{vd}')
    a(f'v_and_b32 v{vd}, 0xffff, v{vd}')
    a(f'v_cmp_lt_u32 vcc, 0x7fff, v{vd}')
    a(f'v_xor_b32 v{vd+1}, 0xffff, v{vd}'); a(f'v_or_b32 v{vd+2}, 0x8000, v{vd}')
    a(f'v_cndmask_b32 v{vd}, v{vd+2}, v{vd+1}, vcc')
    a(f'v_mov_b32_dpp v{vd+1}, v{vd} quad_perm:[1,0,3,2] row_mask:0xf bank_mask:0xf')
    a(f's_lshl_b32 s6, {S_P}, 4'); a(f's_add_u32 s6, s6, {WS_KEY}')
    a(f'v_lshlrev_b32 v{vd+2}, 12, v{vcg}'); a(f'v_lshl_add_u32 v{vd+2}, v{vtk}, 1, v{vd+2}'); a(f'v_add_u32 v{vd+2}, s6, v{vd+2}')
    a(f'v_lshl_or_b32 v{vd}, v{vd+1}, 16, v{vd}')
    a('s_mov_b32 exec_lo, 0x55555555'); a('s_mov_b32 exec_hi, 0x55555555')
    a(f'global_store_dword v{vd+2}, v{vd}, {P_WS} sc1')
    a('s_mov_b64 exec, -1')
    a.label('L_s3_nokey')
    stamp('key_stored')
    if cfg.hlate == 1:
        a(f'v_add_u32 v{vt0}, {WS_H}, v{vxo}')
        a(f'global_store_dwordx4 v{vt0}, {vr(vhp,4)}, {P_WS} sc1')
    if cfg.hlate == 2:
        vhk = al('hkeep', 4, 4); vha_ = al('hkaddr')
        for j in range(4): a(f'v_mov_b32 v{vhk+j}, v{vhp+j}')
        a(f'v_add_u32 v{vha_}, {WS_H}, v{vxo}')
    vout = al('outp', 4, 4)
    for j in range(4): a(f'v_mov_b32 v{vout+j}, v{vd+12+j}')
    a(f's_cmp_eq_u32 {S_W8}, 1'); a('s_cbranch_scc0 L_s3_nostat')
    a(f'v_lshrrev_b32 v{vd}, 16, v{vm2}'); a(f'v_and_or_b32 v{vd}, v{vs_}, {S_MASKHI}, v{vd}')
    a(f's_lshl_b32 s6, {S_P}, 5'); a(f's_add_u32 s6, s6, {WS_STAT}')
    a(f'v_lshl_add_u32 v{vd+1}, v{vtk}, 2, s6')
    a('s_mov_b64 exec, 0xff')
    a(f'global_store_dword v{vd+1}, v{vd}, {P_WS} sc1')
    a('s_mov_b64 exec, -1')
    a.label('L_s3_nostat')
    for n in ('y','yoff','wr','d','S','t','rs','s','m2','hf','hp','r','xf','ud','m1'): R.release(n)
    S_ROLE = 's43'
    a(f's_mov_b32 {S_ROLE}, 1')
    a('s_cmp_lt_u32 s2, 56'); a('s_cbranch_scc1 L_f_go')
    a(f's_mov_b32 {S_ROLE}, 2')
    a('s_sub_u32 s7, s2, 64'); a('s_cmp_lt_u32 s7, 32'); a('s_cbranch_scc1 L_f_go')
    a(f's_mov_b32 {S_ROLE}, 0')
    a('s_branch L_f_nokey')
    a.label('L_f_go')
    a.label('L_f_nokey')
    stamp('s3_done')
    def out_store_and_flag(tag):
        if cfg.hlate == 2: a(f'global_store_dwordx4 v{vha_}, {vr(vhk,4)}, {P_WS} sc1')
        a(f'global_store_dwordx4 v{vxo}, {vr(vout,4)}, {P_OUT} sc1')
    def publish_f3b(tag):
        a('s_waitcnt vmcnt(0)')
        a('s_barrier')
        l = lbl('f3b')
        a(f's_cmp_eq_u32 {S_W8}, 2'); a(f's_cbranch_scc0 {l}')
        a(f's_lshl_b32 s6, {S_P}, 4'); a(f's_add_u32 s6, s6, {WS_F3B}')
        a(f'v_lshl_add_u32 v{vt0}, v{vlane}, 12, s6'); a(f'v_mov_b32 v{vt1}, {S_TAG}')
        a('s_mov_b64 exec, 0xff')
        a(f'global_store_dword v{vt0}, v{vt1}, {P_WS} sc1')
        a('s_mov_b64 exec, -1')
        a.label(l)
    a(f's_cmp_eq_u32 {S_ROLE}, 0'); a('s_cbranch_scc0 L_f_roles')
    if cfg.hlate == 2:
        a('s_waitcnt vmcnt(0)'); a('s_barrier')
    if cfg.olate: a('s_waitcnt vmcnt(0)')
    out_store_and_flag('n'); publish_f3b('n')
    a('s_branch L_fin')
    a.label('L_f_roles')
    if cfg.stop == 4:
        out_store_and_flag('n'); publish_f3b('n'); a('s_branch L_fin'); return
    a(f's_cmp_ge_u32 {S_W8}, 4'); a('s_cbranch_scc1 L_t_roleB')
    vk = al('k', 8, 4); vko = al('koff'); vm = al('m', 2, 2); vkr = al('kraw', 4, 4); vkb = al('kbase')
    a('s_and_b32 s6, s2, 7'); a('s_lshl_b32 s6, s6, 12'); a(f's_add_u32 s6, s6, {WS_KEY}')
    a(f'v_lshl_add_u32 v{vko}, v0, 4, s6')
    a(f'v_lshlrev_b32 v{vkb}, 3, v0'); a(f'v_sub_u32 v{vkb}, 2047, v{vkb}')
    a(f's_cmp_eq_u32 {S_W8}, 0'); a('s_cbranch_scc0 L_t_nz')
    a(f'v_mov_b32 v{vt0}, 0'); a(f'v_lshlrev_b32 v{vt1}, 2, v{vlane}')
    a(f'ds_write_b32 v{vt1}, v{vt0} offset:{L_CL}')
    a(f'v_mov_b32 v{vt1}, {L_CNT}'); a(f'ds_write_b32 v{vt1}, v{vt0}')
    a.label('L_t_nz')
    if not cfg.nokwait: a('s_waitcnt vmcnt(0)')
    stamp('k_wait')
    poll_loop(lambda: a(f'global_load_dwordx4 {vr(vkr,4)}, v{vko}, {P_WS} sc1'), list(range(vkr, vkr+4)), vm, 'key')
    stamp('keys_got')
    if cfg.active('k_spin'):
        i = len(cfg.stamp_names); cfg.stamp_names.append('k_spin')
        a('s_waitcnt lgkmcnt(0)'); a(f's_mul_i32 s{70+2*i}, {S_SPIN}, 100'); a(f's_add_u32 s{70+2*i}, s{70+2*i}, s70')
    for j in range(4):
        a(f'v_subrev_u32 v{vt0}, {2*j}, v{vkb}'); a(f'v_subrev_u32 v{vt1}, {2*j+1}, v{vkb}')
        a(f'v_lshl_or_b32 v{vk+2*j}, v{vkr+j}, 16, v{vt0}')
        a(f'v_and_or_b32 v{vk+2*j+1}, v{vkr+j}, {S_MASKHI}, v{vt1}')
    a(f'v_max3_u32 v{vm}, v{vk}, v{vk+1}, v{vk+2}'); a(f'v_max3_u32 v{vm+1}, v{vk+3}, v{vk+4}, v{vk+5}')
    a(f'v_max3_u32 v{vm}, v{vm}, v{vk+6}, v{vk+7}'); a(f'v_max_u32 v{vm}, v{vm}, v{vm+1}')
    R.release('kraw'); R.release('kbase')
    out_store_and_flag('a')
    for ror in (1, 2, 4, 8): a(f'v_max_u32_dpp v{vm}, v{vm}, v{vm} row_ror:{ror} row_mask:0xf bank_mask:0xf')
    a(f's_lshl_b32 s6, {S_W8}, 4'); a(f's_add_u32 s6, s6, {L_WM}')
    a(f'v_lshrrev_b32 v{vt0}, 4, v{vlane}'); a(f'v_lshl_add_u32 v{vt0}, v{vt0}, 2, s6')
    a('s_mov_b32 exec_lo, 0x00010001'); a('s_mov_b32 exec_hi, 0x00010001')
    a(f'ds_write_b32 v{vt0}, v{vm}')
    a('s_mov_b64 exec, -1')
    stamp('t8_max')
    vw = al('w8m', 16, 4); vown = al('own'); vrk = al('rk')
    a(f'v_mov_b32 v{vt0}, {L_WM}'); a(f'v_mov_b32 v{vt2}, {L_CNT}')
    a(f'v_and_b32 v{vt1}, 15, v{vlane}'); a(f'v_lshlrev_b32 v{vt1}, 2, v{vt1}'); a(f'v_mov_b32 v{vrk}, 0')
    a('s_waitcnt lgkmcnt(0)')
    a('s_barrier')
    stamp('t8_bar1')
    a(f'ds_read_b32 v{vown}, v{vt1} offset:{L_WM}')
    for q in range(4): a(f'ds_read_b128 {vr(vw+4*q,4)}, v{vt0} offset:{16*q}')
    for q in range(4):
        a(f's_waitcnt lgkmcnt({3-q})' if not cfg.stamps else 's_waitcnt lgkmcnt(0)')
        for j in range(4): a(f'v_cmp_gt_u32 s[{44+2*j}:{45+2*j}], v{vw+4*q+j}, v{vown}')
        for j in range(4): a(f'v_addc_co_u32 v{vrk}, vcc, 0, v{vrk}, s[{44+2*j}:{45+2*j}]')
    a(f'v_cmp_eq_u32 vcc, {cfg.trank}, v{vrk}')
    a('s_ff1_i32_b64 s6, vcc')
    a(f'v_readlane_b32 s7, v{vown}, s6')
    a(f'v_mov_b32 v{vw}, s7')
    for j in range(8): a(f'v_cmp_ge_u32 s[{44+2*j}:{45+2*j}], v{vk+j}, v{vw}')
    a('s_bcnt1_i32_b64 s7, s[44:45]')
    for j in range(1, 8):
        a(f's_bcnt1_i32_b64 s6, s[{44+2*j}:{45+2*j}]'); a('s_add_u32 s7, s7, s6')
    a(f'v_mov_b32 v{vt1}, s7')
    a('s_mov_b64 exec, 1')
    a(f'ds_add_rtn_u32 v{vt3}, v{vt2}, v{vt1}')
    a('s_mov_b64 exec, -1')
    vpos = al('pos', 8)
    a('s_mov_b32 s7, 0')
    for j in range(8):
        a(f'v_mbcnt_lo_u32_b32 v{vpos+j}, s{44+2*j}, 0'); a(f'v_mbcnt_hi_u32_b32 v{vpos+j}, s{45+2*j}, v{vpos+j}')
        if j: a(f'v_add_u32 v{vpos+j}, s7, v{vpos+j}')
        if j < 7:
            a(f's_bcnt1_i32_b64 s6, s[{44+2*j}:{45+2*j}]'); a('s_add_u32 s7, s7, s6')
    a('s_waitcnt lgkmcnt(0)')
    a(f'v_readfirstlane_b32 s7, v{vt3}')
    stamp('t8_atom')
    for j in range(8):
        a(f'v_add_u32 v{vpos+j}, s7, v{vpos+j}')
        a(f'v_min_u32 v{vpos+j}, 64, v{vpos+j}')
        a(f'v_lshlrev_b32 v{vpos+j}, 2, v{vpos+j}')
    for j in range(8):
        a(f's_mov_b64 exec, s[{44+2*j}:{45+2*j}]')
        a(f'ds_write_b32 v{vpos+j}, v{vk+j} offset:{L_CL}')
    a('s_mov_b64 exec, -1')
    vc = al('cand'); vrank = al('rank'); vall = al('call', 64, 4)
    a(f'v_lshlrev_b32 v{vt2}, 2, v{vlane}'); a(f'v_mov_b32 v{vt0}, {L_CL}'); a(f'v_mov_b32 v{vrank}, 0'); a(f'v_mov_b32 v{vt3}, {L_CNT}')
    a('s_waitcnt lgkmcnt(0)')
    a('s_barrier')
    stamp('t8_bar2')
    a(f's_cmp_eq_u32 {S_W8}, 0'); a('s_cbranch_scc0 L_t_norank')
    a(f'v_and_b32 v{vt2}, 15, v{vlane}'); a(f'v_lshlrev_b32 v{vt2}, 2, v{vt2}')
    a(f'v_lshrrev_b32 v{vw}, 4, v{vlane}'); a(f'v_lshlrev_b32 v{vw}, 4, v{vw}')
    a(f'ds_read_b32 v{vt1}, v{vt3}')
    a(f'ds_read_b32 v{vc}, v{vt2} offset:{L_CL}')
    a(f'ds_read_b128 {vr(vall,4)}, v{vw} offset:{L_CL}')
    a('s_waitcnt lgkmcnt(0)')
    a(f'v_readfirstlane_b32 s44, v{vt1}')
    for j in range(4): a(f'v_cmp_gt_u32 s[{46+2*j}:{47+2*j}], v{vall+j}, v{vc}')
    for j in range(4): a(f'v_addc_co_u32 v{vrank}, vcc, 0, v{vrank}, s[{46+2*j}:{47+2*j}]')
    for sw in ('16', '32'):
        a(f'v_mov_b32 v{vt1}, v{vrank}'); a(f'v_permlane{sw}_swap_b32 v{vt1}, v{vrank}'); a(f'v_add_u32 v{vrank}, v{vrank}, v{vt1}')
    a('s_cmp_le_u32 s44, 16'); a('s_cbranch_scc0 L_t_n32')
    a('s_mov_b64 exec, 0xffff')
    a(f'v_lshlrev_b32 v{vt0}, 2, v{vrank}')
    a(f'v_cmp_gt_u32 vcc, 8, v{vrank}')
    a('s_and_b64 exec, exec, vcc')
    a(f'ds_write_b32 v{vt0}, v{vc} offset:{L_SEL}')
    a('s_mov_b64 exec, -1')
    a('s_branch L_t_norank')
    a.label('L_t_n32')
    a(f'v_mov_b32 v{vrank}, 0')
    a(f'v_and_b32 v{vt2}, 31, v{vlane}'); a(f'v_lshlrev_b32 v{vt2}, 2, v{vt2}')
    a(f'v_lshrrev_b32 v{vw}, 5, v{vlane}'); a(f'v_lshlrev_b32 v{vw}, 6, v{vw}')
    a(f'ds_read_b32 v{vt1}, v{vt3}')
    a(f'ds_read_b32 v{vc}, v{vt2} offset:{L_CL}')
    for q in range(4): a(f'ds_read_b128 {vr(vall+4*q,4)}, v{vw} offset:{L_CL + 16*q}')
    a('s_waitcnt lgkmcnt(0)')
    a(f'v_readfirstlane_b32 s44, v{vt1}')
    def rank_group(base):
        for j in range(4): a(f'v_cmp_gt_u32 s[{46+2*j}:{47+2*j}], v{base+j}, v{vc}')
        for j in range(4): a(f'v_addc_co_u32 v{vrank}, vcc, 0, v{vrank}, s[{46+2*j}:{47+2*j}]')
    for q in range(4): rank_group(vall + 4*q)
    a(f'v_mov_b32 v{vt1}, v{vrank}'); a(f'v_permlane32_swap_b32 v{vt1}, v{vrank}'); a(f'v_add_u32 v{vrank}, v{vrank}, v{vt1}')
    a('s_cmp_le_u32 s44, 32'); a('s_cbranch_scc0 L_t_slow')
    a('s_mov_b32 exec_hi, 0')
    a(f'v_lshlrev_b32 v{vt0}, 2, v{vrank}')
    a(f'v_cmp_gt_u32 vcc, 8, v{vrank}')
    a('s_and_b64 exec, exec, vcc')
    a(f'ds_write_b32 v{vt0}, v{vc} offset:{L_SEL}')
    a('s_mov_b64 exec, -1')
    a('s_branch L_t_norank')
    a.label('L_t_slow')
    a('s_cmp_gt_u32 s44, 64'); a('s_cbranch_scc1 L_f_fallback')
    a(f'v_lshlrev_b32 v{vt2}, 2, v{vlane}'); a(f'v_mov_b32 v{vrank}, 0')
    a(f'ds_read_b32 v{vc}, v{vt2} offset:{L_CL}')
    for q in range(16): a(f'ds_read_b128 {vr(vall+4*q,4)}, v{vt0} offset:{16*q}')
    for q in range(16):
        if q >= 8:
            a(f's_cmp_le_u32 s44, {4*q}'); a('s_cbranch_scc1 L_f_rankd')
        a(f's_waitcnt lgkmcnt({min(15, 15-q)})')
        rank_group(vall + 4*q)
    a.label('L_f_rankd')
    a('s_nop 0')
    stamp('t8_rank')
    a(f'v_lshlrev_b32 v{vt0}, 2, v{vrank}')
    a(f'v_cmp_gt_u32 vcc, 8, v{vrank}')
    a('s_and_saveexec_b64 s[38:39], vcc')
    a(f'ds_write_b32 v{vt0}, v{vc} offset:{L_SEL}')
    a('s_mov_b64 exec, -1')
    a('s_branch L_t_norank')
    a.label('L_f_fallback')
    a('s_waitcnt lgkmcnt(0)')
    a('s_and_b32 s6, s2, 7'); a('s_lshl_b32 s6, s6, 12'); a(f's_add_u32 s6, s6, {WS_KEY}')
    a(f'v_lshl_add_u32 v{vt0}, v{vlane}, 6, s6')
    for q in range(4): a(f'global_load_dwordx4 {vr(vall+32+4*q,4)}, v{vt0}, {P_WS} offset:{16*q} sc1')
    a(f'v_lshlrev_b32 v{vt2}, 5, v{vlane}'); a(f'v_sub_u32 v{vt2}, 2047, v{vt2}')
    a('s_waitcnt vmcnt(0)')
    for q in range(16):
        a(f'v_subrev_u32 v{vt0}, {2*q}, v{vt2}'); a(f'v_subrev_u32 v{vt1}, {2*q+1}, v{vt2}')
        a(f'v_lshl_or_b32 v{vall+2*q}, v{vall+32+q}, 16, v{vt0}')
        a(f'v_and_or_b32 v{vall+2*q+1}, v{vall+32+q}, {S_MASKHI}, v{vt1}')
    a('s_mov_b32 s44, 0')
    a.label('L_f_fb')
    a(f'v_max_u32 v{vm}, v{vall}, v{vall+1}')
    for q in range(2, 32, 2): a(f'v_max3_u32 v{vm}, v{vm}, v{vall+q}, v{vall+q+1}')
    xlane1(vm, vm+1, 'max_u32', full=True)
    for q in range(32):
        a(f'v_cmp_ne_u32 vcc, v{vall+q}, v{vm}'); a(f'v_cndmask_b32 v{vall+q}, 0, v{vall+q}, vcc')
    a('s_lshl_b32 s6, s44, 2'); a(f's_add_u32 s6, s6, {L_SEL}'); a(f'v_mov_b32 v{vt0}, s6')
    a('s_mov_b64 exec, 1'); a(f'ds_write_b32 v{vt0}, v{vm}'); a('s_mov_b64 exec, -1')
    a('s_add_u32 s44, s44, 1'); a('s_cmp_lt_u32 s44, 8'); a('s_cbranch_scc1 L_f_fb')
    a.label('L_t_norank')
    a('s_waitcnt lgkmcnt(0)')
    a('s_barrier')
    a('s_branch L_t_join')
    a.label('L_t_roleB')
    out_store_and_flag('b')
    if not cfg.dmac: gen_dma(a, R, cfg, env)
    a('s_barrier')
    a('s_barrier')
    a('s_barrier')
    a.label('L_t_join')
    for n in ('k','koff','m','w8m','own','rk','cand','rank','call','pos'): R.release(n)
    vsel = al('sel'); vidx = al('idx')
    a(f'v_lshlrev_b32 v{vt0}, 2, v{vtk}')
    a(f'ds_read_b32 v{vsel}, v{vt0} offset:{L_SEL}')
    vB = al('B', 32, 4); vba = al('ba')
    a(f'v_lshrrev_b32 v{vt0}, 4, v{vlane}'); a(f'v_lshlrev_b32 v{vt0}, 3, v{vt0}')
    a(f'v_bfe_u32 v{vt1}, v{vlane}, 2, 2'); a(f'v_add_u32 v{vt0}, v{vt0}, v{vt1}')
    a(f'v_and_b32 v{vt1}, 3, v{vlane}')
    a('s_waitcnt lgkmcnt(0)')
    a(f'v_and_b32 v{vidx}, 0xffff, v{vsel}'); a(f'v_sub_u32 v{vidx}, 2047, v{vidx}')
    stamp('top8')
    def bfrags(role):
        if role == 1:
            a(f'v_lshlrev_b32 v{vba}, 6, v{vbrow}'); a(f'v_lshl_add_u32 v{vba}, v{vbcol}, 3, v{vba}')
            a(f's_lshl_b32 s6, {S_W8}, 12'); a(f's_add_u32 s6, s6, {L_BIG}')
            a(f'v_add_u32 v{vba}, s6, v{vba}')
            for kk in range(2):
                for nt in range(4):
                    off = kk*2048 + (nt>>1)*32768 + (nt&1)*32
                    d = vB + 4*(kk*4+nt)
                    a(f'ds_read_b64_tr_b16 {vr(d,2)}, v{vba} offset:{off}')
                    a(f'ds_read_b64_tr_b16 {vr(d+2,2)}, v{vba} offset:{off + 4*64}')
        else:
            a(f'v_lshlrev_b32 v{vba}, 5, v{vbrow}'); a(f'v_lshl_add_u32 v{vba}, v{vbcol}, 3, v{vba}')
            a(f's_mul_i32 s6, {S_W8}, {7*32*32}'); a(f's_add_u32 s6, s6, {L_BIG}')
            a(f'v_add_u32 v{vba}, s6, v{vba}')
            for kk in range(7):
                d = vB + 4*kk
                a(f'ds_read_b64_tr_b16 {vr(d,2)}, v{vba} offset:{kk*1024}')
                a(f'ds_read_b64_tr_b16 {vr(d+2,2)}, v{vba} offset:{kk*1024 + 4*32}')
    vbrow = al('brow'); vbcol = al('bcol')
    a(f'v_mov_b32 v{vbrow}, v{vt0}'); a(f'v_mov_b32 v{vbcol}, v{vt1}')
    stamp('f3_ok')
    vst = al('stat'); vm2 = al('m2', 2, 2); vrs = al('rs', 2, 2)
    vsto = al('stato')
    a(f'v_lshlrev_b32 v{vsto}, 2, v{vidx}'); a(f'v_add_u32 v{vsto}, {WS_STAT}, v{vsto}')
    a(f's_cmp_eq_u32 {S_ROLE}, 1'); a('s_cbranch_scc0 L_f2')
    vh = al('h', 8, 4); vd = al('d', 8, 4); vhf = al('hf', 8, 2); vA = al('A', 8, 4); acc = al('acc', 16, 4)
    a(f'v_lshrrev_b32 v{vt0}, 4, v{vlane}'); a(f'v_lshlrev_b32 v{vt0}, 4, v{vt0}')
    a(f'v_lshl_add_u32 v{vt0}, v{vidx}, 10, v{vt0}')
    a(f's_lshl_b32 s6, {S_W8}, 7'); a(f's_add_u32 s6, s6, {WS_H}')
    vhoff = al('hoff')
    a(f'v_add_u32 v{vhoff}, s6, v{vt0}')
    def issue_h():
        a(f'global_load_dword v{vst}, v{vsto}, {P_WS} sc1')
        a(f'global_load_dwordx4 {vr(vh,4)}, v{vhoff}, {P_WS} sc1')
        a(f'global_load_dwordx4 {vr(vh+4,4)}, v{vhoff}, {P_WS} offset:64 sc1')
    issue_h()
    a('s_waitcnt vmcnt(3)')
    a('s_barrier')
    stamp('t4')
    bfrags(1)
    poll_loop(issue_h, [vst] + list(range(vh, vh+8)), vt1, 'h', first_issued=True, nl=3)
    R.release('hoff')
    stamp('h_got')
    a(f'v_lshlrev_b32 v{vm2}, 16, v{vst}'); a(f'v_and_b32 v{vt1}, {S_MASKHI}, v{vst}'); a(f'v_rcp_f32 v{vrs}, v{vt1}')
    vd2 = al('d2', 8, 2); vhf2 = al('hf2', 8, 2)
    prs = ((vhf, vd), (vhf2, vd2))
    for kk, (hf, dd) in enumerate(prs): unpack8(hf, vh+4*kk)
    for kk, (hf, dd) in enumerate(prs):
        for j in range(4): a(f'v_pk_add_f32 {vr(dd+2*j,2)}, {vr(hf+2*j,2)}, {vr(vm2,2)} op_sel_hi:[1,0] neg_lo:[0,1] neg_hi:[0,1]')
    for kk, (hf, dd) in enumerate(prs): cvt4(vA+4*kk, dd)
    for kk, (hf, dd) in enumerate(prs): unpack8(dd, vA+4*kk)
    for kk, (hf, dd) in enumerate(prs):
        for j in range(4): a(f'v_pk_mul_f32 {vr(dd+2*j,2)}, {vr(dd+2*j,2)}, {vr(vrs,2)} op_sel_hi:[1,0]')
    for kk, (hf, dd) in enumerate(prs): cvt4(vA+4*kk, dd)
    R.release('d2'); R.release('hf2')
    a(f's_lshl_b32 s6, {S_W8}, 11'); a(f's_add_u32 s6, s6, {L_PX}')
    a(f'v_lshl_add_u32 v{vt0}, v{vlane}, 4, s6')
    a('s_waitcnt lgkmcnt(0)')
    stamp('f1_norm')
    for kk in range(2):
        for nt in range(4):
            a(f'v_mfma_f32_16x16x32_bf16 {vr(acc+4*nt,4)}, {vr(vA+4*kk,4)}, {vr(vB+4*(kk*4+nt),4)}, {"0" if kk == 0 else vr(acc+4*nt,4)}')
    stamp('f1_mfma')
    a('s_mov_b32 exec_hi, 0')
    for nt in range(4): a(f'ds_write_b128 v{vt0}, {vr(acc+4*nt,4)} offset:{nt*512}')
    a('s_mov_b32 exec_hi, -1')
    gp = al('gp', 16, 4)
    a(f's_lshr_b32 s6, {S_W8}, 1'); a('s_lshl_b32 s6, s6, 9'); a(f's_and_b32 s7, {S_W8}, 1'); a('s_lshl_b32 s7, s7, 8')
    a('s_add_u32 s6, s6, s7'); a(f's_add_u32 s6, s6, {L_PX}')
    a(f'v_lshl_add_u32 v{vt2}, v{vlane}, 2, s6')
    a('s_waitcnt lgkmcnt(0)')
    a('s_barrier')
    stamp('f1_bar')
    a(f's_cmp_eq_u32 {S_W8}, 5'); a('s_cbranch_scc0 L_f1_nof3b')
    a(f's_lshl_b32 s6, {S_P}, 4'); a(f's_add_u32 s6, s6, {WS_F3B}')
    a(f'v_lshl_add_u32 v{vt0}, v{vlane}, 12, s6'); a(f'v_mov_b32 v{vt1}, {S_TAG}')
    a('s_mov_b64 exec, 0xff')
    a(f'global_store_dword v{vt0}, v{vt1}, {P_WS} sc1')
    a('s_mov_b64 exec, -1')
    a.label('L_f1_nof3b')
    a(f's_cmp_ge_u32 {S_W8}, 4'); a('s_cbranch_scc1 L_fin')
    for w in range(0, 8, 2): a(f'ds_read2st64_b32 {vr(gp+w,2)}, v{vt2} offset0:{w*8} offset1:{(w+1)*8}')
    for w in range(0, 8, 2): a(f'ds_read2st64_b32 {vr(gp+8+w,2)}, v{vt2} offset0:{w*8+4} offset1:{(w+1)*8+4}')
    vsa1 = al('hsa')
    a(f'v_and_b32 v{vsa1}, 3, v{vlane}'); a(f'v_lshlrev_b32 v{vsa1}, 5, v{vsa1}')
    a(f'v_lshrrev_b32 v{vt0}, 2, v{vlane}'); a(f'v_lshl_add_u32 v{vsa1}, v{vt0}, 1, v{vsa1}')
    a(f's_lshl_b32 s6, {S_W8}, 7'); a(f's_lshl_b32 s7, {g["S_FC"]}, 9'); a('s_add_u32 s6, s6, s7'); a(f's_add_u32 s6, s6, {WS_HID}')
    a(f'v_add_u32 v{vsa1}, s6, v{vsa1}')
    a('s_waitcnt lgkmcnt(4)' if not cfg.stamps else 's_waitcnt lgkmcnt(0)')
    for (x, y) in ((0,1),(2,3),(4,5),(6,7),(0,2),(4,6),(0,4)): a(f'v_add_f32 v{gp+x}, v{gp+x}, v{gp+y}')
    a('s_waitcnt lgkmcnt(0)')
    for (x, y) in ((0,1),(2,3),(4,5),(6,7),(0,2),(4,6),(0,4)): a(f'v_add_f32 v{gp+8+x}, v{gp+8+x}, v{gp+8+y}')
    stamp('f1_red')
    a(f'v_cvt_pk_bf16_f32 v{gp+1}, v{gp}, v{gp+8}')
    a(f'v_lshlrev_b32 v{gp}, 16, v{gp+1}')
    a(f'v_and_b32 v{gp+8}, {S_MASKHI}, v{gp+1}')
    a(f'v_mul_f32 v{gp+2}, {hx(f2u(-1.4426950408889634))}, v{gp}')
    a(f'v_exp_f32 v{gp+2}, v{gp+2}')
    a(f'v_add_f32 v{gp+2}, 1.0, v{gp+2}')
    a(f'v_rcp_f32 v{gp+2}, v{gp+2}')
    a(f'v_mul_f32 v{gp}, v{gp}, v{gp+2}')
    a(f'v_cvt_pk_bf16_f32 v{gp}, v{gp}, v{gp}')
    a(f'v_lshlrev_b32 v{gp}, 16, v{gp}')
    a(f'v_mul_f32 v{gp}, v{gp}, v{gp+8}')
    a(f'v_mov_b32_dpp v{gp+1}, v{gp} row_shl:4 row_mask:0xf bank_mask:0xf')
    a(f'v_cvt_pk_bf16_f32 v{gp}, v{gp}, v{gp+1}')
    stamp('f1_silu')
    a('s_mov_b32 exec_lo, 0x0f0f0f0f'); a('s_mov_b32 exec_hi, 0x0f0f0f0f')
    for rep in range(RH):
        a(f'global_store_dword v{vsa1}, v{gp}, {P_WS} sc1')
        if rep < RH - 1: a(f'v_add_u32 v{vsa1}, {HID_SZ}, v{vsa1}')
    a('s_mov_b64 exec, -1')
    stamp('hid_stored')
    R.release('hsa')
    a('s_branch L_fin')
    for n in ('h','d','hf','A','acc','gp'): R.release(n)
    a.label('L_f2')
    vA = al('A2', 28, 4); vho = al('ho'); acc = al('acc2', 4, 4); vhv = al('hv'); vst2 = al('st2'); vsel2 = al('sel2'); vix2 = al('ix2')
    a(f'v_lshrrev_b32 v{vt0}, 4, v0'); a(f'v_and_b32 v{vt0}, 7, v{vt0}'); a(f'v_lshlrev_b32 v{vt0}, 2, v{vt0}')
    a(f'ds_read_b32 v{vsel2}, v{vt0} offset:{L_SEL}')
    a('s_waitcnt lgkmcnt(0)')
    a(f'v_and_b32 v{vix2}, 0xffff, v{vsel2}'); a(f'v_sub_u32 v{vix2}, 2047, v{vix2}')
    a(f's_lshl_b32 s7, {g["S_FC"]}, 5')
    a(f'v_and_b32 v{vt0}, 15, v{vlane}'); a(f'v_lshlrev_b32 v{vt0}, 1, v{vt0}')
    a(f'v_lshl_add_u32 v{vho}, v{vix2}, 10, v{vt0}'); a(f'v_add_u32 v{vho}, s7, v{vho}')
    vha = al('ha'); vsa = al('sa')
    a(f'v_and_b32 v{vha}, 0xfffffffc, v{vho}'); a(f'v_add_u32 v{vha}, {WS_H}, v{vha}')
    a(f'v_lshlrev_b32 v{vsa}, 2, v{vix2}'); a(f'v_add_u32 v{vsa}, {WS_STAT}, v{vsa}')
    def issue_h2():
        a(f'global_load_dword v{vhv}, v{vha}, {P_WS} sc1')
        a(f'global_load_dword v{vst2}, v{vsa}, {P_WS} sc1')
    poll_loop(issue_h2, [vhv, vst2], vt0, 'h2')
    a(f'v_and_b32 v{vt0}, 1, v{vlane}'); a(f'v_cmp_eq_u32 vcc, 1, v{vt0}')
    a(f'v_lshrrev_b32 v{vt0}, 16, v{vhv}'); a(f'v_and_b32 v{vhv}, 0xffff, v{vhv}')
    a(f'v_cndmask_b32 v{vhv}, v{vhv}, v{vt0}, vcc')
    R.release('ha'); R.release('sa')
    publish_f3b('f2')
    bfrags(2)
    vf3b = al('f3b'); vf3bo = al('f3bo')
    a('s_and_b32 s6, s2, 7'); a('s_lshl_b32 s6, s6, 12'); a(f's_add_u32 s6, s6, {WS_F3B}')
    a(f'v_lshrrev_b32 v{vf3bo}, 3, v{vidx}'); a(f'v_lshl_add_u32 v{vf3bo}, v{vf3bo}, 4, s6')
    vrsig = al('rsig'); vxn = al('xn')
    a(f'v_lshrrev_b32 v{vt0}, 16, v{vsel2}')
    a(f'v_cmp_lt_u32 vcc, 0x7fff, v{vt0}')
    a(f'v_and_b32 v{vt2}, 0x7fff, v{vt0}'); a(f'v_xor_b32 v{vt3}, 0xffff, v{vt0}')
    a(f'v_cndmask_b32 v{vt0}, v{vt3}, v{vt2}, vcc'); a(f'v_lshlrev_b32 v{vt0}, 16, v{vt0}')
    a(f'v_mul_f32 v{vt0}, {hx(f2u(-1.4426950408889634))}, v{vt0}')
    a(f'v_exp_f32 v{vt0}, v{vt0}'); a(f'v_add_f32 v{vt0}, 1.0, v{vt0}'); a(f'v_rcp_f32 v{vt0}, v{vt0}')
    a(f'v_cvt_pk_bf16_f32 v{vt0}, v{vt0}, v{vt0}'); a(f'v_lshlrev_b32 v{vrsig}, 16, v{vt0}')
    a(f'v_lshlrev_b32 v{vhv}, 16, v{vhv}')
    a(f'v_lshlrev_b32 v{vt2}, 16, v{vst2}'); a(f'v_and_b32 v{vt3}, {S_MASKHI}, v{vst2}'); a(f'v_rcp_f32 v{vt3}, v{vt3}')
    a(f'v_sub_f32 v{vt2}, v{vhv}, v{vt2}'); a(f'v_cvt_pk_bf16_f32 v{vt2}, v{vt2}, v{vt2}'); a(f'v_lshlrev_b32 v{vt2}, 16, v{vt2}')
    a(f'v_mul_f32 v{vt2}, v{vt2}, v{vt3}'); a(f'v_cvt_pk_bf16_f32 v{vt2}, v{vt2}, v{vt2}'); a(f'v_lshlrev_b32 v{vxn}, 16, v{vt2}')
    vhi = al('hio'); vpw = al('pw'); vpr = al('pr')
    a('s_and_b32 s6, s2, 3'); a(f's_mul_i32 s6, s6, {HID_SZ}'); a(f's_mul_i32 s7, {S_W8}, {7*512}'); a('s_add_u32 s6, s6, s7'); a(f's_add_u32 s6, s6, {WS_HID}')
    a(f'v_lshrrev_b32 v{vt0}, 5, v{vlane}'); a(f'v_lshlrev_b32 v{vt0}, 8, v{vt0}')
    a(f'v_lshrrev_b32 v{vt1}, 2, v{vtk}'); a(f'v_lshl_add_u32 v{vt0}, v{vt1}, 7, v{vt0}')
    a(f'v_and_b32 v{vt1}, 3, v{vtk}'); a(f'v_lshl_add_u32 v{vt0}, v{vt1}, 5, v{vt0}')
    a(f'v_bfe_u32 v{vt1}, v{vlane}, 4, 1'); a(f'v_lshl_add_u32 v{vt0}, v{vt1}, 4, v{vt0}')
    a(f'v_add_u32 v{vhi}, s6, v{vt0}')
    a(f's_lshl_b32 s6, {S_W8}, 9'); a(f's_add_u32 s6, s6, {L_PX}')
    a(f'v_lshl_add_u32 v{vpw}, v{vlane}, 4, s6')
    a(f'v_lshrrev_b32 v{vt0}, 4, v0')
    a(f'v_lshrrev_b32 v{vt1}, 2, v{vt0}'); a(f'v_lshlrev_b32 v{vt1}, 8, v{vt1}')
    a(f'v_and_b32 v{vt0}, 3, v{vt0}'); a(f'v_lshl_add_u32 v{vt1}, v{vt0}, 2, v{vt1}')
    a(f'v_and_b32 v{vt0}, 15, v{vlane}'); a(f'v_lshl_add_u32 v{vt1}, v{vt0}, 4, v{vt1}')
    a(f'v_add_u32 v{vpr}, {L_PX}, v{vt1}')
    a(f's_cmp_ge_u32 {S_W8}, 2'); a('s_cbranch_scc1 L_f2_nof3b')
    poll_loop(lambda: a(f'global_load_dword v{vf3b}, v{vf3bo}, {P_WS} sc1'), [vf3b], vt0, 'f3b', cmp_tag=True)
    a.label('L_f2_nof3b')
    def issue_hid():
        for kk in range(7): a(f'global_load_dwordx4 {vr(vA+4*kk,4)}, v{vhi}, {P_WS} offset:{kk*512} sc1')
    if cfg.probe: poll_loop(lambda: a(f'global_load_dwordx4 {vr(vA+24,4)}, v{vhi}, {P_WS} offset:{6*512} sc1'), list(range(vA+24, vA+28)), vt0, 'hidp')
    poll_loop(issue_hid, list(range(vA, vA+28)), vt0, 'hid', nl=7)
    stamp('hid_got')
    acc2 = al('acc2b', 4, 4)
    for kk in range(7):
        d = acc if kk % 2 == 0 else acc2
        a(f'v_mfma_f32_16x16x32_bf16 {vr(d,4)}, {vr(vA+4*kk,4)}, {vr(vB+4*kk,4)}, {"0" if kk < 2 else vr(d,4)}')
    a(f'v_pk_add_f32 {vr(acc,2)}, {vr(acc,2)}, {vr(acc2,2)}'); a(f'v_pk_add_f32 {vr(acc+2,2)}, {vr(acc+2,2)}, {vr(acc2+2,2)}')
    a('s_mov_b32 exec_hi, 0')
    a(f'ds_write_b128 v{vpw}, {vr(acc,4)}')
    a('s_mov_b32 exec_hi, -1')
    a('s_waitcnt lgkmcnt(0)')
    a('s_barrier')
    a(f's_cmp_ge_u32 {S_W8}, 2'); a('s_cbranch_scc1 L_fin')
    fp = al('fp', 8, 4)
    for w in range(0, 8, 2): a(f'ds_read2st64_b32 {vr(fp+w,2)}, v{vpr} offset0:{w*2} offset1:{(w+1)*2}')
    a('s_waitcnt lgkmcnt(0)')
    for (x, y) in ((0,1),(2,3),(4,5),(6,7),(0,2),(4,6),(0,4)): a(f'v_add_f32 v{fp+x}, v{fp+x}, v{fp+y}')
    def rb(r): a(f'v_cvt_pk_bf16_f32 v{r}, v{r}, v{r}'); a(f'v_lshlrev_b32 v{r}, 16, v{r}')
    rb(fp)
    a(f'v_mul_f32 v{fp}, v{fp}, v{vrsig}'); rb(fp)
    a(f'v_add_f32 v{fp}, v{fp}, v{vxn}'); rb(fp)
    a(f'v_add_f32 v{fp}, v{fp}, v{vhv}')
    a(f'v_cvt_pk_bf16_f32 v{fp}, v{fp}, v{fp}')
    a(f'global_store_short v{vho}, v{fp}, {P_OUT}' + ('' if cfg.finplain else ' sc1'))
    stamp('final')

def finish(a, R, cfg):
    a.label('L_fin')
    if cfg.stamps and cfg.rt == 1:
        n = len(cfg.stamp_names)
        a('s_memrealtime s[68:69]')
        a('s_waitcnt lgkmcnt(0)')
        a('v_mov_b32 v2, 0')
        a('s_mov_b64 exec, 1')
        a('s_not_b32 s70, s70')
        for i in range(n):
            a(f'v_mov_b32 v3, s{70+2*i}')
            a(f'global_atomic_umax v2, v3, s[34:35] offset:{4*i}')
        a('v_mov_b32 v3, s68')
        a(f'global_atomic_umax v2, v3, s[34:35] offset:60')
        a('s_mov_b64 exec, -1')
    elif cfg.stamps:
        n = len(cfg.stamp_names)
        a(f'{cfg.tinstr} s[{70+2*n}:{71+2*n}]') if 71+2*n <= 101 else None
        if 71+2*n <= 101: n += 1; cfg.stamp_names.append('END')
        a('s_waitcnt lgkmcnt(0)')
        a('s_lshl_b32 s6, s2, 3'); a('s_add_u32 s6, s6, s4'); a('s_lshl_b32 s6, s6, 8'); a(f's_add_u32 s6, s6, {WS_DBG + 0x100000}')
        a('v_mov_b32 v2, s6')
        a('s_mov_b64 exec, 1')
        for i in range(n):
            a(f'v_mov_b32 v3, s{70+2*i}')
            a(f'global_store_dword v2, v3, s[36:37] offset:{4*i}')
        a('s_mov_b64 exec, -1')
    a('s_cmp_eq_u32 s2, 0'); a('s_cbranch_scc0 L_end')
    a('s_cmp_eq_u32 s4, 0'); a('s_cbranch_scc0 L_end')
    a(f'v_mov_b32 v2, {WS_EPOCH}'); a('v_mov_b32 v3, s5')
    a('s_mov_b64 exec, 1')
    a('global_store_dword v2, v3, s[36:37]')
    a.label('L_end')
    a('s_endpgm')
    body = a.text()
    nv = 256
    hdr = open('cdna_kernels/' + NAME + '.s.ref').read().split('; Override launch geometry')[0]
    s = hdr
    s += f'; @launch grid=(256,1,1) block=(512,1,1) lds={LDS_TOTAL}\n'
    s += '.amdgcn_target "amdgcn-amd-amdhsa--gfx950"\n.text\n'
    s += f'.globl {NAME}_kernel\n.p2align 8\n.type {NAME}_kernel,@function\n{NAME}_kernel:\n'
    s += body
    s += f'''.section .rodata,"a"
.p2align 6
.amdhsa_kernel {NAME}_kernel
  .amdhsa_next_free_vgpr {nv}
  .amdhsa_next_free_sgpr 102
  .amdhsa_accum_offset {nv}
  .amdhsa_group_segment_fixed_size 0
  .amdhsa_kernarg_size 120
  .amdhsa_user_sgpr_count 2
  .amdhsa_user_sgpr_kernarg_segment_ptr 1
  .amdhsa_system_sgpr_workgroup_id_x 1
.end_amdhsa_kernel
'''
    cfg.maxv = R.maxused
    return s

if __name__ == '__main__':
    cfg = Cfg()
    out = sys.argv[1]
    for arg in sys.argv[2:]:
        k, v = arg.split('=')
        setattr(cfg, k, int(v) if v.lstrip('-').isdigit() else v)
    open(out, 'w').write(gen(cfg))
    import os
    if cfg.stamps: open(out + '.stamps', 'w').write('\n'.join(cfg.stamp_names))
    elif os.path.exists(out + '.stamps'): os.remove(out + '.stamps')
    print('max vgpr', cfg.maxv, 'LDS', LDS_TOTAL)
```

```python
import sys, struct, math
from asmlib import *

NAME = "sequential_preLN__ssm_conv_s4d__moe_arch_mod__prompt"
def f2u(x): return struct.unpack('<I', struct.pack('<f', x))[0]
def f32(x): return struct.unpack('<f', struct.pack('<f', x))[0]
def hx(x): return '0x%08x' % (x & 0xffffffff)

WS_EPOCH = 0x0
WS_F1 = 0x50000; R1 = 8
WS_F3 = 0x8000; R3 = 8
WS_F2 = 0x60000
WS_F3B = 0x58000
WS_KEY = 0x10000; RK = 8
WS_HID = 0x20000; RH = 4; HID_SZ = 56 * 512
WS_MISC = 0x10000
WS_STAT = 0x40000
WS_U = 0x100000
WS_Y = 0x300000
WS_H = 0x500000
WS_DBG = 0x800000
KC_SZ = 4160
L_KC = 0
L_UL = 16640; UL_SZ = 4608
L_TT = 25856; TT_SZ = 1536
L_RED = 28928
L_ST1 = L_RED
L_ST2 = L_RED + 512
L_RP = L_RED + 1024
L_IS = L_RED + 1280
L_WM = L_RED + 1344
L_CNT = L_RED + 1408
L_CL = L_RED + 1536
L_SEL = L_RED + 2048
L_FB = L_RED + 2560
L_D = L_RED + 4096
L_WR = L_RED + 5120
L_STG = L_RED + 6144; STG_SZ = 1536
L_BIG = L_STG + 8 * STG_SZ
FROW = 544
F_SZ = 16 * FROW; G_SZ = 48 * FROW; FG_SZ = F_SZ + G_SZ
L_PX = L_BIG + 2 * FG_SZ
PX_T = 1152; PX_C = 8 * PX_T + 64; PX_H = 2 * PX_C
L_W = L_BIG
L_RA = L_BIG + 12288
LDS_TOTAL = L_PX + 2 * PX_H
assert LDS_TOTAL <= 163840, LDS_TOTAL
assert L_BIG % 16 == 0 and L_PX % 16 == 0

SPIN_LIMIT = 1 << 15

class Cfg:
    stop = 99
    dbg = 0
    stamps = 0
    rt = 0
    codepf = 2
    wtouch = 2
    dmac = 0
    dsleep = 0
    hlate = 1
    xbar = 1
    probe = 0
    upipe = 0
    trank = 7
    plain1 = 0
    noclear = 0
    ddirect = 0
    code3 = 1
    olate = 1
    convsched = 1
    r3 = 0
    finplain = 0
    ahead3 = 8
    wprio = 1
    bwsh = 4
    noywait = 0
    pp = 0
    ppsleep = 2
    ppset = 'u,y,key,h,hid'
    ylate = 2
    prio = 0
    nokwait = 0

def gen(cfg):
    a = Asm()
    R = Regs(2, 255)
    al = R.alloc
    S_P, S_W8, S_TAG = 's3', 's4', 's5'
    P_X, P_LA, P_AI, P_CR, P_CI, P_DT, P_DS = 's[8:9]', 's[10:11]', 's[12:13]', 's[14:15]', 's[16:17]', 's[18:19]', 's[20:21]'
    P_WR, P_WG, P_WU, P_WD, P_OUT, P_DBG, P_WS = 's[24:25]', 's[26:27]', 's[28:29]', 's[30:31]', 's[32:33]', 's[34:35]', 's[36:37]'
    S_SPIN = 's60'
    S_L2E, S_L2ELO, S_I2PI, S_I2PILO, S_EPS, S_MASKHI = 's62', 's63', 's64', 's65', 's66', 's67'
    S_ONE2 = 's68'
    cfg.stamp_names = []
    cfg.tinstr = 's_memrealtime' if cfg.rt else 's_memtime'
    G1 = ['start','kernarg','issued','precomp','x_arrived','ln1_prebar','ln1_fin','u_stored','kgen_valu','B_b','B_c','B_d','conv_mfma','B_e','y_stored']
    G2 = ['start','u_stored','B_d','y_stored','y_acked','y_got','key_stored','s3_done','keys_got','top8','f3_ok','h_got','hid_stored','hid_got','final']
    G3 = ['start','keys_got','t8_max','t8_bar1','t8_atom','t8_bar2','t8_rank','top8','h_got','f1_norm','f1_mfma','f1_bar','f1_red','f1_silu','hid_stored']
    G5 = ['start','B_c','expand','B_d','c_r0','c_prew','c_postw','c_prex','c_postx','c_r3','B_e','y_stored','w_done']
    G6 = ['start','y_got','s3_h','key_stored','k_wait','keys_got','k_spin','t8_bar1','t8_bar2','top8','t4','h_got','hid_stored','hid_got','final']
    G4 = ['start','y_acked','y_got','s3_tr','s3_h','s3_part','s3_bar1','s3_fin','s3_rp','s3_bar2','key_stored','s3_done','keys_got','hid_got','final']
    sel = {1: G1, 2: G2, 3: G3, 4: G4, 5: G5, 6: G6}.get(cfg.stamps, G1)
    cfg.active = lambda name: cfg.stamps and cfg.stamps != 9 and name in sel
    def stamp(name):
        if cfg.stamps == 9:
            if name in ('start', 'x_arrived', 'u_stored', 'B_b', 'B_d', 'y_stored', 'key_stored'):
                i = len(cfg.stamp_names)
                a(f's_memrealtime s[{70+2*i}:{71+2*i}]'); cfg.stamp_names.append(name + '_rt')
                a(f's_memtime s[{72+2*i}:{73+2*i}]'); cfg.stamp_names.append(name + '_cy')
            return
        if not cfg.stamps or name not in sel: return
        i = len(cfg.stamp_names)
        assert 70 + 2 * i + 1 <= 101, 'too many stamps'
        a(f'{cfg.tinstr} s[{70+2*i}:{71+2*i}]')
        cfg.stamp_names.append(name)
    uid = [0]
    def lbl(p):
        uid[0] += 1
        return f'L_{p}_{uid[0]}'
    def if_role_a(else_lbl):
        a(f's_cmp_ge_u32 {S_W8}, 4'); a(f's_cbranch_scc1 {else_lbl}')
    def if_role_b(else_lbl):
        a(f's_cmp_lt_u32 {S_W8}, 4'); a(f's_cbranch_scc1 {else_lbl}')
    def stop_here(n):
        if cfg.stop == n:
            a('s_waitcnt vmcnt(0) lgkmcnt(0)'); a('s_branch L_fin')
            return True
        return False
    def poll_loop(issue, check_regs, tmp, name, first_issued=False, cmp_tag=False, nl=1):
        l0 = lbl(name); l1 = lbl(name + 'ok')
        pipe = cfg.pp and name in cfg.ppset.split(',')
        def check():
            if cmp_tag:
                a(f'v_xor_b32 v{tmp}, {S_TAG}, v{check_regs[0]}')
                for r in check_regs[1:]:
                    a(f'v_xor_b32 v{tmp+1}, {S_TAG}, v{r}'); a(f'v_or_b32 v{tmp}, v{tmp}, v{tmp+1}')
                a(f'v_cmp_ne_u32 vcc, 0, v{tmp}')
            else:
                rs = list(check_regs)
                a(f'v_max_u32 v{tmp}, v{rs[0]}, v{rs[1]}') if len(rs) > 1 else a(f'v_mov_b32 v{tmp}, v{rs[0]}')
                rs = rs[2:]
                while len(rs) >= 2:
                    a(f'v_max3_u32 v{tmp}, v{tmp}, v{rs[0]}, v{rs[1]}'); rs = rs[2:]
                if rs: a(f'v_max_u32 v{tmp}, v{tmp}, v{rs[0]}')
                a(f'v_cmp_eq_u32 vcc, -1, v{tmp}')
        a(f's_mov_b32 {S_SPIN}, 0')
        if not pipe:
            if first_issued:
                lf = lbl(name + 'f'); a(f's_branch {lf}')
            a.label(l0)
            issue()
            if first_issued: a.label(lf)
            a('s_waitcnt vmcnt(0)')
            check()
            a(f's_cbranch_vccz {l1}')
            a('s_mov_b64 exec, vcc')
            a(f's_add_u32 {S_SPIN}, {S_SPIN}, 1')
            a(f's_cmp_lt_u32 {S_SPIN}, {SPIN_LIMIT}')
            a(f's_cbranch_scc1 {l0}')
            a.label(l1)
            a('s_mov_b64 exec, -1')
        else:
            if not first_issued: issue()
            a('s_waitcnt vmcnt(0)')
            check()
            a(f's_cbranch_vccz {l1}')
            a('s_mov_b64 exec, vcc')
            a.label(l0)
            issue()
            a(f's_sleep {cfg.ppsleep}')
            a(f's_waitcnt vmcnt({nl * (cfg.pp - 1)})')
            check()
            l2 = lbl(name + 'd')
            a(f's_cbranch_vccz {l2}')
            a('s_mov_b64 exec, vcc')
            a(f's_add_u32 {S_SPIN}, {S_SPIN}, 1')
            a(f's_cmp_lt_u32 {S_SPIN}, {SPIN_LIMIT}')
            a(f's_cbranch_scc1 {l0}')
            a.label(l2)
            a('s_waitcnt vmcnt(0)')
            a('s_mov_b64 exec, -1')
            check()
            a(f's_cbranch_vccz {l1}')
            a('s_mov_b64 exec, vcc')
            a(f's_add_u32 {S_SPIN}, {S_SPIN}, 1')
            a(f's_cmp_lt_u32 {S_SPIN}, {SPIN_LIMIT}')
            a(f's_cbranch_scc1 {l0}')
            a.label(l1)
            a('s_mov_b64 exec, -1')

    a('s_cmp_ge_u32 s2, 256')
    a('s_cbranch_scc1 L_end')
    a('s_load_dwordx16 s[8:23], s[0:1], 0')
    a('s_load_dwordx8 s[24:31], s[0:1], 64')
    a('s_load_dwordx4 s[32:35], s[0:1], 96')
    a('s_load_dwordx2 s[36:37], s[0:1], 112')
    if cfg.stamps:
        for i in range(70, 102): a(f's_mov_b32 s{i}, 0')
    stamp('start')
    vlane = 1
    vt0 = al('t0', 2); vt1 = vt0 + 1
    vt2 = al('t2', 2); vt3 = vt2 + 1
    a(f'v_lshrrev_b32 v{vt0}, 6, v0')
    a(f'v_and_b32 v{vlane}, 63, v0')
    a('s_and_b32 s6, s2, 7'); a('s_lshl_b32 s6, s6, 5'); a('s_lshr_b32 s7, s2, 3'); a(f's_add_u32 {S_P}, s6, s7')
    a(f'v_readfirstlane_b32 {S_W8}, v{vt0}')
    S_FC = 's61'
    a('s_and_b32 s6, s2, 7'); a('s_mul_i32 s7, s6, 7'); a(f's_lshr_b32 {S_FC}, s2, 3'); a(f's_add_u32 s7, s7, {S_FC}')
    a('s_lshl_b32 s6, s6, 2'); a(f's_add_u32 s6, s6, {S_FC}'); a('s_sub_u32 s6, s6, 8')
    a('s_cmp_lt_u32 s2, 56'); a(f's_cselect_b32 {S_FC}, s7, s6')
    vjunk = al('junk'); vja = al('junkaddr')
    vtk = al('tk'); vcg = al('cg')
    a(f'v_and_b32 v{vtk}, 7, v{vlane}')
    a(f'v_lshrrev_b32 v{vcg}, 3, v{vlane}')
    vch = al('choff')
    a(f's_lshl_b32 s6, {S_W8}, 7')
    a(f'v_lshl_add_u32 v{vch}, v{vcg}, 4, s6')
    vrow = al('rowoff')
    a(f's_lshl_b32 s7, {S_P}, 13')
    a(f'v_lshl_add_u32 v{vrow}, v{vtk}, 10, s7')
    vxo = al('xoff')
    a(f'v_add_u32 v{vxo}, v{vrow}, v{vch}')
    vblk = al('blkoff')
    a(f'v_lshl_add_u32 v{vblk}, v0, 4, s7')
    vpo = al('paroff'); vpo2 = al('paroff2'); vdto = al('dtoff')
    a(f's_lshl_b32 s6, {S_P}, 9')
    a(f'v_and_b32 v{vpo}, 255, v0')
    a(f'v_lshl_add_u32 v{vpo}, v{vpo}, 1, s6')
    a(f'v_xor_b32 v{vpo2}, 128, v{vpo}')
    a(f's_lshl_b32 s6, {S_P}, 2')
    a(f'v_bfe_u32 v{vdto}, v0, 7, 1')
    a(f'v_lshl_add_u32 v{vdto}, v{vdto}, 1, s6')
    a(f'v_lshlrev_b32 v{vt0}, 4, v{vlane}')
    vx = al('x', 4, 2); vD = al('D', 4, 2)
    vla = al('la'); vai = al('ai'); vcr = al('cr'); vci = al('ci'); vcr2 = al('cr2'); vci2 = al('ci2'); vldt = al('ldt')
    a('s_waitcnt lgkmcnt(0)')
    stamp('kernarg')
    a(f'global_load_dwordx4 {vr(vx,4)}, v{vxo}, {P_X}')
    a(f's_load_dword {S_TAG}, {P_WS}, {WS_EPOCH}')
    if not cfg.ddirect:
        a(f's_cmp_eq_u32 {S_W8}, 6'); a('s_cbranch_scc0 L_s0_n6')
        a(f'global_load_dwordx4 {vr(vD,4)}, v{vt0}, {P_DS}')
        a.label('L_s0_n6')
        a(f's_cmp_eq_u32 {S_W8}, 7'); a('s_cbranch_scc0 L_s0_n7')
        a(f'global_load_dwordx4 {vr(vD,4)}, v{vt0}, {P_WR}')
        a.label('L_s0_n7')
    if cfg.xbar: a('s_barrier')
    vones = al('ones', 4, 2)
    for i in range(4): a(f'v_mov_b32 v{vones+i}, -1')
    a('s_mul_i32 s6, s2, 768'); a(f's_mul_i32 s7, {S_W8}, 96'); a('s_add_u32 s6, s6, s7'); a(f's_add_u32 s6, s6, {WS_MISC}')
    a(f'v_lshl_add_u32 v{vt1}, v{vlane}, 4, s6')
    a(f'v_add_u32 v{vt2}, {WS_U}, v{vblk}')
    a(f'v_add_u32 v{vt3}, {WS_Y}, v{vblk}')
    if cfg.noclear: a('s_mov_b64 exec, 1')
    a(f'global_store_dwordx4 v{vt2}, {vr(vones,4)}, {P_WS} sc1')
    if not cfg.ylate: a(f'global_store_dwordx4 v{vt3}, {vr(vones,4)}, {P_WS} sc1')
    a('s_mov_b64 exec, 0x3f')
    a(f'global_store_dwordx4 v{vt1}, {vr(vones,4)}, {P_WS} sc1')
    a('s_mov_b64 exec, -1')
    if_role_a('L_s0_nopar')
    a(f'global_load_ushort v{vla}, v{vpo}, {P_LA}')
    a(f'global_load_ushort v{vai}, v{vpo}, {P_AI}')
    a(f'global_load_ushort v{vcr}, v{vpo}, {P_CR}')
    a(f'global_load_ushort v{vci}, v{vpo}, {P_CI}')
    a(f'global_load_ushort v{vcr2}, v{vpo2}, {P_CR}')
    a(f'global_load_ushort v{vci2}, v{vpo2}, {P_CI}')
    a(f'global_load_ushort v{vldt}, v{vdto}, {P_DT}')
    a('s_branch L_s0_par')
    a.label('L_s0_nopar')
    a(f's_cmp_ge_u32 {S_W8}, 6'); a('s_cbranch_scc1 L_s0_parB')
    a('s_getpc_b64 s[38:39]')
    a.label('L_pc_here')
    a(f's_sub_u32 s6, {S_W8}, 4'); a('s_lshl_b32 s6, s6, 13')
    a(f'v_lshl_add_u32 v{vja}, v{vlane}, 7, s6')
    a(f'v_min_u32 v{vja}, L_end-L_pc_here, v{vja}')
    a(f'global_load_dword v{vjunk}, v{vja}, s[38:39]')
    if cfg.code3:
        a(f'v_add_u32 v{vja}, 16384, v{vja}')
        a(f'v_min_u32 v{vja}, L_end-L_pc_here, v{vja}')
        a(f'global_load_dword v{vjunk}, v{vja}, s[38:39]')
    a.label('L_s0_parB')
    a(f'global_load_ushort v{vla}, v{vpo}, {P_LA}')
    a(f'global_load_ushort v{vai}, v{vpo}, {P_AI}')
    a(f'global_load_ushort v{vldt}, v{vdto}, {P_DT}')
    a.label('L_s0_par')
    if cfg.ddirect:
        vWr = al('Wrow', 4, 2); vWa = al('Wra')
        a(f'global_load_dwordx4 {vr(vD,4)}, v{vch}, {P_DS}')
        a(f'v_lshlrev_b32 v{vWa}, 4, v{vlane}')
        a(f's_cmp_eq_u32 {S_W8}, 7'); a('s_cbranch_scc0 L_s0_n7')
        a(f'global_load_dwordx4 {vr(vWr,4)}, v{vWa}, {P_WR}')
        a.label('L_s0_n7')
    R.release('paroff'); R.release('paroff2'); R.release('dtoff')
    stamp('issued')
    a(f's_mov_b32 {S_L2E}, {hx(f2u(1.4426950408889634))}')
    a(f's_mov_b32 {S_L2ELO}, {hx(f2u(1.4426950408889634 - f32(1.4426950408889634)))}')
    i2pi = 1.0 / (2 * math.pi)
    a(f's_mov_b32 {S_I2PI}, {hx(f2u(i2pi))}')
    a(f's_mov_b32 {S_I2PILO}, {hx(f2u(i2pi - f32(i2pi)))}')
    a(f's_mov_b32 {S_EPS}, {hx(f2u(1e-5))}')
    a(f's_mov_b32 {S_MASKHI}, 0xffff0000')
    a(f's_mov_b32 {S_ONE2}, 0x3f803f80')
    vz = al('z', 4, 2)
    for i in range(4): a(f'v_mov_b32 v{vz+i}, 0')
    a(f's_cmp_eq_u32 {S_W8}, 4'); a('s_cbranch_scc0 L_s0_z1')
    a(f'v_lshlrev_b32 v{vt0}, 4, v{vlane}')
    a(f'v_add_u32 v{vt1}, {UL_SZ - 512}, v{vt0}')
    a(f'v_cmp_gt_u32 vcc, 32, v{vlane}')
    a(f'v_cndmask_b32 v{vt0}, v{vt1}, v{vt0}, vcc')
    a(f'ds_write_b128 v{vt0}, {vr(vz,4)} offset:{L_UL}')
    a.label('L_s0_z1')
    a(f's_cmp_eq_u32 {S_W8}, 5'); a('s_cbranch_scc0 L_s0_z2')
    a(f'v_lshrrev_b32 v{vt0}, 1, v{vlane}')
    a(f'v_mul_u32_u24 v{vt0}, {KC_SZ}, v{vt0}')
    a(f'v_and_b32 v{vt1}, 1, v{vlane}')
    a(f'v_lshl_add_u32 v{vt0}, v{vt1}, 4, v{vt0}')
    a('s_mov_b64 exec, 0xff')
    a(f'ds_write_b128 v{vt0}, {vr(vz,4)} offset:{L_KC + 4096}')
    a('s_mov_b64 exec, -1')
    a.label('L_s0_z2')
    if cfg.r3:
        a(f'v_lshrrev_b32 v{vt0}, 7, v0'); a(f'v_mul_u32_u24 v{vt0}, {KC_SZ}, v{vt0}')
        a(f'v_and_b32 v{vt1}, 127, v0'); a(f'v_lshl_add_u32 v{vt0}, v{vt1}, 4, v{vt0}')
        a(f'ds_write_b128 v{vt0}, {vr(vz,4)} offset:{L_KC}')
    R.release('z')

    vTw = al('Tw'); vTs = al('Ts')
    a(f'v_and_b32 v{vt0}, 15, v{vlane}')
    a(f'v_lshrrev_b32 v{vt1}, 4, v{vlane}')
    a(f's_cmp_ge_u32 {S_W8}, 4'); a('s_cbranch_scc1 L_s0_t2')
    a(f's_bitcmp1_b32 {S_W8}, 0'); a('s_cbranch_scc1 L_s0_t1')
    a(f'v_lshrrev_b32 v{vt2}, 3, v{vt0}'); a(f'v_lshlrev_b32 v{vt2}, 7, v{vt2}')
    a(f'v_and_b32 v{vt3}, 7, v{vt0}'); a(f'v_add_u32 v{vTw}, v{vt2}, v{vt3}')
    a(f'v_mov_b32 v{vTs}, 8')
    a('s_branch L_s0_td')
    a.label('L_s0_t1')
    a(f'v_lshrrev_b32 v{vt2}, 2, v{vt0}'); a(f'v_lshlrev_b32 v{vt2}, 6, v{vt2}')
    a(f'v_and_b32 v{vt3}, 3, v{vt0}'); a(f'v_add_u32 v{vt2}, v{vt2}, v{vt3}'); a(f'v_add_u32 v{vTw}, 256, v{vt2}')
    a(f'v_lshrrev_b32 v{vt2}, 1, v{vt0}'); a(f'v_lshlrev_b32 v{vt2}, 5, v{vt2}')
    a(f'v_and_b32 v{vt3}, 1, v{vt0}'); a(f'v_add_u32 v{vt2}, v{vt2}, v{vt3}'); a(f'v_add_u32 v{vt2}, 256, v{vt2}')
    a(f'v_cmp_gt_u32 vcc, 8, v{vt0}')
    a(f'v_cndmask_b32 v{vTw}, v{vt2}, v{vTw}, vcc')
    a(f'v_mov_b32 v{vt2}, 2'); a(f'v_mov_b32 v{vt3}, 4'); a(f'v_cndmask_b32 v{vTs}, v{vt2}, v{vt3}, vcc')
    a('s_branch L_s0_td')
    a.label('L_s0_t2')
    a(f'v_lshlrev_b32 v{vTw}, 4, v{vt0}'); a(f'v_add_u32 v{vTw}, 512, v{vTw}')
    a(f'v_mov_b32 v{vTs}, 1')
    a.label('L_s0_td')
    a(f'v_lshlrev_b32 v{vt1}, 2, v{vt1}')
    a(f'v_mul_u32_u24 v{vt1}, v{vt1}, v{vTs}')
    a(f'v_add_u32 v{vTw}, v{vTw}, v{vt1}')
    a(f'v_lshlrev_b32 v{vTw}, 1, v{vTw}')
    a(f'v_lshlrev_b32 v{vTs}, 1, v{vTs}')
    S_KC, S_KT = 's40', 's41'
    a(f's_lshr_b32 {S_KC}, {S_W8}, 1'); a(f's_and_b32 {S_KT}, {S_W8}, 1')
    a(f's_sub_u32 s6, {S_W8}, 4')
    a(f's_cmp_ge_u32 {S_W8}, 4'); a(f's_cselect_b32 {S_KC}, s6, {S_KC}'); a(f's_cselect_b32 {S_KT}, 2, {S_KT}')
    a(f's_mul_i32 s6, {S_KC}, {TT_SZ}'); a(f's_add_u32 s6, s6, {L_TT}')
    a(f'v_add_u32 v{vTw}, s6, v{vTw}')
    vaa = al('kaa'); vba = al('kba')
    a(f's_mul_i32 s6, {S_KC}, {FG_SZ}'); a(f's_add_u32 s6, s6, {L_BIG}')
    a(f'v_and_b32 v{vt0}, 15, v{vlane}'); a(f'v_mul_u32_u24 v{vt0}, {FROW}, v{vt0}')
    a(f'v_lshrrev_b32 v{vt1}, 4, v{vlane}'); a(f'v_lshl_add_u32 v{vt0}, v{vt1}, 4, v{vt0}')
    a(f'v_add_u32 v{vaa}, s6, v{vt0}')
    a(f's_mul_i32 s7, {S_KT}, {16*FROW}'); a('s_add_u32 s6, s6, s7'); a(f's_add_u32 s6, s6, {F_SZ}')
    a(f'v_add_u32 v{vba}, s6, v{vt0}')

    vTa = al('Ta', 10, 2); vKw = al('Kw'); vz8 = al('z8')
    vf = al('f1', 12, 2); vfo = al('f1off'); vug = al('ugoff'); vul = al('ulds')
    a(f'v_and_b32 v{vz8}, 255, v0')
    a(f'v_lshlrev_b32 v{vug}, 13, v{vz8}')
    a(f's_lshl_b32 s6, {S_P}, 5'); a(f's_add_u32 s6, s6, {WS_U}')
    a(f'v_add_u32 v{vug}, s6, v{vug}')
    a('s_and_b32 s6, s2, 7'); a('s_lshl_b32 s6, s6, 12'); a(f's_add_u32 s6, s6, {WS_F1}')
    a(f'v_lshl_add_u32 v{vfo}, v{vlane}, 4, s6')
    a(f'v_lshlrev_b32 v{vul}, 4, v{vz8}')
    if cfg.r3:
        vRa = al('Ra', 8, 2); vRw = al('Rw'); vXa = al('Xa'); vRb = al('Rb')
        vWu = al('Wu'); vWw = al('Ww')
    if_role_a('L_s0_noexp')
    if not cfg.r3:
        a(f'v_sub_u32 v{vKw}, 255, v{vz8}')
        a(f'v_lshlrev_b32 v{vKw}, 4, v{vKw}')
        a(f'v_lshlrev_b32 v{vz8}, 3, v{vz8}')
        a(f'v_add_u32 v{vz8}, 9, v{vz8}')
        tb = None
    else:
        a(f'v_and_b32 v{vz8}, 127, v0')
        a(f'v_sub_u32 v{vKw}, 255, v{vz8}')
        a(f'v_lshlrev_b32 v{vKw}, 4, v{vKw}')
        a(f'v_lshrrev_b32 v{vt1}, 7, v0')
        a(f'v_mul_u32_u24 v{vt2}, {2*KC_SZ}, v{vt1}'); a(f'v_add_u32 v{vKw}, v{vKw}, v{vt2}')
        a(f'v_mul_u32_u24 v{vt3}, {TT_SZ}, v{vt1}'); a(f'v_add_u32 v{vt3}, {L_TT}, v{vt3}')
        a(f'v_lshlrev_b32 v{vz8}, 3, v{vz8}')
        a(f'v_add_u32 v{vz8}, 9, v{vz8}')
        tb = vt3
    for k in range(10):
        d = vTa + k
        a(f'v_subrev_u32 v{d}, {k}, v{vz8}')
        a(f'v_cvt_f32_u32 v{vt0}, v{d}')
        a(f'v_cvt_pk_bf16_f32 v{vt0}, v{vt0}, v{vt0}')
        a(f'v_and_b32 v{vt0}, 0xffff, v{vt0}')
        a(f'v_subrev_u32 v{vt0}, 17024, v{vt0}')
        a(f'v_min_u32 v{d}, 128, v{d}')
        a(f'v_max_i32 v{d}, v{vt0}, v{d}')
        if tb is None: a(f'v_lshlrev_b32 v{d}, 1, v{d}')
        else: a(f'v_lshl_add_u32 v{d}, v{d}, 1, v{tb}')
    if cfg.r3:
        a(f'v_and_b32 v{vt0}, 31, v0'); a(f'v_lshlrev_b32 v{vt0}, 3, v{vt0}')
        a(f'v_bfe_u32 v{vt1}, v0, 5, 1')
        a(f'v_bfe_u32 v{vt2}, v0, 6, 1')
        a(f'v_sub_u32 v{vRw}, v{vt1}, v{vt0}'); a(f'v_add_u32 v{vRw}, 65, v{vRw}'); a(f'v_sub_u32 v{vRw}, v{vRw}, v{vt2}')
        a(f'v_sub_u32 v{vz8}, 64, v{vt2}')
        a(f'v_add_u32 v{vt2}, 512, v{vt2}')
        for e in range(8):
            d = vRa + e
            a(f'v_subrev_u32 v{vt0}, {e}, v{vRw}')
            a(f'v_lshl_add_u32 v{d}, v{vt0}, 1, v{vt2}')
            a(f'v_lshl_add_u32 v{d}, v{d}, 1, v{vt3}')
            a(f'v_cmp_le_u32 vcc, v{vt0}, v{vz8}')
            a(f'v_mov_b32 v{vt1}, {L_UL}')
            a(f'v_cndmask_b32 v{d}, v{vt1}, v{d}, vcc')
        a(f'v_lshrrev_b32 v{vRw}, 5, v0'); a(f'v_mul_u32_u24 v{vRw}, 320, v{vRw}')
        a(f'v_and_b32 v{vt0}, 31, v0'); a(f'v_lshl_add_u32 v{vRw}, v{vt0}, 4, v{vRw}'); a(f'v_add_u32 v{vRw}, {L_RA}, v{vRw}')
        a(f'v_lshrrev_b32 v{vt0}, 4, v{vlane}'); a(f'v_lshlrev_b32 v{vt0}, 3, v{vt0}')
        a(f'v_bfe_u32 v{vt1}, v{vlane}, 2, 2'); a(f'v_add_u32 v{vt0}, v{vt0}, v{vt1}'); a(f'v_lshlrev_b32 v{vXa}, 5, v{vt0}')
        a(f'v_and_b32 v{vt1}, 3, v{vlane}'); a(f'v_lshl_add_u32 v{vXa}, v{vt1}, 3, v{vXa}')
        a(f's_mul_i32 s6, {S_W8}, 3072'); a(f's_add_u32 s6, s6, {L_W}'); a(f'v_add_u32 v{vXa}, s6, v{vXa}')
        a(f'v_and_b32 v{vt0}, 15, v{vlane}'); a(f'v_and_b32 v{vt1}, 1, v{vt0}')
        a(f'v_mul_u32_u24 v{vRb}, 322, v{vt1}')
        a(f'v_lshlrev_b32 v{vt0}, 1, v{vt0}'); a(f'v_sub_u32 v{vRb}, v{vRb}, v{vt0}')
        a(f'v_lshrrev_b32 v{vt0}, 4, v{vlane}'); a(f'v_lshl_add_u32 v{vRb}, v{vt0}, 4, v{vRb}')
        a(f's_mul_i32 s6, {S_W8}, 640'); a(f's_add_u32 s6, s6, {L_RA + 128 - 96}'); a(f'v_add_u32 v{vRb}, s6, v{vRb}')
        a('s_branch L_s0_r3d')
    a.label('L_s0_noexp')
    if cfg.r3:
        a(f'v_and_b32 v{vt0}, 127, v0'); a(f'v_bfe_u32 v{vt1}, v0, 7, 1')
        a(f'v_mul_u32_u24 v{vWu}, {UL_SZ}, v{vt1}'); a(f'v_lshl_add_u32 v{vWu}, v{vt0}, 4, v{vWu}'); a(f'v_add_u32 v{vWu}, {L_UL + 16*31}, v{vWu}')
        a(f'v_mul_u32_u24 v{vWw}, 6144, v{vt1}'); a(f'v_lshl_add_u32 v{vWw}, v{vt0}, 4, v{vWw}'); a(f'v_add_u32 v{vWw}, {L_W}, v{vWw}')
        a.label('L_s0_r3d')
    R.release('z8')

    vEP = al('EP'); vISa = al('ISa'); vYa = al('Ya')
    a(f'v_lshrrev_b32 v{vt0}, 1, v0')
    a(f'v_and_b32 v{vt1}, 1, v0')
    a(f'v_mul_u32_u24 v{vEP}, {PX_C}, v{vt1}')
    a(f'v_lshrrev_b32 v{vt3}, 5, v{vt0}'); a(f'v_mul_u32_u24 v{vt3}, {PX_T}, v{vt3}'); a(f'v_add_u32 v{vEP}, v{vEP}, v{vt3}')
    a(f'v_bfe_u32 v{vt3}, v{vt0}, 1, 4'); a(f'v_lshl_add_u32 v{vEP}, v{vt3}, 4, v{vEP}')
    a(f'v_and_b32 v{vt3}, 1, v{vt0}'); a(f'v_mul_u32_u24 v{vt3}, 640, v{vt3}'); a(f'v_add_u32 v{vEP}, v{vEP}, v{vt3}')
    a(f'v_add_u32 v{vEP}, {L_PX}, v{vEP}')
    a(f'v_lshlrev_b32 v{vISa}, 2, v{vt1}')
    a(f'v_add_u32 v{vYa}, {WS_Y}, v{vblk}')
    vLA = al('LA', 4); vLB = al('LB'); vPW = al('PW')
    if_role_a('L_s0_nocv')
    a(f's_lshr_b32 s6, {S_W8}, 1'); a(f's_and_b32 s7, {S_W8}, 1')
    a(f'v_and_b32 v{vt0}, 15, v{vlane}'); a(f'v_lshrrev_b32 v{vt1}, 4, v{vlane}')
    a(f'v_and_b32 v{vt2}, 1, v{vt0}')
    a(f'v_mul_u32_u24 v{vt3}, {KC_SZ + 2}, v{vt2}')
    a(f'v_lshl_add_u32 v{vt3}, v{vt1}, 4, v{vt3}')
    a(f'v_lshlrev_b32 v{vt2}, 1, v{vt0}')
    a(f'v_sub_u32 v{vt3}, v{vt3}, v{vt2}')
    a(f's_mul_i32 s38, s6, {2*KC_SZ}'); a('s_lshl_b32 s39, s7, 8')
    a('s_sub_u32 s38, s38, s39'); a(f's_add_u32 s38, s38, {L_KC + 4064 - 64*15}')
    a(f'v_add_u32 v{vLA}, s38, v{vt3}')
    for J in range(1, 4): a(f'v_subrev_u32 v{vLA+J}, {1024*J}, v{vLA}')
    a(f'v_lshl_add_u32 v{vt2}, v{vt0}, 1, v{vt1}')
    a(f's_mul_i32 s38, s6, {UL_SZ}'); a('s_sub_u32 s38, s38, s39'); a(f's_add_u32 s38, s38, {L_UL + 480 - 192}')
    a(f'v_lshl_add_u32 v{vLB}, v{vt2}, 4, s38')
    a(f's_mul_i32 s38, s6, {PX_C}'); a(f's_mul_i32 s39, s7, {PX_H}'); a('s_add_u32 s38, s38, s39'); a(f's_add_u32 s38, s38, {L_PX}')
    a(f'v_lshrrev_b32 v{vt0}, 5, v{vlane}'); a(f'v_lshlrev_b32 v{vt0}, 7, v{vt0}')
    a(f'v_lshl_add_u32 v{vt0}, v{vlane}, 4, v{vt0}')
    a(f'v_add_u32 v{vPW}, s38, v{vt0}')
    a.label('L_s0_nocv')

    def unpack8(dst, src):
        for j in range(4):
            a(f'v_lshlrev_b32 v{dst+2*j}, 16, v{src+j}')
            a(f'v_and_b32 v{dst+2*j+1}, {S_MASKHI}, v{src+j}')
    def cvt4(dst, src, kind='bf16'):
        for j in range(4):
            a(f'v_cvt_pk_{kind}_f32 v{dst+j}, v{src+2*j}, v{src+2*j+1}')
    def xlane2(p, t, op='add_f32', pk=True):
        a(f'v_add_f32_dpp v{p}, v{p}, v{p} row_ror:8 row_mask:0xf bank_mask:0xf')
        a(f'v_add_f32_dpp v{p+1}, v{p+1}, v{p+1} row_ror:8 row_mask:0xf bank_mask:0xf')
        for sw in ('16', '32'):
            a(f'v_mov_b32 v{t}, v{p}'); a(f'v_mov_b32 v{t+1}, v{p+1}')
            a(f'v_permlane{sw}_swap_b32 v{t}, v{p}'); a(f'v_permlane{sw}_swap_b32 v{t+1}, v{p+1}')
            a(f'v_pk_add_f32 {vr(p,2)}, {vr(p,2)}, {vr(t,2)}')
    def xlane1(p, t, op, full=False):
        if full:
            for ror in (1, 2, 4):
                a(f'v_{op}_dpp v{p}, v{p}, v{p} row_ror:{ror} row_mask:0xf bank_mask:0xf')
        a(f'v_{op}_dpp v{p}, v{p}, v{p} row_ror:8 row_mask:0xf bank_mask:0xf')
        for sw in ('16', '32'):
            a(f'v_mov_b32 v{t}, v{p}')
            a(f'v_permlane{sw}_swap_b32 v{t}, v{p}')
            a(f'v_{op} v{p}, v{p}, v{t}')
    def ln_stats_partial(pk, S, t, lds_off):
        a(f'v_dot2_f32_bf16 v{S}, v{pk}, {S_ONE2}, 0')
        a(f'v_dot2_f32_bf16 v{S+1}, v{pk}, v{pk}, 0')
        for j in range(1, 4):
            a(f'v_dot2_f32_bf16 v{S}, v{pk+j}, {S_ONE2}, v{S}')
            a(f'v_dot2_f32_bf16 v{S+1}, v{pk+j}, v{pk+j}, v{S+1}')
        a(f's_lshl_b32 s6, {S_W8}, 3')
        xlane2(S, t)
        a(f'v_lshl_add_u32 v{t}, v{vtk}, 6, s6')
        a('s_mov_b64 exec, 0xff')
        a(f'ds_write_b64 v{t}, {vr(S,2)} offset:{lds_off}')
        a('s_mov_b64 exec, -1')
    def ln_finish(xf, d, S, t, lds_off, m, rs, sout):
        a(f'v_lshlrev_b32 v{t}, 6, v{vtk}')
        for j in range(4): a(f'ds_read_b128 {vr(d+4*j,4)}, v{t} offset:{lds_off + 16*j}')
        a('s_waitcnt lgkmcnt(0)')
        for j in (0, 4, 8, 12): a(f'v_pk_add_f32 {vr(d+j,2)}, {vr(d+j,2)}, {vr(d+j+2,2)}')
        a(f'v_pk_add_f32 {vr(d,2)}, {vr(d,2)}, {vr(d+4,2)}')
        a(f'v_pk_add_f32 {vr(d+8,2)}, {vr(d+8,2)}, {vr(d+12,2)}')
        a(f'v_pk_add_f32 {vr(S,2)}, {vr(d,2)}, {vr(d+8,2)}')
        inv = hx(f2u(1.0/512))
        a(f'v_mul_f32 v{S}, {inv}, v{S}')
        a(f'v_mul_f32 v{S+1}, {inv}, v{S+1}')
        a(f'v_fma_f32 v{S+1}, -v{S}, v{S}, v{S+1}')
        a(f'v_max_f32 v{S+1}, 0, v{S+1}')
        a(f'v_cvt_pk_bf16_f32 v{t}, v{S}, v{S+1}')
        a(f'v_lshlrev_b32 v{m}, 16, v{t}')
        a(f'v_and_b32 v{t}, {S_MASKHI}, v{t}')
        a(f'v_add_f32 v{t}, {S_EPS}, v{t}')
        a(f'v_cvt_pk_bf16_f32 v{t}, v{t}, v{t}')
        a(f'v_lshlrev_b32 v{t}, 16, v{t}')
        a(f'v_sqrt_f32 v{t}, v{t}')
        a(f'v_cvt_pk_bf16_f32 v{t}, v{t}, v{t}')
        a(f'v_lshlrev_b32 v{sout}, 16, v{t}')
        a(f'v_rcp_f32 v{rs}, v{sout}')
        normalize(xf, m, rs, d)
    def normalize(xf, m, rs, d):
        for j in range(4):
            a(f'v_pk_add_f32 {vr(d+2*j,2)}, {vr(xf+2*j,2)}, {vr(m,2)} op_sel_hi:[1,0] neg_lo:[0,1] neg_hi:[0,1]')
        cvt4(d+8, d)
        unpack8(d, d+8)
        for j in range(4):
            a(f'v_pk_mul_f32 {vr(d+2*j,2)}, {vr(d+2*j,2)}, {vr(rs,2)} op_sel_hi:[1,0]')
        cvt4(d+8, d)

    vxf = al('xf', 8, 2); vud = al('ud', 8, 2); vm1 = al('m1', 2, 2)
    vd = al('d', 16, 4); vS = al('S', 2, 2); vt = al('t', 2, 2); vrs = al('rs', 2, 2); vs_ = al('s', 2, 2)
    if cfg.wtouch:
        vtw = al('tw')
        a('s_and_b32 s6, s2, 7'); a('s_lshr_b32 s7, s2, 3')
        a('s_mul_i32 s38, s6, 448'); a('s_and_b32 s38, s38, 0xffffff80')
        a(f's_mul_i32 s39, s7, {16*3584}'); a('s_add_u32 s38, s38, s39')
        a(f'v_lshrrev_b32 v{vtw}, 2, v{vlane}'); a(f'v_mul_u32_u24 v{vtw}, 3584, v{vtw}')
        a(f'v_and_b32 v{vt0}, 3, v{vlane}'); a(f'v_lshl_add_u32 v{vtw}, v{vt0}, 7, v{vtw}')
        a(f'v_add_u32 v{vtw}, s38, v{vtw}')
        a(f'v_min_u32 v{vtw}, {512*3584 - 4}, v{vtw}')
        a('s_lshl_b32 s38, s6, 7'); a(f's_mul_i32 s39, s7, {56*1024}'); a('s_add_u32 s38, s38, s39')
        a(f's_and_b32 s39, {S_W8}, 1'); a(f's_mul_i32 s39, s39, {28*1024}'); a('s_add_u32 s38, s38, s39')
        a(f'v_min_u32 v{vt0}, 27, v{vlane}'); a(f'v_lshl_add_u32 v{vt0}, v{vt0}, 10, s38')
        a(f's_cmp_ge_u32 {S_W8}, 2'); a('s_cselect_b64 vcc, -1, 0')
        a(f'v_cndmask_b32 v{vtw}, v{vtw}, v{vt0}, vcc')
        a(f's_cmp_eq_u32 {S_W8}, 1'); a('s_cselect_b32 s44, s28, s26'); a('s_cselect_b32 s45, s29, s27')
        a(f's_cmp_ge_u32 {S_W8}, 2'); a('s_cselect_b32 s44, s30, s44'); a('s_cselect_b32 s45, s31, s45')
    stamp('precomp')
    a(f's_cmp_lt_u32 {S_W8}, 4'); a('s_cbranch_scc1 L_s1_wa')
    a(f's_cmp_lt_u32 {S_W8}, 6'); a('s_cbranch_scc1 L_s1_wb')
    ncl = 2 if cfg.ylate else 3
    dd = 1 if cfg.ddirect else 0
    if cfg.ddirect:
        a(f's_cmp_eq_u32 {S_W8}, 7'); a('s_cbranch_scc1 L_s1_wb')
        a(f's_waitcnt vmcnt({ncl+3+dd})'); a('s_branch L_s1_wd')
    else:
        a(f's_waitcnt vmcnt({ncl+3})'); a('s_branch L_s1_wd')
    assert not (cfg.code3 and cfg.ddirect)
    a.label('L_s1_wb'); a(f's_waitcnt vmcnt({ncl+4+dd+cfg.code3})'); a('s_branch L_s1_wd')
    a.label('L_s1_wa'); a(f's_waitcnt vmcnt({ncl+7+dd})')
    a.label('L_s1_wd')
    if cfg.prio: a('s_setprio 1')
    stamp('x_arrived')
    if cfg.ylate in (2, 3):
        a(f'global_store_dwordx4 v{vYa}, {vr(vones,4)}, {P_WS} sc1')
    R.release('ones')
    if cfg.wtouch == 1:
        if_role_a('L_tw_done')
        a(f'global_load_dword v{vjunk}, v{vtw}, s[44:45]')
        a.label('L_tw_done')
        R.release('tw')
    ln_stats_partial(vx, vS, vt, L_ST1)
    unpack8(vxf, vx)
    if not cfg.ddirect:
        a(f's_cmp_lt_u32 {S_W8}, 6'); a('s_cbranch_scc1 L_s1_nodw')
        a(f's_sub_u32 s6, {S_W8}, 6'); a('s_lshl_b32 s6, s6, 10'); a(f's_add_u32 s6, s6, {L_D}')
        a(f'v_lshl_add_u32 v{vt0}, v{vlane}, 4, s6')
        a(f'ds_write_b128 v{vt0}, {vr(vD,4)}')
        a.label('L_s1_nodw')
    a(f's_cmp_lt_u32 {S_W8}, 4'); a('s_cbranch_scc1 L_s1_ca')
    a(f's_cmp_lt_u32 {S_W8}, 6'); a('s_cbranch_scc1 L_s1_cb')
    y2 = 1 if cfg.ylate in (2, 3) else 0
    if cfg.ddirect:
        a(f's_cmp_eq_u32 {S_W8}, 7'); a('s_cbranch_scc1 L_s1_cb')
    a(f's_waitcnt vmcnt({3+y2+dd}) lgkmcnt(0)'); a('s_branch L_s1_cd')
    a.label('L_s1_cb'); a(f's_waitcnt vmcnt({4+y2+dd+cfg.code3}) lgkmcnt(0)'); a('s_branch L_s1_cd')
    a.label('L_s1_ca'); a(f's_waitcnt vmcnt({7 + y2 + dd + (1 if cfg.wtouch == 1 else 0)}) lgkmcnt(0)')
    a.label('L_s1_cd')
    stamp('ln1_prebar')
    a('s_barrier')
    a(f's_add_u32 {S_TAG}, {S_TAG}, 1')
    a(f's_cmp_eq_u32 {S_W8}, 4'); a('s_cbranch_scc0 L_s1_nof1')
    a('s_lshl_b32 s7, s2, 4'); a(f's_add_u32 s6, s7, {WS_F1}')
    a(f'v_lshl_add_u32 v{vt0}, v{vlane}, 12, s6')
    a(f'v_mov_b32 v{vt1}, {S_TAG}')
    a('s_mov_b64 exec, 0xff')
    a(f'global_store_dword v{vt0}, v{vt1}, {P_WS} sc1')
    a('s_mov_b64 exec, -1')
    a.label('L_s1_nof1')
    if not cfg.ddirect: a(f'ds_read_b128 {vr(vD,4)}, v{vch} offset:{L_D}')
    ln_finish(vxf, vd, vS, vt, L_ST1, vm1, vrs, vs_)
    stamp('ln1_fin')
    unpack8(vd, vd+8)
    cvt4(vd+12, vd, 'f16')
    S_STG = 's42'
    a(f's_mul_i32 {S_STG}, {S_W8}, {STG_SZ}'); a(f's_add_u32 {S_STG}, {S_STG}, {L_STG}')
    a(f'v_mul_u32_u24 v{vt0}, 192, v{vtk}')
    a(f'v_lshl_add_u32 v{vt0}, v{vcg}, 4, v{vt0}')
    a(f'v_add_u32 v{vt0}, {S_STG}, v{vt0}')
    a(f'ds_write_b128 v{vt0}, {vr(vd+12,4)}')
    a(f'v_bfe_u32 v{vt1}, v{vlane}, 2, 2')
    a(f'v_mul_u32_u24 v{vt1}, 192, v{vt1}')
    a(f'v_lshrrev_b32 v{vt2}, 4, v{vlane}')
    a(f'v_lshl_add_u32 v{vt1}, v{vt2}, 5, v{vt1}')
    a(f'v_and_b32 v{vt2}, 3, v{vlane}')
    a(f'v_lshl_add_u32 v{vt1}, v{vt2}, 3, v{vt1}')
    a(f'v_add_u32 v{vt1}, {S_STG}, v{vt1}')
    a(f'v_add_u32 v{vt2}, {WS_U}, v{vblk}')
    a('s_waitcnt lgkmcnt(0)')
    a(f'ds_read_b64_tr_b16 {vr(vd+8,2)}, v{vt1}')
    a(f'ds_read_b64_tr_b16 {vr(vd+10,2)}, v{vt1} offset:{4*192}')
    if not cfg.ddirect:
        unpack8(vud, vD)
        for j in range(4): a(f'v_pk_mul_f32 {vr(vud+2*j,2)}, {vr(vud+2*j,2)}, {vr(vd+2*j,2)}')
    if cfg.ylate == 2:
        a(f's_cmp_eq_u32 {S_W8}, 4'); a('s_cbranch_scc1 L_s1_ya')
        a('s_waitcnt vmcnt(0) lgkmcnt(0)'); a('s_branch L_s1_yd')
        a.label('L_s1_ya'); a('s_waitcnt vmcnt(1) lgkmcnt(0)')
        a.label('L_s1_yd')
    else:
        a('s_waitcnt lgkmcnt(0)')
    a(f'global_store_dwordx4 v{vt2}, {vr(vd+8,4)}, {P_WS} sc1')
    if cfg.ylate == 1:
        vo3 = al('ones3', 4, 2)
        for i in range(4): a(f'v_mov_b32 v{vo3+i}, -1')
        a(f'global_store_dwordx4 v{vYa}, {vr(vo3,4)}, {P_WS} sc1')
        R.release('ones3')
    if cfg.prio: a('s_setprio 0')
    stamp('u_stored')
    if cfg.ddirect:
        assert cfg.ylate == 2
        unpack8(vud, vD)
        for j in range(4): a(f'v_pk_mul_f32 {vr(vud+2*j,2)}, {vr(vud+2*j,2)}, {vr(vd+2*j,2)}')
        a(f's_cmp_eq_u32 {S_W8}, 7'); a('s_cbranch_scc0 L_s1_nowr')
        a(f'ds_write_b128 v{vWa}, {vr(vWr,4)} offset:{L_WR}')
        a.label('L_s1_nowr')
        R.release('Wrow'); R.release('Wra')
    cvt4(vd+12, vud)
    unpack8(vud, vd+12)
    R.release('x'); R.release('D')
    for n in ('d', 'S', 't', 'rs', 's'): R.release(n)
    if stop_here(1): return finish(a, R, cfg)

    a(f's_waitcnt vmcnt({1 + (1 if cfg.wtouch == 1 else 0) + (1 if cfg.ylate in (1, 3) else 0)})')
    stamp('kg_start')
    kt = al('kt', 12, 2)
    def exp_acc(x, t1, t2):
        a(f'v_mul_f32 v{t1}, {S_L2E}, v{x}')
        a(f'v_fma_f32 v{t2}, v{x}, {S_L2E}, -v{t1}')
        a(f'v_fma_f32 v{t2}, v{x}, {S_L2ELO}, v{t2}')
        a(f'v_exp_f32 v{x}, v{t1}')
        a(f'v_mul_f32 v{t2}, {hx(f2u(math.log(2)))}, v{t2}')
        a(f'v_fma_f32 v{x}, v{x}, v{t2}, v{x}')
    for r in (vla, vai, vldt): a(f'v_lshlrev_b32 v{r}, 16, v{r}')
    exp_acc(vldt, kt, kt+1); exp_acc(vla, kt+2, kt+3)
    a(f'v_cvt_pk_bf16_f32 v{kt}, v{vldt}, v{vla}')
    vdt = vldt; vAr = vla
    a(f'v_lshlrev_b32 v{vdt}, 16, v{kt}')
    a(f'v_and_b32 v{vAr}, {S_MASKHI}, v{kt}')
    val_ = al('al'); vfh = al('fh'); vfl = al('fl'); v2dt = al('2dt')
    a(f'v_mul_f32 v{val_}, v{vAr}, v{vdt}')
    a(f'v_mul_f32 v{kt}, v{vai}, v{vdt}')
    a(f'v_mul_f32 v{val_}, {S_L2E}, v{val_}')
    a(f'v_mul_f32 v{vfh}, {S_I2PI}, v{kt}')
    a(f'v_fma_f32 v{vfl}, v{kt}, {S_I2PI}, -v{vfh}')
    a(f'v_fma_f32 v{vfl}, v{kt}, {S_I2PILO}, v{vfl}')
    def anchor(E, p):
        a(f'v_mul_f32 v{kt}, {hx(f2u(-float(p)))}, v{val_}')
        a(f'v_mul_f32 v{kt+1}, {hx(f2u(float(p)))}, v{vfh}')
        a(f'v_exp_f32 v{kt}, v{kt}')
        a(f'v_fract_f32 v{kt+1}, v{kt+1}')
        a(f'v_mov_b32 v{kt+2}, {hx(f2u(float(p)))}')
        a(f'v_fma_f32 v{kt+1}, v{vfl}, v{kt+2}, v{kt+1}')
        a(f'v_cos_f32 v{E}, v{kt+1}')
        a(f'v_sin_f32 v{E+1}, v{kt+1}')
        a(f'v_pk_mul_f32 {vr(E,2)}, {vr(E,2)}, {vr(kt,2)} op_sel_hi:[1,0]')
    def cmul(d, x, y):
        a(f'v_pk_mul_f32 {vr(d,2)}, {vr(x,2)}, {vr(y,2)} op_sel:[0,0] op_sel_hi:[0,1]')
        a(f'v_pk_fma_f32 {vr(d,2)}, {vr(x,2)}, {vr(y,2)}, {vr(d,2)} op_sel:[1,1,0] op_sel_hi:[1,0,1] neg_lo:[1,0,0]')
    XOF = 20000
    a(f's_bfe_u32 s6, {S_W8}, 0x10001'); a(f's_mul_i32 s6, s6, {FG_SZ}'); a(f's_add_u32 s6, s6, {L_BIG - XOF}')
    a(f's_and_b32 s7, {S_W8}, 1'); a('s_lshl_b32 s7, s7, 8'); a('s_add_u32 s6, s6, s7')
    a('s_mov_b32 m0, s6')
    cv = [kt+8, kt+9, kt+10, kt+11]; cvi = [0]
    def put(row, val, isG):
        t = cv[cvi[0] % 4]; cvi[0] += 1
        if isG:
            a(f'v_cvt_pk_f16_f32 v{t}, v{val}, -v{val+1}')
            a(f'ds_write_addtid_b32 v{t} offset:{XOF + F_SZ + row*FROW}')
        else:
            a(f'v_cvt_pk_f16_f32 v{t}, v{val}, v{val+1}')
            a(f'ds_write_addtid_b32 v{t} offset:{XOF + row*FROW}')
    E1 = al('E1', 2, 2); E8 = al('E8', 2, 2); E128 = al('E128', 2, 2)
    Fa = al('Fa', 2, 2); Fb = al('Fb', 2, 2); Ha = al('Ha', 2, 2); Hb = al('Hb', 2, 2)
    O = [None] + [al(f'O{i}', 2, 2) for i in range(1, 8)]
    Gt = [al('Gt0', 2, 2), al('Gt1', 2, 2)]
    if_role_a('L_k_roleB')
    for r in (vcr, vci, vcr2, vci2): a(f'v_lshlrev_b32 v{r}, 16, v{r}')
    vsum = kt + 4
    a(f'v_add_f32 v{vsum}, |v{vcr}|, |v{vci}|')
    a(f'v_add_f32 v{kt+5}, |v{vcr2}|, |v{vci2}|')
    a(f'v_add_f32 v{vsum}, v{vsum}, v{kt+5}')
    xlane1(vsum, kt+5, 'add_f32', full=True)
    anchor(E128, 128); anchor(E1, 1)
    a(f'v_add_f32 v{v2dt}, v{vdt}, v{vdt}')
    a(f'v_mul_f32 v{vsum}, v{vsum}, v{v2dt}')
    a(f'v_frexp_exp_i32_f32 v{kt+5}, v{vsum}')
    a(f'v_sub_u32 v{kt+6}, 15, v{kt+5}')
    a(f'v_ldexp_f32 v{v2dt}, v{v2dt}, v{kt+6}')
    a(f'v_subrev_u32 v{kt+5}, 15, v{kt+5}')
    a(f'v_mov_b32 v{kt+6}, 1.0')
    a(f'v_ldexp_f32 v{kt+6}, v{kt+6}, v{kt+5}')
    a(f's_lshr_b32 s6, {S_W8}, 1'); a('s_lshl_b32 s6, s6, 2'); a(f's_add_u32 s6, s6, {L_IS}')
    a(f'v_mov_b32 v{kt+7}, s6')
    a('s_mov_b64 exec, 1')
    a(f'ds_write_b32 v{kt+7}, v{kt+6}')
    a('s_mov_b64 exec, -1')
    stamp('kg_anch')
    a(f'v_mul_f32 v{Ha}, v{vcr}, v{v2dt}'); a(f'v_mul_f32 v{Ha+1}, v{vci}, v{v2dt}')
    O[1] = E1
    cmul(O[2], O[1], O[1]); cmul(Hb, Ha, E128); put(0, Ha, True)
    cmul(O[3], O[2], O[1]); cmul(O[4], O[2], O[2])
    cmul(O[5], O[4], O[1]); cmul(O[6], O[4], O[2]); cmul(O[7], O[4], O[3])
    def gcol(i, o):
        if i < 2: return 8*i + o
        if i < 4: return 16 + 4*(i-2) + o//2
        if i < 8: return 24 + 2*(i-4) + o//4
        return 32 + (i-8)
    Hcur, Hnx = Ha, Hb
    gi = 0
    for i in range(0, 17):
        offs = list(range(8)) if i < 2 else ([0,2,4,6] if i < 4 else ([0,4] if i < 8 else [0]))
        if i > 0:
            put(gcol(i, 0), Hcur, True)
            if i < 16: cmul(Hnx, Hcur, E128)
        for o in offs[1:]:
            gg = Gt[gi % 2]; gi += 1
            cmul(gg, Hcur, O[o]); put(gcol(i, o), gg, True)
        Hcur, Hnx = Hnx, Hcur
    stamp('kg_ch')
    a('s_waitcnt vmcnt(0) lgkmcnt(0)' if cfg.ylate in (1, 3) else 's_waitcnt lgkmcnt(0)')
    stamp('kgen_valu')
    a('s_branch L_k_bb')
    a.label('L_k_roleB')
    anchor(E8, 8)
    a(f'v_mov_b32 v{cv[0]}, 0x00003c00'); a(f'ds_write_addtid_b32 v{cv[0]} offset:{XOF}'); cvi[0] = 1
    put(1, E8, False)
    cmul(Fa, E8, E8); put(2, Fa, False)
    Fcur, Fnx = Fa, Fb
    for fj in range(3, 16):
        cmul(Fnx, Fcur, E8); put(fj, Fnx, False); Fcur, Fnx = Fnx, Fcur
    vu = al('u', 8, 2)
    a(f's_cmp_eq_u32 {S_W8}, 4'); a('s_cbranch_scc0 L_k_nof1p')
    def f1issue():
        for j in range(4): a(f'global_load_dword v{vf+j}, v{vfo}, {P_WS} offset:{1024*j} sc1')
    poll_loop(f1issue, [vf, vf+1, vf+2, vf+3], vt0, 'f1', cmp_tag=True)
    a.label('L_k_nof1p')
    a('s_waitcnt vmcnt(0) lgkmcnt(0)' if cfg.ylate in (1, 3) else 's_waitcnt lgkmcnt(0)')
    if cfg.active('kgen_valu'): a(f'{cfg.tinstr} s[{70+2*(len(cfg.stamp_names)-1)}:{71+2*(len(cfg.stamp_names)-1)}]')
    for n in ['kt','al','fh','fl','2dt','E1','E8','E128','Fa','Fb','Ha','Hb','Gt0','Gt1'] + [f'O{i}' for i in range(1,8)]: R.release(n)
    for n in ('la','ai','cr','ci','cr2','ci2','ldt'): R.release(n)
    a.label('L_k_bb')
    a('s_barrier')
    stamp('B_b')
    if cfg.wtouch == 3:
        if_role_a('L_tw3'); a(f'global_load_dword v{vjunk}, v{vtw}, s[44:45]'); a.label('L_tw3')
    if cfg.ylate in (1, 3):
        a(f's_cmp_eq_u32 {S_W8}, 5'); a('s_cbranch_scc0 L_k_nof2')
        a('s_lshl_b32 s7, s2, 4'); a(f's_add_u32 s6, s7, {WS_F2}')
        a(f'v_lshl_add_u32 v{vt0}, v{vlane}, 12, s6'); a(f'v_mov_b32 v{vt1}, {S_TAG}')
        a('s_mov_b64 exec, 0xff')
        a(f'global_store_dword v{vt0}, v{vt1}, {P_WS} sc1')
        a('s_mov_b64 exec, -1')
        a.label('L_k_nof2')
    if_role_b('L_k_nog')
    fl = '' if cfg.plain1 & 1 else ' sc1'
    a(f'global_load_dwordx4 {vr(vu,4)}, v{vug}, {P_WS}{fl}')
    a(f'global_load_dwordx4 {vr(vu+4,4)}, v{vug}, {P_WS} offset:16{fl}')
    a.label('L_k_nog')
    a(f's_cmp_ge_u32 {S_W8}, 6'); a('s_cbranch_scc1 L_k_nomf')
    vA = al('kA', 32, 4); vB = al('kB', 32, 4); vacc = al('kacc', 4, 4)
    for k in range(8):
        a(f'ds_read_b128 {vr(vA+4*k,4)}, v{vaa} offset:{64*k}')
        a(f'ds_read_b128 {vr(vB+4*k,4)}, v{vba} offset:{64*k}')
        if k == 6: a('s_waitcnt lgkmcnt(10)') if False else None
    a(f'v_add_u32 v{vt0}, v{vTw}, v{vTs}')
    a(f'v_add_u32 v{vt1}, v{vt0}, v{vTs}')
    a(f'v_add_u32 v{vt2}, v{vt1}, v{vTs}')
    for k in range(8):
        a(f's_waitcnt lgkmcnt({min(15, 2*(7-k))})')
        a(f'v_mfma_f32_16x16x32_f16 {vr(vacc,4)}, {vr(vA+4*k,4)}, {vr(vB+4*k,4)}, {"0" if k == 0 else vr(vacc,4)}')
    a(f'v_cvt_pk_f16_f32 v{vA}, v{vacc}, v{vacc+1}')
    a(f'v_cvt_pk_f16_f32 v{vA+1}, v{vacc+2}, v{vacc+3}')
    a(f'ds_write_b16 v{vTw}, v{vA}')
    a(f'ds_write_b16_d16_hi v{vt0}, v{vA}')
    a(f'ds_write_b16 v{vt1}, v{vA+1}')
    a(f'ds_write_b16_d16_hi v{vt2}, v{vA+1}')
    for n in ('kA','kB','kacc','kaa','kba'): R.release(n)
    a.label('L_k_nomf')
    a('s_waitcnt lgkmcnt(0)')
    stamp('k_mf')
    a('s_barrier')
    stamp('B_c')
    if cfg.wtouch == 4:
        if_role_a('L_tw4'); a(f'global_load_dword v{vjunk}, v{vtw}, s[44:45]'); a.label('L_tw4')
    R.release('Tw'); R.release('Ts')
    if_role_a('L_k_noexp')
    if not cfg.r3:
        ve = al('e', 20, 2); vp = al('ep', 8, 4)
        for c in range(2):
            for k in range(10):
                a(f'ds_read_u16 v{ve+10*c+k}, v{vTa+k} offset:{L_TT + c*TT_SZ}')
        for c in range(2):
            e = ve + 10*c
            a(f's_waitcnt lgkmcnt({10 if c == 0 else 2})')
            for j in range(4): a(f'v_lshl_or_b32 v{vp+j}, v{e+2*j+2}, 16, v{e+2*j+1}')
            for j in range(4): a(f'v_lshl_or_b32 v{vp+4+j}, v{e+2*j+1}, 16, v{e+2*j}')
            a(f'ds_write_b128 v{vKw}, {vr(vp,4)} offset:{L_KC + (2*c)*KC_SZ}')
            a(f'ds_write_b128 v{vKw}, {vr(vp+4,4)} offset:{L_KC + (2*c+1)*KC_SZ}')
            a(f's_cmp_eq_u32 {S_W8}, 0'); l = lbl('tail'); a(f's_cbranch_scc0 {l}')
            a(f'v_lshl_or_b32 v{vt1}, v{e+9}, 16, v{e+8}')
            a(f'v_mov_b32 v{vt0}, 4096')
            a('s_mov_b64 exec, 1')
            a(f'ds_write_b32 v{vt0}, v{e+9} offset:{L_KC + (2*c)*KC_SZ}')
            a(f'ds_write_b32 v{vt0}, v{vt1} offset:{L_KC + (2*c+1)*KC_SZ}')
            a('s_mov_b64 exec, -1')
            a.label(l)
        R.release('e'); R.release('ep')
    else:
        ve = al('e', 10, 2); vp = al('ep', 8, 4); vr8 = al('r8', 8, 2); vrp = al('rp', 4, 4)
        for k in range(10): a(f'ds_read_u16 v{ve+k}, v{vTa+k}')
        for e in range(8): a(f'ds_read_u16 v{vr8+e}, v{vRa+e}')
        a('s_waitcnt lgkmcnt(8)')
        a(f's_bitcmp1_b32 {S_W8}, 0'); a('s_cbranch_scc0 L_e_noadj')
        a('s_mov_b32 exec_lo, 0'); a('s_mov_b32 exec_hi, 0x80000000')
        a(f'v_cvt_f32_f16 v{vt0}, v{ve+1}'); a(f'v_cvt_f32_f16 v{vt1}, v{ve+4}'); a(f'v_cvt_f32_f16 v{vt2}, v{ve+5}')
        a(f'v_sub_f32 v{vt1}, v{vt1}, v{vt0}'); a(f'v_sub_f32 v{vt2}, v{vt2}, v{vt0}')
        a(f'v_cvt_f16_f32 v{ve+4}, v{vt1}'); a(f'v_cvt_f16_f32 v{ve+5}, v{vt2}')
        a(f'v_and_b32 v{ve+4}, 0xffff, v{ve+4}'); a(f'v_and_b32 v{ve+5}, 0xffff, v{ve+5}')
        for k_ in (0, 1, 2, 3): a(f'v_mov_b32 v{ve+k_}, 0')
        a('s_mov_b64 exec, -1')
        a.label('L_e_noadj')
        for j in range(4): a(f'v_lshl_or_b32 v{vp+j}, v{ve+2*j+2}, 16, v{ve+2*j+1}')
        for j in range(4): a(f'v_lshl_or_b32 v{vp+4+j}, v{ve+2*j+1}, 16, v{ve+2*j}')
        a(f'ds_write_b128 v{vKw}, {vr(vp,4)} offset:{L_KC}')
        a(f'ds_write_b128 v{vKw}, {vr(vp+4,4)} offset:{L_KC + KC_SZ}')
        a(f's_bitcmp1_b32 {S_W8}, 0'); a('s_cbranch_scc1 L_e_notail')
        a(f'v_lshl_or_b32 v{vt1}, v{ve+9}, 16, v{ve+8}')
        a(f's_lshr_b32 s6, {S_W8}, 1'); a(f's_mul_i32 s6, s6, {2*KC_SZ}'); a('s_add_u32 s6, s6, 4096'); a(f'v_mov_b32 v{vt0}, s6')
        a('s_mov_b64 exec, 1')
        a(f'ds_write_b32 v{vt0}, v{ve+9} offset:{L_KC}')
        a(f'ds_write_b32 v{vt0}, v{vt1} offset:{L_KC + KC_SZ}')
        a('s_mov_b64 exec, -1')
        a.label('L_e_notail')
        a('s_waitcnt lgkmcnt(0)')
        for j in range(4): a(f'v_lshl_or_b32 v{vrp+j}, v{vr8+2*j+1}, 16, v{vr8+2*j}')
        a('s_mov_b32 exec_lo, 0x7fff'); a('s_mov_b32 exec_hi, 0x7fff')
        a(f'ds_write_b128 v{vRw}, {vr(vrp,4)}')
        a('s_mov_b64 exec, -1')
        for n in ('e', 'ep', 'r8', 'rp', 'Ra', 'Rw'): R.release(n)
    stamp('expand')
    a('s_branch L_k_bd')
    a.label('L_k_noexp')
    def issue_u():
        a(f'global_load_dwordx4 {vr(vu,4)}, v{vug}, {P_WS} sc1')
        a(f'global_load_dwordx4 {vr(vu+4,4)}, v{vug}, {P_WS} offset:16 sc1')
    if cfg.upipe:
        vu2 = al('u2', 8, 2)
        a(f'global_load_dwordx4 {vr(vu2,4)}, v{vug}, {P_WS} sc1')
        a(f'global_load_dwordx4 {vr(vu2+4,4)}, v{vug}, {P_WS} offset:16 sc1')
        a('s_waitcnt vmcnt(2)')
        a(f'v_max_u32 v{vt0}, v{vu}, v{vu+1}')
        for j in (2, 4, 6): a(f'v_max3_u32 v{vt0}, v{vt0}, v{vu+j}, v{vu+j+1}')
        a(f'v_cmp_eq_u32 vcc, -1, v{vt0}')
        a('s_cbranch_vccz L_u_ok1')
        a('s_mov_b64 exec, vcc')
        a('s_waitcnt vmcnt(0)')
        for j in range(8): a(f'v_mov_b32 v{vu+j}, v{vu2+j}')
        a('s_mov_b64 exec, -1')
        poll_loop(issue_u, list(range(vu, vu+8)), vt0, 'u', first_issued=True, nl=2)
        a.label('L_u_ok1')
        R.release('u2')
    else:
        poll_loop(issue_u, list(range(vu, vu+8)), vt0, 'u', first_issued=True, nl=2)
    a(f'ds_write_b128 v{vul}, {vr(vu,4)} offset:{L_UL + 512}')
    a(f'ds_write_b128 v{vul}, {vr(vu+4,4)} offset:{L_UL + UL_SZ + 512}')
    if cfg.active('expand'): a(f'{cfg.tinstr} s[{70+2*(len(cfg.stamp_names)-1)}:{71+2*(len(cfg.stamp_names)-1)}]')
    a.label('L_k_bd')
    for n in ('Ta','Kw','f1','f1off','ugoff','ulds','u'): R.release(n)
    a('s_waitcnt lgkmcnt(0)')
    a('s_barrier')
    stamp('B_d')
    if cfg.dbg:
        dv = al('dv', 4, 4); da = al('da');
        a(f's_lshl_b32 s6, {S_P}, 15'); a(f's_add_u32 s6, s6, 0x1000000')
        for it in range(3):
            a(f'v_lshlrev_b32 v{da}, 4, v0'); a(f'v_add_u32 v{da}, {it*8192}, v{da}')
            a(f'v_min_u32 v{da}, {L_UL + 2*UL_SZ - 16}, v{da}')
            a(f'ds_read_b128 {vr(dv,4)}, v{da}')
            a(f'v_add_u32 v{da}, s6, v{da}')
            a('s_waitcnt lgkmcnt(0)')
            a(f'global_store_dwordx4 v{da}, {vr(dv,4)}, {P_WS}')
            a('s_waitcnt vmcnt(0)')
        R.release('dv'); R.release('da')
    if stop_here(2): return finish(a, R, cfg)

    if_role_a('L_c_roleB')
    if cfg.wtouch == 2:
        a(f'global_load_dword v{vjunk}, v{vtw}, s[44:45]')
    if cfg.wtouch >= 2: R.release('tw')
    acc = al('acc', 32, 4)
    nfa = 20 if cfg.r3 else 32
    FA = [al('FA0', nfa, 4), al('FA1', nfa, 4)]; FB = [al('FB0', 32, 4), al('FB1', 32, 4)]
    def frag_group(rho, buf, j):
        J = j >> 1; o = 16 * (15 - (rho + 8 * (j & 1)))
        return [f'ds_read_b128 {vr(FB[buf]+4*j,4)}, v{vLB} offset:{512*j + 64*(3-rho)}',
                f'ds_read2_b32 {vr(FA[buf]+4*j,2)}, v{vLA+J} offset0:{o} offset1:{o+1}',
                f'ds_read2_b32 {vr(FA[buf]+4*j+2,2)}, v{vLA+J} offset0:{o+2} offset1:{o+3}']
    def frag_loads(rho, buf):
        L = []
        for j in range(8): L += frag_group(rho, buf, j)
        return L
    first = set()
    def mf(buf, j, tp):
        t = j + tp
        src = vr(acc+4*t,4) if t in first else '0'
        first.add(t)
        a(f'v_mfma_f32_16x16x32_f16 {vr(acc+4*t,4)}, {vr(FA[buf]+4*j,4)}, {vr(FB[buf]+4*tp,4)}, {src}')
    if cfg.r3:
        def group3(rho, buf, sh):
            g_ = frag_group(rho, buf, sh)
            return g_ if (sh <= 3 or (rho == 0 and sh == 4)) else g_[:1]
        shells0 = [[(j, tp) for j in range(4) for tp in range(8 - j) if max(j, tp) == sh] for sh in range(8)]
        shellsA = [list(x) for x in shells0]; shellsA[4] = shellsA[4] + [(4, tp) for tp in range(4)]
        groups = [(rho, sh) for rho in range(4) for sh in range(8)]
        X3 = al('X3', 12, 4); B3 = al('B3', 36, 4)
        r3list = [(3,0),(4,0),(5,0),(5,1),(6,0),(6,1),(7,0),(7,1),(7,2)]
        extraX = []; extraB = []
        for kap in range(3):
            extraX.append(f'ds_read_b64_tr_b16 {vr(X3+4*kap,2)}, v{vXa} offset:{1024*kap}')
            extraX.append(f'ds_read_b64_tr_b16 {vr(X3+4*kap+2,2)}, v{vXa} offset:{1024*kap + 128}')
        for n_, (t, kap) in enumerate(r3list):
            o = 24 - 8*(t-4) + 16*kap
            extraB.append(f'ds_read2_b32 {vr(B3+4*n_,2)}, v{vRb} offset0:{o} offset1:{o+1}')
            extraB.append(f'ds_read2_b32 {vr(B3+4*n_+2,2)}, v{vRb} offset0:{o+2} offset1:{o+3}')
        q = []
        def issue(l, tag): a(l); q.append(tag)
        def wait_tag(tag):
            last = max((i for i, t in enumerate(q) if t == tag), default=-1)
            if last < 0: return
            allowed = len(q) - 1 - last
            a(f's_waitcnt lgkmcnt({min(allowed, 15)})')
            del q[:last + 1]
        AHEAD = cfg.ahead3
        for n in range(AHEAD):
            rho, sh = groups[n]
            for l in group3(rho, rho & 1, sh): issue(l, ('g', n))
        nxt_g = AHEAD
        done = []; cnt = 0; wr = 0
        for n, (rho, sh) in enumerate(groups):
            if rho == 2 and sh == cfg.bwsh:
                stamp('c_prew')
                a('s_barrier')
                stamp('c_postw')
            if rho == 3 and sh == 0:
                stamp('c_prex')
                wait_tag(('x', 0))
                stamp('c_postx')
                for n_, (t, kap) in enumerate(r3list):
                    a(f'v_mfma_f32_16x16x32_f16 {vr(acc+4*t,4)}, {vr(X3+4*kap,4)}, {vr(B3+4*n_,4)}, {vr(acc+4*t,4)}')
            wait_tag(('g', n))
            if rho == 1 and sh == 0: stamp('c_r0')
            if rho == 2 and sh == 0: stamp('c_r1')
            ld = []
            if nxt_g < len(groups):
                r2, s2_ = groups[nxt_g]; ld = [(l, ('g', nxt_g)) for l in group3(r2, r2 & 1, s2_)]; nxt_g += 1
            if (rho == 1 and sh in (2, 3, 4, 5)) or (rho == 2 and sh in (1, 2, 3)):
                for _ in range(3):
                    if extraB: ld.append((extraB.pop(0), ('x', 0)))
            if rho == 2 and sh >= cfg.bwsh:
                for _ in range(2):
                    if extraX: ld.append((extraX.pop(0), ('x', 0)))
            shl = shellsA[sh] if rho == 0 else shells0[sh]
            for idx, (j, tp) in enumerate(shl):
                mf(rho & 1, j, tp); cnt += 1
                rem = len(shl) - idx
                take = len(ld) if rem == 1 else min(len(ld), -(-len(ld) // rem))
                for _ in range(take):
                    l, tag = ld.pop(0); issue(l, tag)
                if rho == 3 and wr < len(done) and cnt - done[wr][1] >= 9:
                    issue(f'ds_write_b128 v{vPW}, {vr(acc+4*done[wr][0],4)} offset:{done[wr][0]*PX_T}', ('w', wr)); wr += 1
            if rho == 3: done.append((sh, cnt))
        assert not extraX and not extraB
        stamp('conv_mfma'); stamp('c_r3')
        while wr < 8:
            a(f'ds_write_b128 v{vPW}, {vr(acc+4*done[wr][0],4)} offset:{done[wr][0]*PX_T}'); wr += 1
        for n_ in ('X3', 'B3', 'Xa', 'Rb'): R.release(n_)
    elif cfg.convsched:
        shells = [[(j, tp) for j in range(8) for tp in range(8 - j) if max(j, tp) == sh] for sh in range(8)]
        groups = [(rho, sh) for rho in range(4) for sh in range(8)]
        q = []
        def issue(l, tag): a(l); q.append(tag)
        def wait_group(n):
            last = max((i for i, t in enumerate(q) if t == ('g', n)), default=-1)
            if last < 0: return
            allowed = len(q) - 1 - last
            a(f's_waitcnt lgkmcnt({min(allowed, 15)})')
            del q[:last + 1]
        AHEAD = 5
        pend = []
        for n in range(AHEAD):
            rho, sh = groups[n]
            for l in frag_group(rho, rho & 1, sh): issue(l, ('g', n))
        nxt_g = AHEAD
        done = []; cnt = 0; wr = 0
        for n, (rho, sh) in enumerate(groups):
            wait_group(n)
            if rho == 1 and sh == 0: stamp('c_r0')
            if rho == 2 and sh == 0: stamp('c_r1')
            ld = []
            if nxt_g < len(groups):
                r2, s2_ = groups[nxt_g]; ld = [(l, ('g', nxt_g)) for l in frag_group(r2, r2 & 1, s2_)]; nxt_g += 1
            for idx, (j, tp) in enumerate(shells[sh]):
                mf(rho & 1, j, tp); cnt += 1
                take = len(ld) if idx == len(shells[sh]) - 1 else min(len(ld), 1 if len(shells[sh]) >= 3 else 2)
                for _ in range(take):
                    l, tag = ld.pop(0); issue(l, tag)
                if rho == 3 and wr < len(done) and cnt - done[wr][1] >= 9:
                    issue(f'ds_write_b128 v{vPW}, {vr(acc+4*done[wr][0],4)} offset:{done[wr][0]*PX_T}', ('w', wr)); wr += 1
            if rho == 3: done.append((sh, cnt))
        stamp('conv_mfma'); stamp('c_r3')
        while wr < 8:
            a(f'ds_write_b128 v{vPW}, {vr(acc+4*done[wr][0],4)} offset:{done[wr][0]*PX_T}'); wr += 1
    else:
        for j in range(5):
            for l in frag_group(0, 0, j): a(l)
        shells = [[(j, tp) for j in range(8) for tp in range(8 - j) if max(j, tp) == sh] for sh in range(8)]
        nxt = frag_loads(1, 1); k = 0
        nostamp = True
        for sh in range(8):
            if sh <= 3: a('s_waitcnt lgkmcnt(12)')
            elif sh == 4: a('s_waitcnt lgkmcnt(9)')
            elif sh == 5: a('s_waitcnt lgkmcnt(0)')
            for idx, (j, tp) in enumerate(shells[sh]):
                mf(0, j, tp)
                if sh <= 2 and idx == 0:
                    for l in frag_group(0, 0, sh + 5): a(l)
                if sh >= 5:
                    for _ in range(2):
                        if k < len(nxt): a(nxt[k]); k += 1
        for rho in range(1, 4):
            buf = rho & 1
            nxt = frag_loads(rho + 1, buf ^ 1) if rho < 3 else []
            a('s_waitcnt lgkmcnt(0)')
            if rho == 1: stamp('c_r0')
            if rho == 2: stamp('c_r1')
            if rho < 3:
                k = 0
                for j in range(8):
                    for tp in range(8 - j):
                        mf(buf, j, tp)
                        if k < len(nxt): a(nxt[k])
                        k += 1
            else:
                done = []; cnt = 0; wr = 0
                for t in range(8):
                    for j in range(t + 1):
                        mf(buf, j, t - j); cnt += 1
                        if wr < len(done) and cnt - done[wr][1] >= 9:
                            a(f'ds_write_b128 v{vPW}, {vr(acc+4*done[wr][0],4)} offset:{done[wr][0]*PX_T}'); wr += 1
                    done.append((t, cnt))
                stamp('conv_mfma'); stamp('c_r3')
                while wr < 8:
                    a(f'ds_write_b128 v{vPW}, {vr(acc+4*done[wr][0],4)} offset:{done[wr][0]*PX_T}'); wr += 1
    stamp('c_wr')
    for n in ('acc','FA0','FA1','FB0','FB1','LA','LB','PW'): R.release(n)
    a('s_branch L_c_be')
    a.label('L_c_roleB')
    if cfg.active('conv_mfma'): a(f'{cfg.tinstr} s[{70+2*(len(cfg.stamp_names)-1)}:{71+2*(len(cfg.stamp_names)-1)}]')
    gen_roleB_conv(a, R, cfg, locals())
    a.label('L_c_be')
    a('s_waitcnt lgkmcnt(0)')
    a('s_barrier')
    stamp('B_e')
    ep = al('ep', 16, 4); vis = al('is', 2, 2)
    a(f'ds_read_b128 {vr(ep,4)}, v{vEP}')
    a(f'ds_read_b128 {vr(ep+8,4)}, v{vEP} offset:{PX_H}')
    a(f'ds_read_b128 {vr(ep+4,4)}, v{vEP} offset:256')
    a(f'ds_read_b128 {vr(ep+12,4)}, v{vEP} offset:{PX_H + 256}')
    a(f'ds_read_b32 v{vis}, v{vISa} offset:{L_IS}')
    a('s_waitcnt lgkmcnt(0)')
    for j in range(4): a(f'v_pk_add_f32 {vr(ep+2*j,2)}, {vr(ep+2*j,2)}, {vr(ep+8+2*j,2)}')
    for j in range(4): a(f'v_pk_mul_f32 {vr(ep+2*j,2)}, {vr(ep+2*j,2)}, {vr(vis,2)} op_sel_hi:[1,0]')
    cvt4(ep+8, ep)
    a(f'global_store_dwordx4 v{vYa}, {vr(ep+8,4)}, {P_WS} sc1')
    R.release('EP'); R.release('ISa'); R.release('Ya')
    stamp('y_stored')
    R.release('ep'); R.release('is')
    if stop_here(3): return finish(a, R, cfg)

    gen_tail(a, R, cfg, locals())
    return finish(a, R, cfg)

def gen_roleB_conv(a, R, cfg, env):
    S_W8 = env['S_W8']; vlane = env['vlane']; vt0 = env['vt0']; vt1 = env['vt1']; lbl = env['lbl']
    P_WG, P_WU, P_WD = env['P_WG'], env['P_WU'], env['P_WD']
    vblk = env['vblk']; S_P = env['S_P']; P_WS = env['P_WS']
    a('s_waitcnt vmcnt(0)')
    if cfg.ylate in (1, 3):
        vf2 = R.alloc('f2', 4, 2); vf2o = R.alloc('f2o')
        a(f's_cmp_eq_u32 {S_W8}, 5'); a('s_cbranch_scc0 L_c_nof2')
        a('s_and_b32 s6, s2, 7'); a('s_lshl_b32 s6, s6, 12'); a(f's_add_u32 s6, s6, {WS_F2}')
        a(f'v_lshl_add_u32 v{vf2o}, v{vlane}, 4, s6')
        def f2issue():
            for j in range(4): a(f'global_load_dword v{vf2+j}, v{vf2o}, {P_WS} offset:{1024*j} sc1')
        env['poll_loop'](f2issue, [vf2, vf2+1, vf2+2, vf2+3], vt0, 'f2', cmp_tag=True)
        a.label('L_c_nof2')
        R.release('f2'); R.release('f2o')
    if cfg.r3:
        if cfg.wprio: a(f's_setprio {cfg.wprio}')
        vWu, vWw = env['vWu'], env['vWw']
        from asmlib import vr
        raw = R.alloc('wraw', 8, 4); x = R.alloc('wx', 16, 2); w7 = R.alloc('w7', 8, 2); w9 = R.alloc('w9', 8, 2); pk = R.alloc('wpk', 8, 4); zz = R.alloc('wz', 4, 4)
        a(f'ds_read_b64 {vr(raw,2)}, v{vWu} offset:8')
        a(f'ds_read_b128 {vr(raw+2+2,4) if False else vr(raw+4,4)}, v{vWu} offset:16')
        a(f'ds_read_b64 {vr(raw+2,2)}, v{vWu} offset:32')
        for i in range(4): a(f'v_mov_b32 v{zz+i}, 0')
        a(f'v_and_b32 v{vt0}, 127, v0')
        a(f'v_lshlrev_b32 v{vt1}, 4, v{vt0}')
        a(f'v_sub_u32 v{vca2 if False else vt1}, v{vWw}, v{vt1}') if False else None
        vb = R.alloc('wzb'); vb2 = R.alloc('wzb2')
        a(f'v_sub_u32 v{vb}, v{vWw}, v{vt1}')
        a(f'v_add_u32 v{vb2}, {130*16}, v{vWw}')
        a(f'v_add_u32 v{vt1}, {3072 + (129-64)*16}, v{vWw}')
        a(f'v_cmp_gt_u32 vcc, 64, v{vt0}')
        a(f'v_cndmask_b32 v{vb2}, v{vt1}, v{vb2}, vcc')
        a(f'v_cmp_eq_u32 vcc, 127, v{vt0}')
        a(f'v_cndmask_b32 v{vb2}, v{vb2}, v{vb}, vcc')
        a(f'v_and_b32 v{vt1}, 126, v{vt0}'); a(f'v_cmp_eq_u32 vcc, 62, v{vt1}')
        a(f'v_cndmask_b32 v{vb2}, v{vb2}, v{vb}, vcc')
        a(f'ds_write_b128 v{vb2}, {vr(zz,4)}')
        a('s_waitcnt lgkmcnt(1)')
        src = [raw, raw+1, raw+4, raw+5, raw+6, raw+7, raw+2, raw+3]
        for j, r in enumerate(src):
            a(f'v_cvt_f32_f16 v{x+2*j}, v{r}')
            a(f'v_cvt_f32_f16_sdwa v{x+2*j+1}, v{r} dst_sel:DWORD dst_unused:UNUSED_PAD src0_sel:WORD_1')
        a(f'v_add_f32 v{w7}, v{x+1}, v{x+2}'); a(f'v_add_f32 v{vt0}, v{x+3}, v{x+4}'); a(f'v_add_f32 v{vt1}, v{x+5}, v{x+6}')
        a(f'v_add_f32 v{w7}, v{w7}, v{x+7}'); a(f'v_add_f32 v{vt0}, v{vt0}, v{vt1}'); a(f'v_add_f32 v{w7}, v{w7}, v{vt0}')
        for e in range(7):
            a(f'v_sub_f32 v{vt0}, v{x+e+8}, v{x+e+1}'); a(f'v_add_f32 v{w7+e+1}, v{w7+e}, v{vt0}')
        for e in range(8):
            a(f'v_add_f32 v{w9+e}, v{x+e}, v{x+e+8}'); a(f'v_add_f32 v{w9+e}, v{w9+e}, v{w7+e}')
        for j in range(4):
            a(f'v_cvt_pk_f16_f32 v{pk+j}, v{w9+2*j}, v{w9+2*j+1}'); a(f'v_cvt_pk_f16_f32 v{pk+4+j}, v{w7+2*j}, v{w7+2*j+1}')
        a(f'ds_write_b128 v{vWw}, {vr(pk,4)} offset:32')
        a(f'ds_write_b128 v{vWw}, {vr(pk+4,4)} offset:{3072 + 16}')
        a(f's_bitcmp1_b32 {S_W8}, 0'); a('s_cbranch_scc1 L_w_noedge')
        a(f'v_add_f32 v{w7}, v{x+4}, v{x+5}'); a(f'v_add_f32 v{w7+1}, v{w7}, v{x+6}'); a(f'v_add_f32 v{w7+2}, v{w7+1}, v{x+7}')
        a(f'v_mov_b32 v{pk}, 0'); a(f'v_mov_b32 v{pk+1}, 0')
        a(f'v_cvt_pk_f16_f32 v{pk+2}, v{x+4}, v{w7}'); a(f'v_cvt_pk_f16_f32 v{pk+3}, v{w7+1}, v{w7+2}')
        a(f'v_mov_b32 v{pk+4}, 0'); a(f'v_mov_b32 v{pk+5}, 0')
        a(f'v_mov_b32 v{vt0}, 0'); a(f'v_cvt_pk_f16_f32 v{pk+6}, v{vt0}, v{x+4}'); a(f'v_cvt_pk_f16_f32 v{pk+7}, v{w7}, v{w7+1}')
        a('s_mov_b64 exec, 1')
        a(f'ds_write_b128 v{vWw}, {vr(pk,4)} offset:16')
        a(f'ds_write_b128 v{vWw}, {vr(pk+4,4)} offset:3072')
        a('s_mov_b64 exec, -1')
        a.label('L_w_noedge')
        for n in ('wraw','wx','w7','w9','wpk','wz','wzb','wzb2','Wu','Ww'): R.release(n)
        if cfg.wprio: a('s_setprio 0')
        vo = R.alloc('ones2', 4, 2); vca = R.alloc('clra')
        for i in range(4): a(f'v_mov_b32 v{vo+i}, -1')
        a(f'v_add_u32 v{vca}, {WS_H - 4096}, v{vblk}')
        a(f'global_store_dwordx4 v{vca}, v[{vo}:{vo+3}], {P_WS} sc1')
        a(f'v_add_u32 v{vca}, 4096, v{vca}')
        a(f'global_store_dwordx4 v{vca}, v[{vo}:{vo+3}], {P_WS} sc1')
        a(f's_lshl_b32 s6, {S_P}, 5'); a(f's_add_u32 s6, s6, {WS_STAT}')
        a(f'v_lshl_add_u32 v{vca}, v{vlane}, 2, s6')
        a('s_mov_b64 exec, 0xff')
        a(f'global_store_dword v{vca}, v{vo}, {P_WS} sc1')
        a('s_mov_b64 exec, -1')
        R.release('ones2'); R.release('clra')
        a('s_waitcnt lgkmcnt(0)')
        env['stamp']('w_done')
        a('s_barrier')
    else:
        vo = R.alloc('ones2', 4, 2); vca = R.alloc('clra')
        for i in range(4): a(f'v_mov_b32 v{vo+i}, -1')
        a(f'v_add_u32 v{vca}, {WS_H - 4096}, v{vblk}')
        a(f'global_store_dwordx4 v{vca}, v[{vo}:{vo+3}], {P_WS} sc1')
        a(f'v_add_u32 v{vca}, 4096, v{vca}')
        a(f'global_store_dwordx4 v{vca}, v[{vo}:{vo+3}], {P_WS} sc1')
        a(f's_lshl_b32 s6, {S_P}, 5'); a(f's_add_u32 s6, s6, {WS_STAT}')
        a(f'v_lshl_add_u32 v{vca}, v{vlane}, 2, s6')
        a('s_mov_b64 exec, 0xff')
        a(f'global_store_dword v{vca}, v{vo}, {P_WS} sc1')
        a('s_mov_b64 exec, -1')
        R.release('ones2'); R.release('clra')

    if cfg.dmac:
        a('s_cmp_lt_u32 s2, 56'); a('s_cbranch_scc1 L_dc_go')
        a('s_sub_u32 s7, s2, 64'); a('s_cmp_lt_u32 s7, 32'); a('s_cbranch_scc0 L_dc_done')
        a.label('L_dc_go')
        n = cfg.dsleep
        while n > 0:
            a(f's_sleep {min(n,100)}'); n -= min(n, 100)
        gen_dma(a, R, cfg, env)
        a.label('L_dc_done')

def gen_dma(a, R, cfg, env):
    S_W8 = env['S_W8']; vlane = env['vlane']; vt0 = env['vt0']; vt1 = env['vt1']
    P_WG, P_WU, P_WD = env['P_WG'], env['P_WU'], env['P_WD']; S_FC = env['S_FC']
    a('s_cmp_lt_u32 s2, 56'); a('s_cbranch_scc0 L_w_not1')
    a(f's_sub_u32 s6, {S_W8}, 4')
    a(f'v_lshrrev_b32 v{vt0}, 2, v{vlane}')
    a(f'v_mul_u32_u24 v{vt0}, 3584, v{vt0}')
    a(f'v_and_b32 v{vt1}, 3, v{vlane}')
    a(f'v_lshl_add_u32 v{vt0}, v{vt1}, 4, v{vt0}')
    a(f's_lshl_b32 s7, {S_FC}, 6')
    a('s_and_b32 s38, s6, 1'); a(f's_mul_i32 s39, s38, {256*3584}'); a('s_add_u32 s7, s7, s39')
    a(f'v_add_u32 v{vt0}, s7, v{vt0}')
    a('s_lshl_b32 s39, s6, 14'); a(f's_add_u32 s39, s39, {L_BIG}')
    a('s_cmp_ge_u32 s6, 2'); a('s_cselect_b32 s44, s28, s26'); a('s_cselect_b32 s45, s29, s27')
    a('s_mov_b32 s38, 16'); a(f's_mov_b32 s7, {16*3584}')
    a('s_branch L_w_loop')
    a.label('L_w_not1')
    a(f's_sub_u32 s6, {S_W8}, 4')
    a(f'v_lshrrev_b32 v{vt0}, 1, v{vlane}')
    a(f'v_lshlrev_b32 v{vt0}, 10, v{vt0}')
    a(f'v_and_b32 v{vt1}, 1, v{vlane}')
    a(f'v_lshl_add_u32 v{vt0}, v{vt1}, 4, v{vt0}')
    a(f's_lshl_b32 s7, {S_FC}, 5')
    a(f's_mul_i32 s39, s6, {448*1024}'); a('s_add_u32 s7, s7, s39')
    a(f'v_add_u32 v{vt0}, s7, v{vt0}')
    a(f's_mul_i32 s39, s6, {448*32}'); a(f's_add_u32 s39, s39, {L_BIG}')
    a('s_mov_b32 s44, s30'); a('s_mov_b32 s45, s31')
    a('s_mov_b32 s38, 14'); a(f's_mov_b32 s7, {32*1024}')
    a.label('L_w_loop')
    a('s_mov_b32 m0, s39'); a('s_add_u32 s39, s39, 1024')
    a(f'global_load_lds_dwordx4 v{vt0}, s[44:45]')
    a(f'v_add_u32 v{vt0}, s7, v{vt0}')
    a('s_sub_u32 s38, s38, 1'); a('s_cmp_lg_u32 s38, 0'); a('s_cbranch_scc1 L_w_loop')

def gen_tail(a, R, cfg, env):
    g = env
    al = R.alloc
    S_W8, S_P, S_TAG, S_MASKHI, S_STG, S_SPIN = g['S_W8'], g['S_P'], g['S_TAG'], g['S_MASKHI'], g['S_STG'], g['S_SPIN']
    S_L2E = g['S_L2E']
    P_WS, P_OUT = g['P_WS'], g['P_OUT']
    vlane, vt0, vt1, vt2, vt3, vtk, vcg, vch, vxo = (g[k] for k in ('vlane','vt0','vt1','vt2','vt3','vtk','vcg','vch','vxo'))
    vxf, vud, vm1 = g['vxf'], g['vud'], g['vm1']
    stamp, lbl, poll_loop, unpack8, cvt4, xlane1 = g['stamp'], g['lbl'], g['poll_loop'], g['unpack8'], g['cvt4'], g['xlane1']
    ln_stats_partial, ln_finish, normalize, stop_here = g['ln_stats_partial'], g['ln_finish'], g['normalize'], g['stop_here']
    vy = al('y', 4, 4); vyo = al('yoff'); vwr = al('wr', 4, 4)
    vd = al('d', 16, 4); vS = al('S', 2, 2); vt = al('t', 2, 2); vrs = al('rs', 2, 2); vs_ = al('s', 2, 2); vm2 = al('m2', 2, 2)
    vhf = al('hf', 8, 2); vhp = al('hp', 4, 4)
    a(f'v_lshrrev_b32 v{vyo}, 1, v0'); a(f'v_lshlrev_b32 v{vyo}, 13, v{vyo}')
    a(f'v_and_b32 v{vt0}, 1, v0'); a(f'v_lshl_add_u32 v{vyo}, v{vt0}, 4, v{vyo}')
    a(f's_lshl_b32 s6, {S_P}, 5'); a(f's_add_u32 s6, s6, {WS_Y}')
    a(f'v_add_u32 v{vyo}, s6, v{vyo}')
    a(f'ds_read_b128 {vr(vwr,4)}, v{vch} offset:{L_WR}')
    a(f'v_lshl_add_u32 v{vt2}, v{vlane}, 4, {S_STG}')
    a(f'v_lshrrev_b32 v{vt0}, 4, v{vlane}'); a(f'v_lshlrev_b32 v{vt3}, 8, v{vt0}')
    a(f'v_bfe_u32 v{vt0}, v{vlane}, 1, 1'); a(f'v_lshl_add_u32 v{vt3}, v{vt0}, 7, v{vt3}')
    a(f'v_bfe_u32 v{vt0}, v{vlane}, 2, 2'); a(f'v_lshl_add_u32 v{vt3}, v{vt0}, 4, v{vt3}')
    a(f'v_and_b32 v{vt0}, 1, v{vlane}'); a(f'v_lshl_add_u32 v{vt3}, v{vt0}, 3, v{vt3}')
    a(f'v_add_u32 v{vt3}, {S_STG}, v{vt3}')
    if not cfg.noywait: a('s_waitcnt vmcnt(0)')
    stamp('y_acked')
    if cfg.plain1 & 2:
        a(f'global_load_dwordx4 {vr(vy,4)}, v{vyo}, {P_WS}')
        poll_loop(lambda: a(f'global_load_dwordx4 {vr(vy,4)}, v{vyo}, {P_WS} sc1'), [vy, vy+1, vy+2, vy+3], vt0, 'y', first_issued=True)
    else:
        poll_loop(lambda: a(f'global_load_dwordx4 {vr(vy,4)}, v{vyo}, {P_WS} sc1'), [vy, vy+1, vy+2, vy+3], vt0, 'y')
    stamp('y_got')
    a(f'ds_write_b128 v{vt2}, {vr(vy,4)}')
    a('s_waitcnt lgkmcnt(0)')
    a(f'ds_read_b64_tr_b16 {vr(vy,2)}, v{vt3}')
    a(f'ds_read_b64_tr_b16 {vr(vy+2,2)}, v{vt3} offset:64')
    a('s_waitcnt lgkmcnt(0)')
    stamp('s3_tr')
    unpack8(vd, vy)
    for j in range(4): a(f'v_pk_add_f32 {vr(vd+2*j,2)}, {vr(vd+2*j,2)}, {vr(vud+2*j,2)}')
    cvt4(vd+8, vd)
    unpack8(vd, vd+8)
    for j in range(4): a(f'v_pk_add_f32 {vr(vd+2*j,2)}, {vr(vd+2*j,2)}, {vr(vxf+2*j,2)}')
    cvt4(vhp, vd)
    if not cfg.hlate:
        a(f'v_add_u32 v{vt0}, {WS_H}, v{vxo}')
        a(f'global_store_dwordx4 v{vt0}, {vr(vhp,4)}, {P_WS} sc1')
    stamp('s3_h')
    ln_stats_partial(vhp, vS, vt, L_ST2)
    unpack8(vhf, vhp)
    a('s_waitcnt lgkmcnt(0)')
    stamp('s3_part')
    a('s_barrier')
    stamp('s3_bar1')
    ln_finish(vhf, vd, vS, vt, L_ST2, vm2, vrs, vs_)
    stamp('s3_fin')
    vr_ = al('r', 2, 2)
    a(f'v_dot2_f32_bf16 v{vr_}, v{vd+8}, v{vwr}, 0')
    a(f'v_dot2_f32_bf16 v{vr_+1}, v{vd+9}, v{vwr+1}, 0')
    a(f'v_dot2_f32_bf16 v{vr_}, v{vd+10}, v{vwr+2}, v{vr_}')
    a(f'v_dot2_f32_bf16 v{vr_+1}, v{vd+11}, v{vwr+3}, v{vr_+1}')
    a(f'v_add_f32 v{vr_}, v{vr_}, v{vr_+1}')
    xlane1(vr_, vt, 'add_f32')
    a(f's_lshl_b32 s6, {S_W8}, 2')
    a(f'v_lshl_add_u32 v{vt}, v{vtk}, 5, s6')
    a('s_mov_b64 exec, 0xff')
    a(f'ds_write_b32 v{vt}, v{vr_} offset:{L_RP}')
    a('s_mov_b64 exec, -1')
    stamp('s3_rp')
    unpack8(vd, vd+8)
    for j in range(4): a(f'v_pk_add_f32 {vr(vd+2*j,2)}, {vr(vd+2*j,2)}, {vr(vhf+2*j,2)}')
    cvt4(vd+12, vd)
    a('s_waitcnt lgkmcnt(0)')
    a('s_barrier')
    stamp('s3_bar2')
    a(f's_cmp_eq_u32 {S_W8}, 0'); a('s_cbranch_scc0 L_s3_nokey')
    a(f'v_lshlrev_b32 v{vt}, 5, v{vtk}')
    a(f'ds_read_b128 {vr(vd,4)}, v{vt} offset:{L_RP}')
    a(f'ds_read_b128 {vr(vd+4,4)}, v{vt} offset:{L_RP+16}')
    a('s_waitcnt lgkmcnt(0)')
    a(f'v_pk_add_f32 {vr(vd,2)}, {vr(vd,2)}, {vr(vd+2,2)}'); a(f'v_pk_add_f32 {vr(vd+4,2)}, {vr(vd+4,2)}, {vr(vd+6,2)}')
    a(f'v_pk_add_f32 {vr(vd,2)}, {vr(vd,2)}, {vr(vd+4,2)}'); a(f'v_add_f32 v{vd}, v{vd}, v{vd+1}')
    a(f'v_cvt_pk_bf16_f32 v{vd}, v{vd}, v{vd}')
    a(f'v_and_b32 v{vd}, 0xffff, v{vd}')
    a(f'v_cmp_lt_u32 vcc, 0x7fff, v{vd}')
    a(f'v_xor_b32 v{vd+1}, 0xffff, v{vd}'); a(f'v_or_b32 v{vd+2}, 0x8000, v{vd}')
    a(f'v_cndmask_b32 v{vd}, v{vd+2}, v{vd+1}, vcc')
    a(f'v_mov_b32_dpp v{vd+1}, v{vd} quad_perm:[1,0,3,2] row_mask:0xf bank_mask:0xf')
    a(f's_lshl_b32 s6, {S_P}, 4'); a(f's_add_u32 s6, s6, {WS_KEY}')
    a(f'v_lshlrev_b32 v{vd+2}, 12, v{vcg}'); a(f'v_lshl_add_u32 v{vd+2}, v{vtk}, 1, v{vd+2}'); a(f'v_add_u32 v{vd+2}, s6, v{vd+2}')
    a(f'v_lshl_or_b32 v{vd}, v{vd+1}, 16, v{vd}')
    a('s_mov_b32 exec_lo, 0x55555555'); a('s_mov_b32 exec_hi, 0x55555555')
    a(f'global_store_dword v{vd+2}, v{vd}, {P_WS} sc1')
    a('s_mov_b64 exec, -1')
    a.label('L_s3_nokey')
    stamp('key_stored')
    if cfg.hlate == 1:
        a(f'v_add_u32 v{vt0}, {WS_H}, v{vxo}')
        a(f'global_store_dwordx4 v{vt0}, {vr(vhp,4)}, {P_WS} sc1')
    if cfg.hlate == 2:
        vhk = al('hkeep', 4, 4); vha_ = al('hkaddr')
        for j in range(4): a(f'v_mov_b32 v{vhk+j}, v{vhp+j}')
        a(f'v_add_u32 v{vha_}, {WS_H}, v{vxo}')
    vout = al('outp', 4, 4)
    for j in range(4): a(f'v_mov_b32 v{vout+j}, v{vd+12+j}')
    a(f's_cmp_eq_u32 {S_W8}, 1'); a('s_cbranch_scc0 L_s3_nostat')
    a(f'v_lshrrev_b32 v{vd}, 16, v{vm2}'); a(f'v_and_or_b32 v{vd}, v{vs_}, {S_MASKHI}, v{vd}')
    a(f's_lshl_b32 s6, {S_P}, 5'); a(f's_add_u32 s6, s6, {WS_STAT}')
    a(f'v_lshl_add_u32 v{vd+1}, v{vtk}, 2, s6')
    a('s_mov_b64 exec, 0xff')
    a(f'global_store_dword v{vd+1}, v{vd}, {P_WS} sc1')
    a('s_mov_b64 exec, -1')
    a.label('L_s3_nostat')
    for n in ('y','yoff','wr','d','S','t','rs','s','m2','hf','hp','r','xf','ud','m1'): R.release(n)
    S_ROLE = 's43'
    a(f's_mov_b32 {S_ROLE}, 1')
    a('s_cmp_lt_u32 s2, 56'); a('s_cbranch_scc1 L_f_go')
    a(f's_mov_b32 {S_ROLE}, 2')
    a('s_sub_u32 s7, s2, 64'); a('s_cmp_lt_u32 s7, 32'); a('s_cbranch_scc1 L_f_go')
    a(f's_mov_b32 {S_ROLE}, 0')
    a('s_branch L_f_nokey')
    a.label('L_f_go')
    a.label('L_f_nokey')
    stamp('s3_done')
    def out_store_and_flag(tag):
        if cfg.hlate == 2: a(f'global_store_dwordx4 v{vha_}, {vr(vhk,4)}, {P_WS} sc1')
        a(f'global_store_dwordx4 v{vxo}, {vr(vout,4)}, {P_OUT} sc1')
    def publish_f3b(tag):
        a('s_waitcnt vmcnt(0)')
        a('s_barrier')
        l = lbl('f3b')
        a(f's_cmp_eq_u32 {S_W8}, 2'); a(f's_cbranch_scc0 {l}')
        a(f's_lshl_b32 s6, {S_P}, 4'); a(f's_add_u32 s6, s6, {WS_F3B}')
        a(f'v_lshl_add_u32 v{vt0}, v{vlane}, 12, s6'); a(f'v_mov_b32 v{vt1}, {S_TAG}')
        a('s_mov_b64 exec, 0xff')
        a(f'global_store_dword v{vt0}, v{vt1}, {P_WS} sc1')
        a('s_mov_b64 exec, -1')
        a.label(l)
    a(f's_cmp_eq_u32 {S_ROLE}, 0'); a('s_cbranch_scc0 L_f_roles')
    if cfg.hlate == 2:
        a('s_waitcnt vmcnt(0)'); a('s_barrier')
    if cfg.olate: a('s_waitcnt vmcnt(0)')
    out_store_and_flag('n'); publish_f3b('n')
    a('s_branch L_fin')
    a.label('L_f_roles')
    if cfg.stop == 4:
        out_store_and_flag('n'); publish_f3b('n'); a('s_branch L_fin'); return
    a(f's_cmp_ge_u32 {S_W8}, 4'); a('s_cbranch_scc1 L_t_roleB')
    vk = al('k', 8, 4); vko = al('koff'); vm = al('m', 2, 2); vkr = al('kraw', 4, 4); vkb = al('kbase')
    a('s_and_b32 s6, s2, 7'); a('s_lshl_b32 s6, s6, 12'); a(f's_add_u32 s6, s6, {WS_KEY}')
    a(f'v_lshl_add_u32 v{vko}, v0, 4, s6')
    a(f'v_lshlrev_b32 v{vkb}, 3, v0'); a(f'v_sub_u32 v{vkb}, 2047, v{vkb}')
    a(f's_cmp_eq_u32 {S_W8}, 0'); a('s_cbranch_scc0 L_t_nz')
    a(f'v_mov_b32 v{vt0}, 0'); a(f'v_lshlrev_b32 v{vt1}, 2, v{vlane}')
    a(f'ds_write_b32 v{vt1}, v{vt0} offset:{L_CL}')
    a(f'v_mov_b32 v{vt1}, {L_CNT}'); a(f'ds_write_b32 v{vt1}, v{vt0}')
    a.label('L_t_nz')
    if not cfg.nokwait: a('s_waitcnt vmcnt(0)')
    stamp('k_wait')
    poll_loop(lambda: a(f'global_load_dwordx4 {vr(vkr,4)}, v{vko}, {P_WS} sc1'), list(range(vkr, vkr+4)), vm, 'key')
    stamp('keys_got')
    if cfg.active('k_spin'):
        i = len(cfg.stamp_names); cfg.stamp_names.append('k_spin')
        a('s_waitcnt lgkmcnt(0)'); a(f's_mul_i32 s{70+2*i}, {S_SPIN}, 100'); a(f's_add_u32 s{70+2*i}, s{70+2*i}, s70')
    for j in range(4):
        a(f'v_subrev_u32 v{vt0}, {2*j}, v{vkb}'); a(f'v_subrev_u32 v{vt1}, {2*j+1}, v{vkb}')
        a(f'v_lshl_or_b32 v{vk+2*j}, v{vkr+j}, 16, v{vt0}')
        a(f'v_and_or_b32 v{vk+2*j+1}, v{vkr+j}, {S_MASKHI}, v{vt1}')
    a(f'v_max3_u32 v{vm}, v{vk}, v{vk+1}, v{vk+2}'); a(f'v_max3_u32 v{vm+1}, v{vk+3}, v{vk+4}, v{vk+5}')
    a(f'v_max3_u32 v{vm}, v{vm}, v{vk+6}, v{vk+7}'); a(f'v_max_u32 v{vm}, v{vm}, v{vm+1}')
    R.release('kraw'); R.release('kbase')
    out_store_and_flag('a')
    for ror in (1, 2, 4, 8): a(f'v_max_u32_dpp v{vm}, v{vm}, v{vm} row_ror:{ror} row_mask:0xf bank_mask:0xf')
    a(f's_lshl_b32 s6, {S_W8}, 4'); a(f's_add_u32 s6, s6, {L_WM}')
    a(f'v_lshrrev_b32 v{vt0}, 4, v{vlane}'); a(f'v_lshl_add_u32 v{vt0}, v{vt0}, 2, s6')
    a('s_mov_b32 exec_lo, 0x00010001'); a('s_mov_b32 exec_hi, 0x00010001')
    a(f'ds_write_b32 v{vt0}, v{vm}')
    a('s_mov_b64 exec, -1')
    stamp('t8_max')
    vw = al('w8m', 16, 4); vown = al('own'); vrk = al('rk')
    a(f'v_mov_b32 v{vt0}, {L_WM}'); a(f'v_mov_b32 v{vt2}, {L_CNT}')
    a(f'v_and_b32 v{vt1}, 15, v{vlane}'); a(f'v_lshlrev_b32 v{vt1}, 2, v{vt1}'); a(f'v_mov_b32 v{vrk}, 0')
    a('s_waitcnt lgkmcnt(0)')
    a('s_barrier')
    stamp('t8_bar1')
    a(f'ds_read_b32 v{vown}, v{vt1} offset:{L_WM}')
    for q in range(4): a(f'ds_read_b128 {vr(vw+4*q,4)}, v{vt0} offset:{16*q}')
    for q in range(4):
        a(f's_waitcnt lgkmcnt({3-q})' if not cfg.stamps else 's_waitcnt lgkmcnt(0)')
        for j in range(4): a(f'v_cmp_gt_u32 s[{44+2*j}:{45+2*j}], v{vw+4*q+j}, v{vown}')
        for j in range(4): a(f'v_addc_co_u32 v{vrk}, vcc, 0, v{vrk}, s[{44+2*j}:{45+2*j}]')
    a(f'v_cmp_eq_u32 vcc, {cfg.trank}, v{vrk}')
    a('s_ff1_i32_b64 s6, vcc')
    a(f'v_readlane_b32 s7, v{vown}, s6')
    a(f'v_mov_b32 v{vw}, s7')
    for j in range(8): a(f'v_cmp_ge_u32 s[{44+2*j}:{45+2*j}], v{vk+j}, v{vw}')
    a('s_bcnt1_i32_b64 s7, s[44:45]')
    for j in range(1, 8):
        a(f's_bcnt1_i32_b64 s6, s[{44+2*j}:{45+2*j}]'); a('s_add_u32 s7, s7, s6')
    a(f'v_mov_b32 v{vt1}, s7')
    a('s_mov_b64 exec, 1')
    a(f'ds_add_rtn_u32 v{vt3}, v{vt2}, v{vt1}')
    a('s_mov_b64 exec, -1')
    vpos = al('pos', 8)
    a('s_mov_b32 s7, 0')
    for j in range(8):
        a(f'v_mbcnt_lo_u32_b32 v{vpos+j}, s{44+2*j}, 0'); a(f'v_mbcnt_hi_u32_b32 v{vpos+j}, s{45+2*j}, v{vpos+j}')
        if j: a(f'v_add_u32 v{vpos+j}, s7, v{vpos+j}')
        if j < 7:
            a(f's_bcnt1_i32_b64 s6, s[{44+2*j}:{45+2*j}]'); a('s_add_u32 s7, s7, s6')
    a('s_waitcnt lgkmcnt(0)')
    a(f'v_readfirstlane_b32 s7, v{vt3}')
    stamp('t8_atom')
    for j in range(8):
        a(f'v_add_u32 v{vpos+j}, s7, v{vpos+j}')
        a(f'v_min_u32 v{vpos+j}, 64, v{vpos+j}')
        a(f'v_lshlrev_b32 v{vpos+j}, 2, v{vpos+j}')
    for j in range(8):
        a(f's_mov_b64 exec, s[{44+2*j}:{45+2*j}]')
        a(f'ds_write_b32 v{vpos+j}, v{vk+j} offset:{L_CL}')
    a('s_mov_b64 exec, -1')
    vc = al('cand'); vrank = al('rank'); vall = al('call', 64, 4)
    a(f'v_lshlrev_b32 v{vt2}, 2, v{vlane}'); a(f'v_mov_b32 v{vt0}, {L_CL}'); a(f'v_mov_b32 v{vrank}, 0'); a(f'v_mov_b32 v{vt3}, {L_CNT}')
    a('s_waitcnt lgkmcnt(0)')
    a('s_barrier')
    stamp('t8_bar2')
    a(f's_cmp_eq_u32 {S_W8}, 0'); a('s_cbranch_scc0 L_t_norank')
    a(f'v_and_b32 v{vt2}, 15, v{vlane}'); a(f'v_lshlrev_b32 v{vt2}, 2, v{vt2}')
    a(f'v_lshrrev_b32 v{vw}, 4, v{vlane}'); a(f'v_lshlrev_b32 v{vw}, 4, v{vw}')
    a(f'ds_read_b32 v{vt1}, v{vt3}')
    a(f'ds_read_b32 v{vc}, v{vt2} offset:{L_CL}')
    a(f'ds_read_b128 {vr(vall,4)}, v{vw} offset:{L_CL}')
    a('s_waitcnt lgkmcnt(0)')
    a(f'v_readfirstlane_b32 s44, v{vt1}')
    for j in range(4): a(f'v_cmp_gt_u32 s[{46+2*j}:{47+2*j}], v{vall+j}, v{vc}')
    for j in range(4): a(f'v_addc_co_u32 v{vrank}, vcc, 0, v{vrank}, s[{46+2*j}:{47+2*j}]')
    for sw in ('16', '32'):
        a(f'v_mov_b32 v{vt1}, v{vrank}'); a(f'v_permlane{sw}_swap_b32 v{vt1}, v{vrank}'); a(f'v_add_u32 v{vrank}, v{vrank}, v{vt1}')
    a('s_cmp_le_u32 s44, 16'); a('s_cbranch_scc0 L_t_n32')
    a('s_mov_b64 exec, 0xffff')
    a(f'v_lshlrev_b32 v{vt0}, 2, v{vrank}')
    a(f'v_cmp_gt_u32 vcc, 8, v{vrank}')
    a('s_and_b64 exec, exec, vcc')
    a(f'ds_write_b32 v{vt0}, v{vc} offset:{L_SEL}')
    a('s_mov_b64 exec, -1')
    a('s_branch L_t_norank')
    a.label('L_t_n32')
    a(f'v_mov_b32 v{vrank}, 0')
    a(f'v_and_b32 v{vt2}, 31, v{vlane}'); a(f'v_lshlrev_b32 v{vt2}, 2, v{vt2}')
    a(f'v_lshrrev_b32 v{vw}, 5, v{vlane}'); a(f'v_lshlrev_b32 v{vw}, 6, v{vw}')
    a(f'ds_read_b32 v{vt1}, v{vt3}')
    a(f'ds_read_b32 v{vc}, v{vt2} offset:{L_CL}')
    for q in range(4): a(f'ds_read_b128 {vr(vall+4*q,4)}, v{vw} offset:{L_CL + 16*q}')
    a('s_waitcnt lgkmcnt(0)')
    a(f'v_readfirstlane_b32 s44, v{vt1}')
    def rank_group(base):
        for j in range(4): a(f'v_cmp_gt_u32 s[{46+2*j}:{47+2*j}], v{base+j}, v{vc}')
        for j in range(4): a(f'v_addc_co_u32 v{vrank}, vcc, 0, v{vrank}, s[{46+2*j}:{47+2*j}]')
    for q in range(4): rank_group(vall + 4*q)
    a(f'v_mov_b32 v{vt1}, v{vrank}'); a(f'v_permlane32_swap_b32 v{vt1}, v{vrank}'); a(f'v_add_u32 v{vrank}, v{vrank}, v{vt1}')
    a('s_cmp_le_u32 s44, 32'); a('s_cbranch_scc0 L_t_slow')
    a('s_mov_b32 exec_hi, 0')
    a(f'v_lshlrev_b32 v{vt0}, 2, v{vrank}')
    a(f'v_cmp_gt_u32 vcc, 8, v{vrank}')
    a('s_and_b64 exec, exec, vcc')
    a(f'ds_write_b32 v{vt0}, v{vc} offset:{L_SEL}')
    a('s_mov_b64 exec, -1')
    a('s_branch L_t_norank')
    a.label('L_t_slow')
    a('s_cmp_gt_u32 s44, 64'); a('s_cbranch_scc1 L_f_fallback')
    a(f'v_lshlrev_b32 v{vt2}, 2, v{vlane}'); a(f'v_mov_b32 v{vrank}, 0')
    a(f'ds_read_b32 v{vc}, v{vt2} offset:{L_CL}')
    for q in range(16): a(f'ds_read_b128 {vr(vall+4*q,4)}, v{vt0} offset:{16*q}')
    for q in range(16):
        if q >= 8:
            a(f's_cmp_le_u32 s44, {4*q}'); a('s_cbranch_scc1 L_f_rankd')
        a(f's_waitcnt lgkmcnt({min(15, 15-q)})')
        rank_group(vall + 4*q)
    a.label('L_f_rankd')
    a('s_nop 0')
    stamp('t8_rank')
    a(f'v_lshlrev_b32 v{vt0}, 2, v{vrank}')
    a(f'v_cmp_gt_u32 vcc, 8, v{vrank}')
    a('s_and_saveexec_b64 s[38:39], vcc')
    a(f'ds_write_b32 v{vt0}, v{vc} offset:{L_SEL}')
    a('s_mov_b64 exec, -1')
    a('s_branch L_t_norank')
    a.label('L_f_fallback')
    a('s_waitcnt lgkmcnt(0)')
    a('s_and_b32 s6, s2, 7'); a('s_lshl_b32 s6, s6, 12'); a(f's_add_u32 s6, s6, {WS_KEY}')
    a(f'v_lshl_add_u32 v{vt0}, v{vlane}, 6, s6')
    for q in range(4): a(f'global_load_dwordx4 {vr(vall+32+4*q,4)}, v{vt0}, {P_WS} offset:{16*q} sc1')
    a(f'v_lshlrev_b32 v{vt2}, 5, v{vlane}'); a(f'v_sub_u32 v{vt2}, 2047, v{vt2}')
    a('s_waitcnt vmcnt(0)')
    for q in range(16):
        a(f'v_subrev_u32 v{vt0}, {2*q}, v{vt2}'); a(f'v_subrev_u32 v{vt1}, {2*q+1}, v{vt2}')
        a(f'v_lshl_or_b32 v{vall+2*q}, v{vall+32+q}, 16, v{vt0}')
        a(f'v_and_or_b32 v{vall+2*q+1}, v{vall+32+q}, {S_MASKHI}, v{vt1}')
    a('s_mov_b32 s44, 0')
    a.label('L_f_fb')
    a(f'v_max_u32 v{vm}, v{vall}, v{vall+1}')
    for q in range(2, 32, 2): a(f'v_max3_u32 v{vm}, v{vm}, v{vall+q}, v{vall+q+1}')
    xlane1(vm, vm+1, 'max_u32', full=True)
    for q in range(32):
        a(f'v_cmp_ne_u32 vcc, v{vall+q}, v{vm}'); a(f'v_cndmask_b32 v{vall+q}, 0, v{vall+q}, vcc')
    a('s_lshl_b32 s6, s44, 2'); a(f's_add_u32 s6, s6, {L_SEL}'); a(f'v_mov_b32 v{vt0}, s6')
    a('s_mov_b64 exec, 1'); a(f'ds_write_b32 v{vt0}, v{vm}'); a('s_mov_b64 exec, -1')
    a('s_add_u32 s44, s44, 1'); a('s_cmp_lt_u32 s44, 8'); a('s_cbranch_scc1 L_f_fb')
    a.label('L_t_norank')
    a('s_waitcnt lgkmcnt(0)')
    a('s_barrier')
    a('s_branch L_t_join')
    a.label('L_t_roleB')
    out_store_and_flag('b')
    if not cfg.dmac: gen_dma(a, R, cfg, env)
    a('s_barrier')
    a('s_barrier')
    a('s_barrier')
    a.label('L_t_join')
    for n in ('k','koff','m','w8m','own','rk','cand','rank','call','pos'): R.release(n)
    vsel = al('sel'); vidx = al('idx')
    a(f'v_lshlrev_b32 v{vt0}, 2, v{vtk}')
    a(f'ds_read_b32 v{vsel}, v{vt0} offset:{L_SEL}')
    vB = al('B', 32, 4); vba = al('ba')
    a(f'v_lshrrev_b32 v{vt0}, 4, v{vlane}'); a(f'v_lshlrev_b32 v{vt0}, 3, v{vt0}')
    a(f'v_bfe_u32 v{vt1}, v{vlane}, 2, 2'); a(f'v_add_u32 v{vt0}, v{vt0}, v{vt1}')
    a(f'v_and_b32 v{vt1}, 3, v{vlane}')
    a('s_waitcnt lgkmcnt(0)')
    a(f'v_and_b32 v{vidx}, 0xffff, v{vsel}'); a(f'v_sub_u32 v{vidx}, 2047, v{vidx}')
    stamp('top8')
    def bfrags(role):
        if role == 1:
            a(f'v_lshlrev_b32 v{vba}, 6, v{vbrow}'); a(f'v_lshl_add_u32 v{vba}, v{vbcol}, 3, v{vba}')
            a(f's_lshl_b32 s6, {S_W8}, 12'); a(f's_add_u32 s6, s6, {L_BIG}')
            a(f'v_add_u32 v{vba}, s6, v{vba}')
            for kk in range(2):
                for nt in range(4):
                    off = kk*2048 + (nt>>1)*32768 + (nt&1)*32
                    d = vB + 4*(kk*4+nt)
                    a(f'ds_read_b64_tr_b16 {vr(d,2)}, v{vba} offset:{off}')
                    a(f'ds_read_b64_tr_b16 {vr(d+2,2)}, v{vba} offset:{off + 4*64}')
        else:
            a(f'v_lshlrev_b32 v{vba}, 5, v{vbrow}'); a(f'v_lshl_add_u32 v{vba}, v{vbcol}, 3, v{vba}')
            a(f's_mul_i32 s6, {S_W8}, {7*32*32}'); a(f's_add_u32 s6, s6, {L_BIG}')
            a(f'v_add_u32 v{vba}, s6, v{vba}')
            for kk in range(7):
                d = vB + 4*kk
                a(f'ds_read_b64_tr_b16 {vr(d,2)}, v{vba} offset:{kk*1024}')
                a(f'ds_read_b64_tr_b16 {vr(d+2,2)}, v{vba} offset:{kk*1024 + 4*32}')
    vbrow = al('brow'); vbcol = al('bcol')
    a(f'v_mov_b32 v{vbrow}, v{vt0}'); a(f'v_mov_b32 v{vbcol}, v{vt1}')
    stamp('f3_ok')
    vst = al('stat'); vm2 = al('m2', 2, 2); vrs = al('rs', 2, 2)
    vsto = al('stato')
    a(f'v_lshlrev_b32 v{vsto}, 2, v{vidx}'); a(f'v_add_u32 v{vsto}, {WS_STAT}, v{vsto}')
    a(f's_cmp_eq_u32 {S_ROLE}, 1'); a('s_cbranch_scc0 L_f2')
    vh = al('h', 8, 4); vd = al('d', 8, 4); vhf = al('hf', 8, 2); vA = al('A', 8, 4); acc = al('acc', 16, 4)
    a(f'v_lshrrev_b32 v{vt0}, 4, v{vlane}'); a(f'v_lshlrev_b32 v{vt0}, 4, v{vt0}')
    a(f'v_lshl_add_u32 v{vt0}, v{vidx}, 10, v{vt0}')
    a(f's_lshl_b32 s6, {S_W8}, 7'); a(f's_add_u32 s6, s6, {WS_H}')
    vhoff = al('hoff')
    a(f'v_add_u32 v{vhoff}, s6, v{vt0}')
    def issue_h():
        a(f'global_load_dword v{vst}, v{vsto}, {P_WS} sc1')
        a(f'global_load_dwordx4 {vr(vh,4)}, v{vhoff}, {P_WS} sc1')
        a(f'global_load_dwordx4 {vr(vh+4,4)}, v{vhoff}, {P_WS} offset:64 sc1')
    issue_h()
    a('s_waitcnt vmcnt(3)')
    a('s_barrier')
    stamp('t4')
    bfrags(1)
    poll_loop(issue_h, [vst] + list(range(vh, vh+8)), vt1, 'h', first_issued=True, nl=3)
    R.release('hoff')
    stamp('h_got')
    a(f'v_lshlrev_b32 v{vm2}, 16, v{vst}'); a(f'v_and_b32 v{vt1}, {S_MASKHI}, v{vst}'); a(f'v_rcp_f32 v{vrs}, v{vt1}')
    vd2 = al('d2', 8, 2); vhf2 = al('hf2', 8, 2)
    prs = ((vhf, vd), (vhf2, vd2))
    for kk, (hf, dd) in enumerate(prs): unpack8(hf, vh+4*kk)
    for kk, (hf, dd) in enumerate(prs):
        for j in range(4): a(f'v_pk_add_f32 {vr(dd+2*j,2)}, {vr(hf+2*j,2)}, {vr(vm2,2)} op_sel_hi:[1,0] neg_lo:[0,1] neg_hi:[0,1]')
    for kk, (hf, dd) in enumerate(prs): cvt4(vA+4*kk, dd)
    for kk, (hf, dd) in enumerate(prs): unpack8(dd, vA+4*kk)
    for kk, (hf, dd) in enumerate(prs):
        for j in range(4): a(f'v_pk_mul_f32 {vr(dd+2*j,2)}, {vr(dd+2*j,2)}, {vr(vrs,2)} op_sel_hi:[1,0]')
    for kk, (hf, dd) in enumerate(prs): cvt4(vA+4*kk, dd)
    R.release('d2'); R.release('hf2')
    a(f's_lshl_b32 s6, {S_W8}, 11'); a(f's_add_u32 s6, s6, {L_PX}')
    a(f'v_lshl_add_u32 v{vt0}, v{vlane}, 4, s6')
    a('s_waitcnt lgkmcnt(0)')
    stamp('f1_norm')
    for kk in range(2):
        for nt in range(4):
            a(f'v_mfma_f32_16x16x32_bf16 {vr(acc+4*nt,4)}, {vr(vA+4*kk,4)}, {vr(vB+4*(kk*4+nt),4)}, {"0" if kk == 0 else vr(acc+4*nt,4)}')
    stamp('f1_mfma')
    a('s_mov_b32 exec_hi, 0')
    for nt in range(4): a(f'ds_write_b128 v{vt0}, {vr(acc+4*nt,4)} offset:{nt*512}')
    a('s_mov_b32 exec_hi, -1')
    gp = al('gp', 16, 4)
    a(f's_lshr_b32 s6, {S_W8}, 1'); a('s_lshl_b32 s6, s6, 9'); a(f's_and_b32 s7, {S_W8}, 1'); a('s_lshl_b32 s7, s7, 8')
    a('s_add_u32 s6, s6, s7'); a(f's_add_u32 s6, s6, {L_PX}')
    a(f'v_lshl_add_u32 v{vt2}, v{vlane}, 2, s6')
    a('s_waitcnt lgkmcnt(0)')
    a('s_barrier')
    stamp('f1_bar')
    a(f's_cmp_eq_u32 {S_W8}, 5'); a('s_cbranch_scc0 L_f1_nof3b')
    a(f's_lshl_b32 s6, {S_P}, 4'); a(f's_add_u32 s6, s6, {WS_F3B}')
    a(f'v_lshl_add_u32 v{vt0}, v{vlane}, 12, s6'); a(f'v_mov_b32 v{vt1}, {S_TAG}')
    a('s_mov_b64 exec, 0xff')
    a(f'global_store_dword v{vt0}, v{vt1}, {P_WS} sc1')
    a('s_mov_b64 exec, -1')
    a.label('L_f1_nof3b')
    a(f's_cmp_ge_u32 {S_W8}, 4'); a('s_cbranch_scc1 L_fin')
    for w in range(0, 8, 2): a(f'ds_read2st64_b32 {vr(gp+w,2)}, v{vt2} offset0:{w*8} offset1:{(w+1)*8}')
    for w in range(0, 8, 2): a(f'ds_read2st64_b32 {vr(gp+8+w,2)}, v{vt2} offset0:{w*8+4} offset1:{(w+1)*8+4}')
    vsa1 = al('hsa')
    a(f'v_and_b32 v{vsa1}, 3, v{vlane}'); a(f'v_lshlrev_b32 v{vsa1}, 5, v{vsa1}')
    a(f'v_lshrrev_b32 v{vt0}, 2, v{vlane}'); a(f'v_lshl_add_u32 v{vsa1}, v{vt0}, 1, v{vsa1}')
    a(f's_lshl_b32 s6, {S_W8}, 7'); a(f's_lshl_b32 s7, {g["S_FC"]}, 9'); a('s_add_u32 s6, s6, s7'); a(f's_add_u32 s6, s6, {WS_HID}')
    a(f'v_add_u32 v{vsa1}, s6, v{vsa1}')
    a('s_waitcnt lgkmcnt(4)' if not cfg.stamps else 's_waitcnt lgkmcnt(0)')
    for (x, y) in ((0,1),(2,3),(4,5),(6,7),(0,2),(4,6),(0,4)): a(f'v_add_f32 v{gp+x}, v{gp+x}, v{gp+y}')
    a('s_waitcnt lgkmcnt(0)')
    for (x, y) in ((0,1),(2,3),(4,5),(6,7),(0,2),(4,6),(0,4)): a(f'v_add_f32 v{gp+8+x}, v{gp+8+x}, v{gp+8+y}')
    stamp('f1_red')
    a(f'v_cvt_pk_bf16_f32 v{gp+1}, v{gp}, v{gp+8}')
    a(f'v_lshlrev_b32 v{gp}, 16, v{gp+1}')
    a(f'v_and_b32 v{gp+8}, {S_MASKHI}, v{gp+1}')
    a(f'v_mul_f32 v{gp+2}, {hx(f2u(-1.4426950408889634))}, v{gp}')
    a(f'v_exp_f32 v{gp+2}, v{gp+2}')
    a(f'v_add_f32 v{gp+2}, 1.0, v{gp+2}')
    a(f'v_rcp_f32 v{gp+2}, v{gp+2}')
    a(f'v_mul_f32 v{gp}, v{gp}, v{gp+2}')
    a(f'v_cvt_pk_bf16_f32 v{gp}, v{gp}, v{gp}')
    a(f'v_lshlrev_b32 v{gp}, 16, v{gp}')
    a(f'v_mul_f32 v{gp}, v{gp}, v{gp+8}')
    a(f'v_mov_b32_dpp v{gp+1}, v{gp} row_shl:4 row_mask:0xf bank_mask:0xf')
    a(f'v_cvt_pk_bf16_f32 v{gp}, v{gp}, v{gp+1}')
    stamp('f1_silu')
    a('s_mov_b32 exec_lo, 0x0f0f0f0f'); a('s_mov_b32 exec_hi, 0x0f0f0f0f')
    for rep in range(RH):
        a(f'global_store_dword v{vsa1}, v{gp}, {P_WS} sc1')
        if rep < RH - 1: a(f'v_add_u32 v{vsa1}, {HID_SZ}, v{vsa1}')
    a('s_mov_b64 exec, -1')
    stamp('hid_stored')
    R.release('hsa')
    a('s_branch L_fin')
    for n in ('h','d','hf','A','acc','gp'): R.release(n)
    a.label('L_f2')
    vA = al('A2', 28, 4); vho = al('ho'); acc = al('acc2', 4, 4); vhv = al('hv'); vst2 = al('st2'); vsel2 = al('sel2'); vix2 = al('ix2')
    a(f'v_lshrrev_b32 v{vt0}, 4, v0'); a(f'v_and_b32 v{vt0}, 7, v{vt0}'); a(f'v_lshlrev_b32 v{vt0}, 2, v{vt0}')
    a(f'ds_read_b32 v{vsel2}, v{vt0} offset:{L_SEL}')
    a('s_waitcnt lgkmcnt(0)')
    a(f'v_and_b32 v{vix2}, 0xffff, v{vsel2}'); a(f'v_sub_u32 v{vix2}, 2047, v{vix2}')
    a(f's_lshl_b32 s7, {g["S_FC"]}, 5')
    a(f'v_and_b32 v{vt0}, 15, v{vlane}'); a(f'v_lshlrev_b32 v{vt0}, 1, v{vt0}')
    a(f'v_lshl_add_u32 v{vho}, v{vix2}, 10, v{vt0}'); a(f'v_add_u32 v{vho}, s7, v{vho}')
    vha = al('ha'); vsa = al('sa')
    a(f'v_and_b32 v{vha}, 0xfffffffc, v{vho}'); a(f'v_add_u32 v{vha}, {WS_H}, v{vha}')
    a(f'v_lshlrev_b32 v{vsa}, 2, v{vix2}'); a(f'v_add_u32 v{vsa}, {WS_STAT}, v{vsa}')
    def issue_h2():
        a(f'global_load_dword v{vhv}, v{vha}, {P_WS} sc1')
        a(f'global_load_dword v{vst2}, v{vsa}, {P_WS} sc1')
    poll_loop(issue_h2, [vhv, vst2], vt0, 'h2')
    a(f'v_and_b32 v{vt0}, 1, v{vlane}'); a(f'v_cmp_eq_u32 vcc, 1, v{vt0}')
    a(f'v_lshrrev_b32 v{vt0}, 16, v{vhv}'); a(f'v_and_b32 v{vhv}, 0xffff, v{vhv}')
    a(f'v_cndmask_b32 v{vhv}, v{vhv}, v{vt0}, vcc')
    R.release('ha'); R.release('sa')
    publish_f3b('f2')
    bfrags(2)
    vf3b = al('f3b'); vf3bo = al('f3bo')
    a('s_and_b32 s6, s2, 7'); a('s_lshl_b32 s6, s6, 12'); a(f's_add_u32 s6, s6, {WS_F3B}')
    a(f'v_lshrrev_b32 v{vf3bo}, 3, v{vidx}'); a(f'v_lshl_add_u32 v{vf3bo}, v{vf3bo}, 4, s6')
    vrsig = al('rsig'); vxn = al('xn')
    a(f'v_lshrrev_b32 v{vt0}, 16, v{vsel2}')
    a(f'v_cmp_lt_u32 vcc, 0x7fff, v{vt0}')
    a(f'v_and_b32 v{vt2}, 0x7fff, v{vt0}'); a(f'v_xor_b32 v{vt3}, 0xffff, v{vt0}')
    a(f'v_cndmask_b32 v{vt0}, v{vt3}, v{vt2}, vcc'); a(f'v_lshlrev_b32 v{vt0}, 16, v{vt0}')
    a(f'v_mul_f32 v{vt0}, {hx(f2u(-1.4426950408889634))}, v{vt0}')
    a(f'v_exp_f32 v{vt0}, v{vt0}'); a(f'v_add_f32 v{vt0}, 1.0, v{vt0}'); a(f'v_rcp_f32 v{vt0}, v{vt0}')
    a(f'v_cvt_pk_bf16_f32 v{vt0}, v{vt0}, v{vt0}'); a(f'v_lshlrev_b32 v{vrsig}, 16, v{vt0}')
    a(f'v_lshlrev_b32 v{vhv}, 16, v{vhv}')
    a(f'v_lshlrev_b32 v{vt2}, 16, v{vst2}'); a(f'v_and_b32 v{vt3}, {S_MASKHI}, v{vst2}'); a(f'v_rcp_f32 v{vt3}, v{vt3}')
    a(f'v_sub_f32 v{vt2}, v{vhv}, v{vt2}'); a(f'v_cvt_pk_bf16_f32 v{vt2}, v{vt2}, v{vt2}'); a(f'v_lshlrev_b32 v{vt2}, 16, v{vt2}')
    a(f'v_mul_f32 v{vt2}, v{vt2}, v{vt3}'); a(f'v_cvt_pk_bf16_f32 v{vt2}, v{vt2}, v{vt2}'); a(f'v_lshlrev_b32 v{vxn}, 16, v{vt2}')
    vhi = al('hio'); vpw = al('pw'); vpr = al('pr')
    a('s_and_b32 s6, s2, 3'); a(f's_mul_i32 s6, s6, {HID_SZ}'); a(f's_mul_i32 s7, {S_W8}, {7*512}'); a('s_add_u32 s6, s6, s7'); a(f's_add_u32 s6, s6, {WS_HID}')
    a(f'v_lshrrev_b32 v{vt0}, 5, v{vlane}'); a(f'v_lshlrev_b32 v{vt0}, 8, v{vt0}')
    a(f'v_lshrrev_b32 v{vt1}, 2, v{vtk}'); a(f'v_lshl_add_u32 v{vt0}, v{vt1}, 7, v{vt0}')
    a(f'v_and_b32 v{vt1}, 3, v{vtk}'); a(f'v_lshl_add_u32 v{vt0}, v{vt1}, 5, v{vt0}')
    a(f'v_bfe_u32 v{vt1}, v{vlane}, 4, 1'); a(f'v_lshl_add_u32 v{vt0}, v{vt1}, 4, v{vt0}')
    a(f'v_add_u32 v{vhi}, s6, v{vt0}')
    a(f's_lshl_b32 s6, {S_W8}, 9'); a(f's_add_u32 s6, s6, {L_PX}')
    a(f'v_lshl_add_u32 v{vpw}, v{vlane}, 4, s6')
    a(f'v_lshrrev_b32 v{vt0}, 4, v0')
    a(f'v_lshrrev_b32 v{vt1}, 2, v{vt0}'); a(f'v_lshlrev_b32 v{vt1}, 8, v{vt1}')
    a(f'v_and_b32 v{vt0}, 3, v{vt0}'); a(f'v_lshl_add_u32 v{vt1}, v{vt0}, 2, v{vt1}')
    a(f'v_and_b32 v{vt0}, 15, v{vlane}'); a(f'v_lshl_add_u32 v{vt1}, v{vt0}, 4, v{vt1}')
    a(f'v_add_u32 v{vpr}, {L_PX}, v{vt1}')
    a(f's_cmp_ge_u32 {S_W8}, 2'); a('s_cbranch_scc1 L_f2_nof3b')
    poll_loop(lambda: a(f'global_load_dword v{vf3b}, v{vf3bo}, {P_WS} sc1'), [vf3b], vt0, 'f3b', cmp_tag=True)
    a.label('L_f2_nof3b')
    def issue_hid():
        for kk in range(7): a(f'global_load_dwordx4 {vr(vA+4*kk,4)}, v{vhi}, {P_WS} offset:{kk*512} sc1')
    if cfg.probe: poll_loop(lambda: a(f'global_load_dwordx4 {vr(vA+24,4)}, v{vhi}, {P_WS} offset:{6*512} sc1'), list(range(vA+24, vA+28)), vt0, 'hidp')
    poll_loop(issue_hid, list(range(vA, vA+28)), vt0, 'hid', nl=7)
    stamp('hid_got')
    acc2 = al('acc2b', 4, 4)
    for kk in range(7):
        d = acc if kk % 2 == 0 else acc2
        a(f'v_mfma_f32_16x16x32_bf16 {vr(d,4)}, {vr(vA+4*kk,4)}, {vr(vB+4*kk,4)}, {"0" if kk < 2 else vr(d,4)}')
    a(f'v_pk_add_f32 {vr(acc,2)}, {vr(acc,2)}, {vr(acc2,2)}'); a(f'v_pk_add_f32 {vr(acc+2,2)}, {vr(acc+2,2)}, {vr(acc2+2,2)}')
    a('s_mov_b32 exec_hi, 0')
    a(f'ds_write_b128 v{vpw}, {vr(acc,4)}')
    a('s_mov_b32 exec_hi, -1')
    a('s_waitcnt lgkmcnt(0)')
    a('s_barrier')
    a(f's_cmp_ge_u32 {S_W8}, 2'); a('s_cbranch_scc1 L_fin')
    fp = al('fp', 8, 4)
    for w in range(0, 8, 2): a(f'ds_read2st64_b32 {vr(fp+w,2)}, v{vpr} offset0:{w*2} offset1:{(w+1)*2}')
    a('s_waitcnt lgkmcnt(0)')
    for (x, y) in ((0,1),(2,3),(4,5),(6,7),(0,2),(4,6),(0,4)): a(f'v_add_f32 v{fp+x}, v{fp+x}, v{fp+y}')
    def rb(r): a(f'v_cvt_pk_bf16_f32 v{r}, v{r}, v{r}'); a(f'v_lshlrev_b32 v{r}, 16, v{r}')
    rb(fp)
    a(f'v_mul_f32 v{fp}, v{fp}, v{vrsig}'); rb(fp)
    a(f'v_add_f32 v{fp}, v{fp}, v{vxn}'); rb(fp)
    a(f'v_add_f32 v{fp}, v{fp}, v{vhv}')
    a(f'v_cvt_pk_bf16_f32 v{fp}, v{fp}, v{fp}')
    a(f'global_store_short v{vho}, v{fp}, {P_OUT}' + ('' if cfg.finplain else ' sc1'))
    stamp('final')

def finish(a, R, cfg):
    a.label('L_fin')
    if cfg.stamps and cfg.rt == 1:
        n = len(cfg.stamp_names)
        a('s_memrealtime s[68:69]')
        a('s_waitcnt lgkmcnt(0)')
        a('v_mov_b32 v2, 0')
        a('s_mov_b64 exec, 1')
        a('s_not_b32 s70, s70')
        for i in range(n):
            a(f'v_mov_b32 v3, s{70+2*i}')
            a(f'global_atomic_umax v2, v3, s[34:35] offset:{4*i}')
        a('v_mov_b32 v3, s68')
        a(f'global_atomic_umax v2, v3, s[34:35] offset:60')
        a('s_mov_b64 exec, -1')
    elif cfg.stamps:
        n = len(cfg.stamp_names)
        a(f'{cfg.tinstr} s[{70+2*n}:{71+2*n}]') if 71+2*n <= 101 else None
        if 71+2*n <= 101: n += 1; cfg.stamp_names.append('END')
        a('s_waitcnt lgkmcnt(0)')
        a('s_lshl_b32 s6, s2, 3'); a('s_add_u32 s6, s6, s4'); a('s_lshl_b32 s6, s6, 8'); a(f's_add_u32 s6, s6, {WS_DBG + 0x100000}')
        a('v_mov_b32 v2, s6')
        a('s_mov_b64 exec, 1')
        for i in range(n):
            a(f'v_mov_b32 v3, s{70+2*i}')
            a(f'global_store_dword v2, v3, s[36:37] offset:{4*i}')
        a('s_mov_b64 exec, -1')
    a('s_cmp_eq_u32 s2, 0'); a('s_cbranch_scc0 L_end')
    a('s_cmp_eq_u32 s4, 0'); a('s_cbranch_scc0 L_end')
    a(f'v_mov_b32 v2, {WS_EPOCH}'); a('v_mov_b32 v3, s5')
    a('s_mov_b64 exec, 1')
    a('global_store_dword v2, v3, s[36:37]')
    a.label('L_end')
    a('s_endpgm')
    body = a.text()
    nv = 256
    hdr = open('cdna_kernels/' + NAME + '.s.ref').read().split('; Override launch geometry')[0]
    s = hdr
    s += f'; @launch grid=(256,1,1) block=(512,1,1) lds={LDS_TOTAL}\n'
    s += '.amdgcn_target "amdgcn-amd-amdhsa--gfx950"\n.text\n'
    s += f'.globl {NAME}_kernel\n.p2align 8\n.type {NAME}_kernel,@function\n{NAME}_kernel:\n'
    s += body
    s += f'''.section .rodata,"a"
.p2align 6
.amdhsa_kernel {NAME}_kernel
  .amdhsa_next_free_vgpr {nv}
  .amdhsa_next_free_sgpr 102
  .amdhsa_accum_offset {nv}
  .amdhsa_group_segment_fixed_size 0
  .amdhsa_kernarg_size 120
  .amdhsa_user_sgpr_count 2
  .amdhsa_user_sgpr_kernarg_segment_ptr 1
  .amdhsa_system_sgpr_workgroup_id_x 1
.end_amdhsa_kernel
'''
    cfg.maxv = R.maxused
    return s

if __name__ == '__main__':
    cfg = Cfg()
    out = sys.argv[1]
    for arg in sys.argv[2:]:
        k, v = arg.split('=')
        setattr(cfg, k, int(v) if v.lstrip('-').isdigit() else v)
    open(out, 'w').write(gen(cfg))
    import os
    if cfg.stamps: open(out + '.stamps', 'w').write('\n'.join(cfg.stamp_names))
    elif os.path.exists(out + '.stamps'): os.remove(out + '.stamps')
    print('max vgpr', cfg.maxv, 'LDS', LDS_TOTAL)
```
